```python
import torch

def _softmax(x, axis=-1):
    return torch.softmax(x, dim=axis)

def _gelu(x):
    return torch.nn.functional.gelu(x, approximate='tanh')

def _silu(x):
    return torch.nn.functional.silu(x)

def _sigmoid(x):
    return torch.sigmoid(x)

def _layernorm(x, axis=-1, eps=1e-05):
    m = x.mean(dim=axis, keepdim=True)
    v = x.var(dim=axis, keepdim=True, unbiased=False)
    return (x - m) / torch.sqrt(v + eps)

def _scatter_add(tgt, idx, src, axis=0):
    return tgt.clone().index_add_(axis, idx, src)

def _segment_sum(src, seg, n):
    out = torch.zeros((n,) + src.shape[1:], dtype=src.dtype)
    return out.index_add_(0, seg, src)

def _pad(x, pw):
    flat = tuple((v for pair in reversed(pw) for v in pair))
    return torch.nn.functional.pad(x, flat)
kernel_name = 'parallel_sum__ssm_conv_s4d__mixer_gmlp__prompt'

def setup_inputs():

    _w = lambda a: (lambda t: t.to(torch.bfloat16) if t.is_floating_point() else t)(torch.as_tensor(a))

    def _A_setup():
        Bsz, L, D, N = (1, 2048, 640, 128)
        return {'u': _w((lambda *s: torch.randn(*s, dtype=torch.bfloat16) * 0.05)(Bsz, L, D)), 'log_A_real': _w((lambda *s: torch.randn(*s, dtype=torch.bfloat16) * 3.2)(D, N) * 0.5), 'A_imag': _w((lambda *s: torch.randn(*s, dtype=torch.bfloat16) * 0.1)(D, N) * 3.14), 'C_real': _w((lambda *s: torch.randn(*s, dtype=torch.bfloat16) * 3.2)(D, N) / N ** 0.5), 'C_imag': _w((lambda *s: torch.randn(*s, dtype=torch.bfloat16) * 3.2)(D, N) / N ** 0.5), 'log_dt': _w((lambda *s: torch.randn(*s, dtype=torch.bfloat16) * 0.1)(D) * 0.5 - 4.0), 'D_skip': _w((lambda *s: torch.randn(*s, dtype=torch.bfloat16) * 0.4)(D))}
    _A_in = _A_setup()

    def _B_setup():
        B, S, D, F = (1, 2048, 640, 1728)
        Fh = F // 2
        return {'x': _w((lambda *s: torch.randn(*s, dtype=torch.bfloat16) * 0.05)(B, S, D)), 'w_in': _w((lambda *s: torch.randn(*s, dtype=torch.bfloat16) * 0.2)(D, 2 * Fh)), 'w_sp': _w(0.01 * (lambda *s: torch.randn(*s, dtype=torch.bfloat16) * 0.2)(S, S)), 'b_sp': _w(1.0 + 0.01 * (lambda *s: torch.randn(*s, dtype=torch.bfloat16) * 0.05)(S)), 'w_out': _w((lambda *s: torch.randn(*s, dtype=torch.bfloat16) * 0.05)(Fh, D))}
    _B_in = _B_setup()
    return {'A_u': _A_in['u'], 'A_log_A_real': _A_in['log_A_real'], 'A_A_imag': _A_in['A_imag'], 'A_C_real': _A_in['C_real'], 'A_C_imag': _A_in['C_imag'], 'A_log_dt': _A_in['log_dt'], 'A_D_skip': _A_in['D_skip'], 'B_x': _B_in['x'], 'B_w_in': _B_in['w_in'], 'B_w_sp': _B_in['w_sp'], 'B_b_sp': _B_in['b_sp'], 'B_w_out': _B_in['w_out']}

def reference(A_u, A_log_A_real, A_A_imag, A_C_real, A_C_imag, A_log_dt, A_D_skip, B_x, B_w_in, B_w_sp, B_b_sp, B_w_out):

    def _A_ref(u, log_A_real, A_imag, C_real, C_imag, log_dt, D_skip):
        L = u.shape[1]
        dt = torch.exp(log_dt)
        A = -torch.exp(log_A_real) + 1j * A_imag
        C = (C_real + 1j * C_imag) * dt[:, None]
        pos = (lambda x, dt: x.to(dt))(torch.arange(L), log_dt.dtype)
        P = torch.exp((A * dt[:, None])[:, :, None] * pos[None, None, :])
        K = 2.0 * torch.einsum('dn,dnl->dl', C, P).real
        L2 = 2 * L
        u_t = (lambda x, *d: x.permute(*d))(u, 0, 2, 1)
        Kf = (lambda x, *a, **k: torch.fft.rfft(x.float(), *a, **k))(K, L2)
        Uf = (lambda x, *a, **k: torch.fft.rfft(x.float(), *a, **k))(u_t, L2)
        y = (lambda x, *a, **k: torch.fft.irfft(x, *a, **k).to(torch.bfloat16))(Uf * Kf[None, :, :], L2)[:, :, :L]
        y = (lambda x, *d: x.permute(*d))(y, 0, 2, 1)
        return y + u * D_skip[None, None, :]

    def _B_ref(x, w_in, w_sp, b_sp, w_out):
        B, S, D = x.shape
        F = w_in.shape[-1]
        Fh = F // 2
        z = _gelu(torch.einsum('bsd,df->bsf', x, w_in))
        z1 = z[..., :Fh].clone()
        z2 = _layernorm(z[..., Fh:], axis=-1)
        g = torch.einsum('ts,bsf->btf', w_sp, z2) + b_sp[None, :, None]
        return torch.einsum('bsf,fd->bsd', z1 * g, w_out)
    x = A_u
    xn = _layernorm(x, axis=-1)
    return x + _A_ref(xn, A_log_A_real, A_A_imag, A_C_real, A_C_imag, A_log_dt, A_D_skip) + _B_ref(xn, B_w_in, B_w_sp, B_b_sp, B_w_out)
```

```python
import re

TRANS = ("v_exp_f32", "v_log_f32", "v_rcp_f32", "v_rsq_f32", "v_sqrt_f32", "v_sin_f32", "v_cos_f32", "v_rcp_iflag_f32")
REG_RE = re.compile(r"(?<![\w.])(-?)(?:abs\()?([vsa])(?:(\d+)|\[(\d+):(\d+)\])")

def regs_of(tok):
    out = set()
    t = tok.strip()
    if t in ("vcc",):
        return {("s", 106), ("s", 107)}
    if t == "vcc_lo": return {("s", 106)}
    if t == "vcc_hi": return {("s", 107)}
    if t == "exec": return {("s", 126), ("s", 127)}
    if t == "m0": return {("s", 124)}
    m = REG_RE.match(t)
    if m:
        k = m.group(2)
        if m.group(3) is not None:
            out.add((k, int(m.group(3))))
        else:
            for i in range(int(m.group(4)), int(m.group(5)) + 1):
                out.add((k, i))
    return out

def split_ops(s):
    ops, depth, cur = [], 0, ""
    for ch in s:
        if ch in "[(": depth += 1
        if ch in "])": depth -= 1
        if ch == "," and depth == 0:
            ops.append(cur.strip()); cur = ""
        else:
            cur += ch
    if cur.strip(): ops.append(cur.strip())
    return ops

class Ins:
    __slots__ = ("text", "mn", "kind", "wr", "rd", "srcc", "ab", "dpp", "passes", "nops", "label", "target", "stdata", "sel")
    def __init__(self, text):
        self.text = text
        t = text.split(";")[0].strip()
        self.label = None; self.target = None
        self.wr = set(); self.rd = set(); self.srcc = set(); self.ab = set(); self.dpp = False; self.passes = 0; self.nops = 1
        self.stdata = set(); self.sel = False
        if t.endswith(":"):
            self.kind = "label"; self.label = t[:-1]; self.mn = ""; self.nops = 0; return
        if not t or t.startswith("."):
            self.kind = "none"; self.mn = ""; self.nops = 0; return
        parts = t.split(None, 1)
        mn = parts[0]; self.mn = mn
        rest = parts[1] if len(parts) > 1 else ""
        ops = split_ops(rest)
        clean = []
        mods = ""
        for o in ops:
            p = o.split()
            clean.append(p[0] if p else "")
            if len(p) > 1: mods += " " + " ".join(p[1:])
        ops = clean
        R = [regs_of(o) for o in ops]
        allr = lambda lst: set().union(*lst) if lst else set()
        if mn == "s_nop":
            self.kind = "salu"; self.nops = int(ops[0], 0) + 1; return
        if mn.startswith("s_cbranch") or mn == "s_branch":
            self.kind = "branch"; self.target = ops[0]; return
        if mn.startswith("v_mfma"):
            self.kind = "mfma"; self.wr = R[0]; self.ab = R[1] | R[2]; self.srcc = R[3]; self.rd = self.ab | self.srcc
            self.passes = 8 if "32x32" in mn else 4
            return
        if mn.startswith("v_"):
            self.kind = "valu"
            base = mn.replace("_e32", "").replace("_e64", "").replace("_dpp", "").replace("_sdwa", "")
            if base in TRANS: self.kind = "trans"
            if "_dpp" in mn or "row_" in mods or "quad_perm" in mods: self.dpp = True
            if "_sdwa" in mn or "op_sel" in mods and not mn.startswith("v_pk"): self.sel = True
            if base.startswith("v_permlane"):
                self.kind = "permlane"; self.wr = R[0] | R[1]; self.rd = R[0] | R[1]; return
            if base in ("v_readfirstlane_b32", "v_readlane_b32"):
                self.kind = "readlane"; self.wr = R[0]; self.rd = allr(R[1:]); return
            if base.startswith("v_cmp"):
                self.wr = R[0]; self.rd = allr(R[1:])
                if base.startswith("v_cmpx"): self.wr |= {("s",126),("s",127)}
                return
            if base in ("v_add_co_u32", "v_sub_co_u32", "v_addc_co_u32", "v_subb_co_u32", "v_mad_u64_u32"):
                self.wr = R[0] | R[1]; self.rd = allr(R[2:]); return
            self.wr = R[0]; self.rd = allr(R[1:])
            if base in ("v_fmac_f32", "v_dot2c_f32_bf16", "v_pk_fmac_f16") or self.dpp or "UNUSED_PRESERVE" in mods or base == "v_writelane_b32":
                self.rd |= R[0]
            if base.startswith("v_dot2"): self.kind = "dot"
            if base == "v_cndmask_b32" and len(ops) == 3: self.rd |= {("s",106),("s",107)}
            return
        if mn.startswith("ds_"):
            self.kind = "ds"
            if mn.startswith("ds_read") or mn.startswith("ds_bpermute") or mn.startswith("ds_permute") or mn.startswith("ds_swizzle") or "_rtn" in mn:
                self.wr = R[0]; self.rd = allr(R[1:])
                if "d16" in mn: self.rd |= R[0]
            else:
                self.rd = allr(R)
            return
        if mn.startswith("buffer_") or mn.startswith("global_"):
            self.kind = "vmem"
            if " lds" in (" " + mods) or mods.strip().endswith("lds"):
                self.rd = allr(R) | {("s", 124)}; self.kind = "vmem"; self.sel = True
                return
            if "load" in mn:
                self.wr = R[0]; self.rd = allr(R[1:])
            else:
                self.rd = allr(R)
                if "x3" in mn or "x4" in mn:
                    self.stdata = R[0] if mn.startswith("buffer_") else R[1]
            return
        if mn.startswith("s_"):
            self.kind = "salu"
            if mn.startswith("s_cmp") or mn in ("s_waitcnt", "s_barrier", "s_sleep", "s_setprio", "s_endpgm", "s_bitcmp0_b32", "s_bitcmp1_b32"):
                self.rd = allr(R)
            elif mn.startswith("s_load") or mn.startswith("s_memtime") or mn.startswith("s_memrealtime") or mn.startswith("s_getreg"):
                self.kind = "smem"; self.wr = R[0]; self.rd = allr(R[1:])
            else:
                self.wr = R[0]; self.rd = allr(R[1:])
                if "saveexec" in mn: self.wr |= {("s",126),("s",127)}
            return
        raise ValueError("unknown instr: " + text)

VAL = ("valu", "trans", "dot", "permlane", "readlane")
def isv(rs): return {r for r in rs if r[0] in "va"}
def iss(rs): return {r for r in rs if r[0] == "s"}

def required(p, c):
    n = 0
    pv, ps = isv(p.wr), iss(p.wr)
    if p.kind in VAL:
        if c.kind == "mfma" and pv & c.rd: n = max(n, 2)
        if c.dpp and pv & c.rd: n = max(n, 2)
        if c.kind == "permlane" and pv & c.rd: n = max(n, 2)
        if c.kind == "readlane" and pv & c.rd: n = max(n, 1)
        if p.kind == "trans" and c.kind in VAL + ("mfma",) and pv & (c.rd | c.wr): n = max(n, 1)
        if p.sel and c.kind in VAL and pv & (c.rd | c.wr): n = max(n, 1)
        if p.kind == "dot" and pv & (c.rd | c.wr) and not (c.kind == "dot" and c.mn == p.mn and not (pv & (c.rd - c.wr))): n = max(n, 3)
        if ps:
            if c.kind == "vmem" and ps & c.rd: n = max(n, 5)
            if c.kind == "readlane" and ps & c.rd: n = max(n, 4)
            if c.kind in VAL and ps & c.rd: n = max(n, 2)
            if c.kind in ("salu", "smem") and ps & c.rd: n = max(n, 1)
            if {("s",126)} & ps:
                if c.dpp: n = max(n, 5)
                if c.kind in ("mfma", "permlane", "readlane"): n = max(n, 4)
    if p.kind == "mfma":
        d = {4: (0, 6, 8, 8), 8: (0, 10, 12, 12)}[p.passes]
        if c.kind == "mfma":
            if pv & c.srcc:
                n = max(n, d[0] if (c.srcc == p.wr and c.passes == p.passes) else d[1])
            if pv & c.ab: n = max(n, d[2])
            if pv & c.wr and not (pv & c.srcc): n = max(n, d[1])
        elif c.kind in VAL + ("vmem", "ds"):
            if pv & (c.rd | c.wr): n = max(n, d[3])
        if c.kind in VAL and p.srcc & c.wr: n = max(n, {4: 3, 8: 7}[p.passes])
    if p.kind == "salu" and ("s", 124) in p.wr and c.kind == "vmem" and ("s", 124) in c.rd: n = max(n, 1)
    if p.kind == "vmem" and p.stdata and (p.stdata & c.wr): n = max(n, 2 if c.kind in VAL else 1)
    return n

WIN = 14
class Asm:
    def __init__(self):
        self.L = []
        self.uid = 0
    def e(self, s):
        for line in s.strip("\n").split("\n"):
            if line.strip(): self.L.append(Ins(line.strip()))
    def lab(self, name): self.L.append(Ins(name + ":"))
    def newlab(self, p="L"):
        self.uid += 1
        return f"{p}_{self.uid}"
    def _need(self, hist, c):
        need = 0; dist = 0
        for p in reversed(hist):
            if dist >= WIN: break
            r = required(p, c)
            if r > dist: need = max(need, r - dist)
            dist += p.nops
        return need
    def _sim(self, hist, seq):
        extra = 0; off = 0
        for c in seq:
            if c.kind in ("label", "none"): continue
            if off >= WIN: break
            dist = off
            for p in reversed(hist):
                if dist >= WIN: break
                r = required(p, c)
                if r > dist: extra = max(extra, r - dist)
                dist += p.nops
            off += c.nops
            if c.kind == "branch" and c.mn == "s_branch": break
        return extra
    def finalize(self):
        out = []; hist = []
        for c in self.L:
            if c.kind in ("label", "none"):
                out.append(c); continue
            n = self._need(hist, c)
            while n > 0:
                k = min(n, 16)
                nop = Ins(f"s_nop {k-1}"); out.append(nop); hist.append(nop); n -= k
            out.append(c); hist.append(c)
            if c.mn in ("s_branch", "s_endpgm"): hist = []
            hist = hist[-WIN-2:]
        labels = {c.label: i for i, c in enumerate(out) if c.kind == "label"}
        out2 = []; hist = []
        for i, c in enumerate(out):
            if c.kind == "branch":
                tgt = labels[c.target]
                n = self._sim(hist + [c], out[tgt:tgt + 40])
                while n > 0:
                    k = min(n, 16)
                    nop = Ins(f"s_nop {k-1}"); out2.append(nop); hist.append(nop); n -= k
            out2.append(c)
            if c.kind not in ("label", "none"):
                hist.append(c)
                if c.mn in ("s_branch", "s_endpgm"): hist = []
                hist = hist[-WIN-2:]
        return "\n".join((c.text if c.kind == "label" else "    " + c.text) for c in out2) + "\n"
```

```python
import math
from gen import *

SLOT = 17600; KCP = 4576; UOFF = 9152; UCP = 4224
TB = 8*SLOT; TSZ = 1568; ZI = 768
SRD_LAR, SRD_AIM, SRD_CR, SRD_CI, SRD_LDT, SRD_DSK = 8, 12, 16, 20, 24, 32
sCH, sSLOT, sTBL, sRND, sD0 = 66, 67, 68, 69, 70
LOG2E = 1.4426950408889634

def ssm_path(g):
    e = g.e; a = g.a
    vL = 1
    g.mk_srd(SRD_LAR, 38, 640*128*2); g.mk_srd(SRD_AIM, 40, 640*128*2)
    g.mk_srd(SRD_CR, 42, 640*128*2); g.mk_srd(SRD_CI, 44, 640*128*2)
    g.mk_srd(SRD_LDT, 46, 640*2); g.mk_srd(SRD_DSK, 48, 640*2)
    e(f"""v_and_b32 v{vL}, 63, v0
    s_sub_u32 s{sB}, s{sB}, 24
    s_lshl_b32 s{sB}, s{sB}, 3
    s_add_u32 s{sRB}, s{sB}, s{sA}
    s_mul_i32 s{sD0}, s{sRB}, 10
    s_mul_i32 s{sSLOT}, s{sWAVE}, {SLOT}
    s_mov_b32 s{sRND}, 0""")
    vG, vJ = 2, 3
    vSW, vSR = 4, 5
    vT0, vT1a, vT1b, vT2 = 6, 7, 8, 9
    vZ = 10
    T = 12
    e(f"""v_lshrrev_b32 v{vG}, 4, v{vL}
    v_and_b32 v{vJ}, 15, v{vL}
    v_lshlrev_b32 v{vSW}, 3, v{vL}
    v_add_u32 v{vSW}, s{sSLOT}, v{vSW}
    v_mul_u32_u24 v{vSR}, 528, v{vJ}
    v_lshl_add_u32 v{vSR}, v{vG}, 4, v{vSR}
    v_add_u32 v{vSR}, s{sSLOT}, v{vSR}
    v_mov_b32 v{vZ}, 0
    v_lshrrev_b32 v{T}, 1, v{vG}
    v_lshlrev_b32 v{T}, 7, v{T}
    v_lshl_add_u32 v{T}, v{vJ}, 3, v{T}
    v_and_b32 v{T+1}, 1, v{vG}
    v_lshl_add_u32 v{T}, v{T+1}, 2, v{T}
    v_lshlrev_b32 v{vT0}, 1, v{T}
    v_lshlrev_b32 v{T}, 6, v{vG}
    v_lshl_add_u32 v{T+1}, v{vJ}, 2, v{T}
    v_add_u32 v{T+1}, 256, v{T+1}
    v_lshl_add_u32 v{T+2}, v{vJ}, 1, v{T}
    v_add_u32 v{T+2}, 256, v{T+2}
    v_cmp_gt_u32 vcc, 2, v{vG}
    v_cndmask_b32 v{vT1a}, v{T+2}, v{T+1}, vcc
    v_mov_b32 v{T+3}, 32
    v_cndmask_b32 v{T+3}, v{T+3}, 2, vcc
    v_add_u32 v{vT1b}, v{vT1a}, v{T+3}
    v_lshlrev_b32 v{vT1a}, 1, v{vT1a}
    v_lshlrev_b32 v{vT1b}, 1, v{vT1b}
    v_add_u32 v{T}, v{T}, v{vJ}
    v_add_u32 v{T}, 512, v{T}
    v_lshlrev_b32 v{vT2}, 1, v{T}""")
    g.stamp(0)
    AR, PH, CRp, CIp = 24, 26, 28, 30
    W = 32
    def C(i): return W + 4*i
    def re(c): return f"v[{c}:{c+1}]"
    def im(c): return f"v[{c+2}:{c+3}]"
    tp = T
    def cexp(c, p):
        lit = hx(f2u(float(p)))
        e(f"""v_mul_f32 v{tp}, {lit}, v{AR}
        v_mul_f32 v{tp+1}, {lit}, v{AR+1}
        v_mul_f32 v{tp+2}, {lit}, v{PH}
        v_mul_f32 v{tp+3}, {lit}, v{PH+1}
        v_exp_f32 v{tp}, v{tp}
        v_exp_f32 v{tp+1}, v{tp+1}
        v_fract_f32 v{tp+2}, v{tp+2}
        v_fract_f32 v{tp+3}, v{tp+3}
        v_cos_f32 v{c}, v{tp+2}
        v_cos_f32 v{c+1}, v{tp+3}
        v_sin_f32 v{c+2}, v{tp+2}
        v_sin_f32 v{c+3}, v{tp+3}
        v_pk_mul_f32 {re(c)}, {re(c)}, v[{tp}:{tp+1}]
        v_pk_mul_f32 {im(c)}, {im(c)}, v[{tp}:{tp+1}]""")
    def cmul(z, x, y):
        e(f"""v_pk_mul_f32 v[{tp}:{tp+1}], {im(x)}, {im(y)}
        v_pk_mul_f32 v[{tp+2}:{tp+3}], {im(x)}, {re(y)}
        v_pk_fma_f32 {im(z) if z not in (x, y) else f'v[{tp+2}:{tp+3}]'}, {re(x)}, {im(y)}, v[{tp+2}:{tp+3}]
        v_pk_fma_f32 {re(z)}, {re(x)}, {re(y)}, v[{tp}:{tp+1}] neg_lo:[0,0,1] neg_hi:[0,0,1]""")
        if z in (x, y): e(f"v_mov_b64 {im(z)}, v[{tp+2}:{tp+3}]")
    pk_i = [0]
    def put(c, row, neg):
        d = T + 4 + 2*(pk_i[0] % 4); pk_i[0] += 1
        n = "-" if neg else ""
        e(f"""v_cvt_pk_f16_f32 v{d}, v{c}, {n}v{c+2}
        v_cvt_pk_f16_f32 v{d+1}, v{c+1}, {n}v{c+3}
        ds_write_b64 v{vSW}, v[{d}:{d+1}] offset:{528*row}""")
    E2F = 100
    E1F = 132
    DD = 164
    vSC = 168
    e(f"s_add_u32 s{sCH}, s{sD0}, s{sWAVE}\ns_mul_i32 s{sTBL}, s{sWAVE}, {TSZ}\ns_add_u32 s{sTBL}, s{sTBL}, {TB}")
    a.lab("L_kgen")
    e(f"""v_lshlrev_b32 v{T}, 2, v{vL}
    s_lshl_b32 s{sA}, s{sCH}, 8
    s_lshl_b32 s{sB}, s{sCH}, 1
    buffer_load_dword v{T+4}, v{T}, {srd(SRD_LAR)}, s{sA} offen
    buffer_load_dword v{T+5}, v{T}, {srd(SRD_AIM)}, s{sA} offen
    buffer_load_dword v{T+6}, v{T}, {srd(SRD_CR)}, s{sA} offen
    buffer_load_dword v{T+7}, v{T}, {srd(SRD_CI)}, s{sA} offen
    buffer_load_ushort v{T+8}, v{vZ}, {srd(SRD_LDT)}, s{sB} offen
    s_mov_b32 s{sB}, 0xffff0000
    s_waitcnt vmcnt(0) lgkmcnt(0)
    v_lshlrev_b32 v{T+8}, 16, v{T+8}
    v_mul_f32 v{T+8}, {hx(f2u(LOG2E))}, v{T+8}
    v_exp_f32 v{T+8}, v{T+8}
    v_lshlrev_b32 v{AR}, 16, v{T+4}
    v_and_b32 v{AR+1}, s{sB}, v{T+4}
    v_cvt_pk_bf16_f32 v{T+8}, v{T+8}, v{T+8}
    v_mul_f32 v{AR}, {hx(f2u(LOG2E))}, v{AR}
    v_mul_f32 v{AR+1}, {hx(f2u(LOG2E))}, v{AR+1}
    v_lshlrev_b32 v{T+8}, 16, v{T+8}
    v_exp_f32 v{AR}, v{AR}
    v_exp_f32 v{AR+1}, v{AR+1}
    v_lshlrev_b32 v{PH}, 16, v{T+5}
    v_and_b32 v{PH+1}, s{sB}, v{T+5}
    v_cvt_pk_bf16_f32 v{T+4}, v{AR}, v{AR+1}
    v_lshlrev_b32 v{AR}, 16, v{T+4}
    v_and_b32 v{AR+1}, s{sB}, v{T+4}
    v_mul_f32 v{AR}, v{AR}, v{T+8}
    v_mul_f32 v{AR+1}, v{AR+1}, v{T+8}
    v_mul_f32 v{AR}, {hx(f2u(-LOG2E))}, v{AR}
    v_mul_f32 v{AR+1}, {hx(f2u(-LOG2E))}, v{AR+1}
    v_mul_f32 v{PH}, v{PH}, v{T+8}
    v_mul_f32 v{PH+1}, v{PH+1}, v{T+8}
    v_mul_f32 v{PH}, {hx(f2u(1/(2*math.pi)))}, v{PH}
    v_mul_f32 v{PH+1}, {hx(f2u(1/(2*math.pi)))}, v{PH+1}
    v_lshlrev_b32 v{CRp}, 16, v{T+6}
    v_and_b32 v{CRp+1}, s{sB}, v{T+6}
    v_lshlrev_b32 v{CIp}, 16, v{T+7}
    v_and_b32 v{CIp+1}, s{sB}, v{T+7}
    v_max3_f32 v{T}, abs(v{CRp}), abs(v{CRp+1}), abs(v{CIp})
    v_max_f32 v{T}, abs(v{CIp+1}), v{T}""")
    for m in ("row_ror:8", "row_ror:4", "row_ror:2", "row_ror:1"):
        e(f"v_max_f32_dpp v{T}, v{T}, v{T} {m} row_mask:0xf bank_mask:0xf")
    e(f"""v_readlane_b32 s{sA}, v{T}, 0
    v_readlane_b32 s{sC}, v{T}, 16
    v_readlane_b32 s{sD}, v{T}, 32
    v_readlane_b32 s{sT}, v{T}, 48
    s_max_u32 s{sA}, s{sA}, s{sC}
    s_max_u32 s{sD}, s{sD}, s{sT}
    s_max_u32 s{sA}, s{sA}, s{sD}
    v_frexp_exp_i32_f32 v{T}, s{sA}
    v_sub_u32 v{T+1}, 0, v{T}
    v_ldexp_f32 v{C(0)}, v{CRp}, v{T+1}
    v_ldexp_f32 v{C(0)+1}, v{CRp+1}, v{T+1}
    v_ldexp_f32 v{C(0)+2}, v{CIp}, v{T+1}
    v_ldexp_f32 v{C(0)+3}, v{CIp+1}, v{T+1}
    v_add_f32 v{vSC}, v{T+8}, v{T+8}
    v_ldexp_f32 v{vSC}, v{vSC}, v{T}""")
    cexp(C(1), 8)
    e(f"v_mov_b32 v{C(2)}, 1.0\nv_mov_b32 v{C(2)+1}, 1.0\nv_mov_b32 v{C(2)+2}, 0\nv_mov_b32 v{C(2)+3}, 0")
    put(C(2), 0, True)
    put(C(1), 1, True)
    cur, oth = C(1), C(2)
    pp = [C(2), C(11)]
    cur = C(1)
    for j in range(2, 16):
        z = pp[j & 1]
        cmul(z, cur, C(1)); put(z, j, True); cur = z
    for ks in range(8):
        e(f"ds_read_b128 v[{E2F+4*ks}:{E2F+4*ks+3}], v{vSR} offset:{64*ks}")
    cexp(C(3), 128)
    R = lambda r: C(3 + r)
    cexp(R(1), 1)
    for r in range(2, 8): cmul(R(r), R(r-1), R(1))
    tq = [C(0), C(1)]
    qcur = [0]
    def Tq(): return tq[qcur[0] & 1]
    def Tnext():
        cmul(tq[(qcur[0]+1) & 1], Tq(), C(3)); qcur[0] += 1
    def row(rho, r):
        if r == 0: put(Tq(), rho, False)
        else:
            z = pp[rho & 1]
            cmul(z, Tq(), R(r)); put(z, rho, False)
    def tile_mma():
        for ks in range(8):
            e(f"ds_read_b128 v[{E1F+4*ks}:{E1F+4*ks+3}], v{vSR} offset:{64*ks}")
        for ks in range(8):
            e(f"s_waitcnt lgkmcnt({7-ks})")
            e(f"v_mfma_f32_16x16x32_f16 v[{DD}:{DD+3}], v[{E1F+4*ks}:{E1F+4*ks+3}], v[{E2F+4*ks}:{E2F+4*ks+3}], {'0' if ks == 0 else f'v[{DD}:{DD+3}]'}")
        for r in range(4): e(f"v_mul_f32 v{DD+r}, v{DD+r}, v{vSC}")
        e(f"v_cvt_pk_bf16_f32 v{DD}, v{DD}, v{DD+1}\nv_cvt_pk_bf16_f32 v{DD+1}, v{DD+2}, v{DD+3}")
    def taddr(v, d): e(f"v_add_u32 v{d}, s{sTBL}, v{v}")
    for q in range(2):
        for r in range(8): row(8*q + r, r)
        Tnext()
    tile_mma()
    taddr(vT0, DD+2)
    e(f"ds_write_b64 v{DD+2}, v[{DD}:{DD+1}]")
    for q in range(2):
        for r in range(4): row(4*q + r, 2*r)
        Tnext()
    for q in range(4):
        for r in range(2): row(8 + 2*q + r, 4*r)
        Tnext()
    tile_mma()
    taddr(vT1a, DD+2); taddr(vT1b, DD+3)
    e(f"ds_write_b32 v{DD+2}, v{DD}\nds_write_b32 v{DD+3}, v{DD+1}")
    for q in range(9):
        row(q, 0)
        if q < 8: Tnext()
    tile_mma()
    taddr(vT2, DD+2)
    e(f"""ds_write_b16 v{DD+2}, v{DD}
    ds_write_b16_d16_hi v{DD+2}, v{DD} offset:32
    ds_write_b16 v{DD+2}, v{DD+1} offset:64
    ds_write_b16_d16_hi v{DD+2}, v{DD+1} offset:96
    v_mov_b32 v{DD+3}, s{sTBL}
    ds_write_b32 v{DD+3}, v{vZ} offset:{2*ZI}""")
    e(f"""s_cmp_lg_u32 s{sRND}, 0
    s_cbranch_scc1 L_kgen_done
    s_cmp_ge_u32 s{sWAVE}, 2
    s_cbranch_scc1 L_kgen_done
    s_mov_b32 s{sRND}, 1
    s_add_u32 s{sCH}, s{sCH}, 8
    s_add_u32 s{sTBL}, s{sTBL}, {8*TSZ}
    s_branch L_kgen""")
    a.lab("L_kgen_done")
    g.stamp(1)
    GA = 24
    for m in range(4):
        for ee in range(9):
            d = GA + 9*m + ee
            e(f"""v_lshlrev_b32 v{T}, 3, v{vL}
            v_sub_u32 v{T}, {2047 - 512*m - ee}, v{T}
            v_cvt_f32_i32 v{T+1}, v{T}
            v_cvt_pk_bf16_f32 v{T+1}, v{T+1}, v{T+1}
            v_and_b32 v{T+1}, 0xffff, v{T+1}
            v_subrev_u32 v{T+1}, {0x4300 - 128}, v{T+1}""")
            if m == 3:
                e(f"""v_cmp_gt_i32 vcc, 128, v{T}
                v_cndmask_b32 v{T+1}, v{T+1}, v{T}, vcc""")
                if ee == 8:
                    e(f"""v_cmp_gt_i32 vcc, 0, v{T}
                    v_mov_b32 v{T+2}, {ZI}
                    v_cndmask_b32 v{T+1}, v{T+1}, v{T+2}, vcc""")
            e(f"v_lshlrev_b32 v{d}, 1, v{T+1}")
    vKA, vUB, vKW, vZW, vL16, vEU, vES, vYO, vFL = 60, 61, 62, 63, 64, 65, 66, 67, 68
    vKAc, vUBc = 69, 70
    e(f"""v_and_b32 v{T}, 1, v{vJ}
    v_mul_u32_u24 v{vKA}, {KCP}, v{T}
    v_lshrrev_b32 v{T+1}, 1, v{vJ}
    v_lshlrev_b32 v{T+1}, 6, v{T+1}
    v_lshl_add_u32 v{T+1}, v{vG}, 4, v{T+1}
    v_sub_u32 v{vKA}, v{vKA}, v{T+1}
    v_add_u32 v{vKA}, {4528 - 3584}, v{vKA}
    v_add_u32 v{vKA}, s{sSLOT}, v{vKA}
    v_mul_u32_u24 v{vUB}, {UCP}, v{T}
    v_or_b32 v{T+1}, 1, v{vJ}
    v_lshl_add_u32 v{vUB}, v{T+1}, 2, v{vUB}
    v_lshlrev_b32 v{T+1}, 4, v{vG}
    v_sub_u32 v{vUB}, v{vUB}, v{T+1}
    v_add_u32 v{vUB}, {UOFF + 52 + 448}, v{vUB}
    v_add_u32 v{vUB}, s{sSLOT}, v{vUB}
    v_lshlrev_b32 v{vL16}, 4, v{vL}
    v_add_u32 v{vKW}, s{sSLOT}, v{vL16}
    v_and_b32 v{T}, 31, v{vL}
    v_min_u32 v{T}, 29, v{T}
    v_lshlrev_b32 v{T}, 4, v{T}
    v_lshrrev_b32 v{T+1}, 5, v{vL}
    v_mul_u32_u24 v{T+1}, {KCP}, v{T+1}
    v_add3_u32 v{vZW}, v{T}, v{T+1}, s{sSLOT}
    v_lshlrev_b32 v{vES}, 7, v{vG}
    v_lshl_add_u32 v{vES}, v{vJ}, 2, v{vES}
    v_add_u32 v{vES}, s{sSLOT}, v{vES}
    v_add_u32 v{vEU}, {UOFF + UCP + 64}, v{vES}
    v_lshrrev_b32 v{T}, 3, v{vL}
    s_mov_b32 s{sA}, {640*128}
    v_mul_lo_u32 v{vYO}, v{T}, s{sA}
    v_and_b32 v{T}, 7, v{vL}
    v_lshl_add_u32 v{vYO}, v{T}, 4, v{vYO}
    v_and_b32 v{vFL}, 31, v{vL}
    v_lshlrev_b32 v{vFL}, 7, v{vFL}""")
    ZQ = 72
    for i in range(4): e(f"v_mov_b32 v{ZQ+i}, 0")
    e(f"""v_and_b32 v{T}, 3, v{vL}
    v_lshlrev_b32 v{T}, 4, v{T}
    v_bfe_u32 v{T+1}, v{vL}, 2, 1
    v_mul_u32_u24 v{T+1}, {UCP}, v{T+1}
    v_add3_u32 v{T}, v{T}, v{T+1}, s{sSLOT}
    ds_write_b128 v{T}, v[{ZQ}:{ZQ+3}] offset:{UOFF}
    s_waitcnt lgkmcnt(0)
    s_mul_i32 s{sTAG}, s{sTAG}, 0x9E3779B1
    s_add_u32 s{sTAG}, s{sTAG}, 0x7F4A7C15
    s_mov_b32 s{sRND}, 0
    s_add_u32 s{sCH}, s{sD0}, s{sWAVE}
    s_mul_i32 s{sTBL}, s{sWAVE}, {TSZ}
    s_add_u32 s{sTBL}, s{sTBL}, {TB}""")
    for i in range(36): e(f"v_add_u32 v{GA+i}, s{sTBL}, v{GA+i}")
    g.stamp(2)
    AF = 76
    BF = 108
    AC = 140
    GV = 76
    OQ = 112
    a.lab("L_conv")
    for m in range(4):
        for ee in range(9):
            e(f"ds_read_u16 v{GV+9*m+ee}, v{GA+9*m+ee}")
        if m % 2 == 1 or True:
            e("s_waitcnt lgkmcnt(0)")
            q = OQ + 8*(m & 1)
            b = GV + 9*m
            for i in range(4):
                e(f"v_lshl_or_b32 v{q+i}, v{b+2*i+2}, 16, v{b+2*i+1}")
                e(f"v_lshl_or_b32 v{q+4+i}, v{b+2*i+1}, 16, v{b+2*i}")
            e(f"ds_write_b128 v{vKW}, v[{q}:{q+3}] offset:{1024*m}\nds_write_b128 v{vKW}, v[{q+4}:{q+7}] offset:{KCP + 1024*m}")
    e(f"ds_write_b128 v{vZW}, v[{ZQ}:{ZQ+3}] offset:4096")
    e(f"""s_lshr_b32 s{sA}, s{sCH}, 4
    s_mov_b32 s{sD}, {WS_FXN}""")
    for th in (7, 14, 20, 26, 32):
        e(f"s_cmp_ge_u32 s{sA}, {th}\ns_cselect_b32 s{sT}, 4096, 0\ns_add_u32 s{sD}, s{sD}, s{sT}")
    g.poll(vFL, f"s{sD}", T)
    g.stamp(3)
    e(f"""s_lshl_b32 s{sA}, s{sCH}, 12
    s_add_u32 s{sA}, s{sA}, {WS_XNT}
    s_sub_u32 s{sC}, s{sA}, 4
    s_add_u32 m0, s{sSLOT}, {UOFF + UCP + 64}
    s_lshl_b32 s{sB}, s{sCH}, 1""")
    for i in range(4): e(f"buffer_load_dwordx4 v{vL16}, {srd(SRD_WS)}, s{sA} offen offset:{1024*i} sc1 lds")
    e(f"s_add_u32 m0, s{sSLOT}, {UOFF + 64}\ns_nop 0")
    for i in range(4): e(f"buffer_load_dwordx4 v{vL16}, {srd(SRD_WS)}, s{sC} offen offset:{1024*i} sc1 lds")
    vDS = 172
    e(f"""buffer_load_ushort v{vDS}, v{vZ}, {srd(SRD_DSK)}, s{sB} offen
    v_mov_b32 v{vKAc}, v{vKA}
    v_mov_b32 v{vUBc}, v{vUB}
    v_mov_b32 v{T}, s{sSLOT}""")
    for i in range(32): e(f"v_mov_b32 v{AC+i}, 0")
    e(f"""s_mov_b32 s{sCNT}, 8
    s_waitcnt vmcnt(0)
    ds_write_b32 v{T}, v{vZ} offset:{UOFF + 64}""")
    g.stamp(4)
    a.lab("L_mu0")
    def rd(m):
        return [f"ds_read_b128 v[{AF+4*m}:{AF+4*m+3}], v{vKAc} offset:{512*(7-m)}",
                f"ds_read_b64 v[{BF+4*m}:{BF+4*m+1}], v{vUBc} offset:{512*m}",
                f"ds_read_b64 v[{BF+4*m+2}:{BF+4*m+3}], v{vUBc} offset:{512*m+8}"]
    for m in range(5):
        for s in rd(m): e(s)
    issued = 5
    for m in range(8):
        e(f"s_waitcnt lgkmcnt({3*(issued-1-m)})")
        pairs = [(m, b) for b in range(m+1) if m + b <= 7] + [(u, m) for u in range(m) if u + m <= 7]
        for k, (u, b) in enumerate(pairs):
            c = AC + 4*(u + b)
            e(f"v_mfma_f32_16x16x32_bf16 v[{c}:{c+3}], v[{AF+4*u}:{AF+4*u+3}], v[{BF+4*b}:{BF+4*b+3}], v[{c}:{c+3}]")
        if issued < 8:
            for s in rd(issued): e(s)
            issued += 1
    e(f"""v_subrev_u32 v{vKAc}, 64, v{vKAc}
    v_subrev_u32 v{vUBc}, 64, v{vUBc}
    s_sub_u32 s{sCNT}, s{sCNT}, 1
    s_cmp_lg_u32 s{sCNT}, 0
    s_cbranch_scc1 L_mu0""")
    g.stamp(5)
    UV = AF
    for c in range(8):
        e(f"ds_read2_b32 v[{UV+2*c}:{UV+2*c+1}], v{vEU} offset0:{128*c % 256} offset1:{(128*c + 16) % 256}" if c < 2 else "")
    for c in range(2, 8):
        e(f"ds_read_b32 v{UV+2*c}, v{vEU} offset:{512*c}\nds_read_b32 v{UV+2*c+1}, v{vEU} offset:{512*c+64}")
    e(f"""v_lshlrev_b32 v{vDS}, 16, v{vDS}
    v_mov_b32 v{vDS+1}, v{vDS}
    s_mov_b32 s{sB}, 0xffff0000
    s_waitcnt lgkmcnt(0)""")
    for c in range(8):
        for h in range(2):
            y = AC + 4*c + 2*h; u = UV + 2*c + h
            p0, p1 = T, T+2
            e(f"""v_cvt_pk_bf16_f32 v{p1}, v{y}, v{y+1}
            v_lshlrev_b32 v{p0}, 16, v{u}
            v_and_b32 v{p0+1}, s{sB}, v{u}
            v_pk_mul_f32 v[{p0}:{p0+1}], v[{p0}:{p0+1}], v[{vDS}:{vDS+1}]
            v_lshlrev_b32 v{y}, 16, v{p1}
            v_and_b32 v{y+1}, s{sB}, v{p1}
            v_cvt_pk_bf16_f32 v{p1}, v{p0}, v{p0+1}
            v_lshlrev_b32 v{p0}, 16, v{p1}
            v_and_b32 v{p0+1}, s{sB}, v{p1}
            v_pk_add_f32 v[{y}:{y+1}], v[{y}:{y+1}], v[{p0}:{p0+1}]
            v_cvt_pk_bf16_f32 v{y}, v{y}, v{y+1}
            ds_write_b32 v{vES}, v{y} offset:{512*c + 64*h}""")
    for i in range(4):
        e(f"ds_read_b128 v[{BF+4*i}:{BF+4*i+3}], v{vKW} offset:{1024*i}")
    e(f"""s_lshl_b32 s{sA}, s{sCH}, 7
    s_add_u32 s{sA}, s{sA}, {WS_YA}""")
    for i in range(4):
        e(f"""s_waitcnt lgkmcnt({3-i})
        buffer_store_dwordx4 v[{BF+4*i}:{BF+4*i+3}], v{vYO}, {srd(SRD_WS)}, s{sA} offen sc1
        s_add_u32 s{sA}, s{sA}, {8*640*128}""")
    g.stamp(6)
    e(f"""s_cmp_lg_u32 s{sRND}, 0
    s_cbranch_scc1 L_conv_done
    s_cmp_ge_u32 s{sWAVE}, 2
    s_cbranch_scc1 L_conv_done
    s_mov_b32 s{sRND}, 1
    s_add_u32 s{sCH}, s{sCH}, 8""")
    for i in range(36): e(f"v_add_u32 v{GA+i}, {8*TSZ}, v{GA+i}")
    e("s_branch L_conv")
    a.lab("L_conv_done")
    e(f"""s_waitcnt vmcnt(0)
    s_barrier
    s_cmp_lg_u32 s{sWAVE}, 0
    s_cbranch_scc1 L_end
    s_lshl_b32 s{sA}, s{sRB}, 7
    s_add_u32 s{sA}, s{sA}, {WS_FY}""")
    g.flag_store(sA, T)
    g.stamp(7)
    e("s_branch L_end")
```

```python
import sys, math, struct
from asmlib import Asm

KNAME = "parallel_sum__ssm_conv_s4d__mixer_gmlp__prompt_kernel"
def f2u(x): return struct.unpack("<I", struct.pack("<f", x))[0]
def hx(x): return f"0x{x:08x}"

WS_EPOCH = 0
WS_FXN   = 0x10000
WS_FZ2   = 0x20000
WS_FH    = 0x40000
WS_FY    = 0x60000
WS_STATS = 0x80000
WS_XNT   = 0x100000
WS_Z2    = 0x400000
WS_H     = 0x800000
WS_YA    = 0xC00000
WS_DBG   = 0x1000000
WS_SIZE  = 0x2000000

XT = 0; RING1 = 81920; S1SZ = 19456
S2SZ = 26624; NS2 = 6
HB = 0; YAB = 110592; WST = 126976

sWAVE, sRB, sCB, sTAG, sT = 3, 4, 5, 6, 7
SRD_X, SRD_WIN, SRD_WSP, SRD_WOUT, SRD_OUT, SRD_WS, SRD_BSP = 8, 12, 16, 20, 24, 28, 32
def srd(n): return f"s[{n}:{n+3}]"
sW, sMH, sNH = 66, 67, 68
sWSLOT, sWSOFF, sWSL = 69, 70, 71
sXOFF, sROFF, sCNT = 72, 73, 74
sK1 = 76
sA, sB, sC, sD = 78, 79, 80, 81
sSPIN = 82
sMASK = 84
sE0 = 86
sTM = 88
sTM0 = 90
sT2 = 92
SPIN_MAX = 200000

class G:
    def __init__(self, opts):
        self.a = Asm(); self.o = opts; self.nstamp = 0
    def e(self, s): self.a.e(s)

    def mk_srd(self, d, p, nbytes):
        self.e(f"""s_mov_b32 s{d}, s{p}
        s_mov_b32 s{d+1}, s{p+1}
        s_mov_b32 s{d+2}, {nbytes}
        s_mov_b32 s{d+3}, 0x20000""")

    def stamp(self, idx, vt=None):
        if not self.o.get("stamps"): return
        self.e(f"""s_memtime s[{sTM}:{sTM+1}]
        s_waitcnt lgkmcnt(0)
        s_sub_u32 s{sTM}, s{sTM}, s{sTM0}
        v_writelane_b32 v0, s{sTM}, {idx}""")

    def poll(self, voff, soff, vtmp):
        L = self.a.newlab("Lpoll"); D = self.a.newlab("Lpolld")
        self.e(f"s_mov_b32 s{sSPIN}, {SPIN_MAX}")
        self.a.lab(L)
        self.e(f"""buffer_load_dword v{vtmp}, v{voff}, {srd(SRD_WS)}, {soff} offen sc1
        s_waitcnt vmcnt(0)
        v_cmp_ne_u32 vcc, s{sTAG}, v{vtmp}
        s_cbranch_vccz {D}
        s_sleep 1
        s_sub_u32 s{sSPIN}, s{sSPIN}, 1
        s_cmp_lg_u32 s{sSPIN}, 0
        s_cbranch_scc1 {L}""")
        self.a.lab(D)

    def flag_store(self, soff_sreg, vt):
        self.e(f"""v_mov_b32 v{vt}, s{sTAG}
        v_mov_b32 v{vt+1}, 0
        s_mov_b64 s[{sE0}:{sE0+1}], exec
        s_mov_b64 exec, 1
        buffer_store_dword v{vt}, v{vt+1}, {srd(SRD_WS)}, s{soff_sreg} offen sc1
        s_mov_b64 exec, s[{sE0}:{sE0+1}]""")

    def entry(self):
        e = self.e
        e(f"""s_cmp_ge_u32 s2, 256
        s_cbranch_scc1 L_exit
        s_load_dwordx16 s[36:51], s[0:1], 0
        s_load_dwordx8 s[52:59], s[0:1], 64
        s_load_dwordx4 s[60:63], s[0:1], 96
        s_load_dwordx2 s[64:65], s[0:1], 112
        v_lshrrev_b32 v1, 6, v0""")
        if self.o.get("stamps"):
            e(f"s_memtime s[{sTM0}:{sTM0+1}]")
        e(f"""v_readfirstlane_b32 s{sWAVE}, v1
        s_waitcnt lgkmcnt(0)
        s_load_dword s{sTAG}, s[64:65], {WS_EPOCH}""")
        self.mk_srd(SRD_WS, 64, WS_SIZE)
        e(f"""s_and_b32 s{sA}, s2, 7
        s_lshr_b32 s{sB}, s2, 3
        s_cmp_ge_u32 s{sB}, 24
        s_cbranch_scc1 L_ssm""")
        e(f"""s_lshr_b32 s{sRB}, s{sA}, 1
        s_lshl_b32 s{sRB}, s{sRB}, 3
        s_and_b32 s{sC}, s{sB}, 7
        s_add_u32 s{sRB}, s{sRB}, s{sC}
        s_and_b32 s{sCB}, s{sA}, 1
        s_mul_i32 s{sCB}, s{sCB}, 3
        s_lshr_b32 s{sC}, s{sB}, 3
        s_add_u32 s{sCB}, s{sCB}, s{sC}
        s_and_b32 s{sW}, s{sWAVE}, 3
        s_lshr_b32 s{sMH}, s{sW}, 1
        s_and_b32 s{sNH}, s{sW}, 1""")
        self.mk_srd(SRD_X, 36, 2048*640*2)
        self.mk_srd(SRD_WIN, 52, 640*1728*2)
        self.mk_srd(SRD_WSP, 54, 2048*2048*2)
        self.mk_srd(SRD_BSP, 56, 2048*2)
        self.mk_srd(SRD_WOUT, 58, 864*640*2)
        self.mk_srd(SRD_OUT, 60, 2048*640*2)

    vL = 1
    vWOFF = 2
    vX0, vX1 = 8, 9
    vWB, vWB4 = 10, 11
    vA0, vA1, vB0, vB4 = 12, 13, 14, 15
    vT = 16
    vK0 = 32
    F0 = 40
    F1 = 68
    ACC = 96
    Z1 = 136
    XR = 40

    def issue_w(self):
        e = self.e
        for i in range(4):
            e(f"""s_add_u32 m0, s{sWSLOT}, {i*4096}
            s_nop 0
            buffer_load_dwordx4 v{self.vWOFF+i}, {srd(SRD_WIN)}, s{sWSOFF} offen lds""")
        L = self.a.newlab("Lsk")
        e(f"""s_cmp_eq_u32 s{sW}, 3
        s_cbranch_scc1 {L}
        s_add_u32 m0, s{sWSLOT}, {4*4096}
        s_nop 0
        buffer_load_dwordx4 v{self.vWOFF+4}, {srd(SRD_WIN)}, s{sWSOFF} offen lds""")
        self.a.lab(L)
        e(f"""s_add_u32 s{sWSLOT}, s{sWSLOT}, {S1SZ}
        s_cmp_ge_u32 s{sWSLOT}, {RING1 + 4*S1SZ}
        s_cselect_b32 s{sT}, {4*S1SZ}, 0
        s_sub_u32 s{sWSLOT}, s{sWSLOT}, s{sT}
        s_add_u32 s{sWSOFF}, s{sWSOFF}, {64*3456}
        s_add_u32 s{sWSL}, s{sWSL}, 1
        s_cmp_ge_u32 s{sWSL}, 10
        s_cselect_b32 s{sT}, {640*3456}, 0
        s_cselect_b32 s{sT2}, 10, 0
        s_sub_u32 s{sWSOFF}, s{sWSOFF}, s{sT}
        s_sub_u32 s{sWSL}, s{sWSL}, s{sT2}""")

    def gemm_prologue(self):
        e = self.e; T = self.vT; XR = self.XR; vL = self.vL
        e(f"""v_and_b32 v{vL}, 63, v0
        v_lshrrev_b32 v{T}, 3, v0
        v_and_b32 v{T+1}, 7, v0
        v_mul_u32_u24 v{T+2}, 1280, v{T}
        v_lshl_add_u32 v{T+2}, v{T+1}, 4, v{T+2}
        s_mul_i32 s{sA}, s{sRB}, {64*1280}""")
        for j in range(10):
            e(f"buffer_load_dwordx4 v[{XR+4*j}:{XR+4*j+3}], v{T+2}, {srd(SRD_X)}, s{sA} offen offset:{128*j}")
        e(f"""v_bfe_u32 v{T+3}, v{T}, 1, 3
        v_xor_b32 v{T+3}, v{T+3}, v{T+1}
        v_lshlrev_b32 v{T+3}, 4, v{T+3}
        v_lshl_add_u32 v{T+3}, v{T}, 7, v{T+3}""")
        e(f"s_lshl_b32 s{sA}, s{sW}, 6")
        for i in range(5):
            p, gq, rem, k8, d = T+4, T+5, T+6, T+7, self.vWOFF + i
            e(f"""v_add_u32 v{p}, s{sA}, v{vL}
            v_add_u32 v{p}, {256*i}, v{p}
            v_mul_u32_u24 v{gq}, 6899, v{p}
            v_lshrrev_b32 v{gq}, 20, v{gq}
            v_mul_u32_u24 v{rem}, 152, v{gq}
            v_sub_u32 v{rem}, v{p}, v{rem}
            v_mul_u32_u24 v{k8}, 3641, v{rem}
            v_lshrrev_b32 v{k8}, 16, v{k8}
            v_mul_u32_u24 v{d}, 18, v{k8}
            v_sub_u32 v{rem}, v{rem}, v{d}
            v_cmp_gt_u32 vcc, 8, v{k8}
            v_lshl_add_u32 v{k8}, v{gq}, 3, v{k8}
            v_mul_u32_u24 v{d}, 3456, v{k8}
            v_lshl_add_u32 v{d}, v{rem}, 4, v{d}
            v_mov_b32 v{p}, 0x7fff0000
            v_cndmask_b32 v{d}, v{p}, v{d}, vcc""")
        e(f"""s_and_b32 s{sWSL}, s{sRB}, 7
        s_mul_i32 s{sWSOFF}, s{sWSL}, {64*3456}
        s_mul_i32 s{sA}, s{sCB}, 288
        s_add_u32 s{sWSOFF}, s{sWSOFF}, s{sA}
        s_add_u32 s{sWSOFF}, s{sWSOFF}, 1728
        s_lshl_b32 s{sWSLOT}, s{sW}, 10
        s_add_u32 s{sWSLOT}, s{sWSLOT}, {RING1}
        s_lshl_b32 s{sXOFF}, s{sWSL}, 13
        s_cmp_lt_u32 s{sWAVE}, 4
        s_cbranch_scc1 L_pro_noload""")
        Lp = self.a.newlab("Lpre")
        e(f"s_mov_b32 s{sCNT}, 4")
        self.a.lab(Lp)
        self.issue_w()
        e(f"""s_sub_u32 s{sCNT}, s{sCNT}, 1
        s_cmp_lg_u32 s{sCNT}, 0
        s_cbranch_scc1 {Lp}
        s_waitcnt vmcnt(16)
        s_branch L_pro_x""")
        self.a.lab("L_pro_noload")
        e("s_waitcnt vmcnt(0)")
        self.a.lab("L_pro_x")
        g, c15 = T+4, T+5
        e(f"""v_lshrrev_b32 v{g}, 4, v{vL}
        v_and_b32 v{c15}, 15, v{vL}
        v_lshrrev_b32 v{T+6}, 1, v{c15}
        v_xor_b32 v{T+6}, v{T+6}, v{g}
        v_lshlrev_b32 v{T+6}, 4, v{T+6}
        v_lshl_add_u32 v{self.vX0}, v{c15}, 7, v{T+6}
        s_lshl_b32 s{sA}, s{sMH}, 12
        v_add_u32 v{self.vX0}, s{sA}, v{self.vX0}
        v_xor_b32 v{self.vX1}, 64, v{self.vX0}
        v_mul_u32_u24 v{self.vWB4}, 2432, v{g}
        v_bfe_u32 v{T+6}, v{vL}, 2, 2
        v_mul_u32_u24 v{T+6}, 288, v{T+6}
        v_add_u32 v{self.vWB4}, v{self.vWB4}, v{T+6}
        v_and_b32 v{T+6}, 3, v{vL}
        v_lshl_add_u32 v{self.vWB4}, v{T+6}, 3, v{self.vWB4}
        s_mul_i32 s{sA}, s{sNH}, 160
        v_add_u32 v{self.vWB}, s{sA}, v{self.vWB4}
        v_add_u32 v{self.vWB4}, 128, v{self.vWB4}""")
        S, Q = T+8, T+9
        e(f"""v_mov_b32 v{S}, 0
        v_mov_b32 v{Q}, 0
        s_mov_b32 s{sA}, 0x3f803f80""")
        for i in range(40):
            e(f"v_dot2c_f32_bf16 v{S}, s{sA}, v{XR+i}\nv_dot2c_f32_bf16 v{Q}, v{XR+i}, v{XR+i}")
        for m in ("quad_perm:[1,0,3,2]", "quad_perm:[2,3,0,1]", "row_half_mirror"):
            e(f"v_add_f32_dpp v{S}, v{S}, v{S} {m} row_mask:0xf bank_mask:0xf\nv_add_f32_dpp v{Q}, v{Q}, v{Q} {m} row_mask:0xf bank_mask:0xf")
        self.ln_params(S, Q, 640, T+10, T+12, T+14)
        NM, RS = T+10, T+12
        a, b = T+14, T+15
        e("s_mov_b32 s%d, 0xffff0000" % sA)
        for i in range(40):
            r = XR + i
            e(f"""v_lshlrev_b32 v{a}, 16, v{r}
            v_and_b32 v{b}, s{sA}, v{r}
            v_pk_add_f32 v[{a}:{b}], v[{a}:{b}], v[{NM}:{NM+1}]
            v_cvt_pk_bf16_f32 v{r}, v{a}, v{b}
            v_lshlrev_b32 v{a}, 16, v{r}
            v_and_b32 v{b}, s{sA}, v{r}
            v_pk_mul_f32 v[{a}:{b}], v[{a}:{b}], v[{RS}:{RS+1}]
            v_cvt_pk_bf16_f32 v{r}, v{a}, v{b}""")
            if i % 4 == 3:
                j = i // 4
                if j < 8:
                    e(f"ds_write_b128 v{T+3}, v[{XR+4*j}:{XR+4*j+3}] offset:{8192*j}")
                else:
                    if j == 8: e(f"v_add_u32 v{T+3}, 0x10000, v{T+3}")
                    e(f"ds_write_b128 v{T+3}, v[{XR+4*j}:{XR+4*j+3}] offset:{8192*(j-8)}")
        e(f"""s_waitcnt lgkmcnt(0)
        s_mul_i32 s{sTAG}, s{sTAG}, 0x9E3779B1
        s_add_u32 s{sTAG}, s{sTAG}, 0x7F4A7C15
        s_mov_b32 s{sK1}, {hx(f2u(-2.302208198*0.044715))}
        s_mov_b32 s{sK1+1}, {hx(f2u(-2.302208198*0.044715))}
        v_mov_b32 v{self.vK0}, {hx(f2u(-2.302208198))}
        v_mov_b32 v{self.vK0+1}, {hx(f2u(-2.302208198))}
        s_cmp_ge_u32 s{sWAVE}, 4
        s_cbranch_scc1 L_Y""")

    def ln_params(self, S, Q, n, NM, RS, t):
        self.e(f"""v_mul_f32 v{S}, {hx(f2u(1.0/n))}, v{S}
        v_mul_f32 v{Q}, {hx(f2u(1.0/n))}, v{Q}
        v_fma_f32 v{Q}, -v{S}, v{S}, v{Q}
        v_max_f32 v{Q}, 0, v{Q}
        v_cvt_pk_bf16_f32 v{t}, v{S}, v{Q}
        v_lshlrev_b32 v{NM}, 16, v{t}
        v_xor_b32 v{NM}, 0x80000000, v{NM}
        v_mov_b32 v{NM+1}, v{NM}
        v_and_b32 v{Q}, 0xffff0000, v{t}
        v_add_f32 v{Q}, {hx(f2u(1e-5))}, v{Q}
        v_cvt_pk_bf16_f32 v{t}, v{Q}, v{Q}
        v_lshlrev_b32 v{Q}, 16, v{t}
        v_sqrt_f32 v{Q}, v{Q}
        v_cvt_pk_bf16_f32 v{t}, v{Q}, v{Q}
        v_lshlrev_b32 v{Q}, 16, v{t}
        v_rcp_f32 v{RS}, v{Q}
        v_mov_b32 v{RS+1}, v{RS}""")

    def p1_reads(self, F, ks):
        e = self.e
        vx = self.vA0 if ks == 0 else self.vA1
        out = []
        for a in range(2):
            out.append(f"ds_read_b128 v[{F+4*a}:{F+4*a+3}], v{vx} offset:{2048*a}")
        for j in range(5):
            base = self.vB0 if j < 4 else self.vB4
            off = ks*9728 + (32*j if j < 4 else 0)
            for h in range(2):
                r = F + 8 + 4*j + 2*h
                out.append(f"ds_read_b64_tr_b16 v[{r}:{r+1}], v{base} offset:{off + h*1152}")
        return out
    def mfmas(self, F, swap):
        out = []
        for j in range(5):
            for a in range(2):
                c = self.ACC + 4*(2*j + a)
                X = f"v[{F+4*a}:{F+4*a+3}]"; W = f"v[{F+8+4*j}:{F+8+4*j+3}]"
                A, B = (W, X) if swap else (X, W)
                out.append(f"v_mfma_f32_16x16x32_bf16 v[{c}:{c+3}], {A}, {B}, v[{c}:{c+3}]")
        return out
    def interleave(self, reads, mf):
        out = []
        n = max(len(reads), len(mf))
        ri = 0
        per = math.ceil(len(reads) / max(1, len(mf)))
        for m in mf:
            for _ in range(per):
                if ri < len(reads): out.append(reads[ri]); ri += 1
            out.append(m)
        out += reads[ri:]
        return out

    def zero_acc_f1(self):
        for r in list(range(self.ACC, self.ACC + 40)) + list(range(self.F1, self.F1 + 28)):
            self.e(f"v_mov_b32 v{r}, 0")

    def compute_loop(self, n, swap, reads_fn, addr_fn, nreads, tagname, vmwait=False):
        e = self.e
        L = self.a.newlab("Lc" + tagname)
        e(f"s_mov_b32 s{sCNT}, {n}")
        self.a.lab(L)
        addr_fn()
        e("s_barrier")
        for s in self.interleave(reads_fn(self.F0, 0), self.mfmas(self.F1, swap)): e(s)
        r1 = reads_fn(self.F1, 1)
        for s in r1: e(s)
        e(f"s_waitcnt lgkmcnt({len(r1)})")
        for s in self.mfmas(self.F0, swap): e(s)
        e(f"""s_sub_u32 s{sCNT}, s{sCNT}, 1
        s_cmp_lg_u32 s{sCNT}, 0
        s_waitcnt {'vmcnt(0) ' if vmwait else ''}lgkmcnt(0)
        s_cbranch_scc1 {L}""")
        for s in self.mfmas(self.F1, swap): e(s)

    def p1_addr(self):
        self.e(f"""v_add_u32 v{self.vA0}, s{sXOFF}, v{self.vX0}
        v_add_u32 v{self.vA1}, s{sXOFF}, v{self.vX1}
        v_add_u32 v{self.vB0}, s{sROFF}, v{self.vWB}
        v_add_u32 v{self.vB4}, s{sROFF}, v{self.vWB4}
        s_add_u32 s{sXOFF}, s{sXOFF}, 8192
        s_cmp_ge_u32 s{sXOFF}, 81920
        s_cselect_b32 s{sT}, 81920, 0
        s_sub_u32 s{sXOFF}, s{sXOFF}, s{sT}
        s_add_u32 s{sROFF}, s{sROFF}, {S1SZ}
        s_cmp_ge_u32 s{sROFF}, {RING1 + 4*S1SZ}
        s_cselect_b32 s{sT}, {4*S1SZ}, 0
        s_sub_u32 s{sROFF}, s{sROFF}, s{sT}""")

    def gelu_pair(self, r, t, dst=None):
        d = r if dst is None else dst
        self.e(f"""v_pk_mul_f32 v[{t}:{t+1}], v[{r}:{r+1}], v[{r}:{r+1}]
        v_pk_fma_f32 v[{t}:{t+1}], v[{t}:{t+1}], s[{sK1}:{sK1+1}], v[{self.vK0}:{self.vK0+1}]
        v_pk_mul_f32 v[{t}:{t+1}], v[{t}:{t+1}], v[{r}:{r+1}]
        v_exp_f32 v{t}, v{t}
        v_exp_f32 v{t+1}, v{t+1}
        v_pk_add_f32 v[{t}:{t+1}], v[{t}:{t+1}], 1.0 op_sel_hi:[1,0]
        v_rcp_f32 v{t}, v{t}
        v_rcp_f32 v{t+1}, v{t+1}
        v_pk_mul_f32 v[{t}:{t+1}], v[{t}:{t+1}], v[{r}:{r+1}]
        v_cvt_pk_bf16_f32 v{t}, v{t}, v{t+1}
        v_lshlrev_b32 v{d}, 16, v{t}
        v_and_b32 v{d+1}, s{sB}, v{t}""")

    def dump_regs(self, r0, n, slot, vt):
        self.e(f"""s_lshl_b32 s{sA}, s2, 3
        s_add_u32 s{sA}, s{sA}, s{sWAVE}
        s_mul_i32 s{sA}, s{sA}, {n*256}
        s_add_u32 s{sA}, s{sA}, {WS_DBG + 0x100000 + slot*0x600000}
        v_lshlrev_b32 v{vt}, 2, v{self.vL}""")
        for i in range(n):
            self.e(f"buffer_store_dword v{r0+i}, v{vt}, {srd(SRD_WS)}, s{sA} offen\ns_add_u32 s{sA}, s{sA}, 256")

    def x_path(self):
        e = self.e; T = self.vT; ACC = self.ACC; vL = self.vL
        self.stamp(0)
        self.zero_acc_f1()
        e(f"s_mov_b32 s{sROFF}, {RING1}")
        self.compute_loop(10, False, self.p1_reads, self.p1_addr, 12, "p1a")
        self.stamp(1)
        e(f"""s_and_b32 s{sWSL}, s{sRB}, 7
        s_add_u32 s{sWSL}, s{sWSL}, 3
        s_cmp_ge_u32 s{sWSL}, 10
        s_cselect_b32 s{sT}, 10, 0
        s_sub_u32 s{sWSL}, s{sWSL}, s{sT}
        s_mul_i32 s{sWSOFF}, s{sWSL}, {64*3456}
        s_mul_i32 s{sA}, s{sCB}, 288
        s_add_u32 s{sWSOFF}, s{sWSOFF}, s{sA}
        s_lshl_b32 s{sWSLOT}, s{sW}, 10
        s_add_u32 s{sWSLOT}, s{sWSLOT}, {RING1 + S1SZ}
        s_mov_b32 s{sB}, 0xffff0000""")
        SS = self.F0
        for i in range(16): e(f"v_mov_b32 v{SS+i}, 0")
        vmw = lambda n: f"s_waitcnt vmcnt({n})"
        for j in range(5):
            e("s_barrier")
            self.issue_w()
            Ls = None
            if j == 4:
                Ls = self.a.newlab("Lz4")
                e(f"s_cmp_eq_u32 s{sNH}, 1\ns_cbranch_scc1 {Ls}")
            for a in range(2):
                for h in range(2):
                    r = ACC + 4*(2*j + a) + 2*h
                    t = T + 2*((2*a + h) % 4)
                    self.gelu_pair(r, t)
                    s_, q_ = SS + 4*a + 2*h, SS + 8 + 4*a + 2*h
                    e(f"""v_pk_add_f32 v[{s_}:{s_+1}], v[{s_}:{s_+1}], v[{r}:{r+1}]
                    v_pk_fma_f32 v[{q_}:{q_+1}], v[{r}:{r+1}], v[{r}:{r+1}], v[{q_}:{q_+1}]""")
            if Ls: self.a.lab(Ls)
            e(vmw(8))
        e("s_barrier")
        self.issue_w()
        cur = [SS + i for i in range(16)]
        steps = [(8, "row_mirror"), (4, "row_half_mirror"), (2, "quad_perm:[2,3,0,1]"), (1, "quad_perm:[1,0,3,2]")]
        for bit, mode in steps:
            e(f"""v_and_b32 v{T}, {bit}, v{vL}
            v_cmp_ne_u32 vcc, 0, v{T}""")
            n = len(cur) // 2
            nxt = []
            for i in range(n):
                lo, hi = cur[i], cur[i + n]
                e(f"""v_cndmask_b32 v{T+1+i}, v{hi}, v{lo}, vcc
                v_cndmask_b32 v{lo}, v{lo}, v{hi}, vcc""")
                nxt.append(lo)
            for i in range(n):
                e(f"v_add_f32_dpp v{cur[i]}, v{T+1+i}, v{cur[i]} {mode} row_mask:0xf bank_mask:0xf")
            cur = nxt
        val = cur[0]
        e(f"""v_mov_b32 v{val+1}, s{sTAG}
        v_lshlrev_b32 v{T}, 3, v{vL}
        s_lshl_b32 s{sC}, s{sRB}, 1
        s_add_u32 s{sC}, s{sC}, s{sMH}
        s_mul_i32 s{sC}, s{sC}, {12*512}
        s_add_u32 s{sC}, s{sC}, {WS_STATS}
        s_lshl_b32 s{sA}, s{sCB}, 1
        s_add_u32 s{sA}, s{sA}, s{sNH}
        s_lshl_b32 s{sA}, s{sA}, 9
        s_add_u32 s{sA}, s{sA}, s{sC}
        buffer_store_dwordx2 v[{val}:{val+1}], v{T}, {srd(SRD_WS)}, s{sA} offen sc1""")
        e(vmw(9))
        e("s_barrier")
        self.issue_w()
        e(vmw(9))
        e("s_barrier")
        e(vmw(4))
        e("s_barrier")
        e("s_waitcnt vmcnt(0)")
        e("s_barrier")
        self.stamp(2)
        PR = self.F1
        L = self.a.newlab("Lst"); D = self.a.newlab("Lstd")
        e(f"s_mov_b32 s{sSPIN}, {SPIN_MAX}")
        self.a.lab(L)
        for p in range(12):
            if p < 8:
                e(f"buffer_load_dwordx2 v[{PR+2*p}:{PR+2*p+1}], v{T}, {srd(SRD_WS)}, s{sC} offen offset:{512*p} sc1")
            else:
                if p == 8: e(f"s_add_u32 s{sA}, s{sC}, 4096")
                e(f"buffer_load_dwordx2 v[{PR+2*p}:{PR+2*p+1}], v{T}, {srd(SRD_WS)}, s{sA} offen offset:{512*(p-8)} sc1")
        e("s_waitcnt vmcnt(0)")
        e(f"v_xor_b32 v{T+1}, s{sTAG}, v{PR+1}")
        for p in range(1, 12):
            e(f"v_xor_b32 v{T+2}, s{sTAG}, v{PR+2*p+1}\nv_or_b32 v{T+1}, v{T+1}, v{T+2}")
        e(f"""v_cmp_ne_u32 vcc, 0, v{T+1}
        s_cbranch_vccz {D}
        s_sleep 1
        s_sub_u32 s{sSPIN}, s{sSPIN}, 1
        s_cmp_lg_u32 s{sSPIN}, 0
        s_cbranch_scc1 {L}""")
        self.a.lab(D)
        self.stamp(3)
        for p in range(1, 12):
            e(f"v_add_f32 v{PR}, v{PR}, v{PR+2*p}")
        e(f"""v_mov_b32_dpp v{PR+1}, v{PR} row_ror:8 row_mask:0xf bank_mask:0xf""")
        self.ln_params(PR, PR+1, 864, T+10, T+12, T+14)
        for i in range(8):
            e(f"v_mov_b32_dpp v{SS+i}, v{T+10} row_newbcast:{i} row_mask:0xf bank_mask:0xf")
            e(f"v_mov_b32_dpp v{SS+8+i}, v{T+12} row_newbcast:{i} row_mask:0xf bank_mask:0xf")
        e(f"""v_lshrrev_b32 v{T}, 4, v{vL}
        v_and_b32 v{T+1}, 1, v{T}
        v_lshrrev_b32 v{T}, 1, v{T}
        v_lshl_add_u32 v{T}, v{T+1}, 1, v{T}
        v_lshlrev_b32 v{T}, 8, v{T}
        v_and_b32 v{T+1}, 15, v{vL}
        v_lshl_add_u32 v{T}, v{T+1}, 4, v{T}
        s_lshl_b32 s{sA}, s{sCB}, 5
        s_add_u32 s{sA}, s{sA}, s{sRB}
        s_mul_i32 s{sA}, s{sA}, 18432
        s_mul_i32 s{sC}, s{sMH}, 9216
        s_add_u32 s{sA}, s{sA}, s{sC}
        s_add_u32 s{sA}, s{sA}, {WS_Z2}
        s_mul_i32 s{sC}, s{sNH}, 5120
        s_add_u32 s{sC}, s{sC}, s{sA}
        s_add_u32 s{sA}, s{sA}, 4096""")
        Q4 = self.F1
        Ls = self.a.newlab("Lz4b")
        for j in range(5):
            if j == 4: e(f"s_cmp_eq_u32 s{sNH}, 1\ns_cbranch_scc1 {Ls}")
            q = Q4 + 4*j
            for a in range(2):
                for h in range(2):
                    r = ACC + 4*(2*j + a) + 2*h
                    nm, rs = SS + 4*a + 2*h, SS + 8 + 4*a + 2*h
                    d = q + 2*a + h
                    e(f"""v_pk_add_f32 v[{r}:{r+1}], v[{r}:{r+1}], v[{nm}:{nm+1}]
                    v_cvt_pk_bf16_f32 v{d}, v{r}, v{r+1}
                    v_lshlrev_b32 v{r}, 16, v{d}
                    v_and_b32 v{r+1}, s{sB}, v{d}
                    v_pk_mul_f32 v[{r}:{r+1}], v[{r}:{r+1}], v[{rs}:{rs+1}]
                    v_cvt_pk_bf16_f32 v{d}, v{r}, v{r+1}""")
            e(f"v_permlane16_swap_b32 v{q}, v{q+2}\nv_permlane16_swap_b32 v{q+1}, v{q+3}")
            if j < 4:
                e(f"buffer_store_dwordx4 v[{q}:{q+3}], v{T}, {srd(SRD_WS)}, s{sC} offen offset:{1024*j} sc1")
            else:
                e(f"buffer_store_dwordx4 v[{q}:{q+3}], v{T}, {srd(SRD_WS)}, s{sA} offen sc1")
        self.a.lab(Ls)
        e(f"""s_lshl_b32 s{sD}, s{sCB}, 2
        s_add_u32 s{sD}, s{sD}, s{sW}
        s_lshl_b32 s{sD}, s{sD}, 12
        s_add_u32 s{sD}, s{sD}, {WS_FZ2}
        s_lshl_b32 s{sA}, s{sRB}, 7
        s_add_u32 s{sA}, s{sA}, s{sD}
        s_waitcnt vmcnt(0)""")
        self.flag_store(sA, T+2)
        self.stamp(4)
        e("s_barrier")
        if self.o.get("stop") == "p1":
            e("s_branch L_end"); return
        self.x_p2_loader()
        self.x_p3()

    def x_p2_loader(self):
        e = self.e; T = self.vT; vL = self.vL
        vAo = 2
        e(f"s_lshl_b32 s{sA}, s{sW}, 4")
        for i in range(2):
            e(f"""v_lshrrev_b32 v{T}, 3, v{vL}
            v_add_u32 v{T}, s{sA}, v{T}
            v_add_u32 v{T}, {8*i}, v{T}
            v_bfe_u32 v{T+1}, v{T}, 1, 3
            v_and_b32 v{T+2}, 7, v{vL}
            v_xor_b32 v{T+1}, v{T+1}, v{T+2}
            v_lshlrev_b32 v{T+1}, 4, v{T+1}
            v_lshl_add_u32 v{vAo+i}, v{T}, 12, v{T+1}""")
        e(f"""v_lshlrev_b32 v4, 4, v{vL}
        v_and_b32 v5, 31, v{vL}
        v_lshlrev_b32 v5, 7, v5""")
        e(f"""s_and_b32 s{sWSL}, s{sRB}, 7
        s_lshl_b32 s{sWSL}, s{sWSL}, 2
        s_lshl_b32 s{sWSOFF}, s{sRB}, 18
        s_lshl_b32 s{sA}, s{sWSL}, 7
        s_add_u32 s{sWSOFF}, s{sWSOFF}, s{sA}
        s_mul_i32 s{sROFF}, s{sMH}, 9216
        s_mul_i32 s{sA}, s{sNH}, 5120
        s_add_u32 s{sROFF}, s{sROFF}, s{sA}
        s_lshl_b32 s{sA}, s{sCB}, 5
        s_add_u32 s{sA}, s{sA}, s{sWSL}
        s_mul_i32 s{sXOFF}, s{sA}, 18432
        s_add_u32 s{sXOFF}, s{sXOFF}, s{sROFF}
        s_add_u32 s{sXOFF}, s{sXOFF}, {WS_Z2}
        s_add_u32 s{sROFF}, s{sROFF}, 8192
        s_mov_b32 s{sWSLOT}, 0
        s_lshl_b32 s{sC}, s{sW}, 11""")
        self.poll(5, f"s{sD}", T)
        self.stamp(5)
        def issue():
            e(f"""s_add_u32 m0, s{sWSLOT}, s{sC}
            s_nop 0
            buffer_load_dwordx4 v{vAo}, {srd(SRD_WSP)}, s{sWSOFF} offen lds
            s_add_u32 m0, m0, 1024
            s_nop 0
            buffer_load_dwordx4 v{vAo+1}, {srd(SRD_WSP)}, s{sWSOFF} offen lds
            s_add_u32 m0, s{sWSLOT}, s{sROFF}
            s_nop 0""")
            for i in range(4):
                e(f"buffer_load_dwordx4 v4, {srd(SRD_WS)}, s{sXOFF} offen offset:{1024*i} sc1 lds")
            L = self.a.newlab("Lsk")
            e(f"""s_cmp_eq_u32 s{sNH}, 1
            s_cbranch_scc1 {L}
            s_add_u32 m0, m0, 4096
            s_add_u32 s{sT}, s{sXOFF}, 4096
            buffer_load_dwordx4 v4, {srd(SRD_WS)}, s{sT} offen sc1 lds""")
            self.a.lab(L)
            e(f"""s_add_u32 s{sWSLOT}, s{sWSLOT}, {S2SZ}
            s_cmp_ge_u32 s{sWSLOT}, {NS2*S2SZ}
            s_cselect_b32 s{sT}, {NS2*S2SZ}, 0
            s_sub_u32 s{sWSLOT}, s{sWSLOT}, s{sT}
            s_add_u32 s{sWSOFF}, s{sWSOFF}, 128
            s_add_u32 s{sXOFF}, s{sXOFF}, 18432
            s_add_u32 s{sWSL}, s{sWSL}, 1
            s_cmp_ge_u32 s{sWSL}, 32
            s_cselect_b32 s{sT}, 4096, 0
            s_cselect_b32 s{sT2}, {32*18432}, 0
            s_and_b32 s{sWSL}, s{sWSL}, 31
            s_sub_u32 s{sWSOFF}, s{sWSOFF}, s{sT}
            s_sub_u32 s{sXOFF}, s{sXOFF}, s{sT2}""")
        L0 = self.a.newlab("Lp2p")
        e(f"s_mov_b32 s{sCNT}, {NS2-1}")
        self.a.lab(L0)
        issue()
        e(f"s_sub_u32 s{sCNT}, s{sCNT}, 1\ns_cmp_lg_u32 s{sCNT}, 0\ns_cbranch_scc1 {L0}")
        L1 = self.a.newlab("Lp2l")
        e(f"s_mov_b32 s{sCNT}, {32-(NS2-1)}")
        self.a.lab(L1)
        e(f"s_waitcnt vmcnt({6*(NS2-2)})\ns_barrier")
        issue()
        e(f"s_sub_u32 s{sCNT}, s{sCNT}, 1\ns_cmp_lg_u32 s{sCNT}, 0\ns_cbranch_scc1 {L1}")
        for i in range(NS2-1):
            e(f"s_waitcnt vmcnt({6*(NS2-2-i)})\ns_barrier")
        self.stamp(6)

    @staticmethod
    def phi_map(phi):
        cbp, j = divmod(phi, 9)
        if j == 4: return (24 + cbp // 2, cbp & 1)
        jj = j if j < 4 else j - 1
        return (cbp * 4 + jj // 2, jj & 1)

    def x_p3(self):
        e = self.e; T = self.vT; vL = self.vL
        WR = 40
        ACC3 = 0
        e("s_barrier")
        if self.o.get("stop") == "p2":
            e("s_branch L_end"); return
        for i in range(2):
            e(f"""v_lshrrev_b32 v{T}, 4, v{vL}
            v_add_u32 v{T+3}, {4*i}, v{T}
            v_lshlrev_b32 v{T+1}, 1, v{T+3}
            v_and_b32 v{T+2}, 15, v{vL}
            v_xor_b32 v{T+1}, v{T+1}, v{T+2}
            v_lshlrev_b32 v{T+1}, 4, v{T+1}
            v_mul_u32_u24 v{T}, 1280, v{T}
            v_add_u32 v{2+i}, v{T}, v{T+1}""")
        Lsw = self.a.newlab("Lsw")
        e(f"""s_bitcmp0_b32 s{sW}, 0
        s_cbranch_scc1 {Lsw}
        v_mov_b32 v{T}, v2
        v_mov_b32 v2, v3
        v_mov_b32 v3, v{T}""")
        self.a.lab(Lsw)
        e(f"""s_min_u32 s{sA}, s{sCB}, 4
        s_lshl_b32 s{sA}, s{sA}, 8
        s_mul_i32 s{sB}, s{sW}, {36*1280}
        s_add_u32 s{sA}, s{sA}, s{sB}
        s_mul_i32 s{sB}, s{sW}, 9216""")
        def stage_unit(u, lds):
            for i in range(9):
                e(f"""s_add_u32 m0, s{sB}, {lds + i*1024}
                s_add_u32 s{sT}, s{sA}, {u*144*1280 + i*4*1280}
                buffer_load_dwordx4 v{2 + (i&1)}, {srd(SRD_WOUT)}, s{sT} offen lds""")
        for ee in range(2):
            e(f"""v_lshrrev_b32 v{T}, 2, v{vL}
            v_and_b32 v{T+1}, 7, v{T}
            s_lshl_b32 s{sC}, s{sW}, 1
            s_add_u32 s{sC}, s{sC}, {ee}
            v_xor_b32 v{T+1}, s{sC}, v{T+1}
            v_lshlrev_b32 v{T+1}, 5, v{T+1}
            v_lshl_add_u32 v{T+1}, v{T}, 8, v{T+1}
            v_and_b32 v{T+2}, 3, v{vL}
            v_lshl_add_u32 v{8+ee}, v{T+2}, 3, v{T+1}
            v_add_u32 v{10+ee}, 0x10000, v{8+ee}
            v_add_u32 v{6+ee}, {WST}, v{8+ee}""")
        def wslot(ks): return ks if ks < 20 else (ks - 4 if ks >= 24 else ks - 20)
        def wread(phi, lds):
            ks, hf = self.phi_map(phi)
            out = []
            for ee in range(2):
                r = WR + (wslot(ks)*2 + ee)*4 + 2*hf
                if lds is None:
                    out.append(f"ds_read_b64_tr_b16 v[{r}:{r+1}], v{6+ee} offset:{(phi-45)*4096}")
                else:
                    off = lds + (phi % 9)*4096
                    out.append(f"ds_read_b64_tr_b16 v[{r}:{r+1}], v{(8,10)[off >> 16] + ee} offset:{off & 0xffff}")
            return out
        for u in range(3): stage_unit(u, u*36864)
        stage_unit(5, WST)
        e("s_waitcnt vmcnt(0)\ns_barrier")
        for u in range(3):
            for fi in range(9):
                for s_ in wread(9*u + fi, u*36864): e(s_)
        for s_ in wread(49, None): e(s_)
        e("s_waitcnt lgkmcnt(0)\ns_barrier")
        for u in range(3, 5): stage_unit(u, (u-3)*36864)
        e("s_waitcnt vmcnt(0)\ns_barrier")
        for u in range(3, 5):
            for fi in range(9):
                for s_ in wread(9*u + fi, (u-3)*36864): e(s_)
        e("s_waitcnt lgkmcnt(0)\ns_barrier")
        self.stamp(7)
        e("s_barrier")
        self.stamp(8)
        e(f"s_cmp_eq_u32 s{sCB}, 5\ns_cbranch_scc1 L_end")
        e(f"""v_lshlrev_b32 v2, 4, v{vL}
        v_add_u32 v3, 0x10000, v2
        v_lshlrev_b32 v4, 3, v{vL}
        v_add_u32 v5, 0x10000, v4""")
        for i in range(32): e(f"v_accvgpr_write_b32 a{i}, 0")
        def hreads(ks, F):
            out = []
            for b in range(4):
                mh, a = b >> 1, b & 1
                if ks < 24:
                    cbp, p = divmod(ks, 4)
                    off = HB + cbp*18432 + (9*mh + 5*(p >> 1) + 2*(p & 1) + a)*1024
                    out.append(f"ds_read_b128 v[{F+4*b}:{F+4*b+3}], v{2 + (off >> 16)} offset:{off & 0xffff}")
                else:
                    for hf in range(2):
                        cbp = 2*(ks - 24) + hf
                        off = HB + cbp*18432 + (9*mh + 4)*1024 + a*512
                        out.append(f"ds_read_b64 v[{F+4*b+2*hf}:{F+4*b+2*hf+1}], v{4 + (off >> 16)} offset:{off & 0xffff}")
            return out
        FB = (8, 24)
        order = list(range(20)) + [24, 25, 26] + [20, 21, 22, 23]
        late = [45, 46, 47, 48, 50, 51, 52, 53]
        for s_ in hreads(order[0], FB[0]): e(s_)
        for idx, ks in enumerate(order):
            F = FB[idx & 1]
            nxt = []
            if 5 <= idx < 13: nxt += wread(late[idx - 5], None)
            if idx < 26: nxt += hreads(order[idx + 1], FB[(idx + 1) & 1])
            for s_ in nxt: e(s_)
            e(f"s_waitcnt lgkmcnt({len(nxt)})")
            for b in range(4):
                for ee in range(2):
                    c = 4*(2*b + ee)
                    w = WR + (wslot(ks)*2 + ee)*4
                    e(f"v_mfma_f32_16x16x32_bf16 a[{c}:{c+3}], v[{w}:{w+3}], v[{F+4*b}:{F+4*b+3}], a[{c}:{c+3}]")
        self.stamp(9)
        XV = 40
        YV = 56
        OV = 72
        e(f"""v_and_b32 v{T}, 15, v{vL}
        v_mul_u32_u24 v{T}, 1280, v{T}
        v_lshrrev_b32 v{T+1}, 4, v{vL}
        v_lshl_add_u32 v{T+2}, v{T+1}, 3, v{T}
        s_mul_i32 s{sA}, s{sRB}, {64*1280}
        s_lshl_b32 s{sB}, s{sCB}, 8
        s_add_u32 s{sA}, s{sA}, s{sB}
        s_lshl_b32 s{sB}, s{sW}, 6
        s_add_u32 s{sA}, s{sA}, s{sB}""")
        for b in range(4):
            e(f"s_add_u32 s{sT}, s{sA}, {b*16*1280}")
            for ee in range(2):
                r = XV + 2*(2*b + ee)
                e(f"buffer_load_dwordx2 v[{r}:{r+1}], v{T+2}, {srd(SRD_X)}, s{sT} offen offset:{32*ee}")
        e(f"""v_lshrrev_b32 v{T+3}, 2, v{vL}
        v_lshlrev_b32 v{T+3}, 7, v{T+3}
        v_and_b32 v{T+4}, 3, v{vL}
        v_lshl_add_u32 v{T+3}, v{T+4}, 3, v{T+3}
        s_lshl_b32 s{sB}, s{sW}, 12
        s_add_u32 s{sB}, s{sB}, {YAB}
        v_add_u32 v{T+3}, s{sB}, v{T+3}""")
        for b in range(4):
            for ee in range(2):
                r = YV + 2*(2*b + ee)
                e(f"ds_read_b64_tr_b16 v[{r}:{r+1}], v{T+3} offset:{ee*2048 + b*32}")
        e(f"""v_and_b32 v{T+4}, 1, v{T+1}
        v_lshlrev_b32 v{T+4}, 5, v{T+4}
        v_lshrrev_b32 v{T+5}, 1, v{T+1}
        v_lshl_add_u32 v{T+4}, v{T+5}, 4, v{T+4}
        v_add_u32 v{T+4}, v{T+4}, v{T}
        s_mov_b32 s{sB}, 0xffff0000
        s_waitcnt vmcnt(0) lgkmcnt(0)""")
        p0, p1, p2 = T+6, T+8, T+10
        for b in range(4):
            q = OV + 4*b
            for ee in range(2):
                for h in range(2):
                    xr = XV + 2*(2*b + ee) + h; yr = YV + 2*(2*b + ee) + h
                    c = 4*(2*b + ee) + 2*h
                    d = q + 2*ee + h
                    e(f"""v_lshlrev_b32 v{p0}, 16, v{xr}
                    v_and_b32 v{p0+1}, s{sB}, v{xr}
                    v_lshlrev_b32 v{p1}, 16, v{yr}
                    v_and_b32 v{p1+1}, s{sB}, v{yr}
                    v_accvgpr_read_b32 v{p2}, a{c}
                    v_accvgpr_read_b32 v{p2+1}, a{c+1}
                    v_pk_add_f32 v[{p0}:{p0+1}], v[{p0}:{p0+1}], v[{p1}:{p1+1}]
                    v_cvt_pk_bf16_f32 v{p1}, v{p0}, v{p0+1}
                    v_cvt_pk_bf16_f32 v{p1+1}, v{p2}, v{p2+1}
                    v_lshlrev_b32 v{p0}, 16, v{p1}
                    v_and_b32 v{p0+1}, s{sB}, v{p1}
                    v_lshlrev_b32 v{p2}, 16, v{p1+1}
                    v_and_b32 v{p2+1}, s{sB}, v{p1+1}
                    v_pk_add_f32 v[{p0}:{p0+1}], v[{p0}:{p0+1}], v[{p2}:{p2+1}]
                    v_cvt_pk_bf16_f32 v{d}, v{p0}, v{p0+1}""")
            e(f"""v_permlane16_swap_b32 v{q}, v{q+2}
            v_permlane16_swap_b32 v{q+1}, v{q+3}
            s_add_u32 s{sT}, s{sA}, {b*16*1280}
            buffer_store_dwordx4 v[{q}:{q+3}], v{T+4}, {srd(SRD_OUT)}, s{sT} offen""")
        self.stamp(10)
        e("s_branch L_end")

    def y_path(self):
        e = self.e; T = self.vT; ACC = self.ACC; vL = self.vL; Z1 = self.Z1
        self.a.lab("L_Y")
        self.stamp(0)
        vmw = lambda n: f"s_waitcnt vmcnt({n})"
        e(vmw(12))
        e("s_barrier")
        g, r, c4 = T, T+1, T+2
        e(f"""v_lshrrev_b32 v{g}, 4, v{vL}
        v_bfe_u32 v{r}, v{vL}, 2, 2
        v_and_b32 v{c4}, 3, v{vL}
        s_and_b32 s{sA}, s{sW}, 1
        s_lshl_b32 s{sB}, s{sA}, 5""")
        for rd in range(2):
            t, sw, ad = T+3, T+4, T+6+rd
            e(f"""v_lshl_add_u32 v{t}, v{g}, 3, v{r}
            v_add_u32 v{t}, {4*rd}, v{t}
            v_add_u32 v{t}, s{sB}, v{t}
            v_bfe_u32 v{sw}, v{t}, 1, 3
            v_lshrrev_b32 v{ad}, 1, v{c4}
            v_xor_b32 v{sw}, v{sw}, v{ad}
            v_lshlrev_b32 v{sw}, 4, v{sw}
            v_lshl_add_u32 v{ad}, v{t}, 7, v{sw}
            v_and_b32 v{sw}, 1, v{c4}
            v_lshl_add_u32 v{ad}, v{sw}, 3, v{ad}""")
        e(f"""v_and_b32 v{T+8}, 15, v{vL}
        v_lshlrev_b32 v{T+8}, 12, v{T+8}
        v_lshl_add_u32 v{T+8}, v{g}, 4, v{T+8}
        s_lshl_b32 s{sB}, s{sA}, 6
        v_add_u32 v{T+8}, s{sB}, v{T+8}
        s_mul_i32 s{sA}, s{sCB}, 7
        s_sub_u32 s{sB}, s{sCB}, 2
        s_max_i32 s{sB}, s{sB}, 0
        s_sub_u32 s{sA}, s{sA}, s{sB}
        s_lshr_b32 s{sB}, s{sW}, 1
        s_add_u32 s{sA}, s{sA}, s{sB}""")
        XQ = self.F0
        for i in range(4):
            e(f"""s_add_u32 s{sB}, s{sA}, {2*i}
            s_and_b32 s{sC}, s{sB}, 3
            s_lshl_b32 s{sC}, s{sC}, 5
            s_lshr_b32 s{sD}, s{sB}, 2
            s_lshl_b32 s{sD}, s{sD}, 13""")
            for rd in range(2):
                e(f"""v_xor_b32 v{T+9}, s{sC}, v{T+6+rd}
                v_add_u32 v{T+9}, s{sD}, v{T+9}
                ds_read_b64_tr_b16 v[{XQ+4*i+2*rd}:{XQ+4*i+2*rd+1}], v{T+9}""")
        e(f"""s_lshl_b32 s{sB}, s{sRB}, 7
        s_add_u32 s{sB}, s{sB}, {WS_XNT}
        s_lshl_b32 s{sA}, s{sA}, 16
        s_add_u32 s{sA}, s{sA}, s{sB}
        s_waitcnt lgkmcnt(0)""")
        for i in range(4):
            e(f"""buffer_store_dwordx4 v[{XQ+4*i}:{XQ+4*i+3}], v{T+8}, {srd(SRD_WS)}, s{sA} offen sc1
            s_add_u32 s{sA}, s{sA}, {2*65536}""")
        e(vmw(12))
        L = self.a.newlab("Ly1")
        e(f"s_mov_b32 s{sCNT}, 1")
        self.a.lab(L)
        e("s_barrier")
        Lc = self.a.newlab("Lcol")
        e(f"""s_cmp_lg_u32 s{sCNT}, 7
        s_cbranch_scc1 {Lc}
        s_sub_u32 s{sWSOFF}, s{sWSOFF}, 1728""")
        self.a.lab(Lc)
        Lf = self.a.newlab("Lfx")
        e(f"""s_cmp_lg_u32 s{sCNT}, 5
        s_cbranch_scc1 {Lf}
        s_cmp_lg_u32 s{sW}, 0
        s_cbranch_scc1 {Lf}
        s_lshl_b32 s{sA}, s{sCB}, 5
        s_add_u32 s{sA}, s{sA}, s{sRB}
        s_lshl_b32 s{sA}, s{sA}, 7
        s_add_u32 s{sA}, s{sA}, {WS_FXN}""")
        self.flag_store(sA, T)
        self.a.lab(Lf)
        self.issue_w()
        e(vmw(8))
        e(f"""s_add_u32 s{sCNT}, s{sCNT}, 1
        s_cmp_lt_u32 s{sCNT}, 10
        s_cbranch_scc1 {L}""")
        self.stamp(1)
        self.zero_acc_f1()
        e(f"s_mov_b32 s{sROFF}, {RING1 + 2*S1SZ}")
        e(f"""v_and_b32 v{T}, 15, v{vL}
        v_lshlrev_b32 v{T}, 1, v{T}
        s_lshl_b32 s{sA}, s{sRB}, 7
        s_lshl_b32 s{sB}, s{sMH}, 6
        s_add_u32 s{sA}, s{sA}, s{sB}
        buffer_load_ushort v34, v{T}, {srd(SRD_BSP)}, s{sA} offen
        buffer_load_ushort v36, v{T}, {srd(SRD_BSP)}, s{sA} offen offset:32""")
        self.compute_loop(10, True, self.p1_reads, self.p1_addr, 12, "p1b", vmwait=True)
        self.stamp(2)
        e("s_barrier")
        e(f"s_mov_b32 s{sB}, 0xffff0000")
        for i in range(20):
            self.gelu_pair(ACC + 2*i, T + 2*(i % 4), dst=Z1 + 2*i)
        e("""v_lshlrev_b32 v34, 16, v34
        v_lshlrev_b32 v36, 16, v36
        v_mov_b32 v35, v34
        v_mov_b32 v37, v36""")
        self.stamp(3)
        if self.o.get("stop") == "p1":
            self.dump_regs(Z1, 40, 0, T)
            e("s_branch L_end"); return
        self.zero_acc_f1()
        e(f"""v_lshlrev_b32 v{self.vWB4}, 4, v{vL}
        v_add_u32 v{self.vWB4}, 8192, v{self.vWB4}
        s_mul_i32 s{sA}, s{sNH}, 5120
        v_add_u32 v{self.vWB}, s{sA}, v{self.vWB4}
        v_add_u32 v{self.vWB4}, 4096, v{self.vWB4}
        s_mov_b32 s{sROFF}, 0""")
        def addr():
            e(f"""v_add_u32 v{self.vA0}, s{sROFF}, v{self.vX0}
            v_add_u32 v{self.vA1}, s{sROFF}, v{self.vX1}
            v_add_u32 v{self.vB0}, s{sROFF}, v{self.vWB}
            v_add_u32 v{self.vB4}, s{sROFF}, v{self.vWB4}
            s_add_u32 s{sROFF}, s{sROFF}, {S2SZ}
            s_cmp_ge_u32 s{sROFF}, {NS2*S2SZ}
            s_cselect_b32 s{sT}, {NS2*S2SZ}, 0
            s_sub_u32 s{sROFF}, s{sROFF}, s{sT}""")
        def reads(F, ks):
            vx = self.vA0 if ks == 0 else self.vA1
            out = [f"ds_read_b128 v[{F+4*a}:{F+4*a+3}], v{vx} offset:{2048*a}" for a in range(2)]
            for j in range(5):
                base = self.vB0 if j < 4 else self.vB4
                off = ks*9216 + (1024*j if j < 4 else 0)
                out.append(f"ds_read_b128 v[{F+8+4*j}:{F+8+4*j+3}], v{base} offset:{off}")
            return out
        self.compute_loop(32, True, reads, addr, 7, "p2")
        self.stamp(4)
        e("s_barrier")
        HQ = self.F0
        e(f"""v_lshlrev_b32 v{T+8}, 4, v{vL}
        v_lshlrev_b32 v{T+9}, 3, v{vL}
        s_mul_i32 s{sA}, s{sRB}, 6
        s_add_u32 s{sA}, s{sA}, s{sCB}
        s_mul_i32 s{sA}, s{sA}, 18432
        s_mul_i32 s{sC}, s{sMH}, 9216
        s_add_u32 s{sA}, s{sA}, s{sC}
        s_mul_i32 s{sC}, s{sNH}, 5120
        s_add_u32 s{sA}, s{sA}, s{sC}
        s_add_u32 s{sA}, s{sA}, {WS_H}
        s_add_u32 s{sC}, s{sA}, 4096""")
        Ls = self.a.newlab("Lh4")
        def hval(j, a, h, d):
            r = ACC + 4*(2*j + a) + 2*h; z = Z1 + 4*(2*j + a) + 2*h; b = 34 + 2*a
            e(f"""v_cvt_pk_bf16_f32 v{d}, v{r}, v{r+1}
            v_lshlrev_b32 v{r}, 16, v{d}
            v_and_b32 v{r+1}, s{sB}, v{d}
            v_pk_add_f32 v[{r}:{r+1}], v[{r}:{r+1}], v[{b}:{b+1}]
            v_cvt_pk_bf16_f32 v{d}, v{r}, v{r+1}
            v_lshlrev_b32 v{r}, 16, v{d}
            v_and_b32 v{r+1}, s{sB}, v{d}
            v_pk_mul_f32 v[{r}:{r+1}], v[{r}:{r+1}], v[{z}:{z+1}]
            v_cvt_pk_bf16_f32 v{d}, v{r}, v{r+1}""")
        for p in range(2):
            for a in range(2):
                q = HQ + 4*(2*p + a)
                for jj in range(2):
                    for h in range(2):
                        hval(2*p + jj, a, h, q + 2*jj + h)
                e(f"buffer_store_dwordx4 v[{q}:{q+3}], v{T+8}, {srd(SRD_WS)}, s{sA} offen offset:{1024*(2*p+a)} sc1")
        e(f"s_cmp_eq_u32 s{sNH}, 1\ns_cbranch_scc1 {Ls}")
        for a in range(2):
            q = HQ + 16 + 2*a
            for h in range(2): hval(4, a, h, q + h)
            e(f"buffer_store_dwordx2 v[{q}:{q+1}], v{T+9}, {srd(SRD_WS)}, s{sC} offen offset:{512*a} sc1")
        self.a.lab(Ls)
        e(f"""s_lshl_b32 s{sD}, s{sRB}, 2
        s_add_u32 s{sD}, s{sD}, s{sW}
        s_lshl_b32 s{sD}, s{sD}, 10
        s_add_u32 s{sD}, s{sD}, {WS_FH}
        s_lshl_b32 s{sA}, s{sCB}, 7
        s_add_u32 s{sA}, s{sA}, s{sD}
        s_waitcnt vmcnt(0)""")
        self.flag_store(sA, T)
        self.stamp(5)
        if self.o.get("stop") == "p2":
            e("s_branch L_end"); return
        for i in range(4): e("s_barrier")
        e(f"""v_and_b32 v{T+2}, 7, v{vL}
        v_min_u32 v{T+2}, 5, v{T+2}
        v_lshlrev_b32 v{T+2}, 7, v{T+2}""")
        self.poll(T+2, f"s{sD}", T+3)
        self.stamp(6)
        e(f"""s_mul_i32 s{sA}, s{sMH}, 9216
        s_mul_i32 s{sC}, s{sNH}, 5120
        s_add_u32 s{sA}, s{sA}, s{sC}
        s_mul_i32 s{sC}, s{sRB}, {6*18432}
        s_add_u32 s{sC}, s{sC}, s{sA}
        s_add_u32 s{sC}, s{sC}, {WS_H}
        s_mov_b32 s{sCNT}, 6""")
        L = self.a.newlab("Lhl"); Lk = self.a.newlab("Lhk")
        self.a.lab(L)
        e(f"s_add_u32 m0, s{sA}, {HB}\ns_nop 0")
        for i in range(4):
            e(f"buffer_load_dwordx4 v{T+8}, {srd(SRD_WS)}, s{sC} offen offset:{1024*i} sc1 lds")
        e(f"""s_cmp_eq_u32 s{sNH}, 1
        s_cbranch_scc1 {Lk}
        s_add_u32 m0, m0, 4096
        s_add_u32 s{sT}, s{sC}, 4096
        buffer_load_dwordx4 v{T+8}, {srd(SRD_WS)}, s{sT} offen sc1 lds""")
        self.a.lab(Lk)
        e(f"""s_add_u32 s{sA}, s{sA}, 18432
        s_add_u32 s{sC}, s{sC}, 18432
        s_sub_u32 s{sCNT}, s{sCNT}, 1
        s_cmp_lg_u32 s{sCNT}, 0
        s_cbranch_scc1 {L}""")
        e(f"v_lshlrev_b32 v{T+2}, 7, v{vL}\ns_mov_b32 s{sD}, {WS_FY}")
        if not self.o.get("nossm"):
            self.poll(T+2, f"s{sD}", T+3)
        e(f"""s_mul_i32 s{sC}, s{sRB}, {640*128}
        s_min_u32 s{sA}, s{sCB}, 4
        s_lshl_b32 s{sA}, s{sA}, 14
        s_add_u32 s{sC}, s{sC}, s{sA}
        s_lshl_b32 s{sA}, s{sW}, 12
        s_add_u32 s{sC}, s{sC}, s{sA}
        s_add_u32 s{sC}, s{sC}, {WS_YA}
        s_add_u32 m0, s{sA}, {YAB}
        s_nop 0""")
        for i in range(4):
            e(f"buffer_load_dwordx4 v{T+8}, {srd(SRD_WS)}, s{sC} offen offset:{1024*i} sc1 lds")
        e("s_waitcnt vmcnt(0)\ns_barrier")
        self.stamp(7)
        e(f"""s_cmp_lg_u32 s2, 0
        s_cbranch_scc1 L_end
        s_cmp_lg_u32 s{sW}, 0
        s_cbranch_scc1 L_end
        s_mov_b32 s{sA}, {WS_EPOCH}""")
        self.flag_store(sA, T)
        e("s_branch L_end")

    def build(self):
        from ssm import ssm_path
        self.entry()
        self.gemm_prologue()
        self.x_path()
        self.y_path()
        self.a.lab("L_ssm")
        if self.o.get("nossm"):
            self.e("s_branch L_end")
        else:
            ssm_path(self)
        self.a.lab("L_end")
        if self.o.get("stamps"):
            self.e(f"""s_mov_b64 exec, -1
            s_lshl_b32 s{sTM}, s2, 3
            s_add_u32 s{sTM}, s{sTM}, s{sWAVE}
            s_lshl_b32 s{sTM}, s{sTM}, 8
            s_add_u32 s{sTM}, s{sTM}, {WS_DBG}
            v_lshlrev_b32 v2, 2, v1
            buffer_store_dword v0, v2, {srd(SRD_WS)}, s{sTM} offen""")
        self.e("s_endpgm")
        self.a.lab("L_exit")
        self.e("s_endpgm")
        body = self.a.finalize()
        hdr = open("parallel_sum__ssm_conv_s4d__mixer_gmlp__prompt.s.ref").read().split("; Override launch")[0]
        s = hdr + "; @launch grid=(256,1,1) block=(512,1,1) lds=163840\n"
        s += f'.amdgcn_target "amdgcn-amd-amdhsa--gfx950"\n.text\n.globl {KNAME}\n.p2align 8\n.type {KNAME},@function\n{KNAME}:\n'
        s += body
        s += f""".section .rodata,"a"
.p2align 6
.amdhsa_kernel {KNAME}
  .amdhsa_next_free_vgpr 256
  .amdhsa_next_free_sgpr 96
  .amdhsa_accum_offset 224
  .amdhsa_group_segment_fixed_size 0
  .amdhsa_kernarg_size 120
  .amdhsa_user_sgpr_count 2
  .amdhsa_user_sgpr_kernarg_segment_ptr 1
  .amdhsa_system_sgpr_workgroup_id_x 1
.end_amdhsa_kernel
"""
        return s

if __name__ == "__main__":
    opts = {}
    out = "parallel_sum__ssm_conv_s4d__mixer_gmlp__prompt.s"
    for a in sys.argv[1:]:
        if a.startswith("-o"): out = a[2:]
        elif "=" in a:
            k, v = a.split("="); opts[k] = v
        else: opts[a] = True
    open(out, "w").write(G(opts).build())
```

```python
import math
from gen import *

SLOT = 17600; KCP = 4576; UOFF = 9152; UCP = 4224
TB = 8*SLOT; TSZ = 1568; ZI = 768
SRD_LAR, SRD_AIM, SRD_CR, SRD_CI, SRD_LDT, SRD_DSK = 8, 12, 16, 20, 24, 32
sCH, sSLOT, sTBL, sRND, sD0 = 66, 67, 68, 69, 70
sWJ, sKS, sLN = 71, 72, 73
SRD_WO, SRD_PF, SRD_WI = 36, 52, 40
LOG2E = 1.4426950408889634

def ssm_path(g):
    e = g.e; a = g.a
    vL = 1
    g.mk_srd(SRD_LAR, 38, 640*128*2); g.mk_srd(SRD_AIM, 40, 640*128*2)
    g.mk_srd(SRD_CR, 42, 640*128*2); g.mk_srd(SRD_CI, 44, 640*128*2)
    g.mk_srd(SRD_LDT, 46, 640*2); g.mk_srd(SRD_DSK, 48, 640*2)
    e(f"""v_and_b32 v{vL}, 63, v0
    s_sub_u32 s{sB}, s{sB}, 24
    s_lshl_b32 s{sB}, s{sB}, 3
    s_add_u32 s{sRB}, s{sB}, s{sA}
    s_mul_i32 s{sD0}, s{sRB}, 10
    s_mul_i32 s{sSLOT}, s{sWAVE}, {SLOT}
    s_mov_b32 s{sRND}, 0""")
    vG, vJ = 2, 3
    vSW, vSR = 4, 5
    vT0, vT1a, vT1b, vT2 = 6, 7, 8, 9
    vZ = 10
    T = 12
    e(f"""v_lshrrev_b32 v{vG}, 4, v{vL}
    v_and_b32 v{vJ}, 15, v{vL}
    v_lshlrev_b32 v{vSW}, 3, v{vL}
    v_add_u32 v{vSW}, s{sSLOT}, v{vSW}
    v_mul_u32_u24 v{vSR}, 528, v{vJ}
    v_lshl_add_u32 v{vSR}, v{vG}, 4, v{vSR}
    v_add_u32 v{vSR}, s{sSLOT}, v{vSR}
    v_mov_b32 v{vZ}, 0
    v_lshrrev_b32 v{T}, 1, v{vG}
    v_lshlrev_b32 v{T}, 7, v{T}
    v_lshl_add_u32 v{T}, v{vJ}, 3, v{T}
    v_and_b32 v{T+1}, 1, v{vG}
    v_lshl_add_u32 v{T}, v{T+1}, 2, v{T}
    v_lshlrev_b32 v{vT0}, 1, v{T}
    v_lshlrev_b32 v{T}, 6, v{vG}
    v_lshl_add_u32 v{T+1}, v{vJ}, 2, v{T}
    v_add_u32 v{T+1}, 256, v{T+1}
    v_lshl_add_u32 v{T+2}, v{vJ}, 1, v{T}
    v_add_u32 v{T+2}, 256, v{T+2}
    v_cmp_gt_u32 vcc, 2, v{vG}
    v_cndmask_b32 v{vT1a}, v{T+2}, v{T+1}, vcc
    v_mov_b32 v{T+3}, 32
    v_cndmask_b32 v{T+3}, v{T+3}, 2, vcc
    v_add_u32 v{vT1b}, v{vT1a}, v{T+3}
    v_lshlrev_b32 v{vT1a}, 1, v{vT1a}
    v_lshlrev_b32 v{vT1b}, 1, v{vT1b}
    v_add_u32 v{T}, v{T}, v{vJ}
    v_add_u32 v{T}, 512, v{T}
    v_lshlrev_b32 v{vT2}, 1, v{T}""")
    g.mk_srd(SRD_WO, 58, 864*640*2)
    g.mk_srd(SRD_WI, 52, 640*1728*2)
    g.mk_srd(SRD_PF, 54, 2048*2048*2)
    e(f"""s_mov_b32 s{sWJ}, 0
    s_cmp_ge_u32 s{sRB}, 54
    s_cbranch_scc1 L_wj_skip
    s_cmp_ge_u32 s{sWAVE}, 5
    s_cbranch_scc1 L_wj_skip
    s_mov_b32 s{sWJ}, 1
    s_lshr_b32 s{sKS}, s{sRB}, 1
    s_and_b32 s{sLN}, s{sRB}, 1
    s_mul_i32 s{sLN}, s{sLN}, 5
    s_add_u32 s{sLN}, s{sLN}, s{sWAVE}
    s_lshr_b32 s{sA}, s{sKS}, 2
    s_and_b32 s{sB}, s{sKS}, 3
    s_mul_i32 s{sA}, s{sA}, 9
    s_lshl_b32 s{sC}, s{sB}, 1
    s_add_u32 s{sA}, s{sA}, s{sC}
    s_lshr_b32 s{sC}, s{sB}, 1
    s_add_u32 s{sA}, s{sA}, s{sC}
    s_add_u32 s{sB}, s{sA}, 1
    s_sub_u32 s{sC}, s{sKS}, 24
    s_mul_i32 s{sC}, s{sC}, 18
    s_add_u32 s{sC}, s{sC}, 4
    s_add_u32 s{sD}, s{sC}, 9
    s_cmp_ge_u32 s{sKS}, 24
    s_cselect_b32 s{sA}, s{sC}, s{sA}
    s_cselect_b32 s{sB}, s{sD}, s{sB}
    s_mul_i32 s{sA}, s{sA}, {16*1280}
    s_mul_i32 s{sB}, s{sB}, {16*1280}
    s_lshl_b32 s{sC}, s{sLN}, 7
    s_add_u32 s{sA}, s{sA}, s{sC}
    s_add_u32 s{sB}, s{sB}, s{sC}
    v_lshrrev_b32 v{T}, 3, v{vL}
    v_mul_u32_u24 v{T}, 1280, v{T}
    v_and_b32 v{T+1}, 7, v{vL}
    v_lshl_add_u32 v{T}, v{T+1}, 4, v{T}
    s_add_u32 m0, s{sSLOT}, {UOFF + 128}
    s_add_u32 s{sC}, s{sA}, {8*1280}
    buffer_load_dwordx4 v{T}, {srd(SRD_WO)}, s{sA} offen lds
    s_add_u32 m0, m0, 1024
    s_add_u32 s{sD}, s{sB}, {8*1280}
    buffer_load_dwordx4 v{T}, {srd(SRD_WO)}, s{sC} offen lds
    s_add_u32 m0, m0, 1024
    s_nop 0
    buffer_load_dwordx4 v{T}, {srd(SRD_WO)}, s{sB} offen lds
    s_add_u32 m0, m0, 1024
    s_nop 0
    buffer_load_dwordx4 v{T}, {srd(SRD_WO)}, s{sD} offen lds""")
    a.lab("L_wj_skip")
    g.stamp(0)
    PFW = g.o.get("pfw", "1") == "1"
    AR, PH, CRp, CIp = 24, 26, 28, 30
    W = 32
    def C(i): return W + 4*i
    def re(c): return f"v[{c}:{c+1}]"
    def im(c): return f"v[{c+2}:{c+3}]"
    tp = T
    def cexp(c, p):
        lit = hx(f2u(float(p)))
        e(f"""v_mul_f32 v{tp}, {lit}, v{AR}
        v_mul_f32 v{tp+1}, {lit}, v{AR+1}
        v_mul_f32 v{tp+2}, {lit}, v{PH}
        v_mul_f32 v{tp+3}, {lit}, v{PH+1}
        v_exp_f32 v{tp}, v{tp}
        v_exp_f32 v{tp+1}, v{tp+1}
        v_fract_f32 v{tp+2}, v{tp+2}
        v_fract_f32 v{tp+3}, v{tp+3}
        v_cos_f32 v{c}, v{tp+2}
        v_cos_f32 v{c+1}, v{tp+3}
        v_sin_f32 v{c+2}, v{tp+2}
        v_sin_f32 v{c+3}, v{tp+3}
        v_pk_mul_f32 {re(c)}, {re(c)}, v[{tp}:{tp+1}]
        v_pk_mul_f32 {im(c)}, {im(c)}, v[{tp}:{tp+1}]""")
    def cmul(z, x, y):
        e(f"""v_pk_mul_f32 v[{tp}:{tp+1}], {im(x)}, {im(y)}
        v_pk_mul_f32 v[{tp+2}:{tp+3}], {im(x)}, {re(y)}
        v_pk_fma_f32 {im(z) if z not in (x, y) else f'v[{tp+2}:{tp+3}]'}, {re(x)}, {im(y)}, v[{tp+2}:{tp+3}]
        v_pk_fma_f32 {re(z)}, {re(x)}, {re(y)}, v[{tp}:{tp+1}] neg_lo:[0,0,1] neg_hi:[0,0,1]""")
        if z in (x, y): e(f"v_mov_b64 {im(z)}, v[{tp+2}:{tp+3}]")
    pk_i = [0]
    def put(c, row, neg):
        d = T + 4 + 2*(pk_i[0] % 4); pk_i[0] += 1
        n = "-" if neg else ""
        e(f"""v_cvt_pk_f16_f32 v{d}, v{c}, {n}v{c+2}
        v_cvt_pk_f16_f32 v{d+1}, v{c+1}, {n}v{c+3}
        ds_write_b64 v{vSW}, v[{d}:{d+1}] offset:{528*row}""")
    E2F = 100
    E1F = 132
    DD = 164
    vSC = 168
    e(f"s_add_u32 s{sCH}, s{sD0}, s{sWAVE}\ns_mul_i32 s{sTBL}, s{sWAVE}, {TSZ}\ns_add_u32 s{sTBL}, s{sTBL}, {TB}")
    a.lab("L_kgen")
    e(f"""v_lshlrev_b32 v{T}, 2, v{vL}
    s_lshl_b32 s{sA}, s{sCH}, 8
    s_lshl_b32 s{sB}, s{sCH}, 1
    buffer_load_dword v{T+4}, v{T}, {srd(SRD_LAR)}, s{sA} offen
    buffer_load_dword v{T+5}, v{T}, {srd(SRD_AIM)}, s{sA} offen
    buffer_load_dword v{T+6}, v{T}, {srd(SRD_CR)}, s{sA} offen
    buffer_load_dword v{T+7}, v{T}, {srd(SRD_CI)}, s{sA} offen
    buffer_load_ushort v{T+8}, v{vZ}, {srd(SRD_LDT)}, s{sB} offen""")
    if PFW:
        e(f"""s_cmp_lg_u32 s{sRND}, 0
        s_cbranch_scc1 L_pfw_skip
        v_lshrrev_b32 v200, 3, v{vL}
        v_mul_u32_u24 v200, 3456, v200
        v_and_b32 v201, 7, v{vL}
        v_lshl_add_u32 v200, v201, 7, v200
        s_lshr_b32 s{sA}, s{sRB}, 3
        s_lshl_b32 s{sA}, s{sA}, 3
        s_add_u32 s{sA}, s{sA}, s{sWAVE}
        s_and_b32 s{sC}, s2, 1
        s_mul_i32 s{sC}, s{sC}, 864""")
        for i in range(3):
            e(f"""s_add_u32 s{sD}, s{sA}, {64*i}
            s_cmp_ge_u32 s{sD}, 80
            s_cselect_b32 s{sT}, 80, 0
            s_cselect_b32 s{sT2}, 0, 1728
            s_sub_u32 s{sD}, s{sD}, s{sT}
            s_mul_i32 s{sD}, s{sD}, {8*3456}
            s_add_u32 s{sT2}, s{sT2}, s{sC}
            s_and_b32 s{sT2}, s{sT2}, 0xffffff80
            s_add_u32 s{sD}, s{sD}, s{sT2}
            buffer_load_dword v{202+i}, v200, {srd(SRD_WI)}, s{sD} offen""")
        e("s_waitcnt vmcnt(3) lgkmcnt(0)\ns_branch L_pfw_done")
        a.lab("L_pfw_skip")
    e("s_waitcnt vmcnt(0) lgkmcnt(0)")
    if PFW: a.lab("L_pfw_done")
    e(f"s_mov_b32 s{sB}, 0xffff0000")
    e(f"""s_cmp_lg_u32 s{sRND}, 0
    s_cbranch_scc1 L_r0_skip
    s_mul_i32 s{sTAG}, s{sTAG}, 0x9E3779B1
    s_add_u32 s{sTAG}, s{sTAG}, 0x7F4A7C15
    s_cmp_eq_u32 s{sWJ}, 0
    s_cbranch_scc1 L_wj2_skip
    v_lshrrev_b32 v{E1F+16}, 2, v{vL}
    v_lshlrev_b32 v{E1F+16}, 7, v{E1F+16}
    v_and_b32 v{E1F+17}, 3, v{vL}
    v_lshl_add_u32 v{E1F+16}, v{E1F+17}, 3, v{E1F+16}
    v_add_u32 v{E1F+16}, s{sSLOT}, v{E1F+16}
    v_lshlrev_b32 v{E1F+17}, 4, v{vL}""")
    for df in range(4):
        for hf in range(2):
            e(f"ds_read_b64_tr_b16 v[{E1F+4*df+2*hf}:{E1F+4*df+2*hf+1}], v{E1F+16} offset:{UOFF + 128 + hf*2048 + df*32}")
    e(f"""s_lshl_b32 s{sA}, s{sLN}, 2
    s_mul_i32 s{sA}, s{sA}, {27*1024}
    s_lshl_b32 s{sC}, s{sKS}, 10
    s_add_u32 s{sA}, s{sA}, s{sC}
    s_add_u32 s{sA}, s{sA}, {WS_WOT}
    s_waitcnt lgkmcnt(0)""")
    for df in range(4):
        e(f"buffer_store_dwordx4 v[{E1F+4*df}:{E1F+4*df+3}], v{E1F+17}, {srd(SRD_WS)}, s{sA} offen sc1\ns_add_u32 s{sA}, s{sA}, {27*1024}")
    a.lab("L_wj2_skip")
    a.lab("L_r0_skip")
    e(f"""v_lshlrev_b32 v{T+8}, 16, v{T+8}
    v_mul_f32 v{T+8}, {hx(f2u(LOG2E))}, v{T+8}
    v_exp_f32 v{T+8}, v{T+8}
    v_lshlrev_b32 v{AR}, 16, v{T+4}
    v_and_b32 v{AR+1}, s{sB}, v{T+4}
    v_cvt_pk_bf16_f32 v{T+8}, v{T+8}, v{T+8}
    v_mul_f32 v{AR}, {hx(f2u(LOG2E))}, v{AR}
    v_mul_f32 v{AR+1}, {hx(f2u(LOG2E))}, v{AR+1}
    v_lshlrev_b32 v{T+8}, 16, v{T+8}
    v_exp_f32 v{AR}, v{AR}
    v_exp_f32 v{AR+1}, v{AR+1}
    v_lshlrev_b32 v{PH}, 16, v{T+5}
    v_and_b32 v{PH+1}, s{sB}, v{T+5}
    v_cvt_pk_bf16_f32 v{T+4}, v{AR}, v{AR+1}
    v_lshlrev_b32 v{AR}, 16, v{T+4}
    v_and_b32 v{AR+1}, s{sB}, v{T+4}
    v_mul_f32 v{AR}, v{AR}, v{T+8}
    v_mul_f32 v{AR+1}, v{AR+1}, v{T+8}
    v_mul_f32 v{AR}, {hx(f2u(-LOG2E))}, v{AR}
    v_mul_f32 v{AR+1}, {hx(f2u(-LOG2E))}, v{AR+1}
    v_mul_f32 v{PH}, v{PH}, v{T+8}
    v_mul_f32 v{PH+1}, v{PH+1}, v{T+8}
    v_mul_f32 v{PH}, {hx(f2u(1/(2*math.pi)))}, v{PH}
    v_mul_f32 v{PH+1}, {hx(f2u(1/(2*math.pi)))}, v{PH+1}
    v_lshlrev_b32 v{CRp}, 16, v{T+6}
    v_and_b32 v{CRp+1}, s{sB}, v{T+6}
    v_lshlrev_b32 v{CIp}, 16, v{T+7}
    v_and_b32 v{CIp+1}, s{sB}, v{T+7}
    v_max3_f32 v{T}, abs(v{CRp}), abs(v{CRp+1}), abs(v{CIp})
    v_max_f32 v{T}, abs(v{CIp+1}), v{T}""")
    for m in ("row_ror:8", "row_ror:4", "row_ror:2", "row_ror:1"):
        e(f"v_max_f32_dpp v{T}, v{T}, v{T} {m} row_mask:0xf bank_mask:0xf")
    e(f"""v_readlane_b32 s{sA}, v{T}, 0
    v_readlane_b32 s{sC}, v{T}, 16
    v_readlane_b32 s{sD}, v{T}, 32
    v_readlane_b32 s{sT}, v{T}, 48
    s_max_u32 s{sA}, s{sA}, s{sC}
    s_max_u32 s{sD}, s{sD}, s{sT}
    s_max_u32 s{sA}, s{sA}, s{sD}
    v_frexp_exp_i32_f32 v{T}, s{sA}
    v_sub_u32 v{T+1}, 0, v{T}
    v_ldexp_f32 v{C(0)}, v{CRp}, v{T+1}
    v_ldexp_f32 v{C(0)+1}, v{CRp+1}, v{T+1}
    v_ldexp_f32 v{C(0)+2}, v{CIp}, v{T+1}
    v_ldexp_f32 v{C(0)+3}, v{CIp+1}, v{T+1}
    v_add_f32 v{vSC}, v{T+8}, v{T+8}
    v_ldexp_f32 v{vSC}, v{vSC}, v{T}""")
    cexp(C(1), 8)
    e(f"v_mov_b32 v{C(2)}, 1.0\nv_mov_b32 v{C(2)+1}, 1.0\nv_mov_b32 v{C(2)+2}, 0\nv_mov_b32 v{C(2)+3}, 0")
    put(C(2), 0, True)
    put(C(1), 1, True)
    cur, oth = C(1), C(2)
    pp = [C(2), C(11)]
    cur = C(1)
    for j in range(2, 16):
        z = pp[j & 1]
        cmul(z, cur, C(1)); put(z, j, True); cur = z
    for ks in range(8):
        e(f"ds_read_b128 v[{E2F+4*ks}:{E2F+4*ks+3}], v{vSR} offset:{64*ks}")
    e(f"""s_cmp_lg_u32 s{sRND}, 0
    s_cbranch_scc1 L_wj3_skip
    s_cmp_eq_u32 s{sWJ}, 0
    s_cbranch_scc1 L_wj3_skip
    s_lshl_b32 s{sA}, s{sLN}, 5
    s_add_u32 s{sA}, s{sA}, s{sKS}
    s_lshl_b32 s{sA}, s{sA}, 7
    s_add_u32 s{sA}, s{sA}, {WS_FWO}
    s_waitcnt vmcnt(0)""")
    g.flag_store(sA, T)
    a.lab("L_wj3_skip")
    cexp(C(3), 128)
    R = lambda r: C(3 + r)
    cexp(R(1), 1)
    for r in range(2, 8): cmul(R(r), R(r-1), R(1))
    tq = [C(0), C(1)]
    qcur = [0]
    def Tq(): return tq[qcur[0] & 1]
    def Tnext():
        cmul(tq[(qcur[0]+1) & 1], Tq(), C(3)); qcur[0] += 1
    def row(rho, r):
        if r == 0: put(Tq(), rho, False)
        else:
            z = pp[rho & 1]
            cmul(z, Tq(), R(r)); put(z, rho, False)
    def tile_mma():
        for ks in range(8):
            e(f"ds_read_b128 v[{E1F+4*ks}:{E1F+4*ks+3}], v{vSR} offset:{64*ks}")
        for ks in range(8):
            e(f"s_waitcnt lgkmcnt({7-ks})")
            e(f"v_mfma_f32_16x16x32_f16 v[{DD}:{DD+3}], v[{E1F+4*ks}:{E1F+4*ks+3}], v[{E2F+4*ks}:{E2F+4*ks+3}], {'0' if ks == 0 else f'v[{DD}:{DD+3}]'}")
        for r in range(4): e(f"v_mul_f32 v{DD+r}, v{DD+r}, v{vSC}")
        e(f"v_cvt_pk_bf16_f32 v{DD}, v{DD}, v{DD+1}\nv_cvt_pk_bf16_f32 v{DD+1}, v{DD+2}, v{DD+3}")
    def taddr(v, d): e(f"v_add_u32 v{d}, s{sTBL}, v{v}")
    for q in range(2):
        for r in range(8): row(8*q + r, r)
        Tnext()
    tile_mma()
    taddr(vT0, DD+2)
    e(f"ds_write_b64 v{DD+2}, v[{DD}:{DD+1}]")
    for q in range(2):
        for r in range(4): row(4*q + r, 2*r)
        Tnext()
    for q in range(4):
        for r in range(2): row(8 + 2*q + r, 4*r)
        Tnext()
    tile_mma()
    taddr(vT1a, DD+2); taddr(vT1b, DD+3)
    e(f"ds_write_b32 v{DD+2}, v{DD}\nds_write_b32 v{DD+3}, v{DD+1}")
    for q in range(9):
        row(q, 0)
        if q < 8: Tnext()
    tile_mma()
    taddr(vT2, DD+2)
    e(f"""ds_write_b16 v{DD+2}, v{DD}
    ds_write_b16_d16_hi v{DD+2}, v{DD} offset:32
    ds_write_b16 v{DD+2}, v{DD+1} offset:64
    ds_write_b16_d16_hi v{DD+2}, v{DD+1} offset:96
    v_mov_b32 v{DD+3}, s{sTBL}
    ds_write_b32 v{DD+3}, v{vZ} offset:{2*ZI}""")
    e(f"""s_cmp_lg_u32 s{sRND}, 0
    s_cbranch_scc1 L_kgen_done
"""
    )
    if not g.o.get("nopf"):
        e(f"""s_and_b32 s{sA}, s2, 7
        s_lshr_b32 s{sA}, s{sA}, 1
        s_lshl_b32 s{sA}, s{sA}, 21
        s_lshr_b32 s{sC}, s{sRB}, 3
        s_lshl_b32 s{sC}, s{sC}, 18
        s_add_u32 s{sA}, s{sA}, s{sC}
        s_lshl_b32 s{sC}, s{sWAVE}, 15
        s_add_u32 s{sA}, s{sA}, s{sC}
        v_lshlrev_b32 v{T}, 7, v{vL}""")
        for i in range(4):
            e(f"buffer_load_dword v{200+i}, v{T}, {srd(SRD_PF)}, s{sA} offen\ns_add_u32 s{sA}, s{sA}, 8192")
    e(f"""s_nop 0
    s_cmp_ge_u32 s{sWAVE}, 2
    s_cbranch_scc1 L_kgen_done
    s_mov_b32 s{sRND}, 1
    s_add_u32 s{sCH}, s{sCH}, 8
    s_add_u32 s{sTBL}, s{sTBL}, {8*TSZ}
    s_branch L_kgen""")
    a.lab("L_kgen_done")
    g.stamp(1)
    GA = 24
    for m in range(4):
        for ee in range(9):
            d = GA + 9*m + ee
            e(f"""v_lshlrev_b32 v{T}, 3, v{vL}
            v_sub_u32 v{T}, {2047 - 512*m - ee}, v{T}
            v_cvt_f32_i32 v{T+1}, v{T}
            v_cvt_pk_bf16_f32 v{T+1}, v{T+1}, v{T+1}
            v_and_b32 v{T+1}, 0xffff, v{T+1}
            v_subrev_u32 v{T+1}, {0x4300 - 128}, v{T+1}""")
            if m == 3:
                e(f"""v_cmp_gt_i32 vcc, 128, v{T}
                v_cndmask_b32 v{T+1}, v{T+1}, v{T}, vcc""")
                if ee == 8:
                    e(f"""v_cmp_gt_i32 vcc, 0, v{T}
                    v_mov_b32 v{T+2}, {ZI}
                    v_cndmask_b32 v{T+1}, v{T+1}, v{T+2}, vcc""")
            e(f"v_lshlrev_b32 v{d}, 1, v{T+1}")
    vKA, vUB, vKW, vZW, vL16, vEU, vES, vYO, vFL = 60, 61, 62, 63, 64, 65, 66, 67, 68
    vKAc, vUBc = 69, 70
    e(f"""v_and_b32 v{T}, 1, v{vJ}
    v_mul_u32_u24 v{vKA}, {KCP}, v{T}
    v_lshrrev_b32 v{T+1}, 1, v{vJ}
    v_lshlrev_b32 v{T+1}, 6, v{T+1}
    v_lshl_add_u32 v{T+1}, v{vG}, 4, v{T+1}
    v_sub_u32 v{vKA}, v{vKA}, v{T+1}
    v_add_u32 v{vKA}, {4528 - 3584}, v{vKA}
    v_add_u32 v{vKA}, s{sSLOT}, v{vKA}
    v_mul_u32_u24 v{vUB}, {UCP}, v{T}
    v_or_b32 v{T+1}, 1, v{vJ}
    v_lshl_add_u32 v{vUB}, v{T+1}, 2, v{vUB}
    v_lshlrev_b32 v{T+1}, 4, v{vG}
    v_sub_u32 v{vUB}, v{vUB}, v{T+1}
    v_add_u32 v{vUB}, {UOFF + 52 + 448}, v{vUB}
    v_add_u32 v{vUB}, s{sSLOT}, v{vUB}
    v_lshlrev_b32 v{vL16}, 4, v{vL}
    v_add_u32 v{vKW}, s{sSLOT}, v{vL16}
    v_and_b32 v{T}, 31, v{vL}
    v_min_u32 v{T}, 29, v{T}
    v_lshlrev_b32 v{T}, 4, v{T}
    v_lshrrev_b32 v{T+1}, 5, v{vL}
    v_mul_u32_u24 v{T+1}, {KCP}, v{T+1}
    v_add3_u32 v{vZW}, v{T}, v{T+1}, s{sSLOT}
    v_lshlrev_b32 v{vES}, 7, v{vG}
    v_lshl_add_u32 v{vES}, v{vJ}, 2, v{vES}
    v_add_u32 v{vES}, s{sSLOT}, v{vES}
    v_add_u32 v{vEU}, {UOFF + UCP + 64}, v{vES}
    v_lshrrev_b32 v{T}, 3, v{vL}
    s_mov_b32 s{sA}, {640*128}
    v_mul_lo_u32 v{vYO}, v{T}, s{sA}
    v_and_b32 v{T}, 7, v{vL}
    v_lshl_add_u32 v{vYO}, v{T}, 4, v{vYO}
    v_and_b32 v{vFL}, 31, v{vL}
    v_lshlrev_b32 v{vFL}, 7, v{vFL}""")
    ZQ = 72
    for i in range(4): e(f"v_mov_b32 v{ZQ+i}, 0")
    e(f"""v_and_b32 v{T}, 3, v{vL}
    v_lshlrev_b32 v{T}, 4, v{T}
    v_bfe_u32 v{T+1}, v{vL}, 2, 1
    v_mul_u32_u24 v{T+1}, {UCP}, v{T+1}
    v_add3_u32 v{T}, v{T}, v{T+1}, s{sSLOT}
    ds_write_b128 v{T}, v[{ZQ}:{ZQ+3}] offset:{UOFF}
    s_mov_b32 s{sRND}, 0
    s_add_u32 s{sCH}, s{sD0}, s{sWAVE}
    s_mul_i32 s{sTBL}, s{sWAVE}, {TSZ}
    s_add_u32 s{sTBL}, s{sTBL}, {TB}""")
    for i in range(36): e(f"v_add_u32 v{GA+i}, s{sTBL}, v{GA+i}")
    g.stamp(2)
    AF = 76
    BF = 108
    AC = 140
    GV = 76
    OQ = 112
    a.lab("L_conv")
    for m in range(4):
        for ee in range(9):
            e(f"ds_read_u16 v{GV+9*m+ee}, v{GA+9*m+ee}")
        if m % 2 == 1 or True:
            e("s_waitcnt lgkmcnt(0)")
            q = OQ + 8*(m & 1)
            b = GV + 9*m
            for i in range(4):
                e(f"v_lshl_or_b32 v{q+i}, v{b+2*i+2}, 16, v{b+2*i+1}")
                e(f"v_lshl_or_b32 v{q+4+i}, v{b+2*i+1}, 16, v{b+2*i}")
            e(f"ds_write_b128 v{vKW}, v[{q}:{q+3}] offset:{1024*m}\nds_write_b128 v{vKW}, v[{q+4}:{q+7}] offset:{KCP + 1024*m}")
    e(f"ds_write_b128 v{vZW}, v[{ZQ}:{ZQ+3}] offset:4096")
    e(f"""s_lshr_b32 s{sA}, s{sCH}, 4
    s_mov_b32 s{sD}, {WS_FXN}""")
    for th in (7, 14, 20, 26, 32):
        e(f"s_cmp_ge_u32 s{sA}, {th}\ns_cselect_b32 s{sT}, 4096, 0\ns_add_u32 s{sD}, s{sD}, s{sT}")
    g.poll(vFL, f"s{sD}", T)
    g.stamp(3)
    e(f"""s_lshl_b32 s{sA}, s{sCH}, 12
    s_add_u32 s{sA}, s{sA}, {WS_XNT}
    s_sub_u32 s{sC}, s{sA}, 4
    s_add_u32 m0, s{sSLOT}, {UOFF + UCP + 64}
    s_lshl_b32 s{sB}, s{sCH}, 1""")
    for i in range(4): e(f"buffer_load_dwordx4 v{vL16}, {srd(SRD_WS)}, s{sA} offen offset:{1024*i} sc1 lds")
    e(f"s_add_u32 m0, s{sSLOT}, {UOFF + 64}\ns_nop 0")
    for i in range(4): e(f"buffer_load_dwordx4 v{vL16}, {srd(SRD_WS)}, s{sC} offen offset:{1024*i} sc1 lds")
    vDS = 172
    e(f"""buffer_load_ushort v{vDS}, v{vZ}, {srd(SRD_DSK)}, s{sB} offen
    v_mov_b32 v{vKAc}, v{vKA}
    v_mov_b32 v{vUBc}, v{vUB}
    v_mov_b32 v{T}, s{sSLOT}""")
    for i in range(32): e(f"v_mov_b32 v{AC+i}, 0")
    e(f"""s_mov_b32 s{sCNT}, 8
    s_waitcnt vmcnt(0)
    ds_write_b32 v{T}, v{vZ} offset:{UOFF + 64}""")
    g.stamp(4)
    a.lab("L_mu0")
    def rd(m):
        return [f"ds_read_b128 v[{AF+4*m}:{AF+4*m+3}], v{vKAc} offset:{512*(7-m)}",
                f"ds_read_b64 v[{BF+4*m}:{BF+4*m+1}], v{vUBc} offset:{512*m}",
                f"ds_read_b64 v[{BF+4*m+2}:{BF+4*m+3}], v{vUBc} offset:{512*m+8}"]
    for m in range(5):
        for s in rd(m): e(s)
    issued = 5
    for m in range(8):
        e(f"s_waitcnt lgkmcnt({3*(issued-1-m)})")
        pairs = [(m, b) for b in range(m+1) if m + b <= 7] + [(u, m) for u in range(m) if u + m <= 7]
        for k, (u, b) in enumerate(pairs):
            c = AC + 4*(u + b)
            e(f"v_mfma_f32_16x16x32_bf16 v[{c}:{c+3}], v[{AF+4*u}:{AF+4*u+3}], v[{BF+4*b}:{BF+4*b+3}], v[{c}:{c+3}]")
        if issued < 8:
            for s in rd(issued): e(s)
            issued += 1
    e(f"""v_subrev_u32 v{vKAc}, 64, v{vKAc}
    v_subrev_u32 v{vUBc}, 64, v{vUBc}
    s_sub_u32 s{sCNT}, s{sCNT}, 1
    s_cmp_lg_u32 s{sCNT}, 0
    s_cbranch_scc1 L_mu0""")
    g.stamp(5)
    UV = AF
    for c in range(8):
        e(f"ds_read2_b32 v[{UV+2*c}:{UV+2*c+1}], v{vEU} offset0:{128*c % 256} offset1:{(128*c + 16) % 256}" if c < 2 else "")
    for c in range(2, 8):
        e(f"ds_read_b32 v{UV+2*c}, v{vEU} offset:{512*c}\nds_read_b32 v{UV+2*c+1}, v{vEU} offset:{512*c+64}")
    e(f"""v_lshlrev_b32 v{vDS}, 16, v{vDS}
    v_mov_b32 v{vDS+1}, v{vDS}
    s_mov_b32 s{sB}, 0xffff0000
    s_waitcnt lgkmcnt(0)""")
    for c in range(8):
        for h in range(2):
            y = AC + 4*c + 2*h; u = UV + 2*c + h
            p0, p1 = T, T+2
            e(f"""v_cvt_pk_bf16_f32 v{p1}, v{y}, v{y+1}
            v_lshlrev_b32 v{p0}, 16, v{u}
            v_and_b32 v{p0+1}, s{sB}, v{u}
            v_pk_mul_f32 v[{p0}:{p0+1}], v[{p0}:{p0+1}], v[{vDS}:{vDS+1}]
            v_lshlrev_b32 v{y}, 16, v{p1}
            v_and_b32 v{y+1}, s{sB}, v{p1}
            v_cvt_pk_bf16_f32 v{p1}, v{p0}, v{p0+1}
            v_lshlrev_b32 v{p0}, 16, v{p1}
            v_and_b32 v{p0+1}, s{sB}, v{p1}
            v_pk_add_f32 v[{y}:{y+1}], v[{y}:{y+1}], v[{p0}:{p0+1}]
            v_cvt_pk_bf16_f32 v{y}, v{y}, v{y+1}
            ds_write_b32 v{vES}, v{y} offset:{512*c + 64*h}""")
    for i in range(4):
        e(f"ds_read_b128 v[{BF+4*i}:{BF+4*i+3}], v{vKW} offset:{1024*i}")
    e(f"""s_lshl_b32 s{sA}, s{sCH}, 7
    s_add_u32 s{sA}, s{sA}, {WS_YA}""")
    for i in range(4):
        e(f"""s_waitcnt lgkmcnt({3-i})
        buffer_store_dwordx4 v[{BF+4*i}:{BF+4*i+3}], v{vYO}, {srd(SRD_WS)}, s{sA} offen sc1
        s_add_u32 s{sA}, s{sA}, {8*640*128}""")
    g.stamp(6)
    e(f"""s_cmp_lg_u32 s{sRND}, 0
    s_cbranch_scc1 L_conv_done
    s_cmp_ge_u32 s{sWAVE}, 2
    s_cbranch_scc1 L_conv_done
    s_mov_b32 s{sRND}, 1
    s_add_u32 s{sCH}, s{sCH}, 8""")
    for i in range(36): e(f"v_add_u32 v{GA+i}, {8*TSZ}, v{GA+i}")
    e("s_branch L_conv")
    a.lab("L_conv_done")
    e(f"""s_waitcnt vmcnt(0)
    s_barrier
    s_cmp_lg_u32 s{sWAVE}, 0
    s_cbranch_scc1 L_end
    s_lshl_b32 s{sA}, s{sRB}, 7
    s_add_u32 s{sA}, s{sA}, {WS_FY}""")
    g.flag_store(sA, T)
    g.stamp(7)
    e("s_branch L_end")
```

```python
import sys, math, struct
from asmlib import Asm

KNAME = "parallel_sum__ssm_conv_s4d__mixer_gmlp__prompt_kernel"
def f2u(x): return struct.unpack("<I", struct.pack("<f", x))[0]
def hx(x): return f"0x{x:08x}"

WS_EPOCH = 0
WS_FXN   = 0x10000
WS_FZ2   = 0x20000
WS_FH    = 0x40000
WS_FY    = 0x60000
WS_FWO   = 0x70000
WS_WOT   = 0xF00000 - 0x20000
WS_STATS = 0x80000
WS_XNT   = 0x100000
WS_Z2    = 0x400000
WS_H     = 0x800000
WS_YA    = 0xC00000
WS_DBG   = 0x1000000
WS_SIZE  = 0x2000000

XT = 0; RING1 = 81920; S1SZ = 19456
NA = 10; BRING = 81920; NB = 4; BSZ = 18432
HB = 49152; YAB = 16384

sWAVE, sRB, sCB, sTAG, sT = 3, 4, 5, 6, 7
SRD_X, SRD_WIN, SRD_WSP, SRD_WOUT, SRD_OUT, SRD_WS, SRD_BSP = 8, 12, 16, 20, 24, 28, 32
def srd(n): return f"s[{n}:{n+3}]"
sW, sMH, sNH = 66, 67, 68
sWSLOT, sWSOFF, sWSL = 69, 70, 71
sXOFF, sROFF, sCNT = 72, 73, 74
sK1 = 76
sA, sB, sC, sD = 78, 79, 80, 81
sSPIN = 82
sMASK = 84
sE0 = 86
sTM = 88
sTM0 = 90
sT2 = 92
SPIN_MAX = 200000

class G:
    def __init__(self, opts):
        self.a = Asm(); self.o = opts; self.nstamp = 0
    def e(self, s):
        if self.o.get("nodma"):
            s = "\n".join(l for l in s.split("\n") if not l.strip().endswith(" lds"))
        if self.o.get("nosc1"):
            s = s.replace(" sc1 lds", " lds")
        self.a.e(s)

    def mk_srd(self, d, p, nbytes):
        self.e(f"""s_mov_b32 s{d}, s{p}
        s_mov_b32 s{d+1}, s{p+1}
        s_mov_b32 s{d+2}, {nbytes}
        s_mov_b32 s{d+3}, 0x20000""")

    def stamp(self, idx, vt=None):
        if not self.o.get("stamps"): return
        self.e(f"""s_memtime s[{sTM}:{sTM+1}]
        s_waitcnt lgkmcnt(0)
        s_sub_u32 s{sTM}, s{sTM}, s{sTM0}
        v_writelane_b32 v0, s{sTM}, {idx}""")

    def stamp_s(self, k):
        if not self.o.get("stamps"): return
        self.e(f"""s_memtime s[{sTM}:{sTM+1}]
        s_waitcnt lgkmcnt(0)
        s_sub_u32 s{96+k}, s{sTM}, s{sTM0}""")
    def stamp_flush(self):
        if not self.o.get("stamps"): return
        for k in range(5): self.e(f"v_writelane_b32 v0, s{96+k}, {40+k}")

    def stampd(self, base):
        if not self.o.get("fine"): return
        self.e(f"""s_memtime s[{sTM}:{sTM+1}]
        s_waitcnt lgkmcnt(0)
        s_sub_u32 s{sTM}, s{sTM}, s{sTM0}
        s_add_u32 m0, s{sCNT}, {base}
        s_nop 1
        v_writelane_b32 v0, s{sTM}, m0""")

    def poll(self, voff, soff, vtmp):
        L = self.a.newlab("Lpoll"); D = self.a.newlab("Lpolld")
        self.e(f"s_mov_b32 s{sSPIN}, {SPIN_MAX}")
        self.a.lab(L)
        self.e(f"""buffer_load_dword v{vtmp}, v{voff}, {srd(SRD_WS)}, {soff} offen sc1
        s_waitcnt vmcnt(0)
        v_cmp_ne_u32 vcc, s{sTAG}, v{vtmp}
        s_cbranch_vccz {D}
        s_sleep 1
        s_sub_u32 s{sSPIN}, s{sSPIN}, 1
        s_cmp_lg_u32 s{sSPIN}, 0
        s_cbranch_scc1 {L}""")
        self.a.lab(D)

    def flag_store(self, soff_sreg, vt):
        self.e(f"""v_mov_b32 v{vt}, s{sTAG}
        v_mov_b32 v{vt+1}, 0
        s_mov_b64 s[{sE0}:{sE0+1}], exec
        s_mov_b64 exec, 1
        buffer_store_dword v{vt}, v{vt+1}, {srd(SRD_WS)}, s{soff_sreg} offen sc1
        s_mov_b64 exec, s[{sE0}:{sE0+1}]""")

    def entry(self):
        e = self.e
        e(f"""s_cmp_ge_u32 s2, 256
        s_cbranch_scc1 L_exit
        s_load_dwordx16 s[36:51], s[0:1], 0
        s_load_dwordx8 s[52:59], s[0:1], 64
        s_load_dwordx4 s[60:63], s[0:1], 96
        s_load_dwordx2 s[64:65], s[0:1], 112
        v_lshrrev_b32 v1, 6, v0""")
        if self.o.get("stamps"):
            e(f"s_memtime s[{sTM0}:{sTM0+1}]")
        e(f"""v_readfirstlane_b32 s{sWAVE}, v1
        s_waitcnt lgkmcnt(0)
        s_load_dword s{sTAG}, s[64:65], {WS_EPOCH}""")
        self.mk_srd(SRD_WS, 64, WS_SIZE)
        e(f"""s_and_b32 s{sA}, s2, 7
        s_lshr_b32 s{sB}, s2, 3
        s_cmp_ge_u32 s{sB}, 24
        s_cbranch_scc1 L_ssm""")
        e(f"""s_lshr_b32 s{sRB}, s{sA}, 1
        s_lshl_b32 s{sRB}, s{sRB}, 3
        s_and_b32 s{sC}, s{sB}, 7
        s_add_u32 s{sRB}, s{sRB}, s{sC}
        s_and_b32 s{sCB}, s{sA}, 1
        s_mul_i32 s{sCB}, s{sCB}, 3
        s_lshr_b32 s{sC}, s{sB}, 3
        s_add_u32 s{sCB}, s{sCB}, s{sC}
        s_and_b32 s{sW}, s{sWAVE}, 3
        s_lshr_b32 s{sMH}, s{sW}, 1
        s_and_b32 s{sNH}, s{sW}, 1""")
        self.mk_srd(SRD_X, 36, 2048*640*2)
        self.mk_srd(SRD_WIN, 52, 640*1728*2)
        self.mk_srd(SRD_WSP, 54, 2048*2048*2)
        self.mk_srd(SRD_BSP, 56, 2048*2)
        self.mk_srd(SRD_WOUT, 58, 864*640*2)
        self.mk_srd(SRD_OUT, 60, 2048*640*2)

    vL = 1
    vWOFF = 2
    vX0, vX1 = 8, 9
    vWB, vWB4 = 10, 11
    vA0, vA1, vB0, vB4 = 12, 13, 14, 15
    vT = 16
    vK0 = 32
    FS = (40, 96)
    ACC = 152
    Z1 = 192
    XR = 40

    def w_ops(self):
        g = []
        for i in range(4):
            g.append(f"""s_add_u32 m0, s{sWSLOT}, {i*4096}
            s_nop 0
            buffer_load_dwordx4 v{self.vWOFF+i}, {srd(SRD_WIN)}, s{sWSOFF} offen lds""")
        L = self.a.newlab("Lsk")
        g.append(f"""s_cmp_eq_u32 s{sW}, 3
        s_cbranch_scc1 {L}
        s_add_u32 m0, s{sWSLOT}, {4*4096}
        s_nop 0
        buffer_load_dwordx4 v{self.vWOFF+4}, {srd(SRD_WIN)}, s{sWSOFF} offen lds
        {L}:
        s_add_u32 s{sWSLOT}, s{sWSLOT}, {S1SZ}
        s_cmp_ge_u32 s{sWSLOT}, {RING1 + 4*S1SZ}
        s_cselect_b32 s{sT}, {4*S1SZ}, 0
        s_sub_u32 s{sWSLOT}, s{sWSLOT}, s{sT}
        s_add_u32 s{sWSOFF}, s{sWSOFF}, {64*3456}
        s_add_u32 s{sWSL}, s{sWSL}, 1
        s_cmp_ge_u32 s{sWSL}, 10
        s_cselect_b32 s{sT}, {640*3456}, 0
        s_cselect_b32 s{sT2}, 10, 0
        s_sub_u32 s{sWSOFF}, s{sWSOFF}, s{sT}
        s_sub_u32 s{sWSL}, s{sWSL}, s{sT2}""")
        return g
    def issue_w(self):
        for g in self.w_ops(): self.e(g)

    def gemm_prologue(self):
        e = self.e; T = self.vT; XR = self.XR; vL = self.vL
        sXS = sROFF
        self.stamp_s(0)
        e(f"""v_and_b32 v{vL}, 63, v0
        v_lshrrev_b32 v{T}, 3, v0
        v_and_b32 v{T+1}, 7, v0
        v_mul_u32_u24 v{T+2}, 1280, v{T}
        v_lshl_add_u32 v{T+2}, v{T+1}, 4, v{T+2}
        s_mul_i32 s{sA}, s{sRB}, {64*1280}
        s_lshr_b32 s{sXS}, s2, 6
        s_mul_i32 s{sXS}, s{sXS}, {self.o.get("xrot", 3)}
        s_lshl_b32 s{sB}, s{sXS}, 7""")
        for j in range(10):
            e(f"""s_add_u32 s{sC}, s{sA}, s{sB}
            buffer_load_dwordx4 v[{XR+4*j}:{XR+4*j+3}], v{T+2}, {srd(SRD_X)}, s{sC} offen
            s_add_u32 s{sB}, s{sB}, 128
            s_cmp_ge_u32 s{sB}, 1280
            s_cselect_b32 s{sB}, 0, s{sB}""")
        e(f"s_lshl_b32 s{sA}, s{sW}, 6")
        for i in range(5):
            p, gq, rem, k8, d = T+4, T+5, T+6, T+7, self.vWOFF + i
            e(f"""v_add_u32 v{p}, s{sA}, v{vL}
            v_add_u32 v{p}, {256*i}, v{p}
            v_mul_u32_u24 v{gq}, 6899, v{p}
            v_lshrrev_b32 v{gq}, 20, v{gq}
            v_mul_u32_u24 v{rem}, 152, v{gq}
            v_sub_u32 v{rem}, v{p}, v{rem}
            v_mul_u32_u24 v{k8}, 3641, v{rem}
            v_lshrrev_b32 v{k8}, 16, v{k8}
            v_mul_u32_u24 v{d}, 18, v{k8}
            v_sub_u32 v{rem}, v{rem}, v{d}
            v_cmp_gt_u32 vcc, 8, v{k8}
            v_lshl_add_u32 v{k8}, v{gq}, 3, v{k8}
            v_mul_u32_u24 v{d}, 3456, v{k8}
            v_lshl_add_u32 v{d}, v{rem}, 4, v{d}
            v_mov_b32 v{p}, 0x7fff0000
            v_cndmask_b32 v{d}, v{p}, v{d}, vcc""")
        e(f"""s_and_b32 s{sWSL}, s{sRB}, 7
        s_mul_i32 s{sWSOFF}, s{sWSL}, {64*3456}
        s_mul_i32 s{sA}, s{sCB}, 288
        s_add_u32 s{sWSOFF}, s{sWSOFF}, s{sA}
        s_add_u32 s{sWSOFF}, s{sWSOFF}, 1728
        s_lshl_b32 s{sWSLOT}, s{sW}, 10
        s_add_u32 s{sWSLOT}, s{sWSLOT}, {RING1}
        s_lshl_b32 s{sXOFF}, s{sWSL}, 13""")
        g, c15 = T+4, T+5
        e(f"""v_bfe_u32 v{T+3}, v{T}, 1, 3
        v_xor_b32 v{T+3}, v{T+3}, v{T+1}
        v_lshlrev_b32 v{T+3}, 4, v{T+3}
        v_lshl_add_u32 v{T+3}, v{T}, 7, v{T+3}
        v_lshrrev_b32 v{g}, 4, v{vL}
        v_and_b32 v{c15}, 15, v{vL}
        v_lshrrev_b32 v{T+6}, 1, v{c15}
        v_xor_b32 v{T+6}, v{T+6}, v{g}
        v_lshlrev_b32 v{T+6}, 4, v{T+6}
        v_lshl_add_u32 v{self.vX0}, v{c15}, 7, v{T+6}
        s_lshl_b32 s{sA}, s{sMH}, 12
        v_add_u32 v{self.vX0}, s{sA}, v{self.vX0}
        v_xor_b32 v{self.vX1}, 64, v{self.vX0}
        v_mul_u32_u24 v{self.vWB4}, 2432, v{g}
        v_bfe_u32 v{T+6}, v{vL}, 2, 2
        v_mul_u32_u24 v{T+6}, 288, v{T+6}
        v_add_u32 v{self.vWB4}, v{self.vWB4}, v{T+6}
        v_and_b32 v{T+6}, 3, v{vL}
        v_lshl_add_u32 v{self.vWB4}, v{T+6}, 3, v{self.vWB4}
        s_mul_i32 s{sA}, s{sNH}, 160
        v_add_u32 v{self.vWB}, s{sA}, v{self.vWB4}
        v_add_u32 v{self.vWB4}, 128, v{self.vWB4}
        s_mov_b32 s{sK1}, {hx(f2u(-2.302208198*0.044715))}
        s_mov_b32 s{sK1+1}, {hx(f2u(-2.302208198*0.044715))}
        v_mov_b32 v{self.vK0}, {hx(f2u(-2.302208198))}
        v_mov_b32 v{self.vK0+1}, {hx(f2u(-2.302208198))}""")
        def ydma(grp):
            L = self.a.newlab("Lyd")
            e(f"s_cmp_lt_u32 s{sWAVE}, 4\ns_cbranch_scc1 {L}")
            e(grp)
            self.a.lab(L)
        S, Q = T+8, T+9
        e(f"""v_mov_b32 v{S}, 0
        v_mov_b32 v{Q}, 0
        s_mov_b32 s{sA}, 0x3f803f80""")
        for j in range(10):
            if j == 0: self.stamp_s(1)
            e(f"s_waitcnt vmcnt({9-j})")
            if j == 0: self.stamp_s(2)
            if j == 9: self.stamp_s(3)
            for i in range(4*j, 4*j+4):
                e(f"v_dot2c_f32_bf16 v{S}, s{sA}, v{XR+i}\nv_dot2c_f32_bf16 v{Q}, v{XR+i}, v{XR+i}")
        groups = []
        for st in range(4): groups += self.w_ops()
        ydma("\n".join(groups[:5])); groups = groups[5:]
        self.stamp_s(4)
        for m in ("quad_perm:[1,0,3,2]", "quad_perm:[2,3,0,1]", "row_half_mirror"):
            e(f"v_add_f32_dpp v{S}, v{S}, v{S} {m} row_mask:0xf bank_mask:0xf\nv_add_f32_dpp v{Q}, v{Q}, v{Q} {m} row_mask:0xf bank_mask:0xf")
        self.ln_params(S, Q, 640, T+10, T+12, T+14)
        NM, RS = T+10, T+12
        e(f"s_mov_b32 s{sA}, 0xffff0000\ns_lshl_b32 s{sB}, s{sXS}, 13")
        for i in range(40):
            r = XR + i
            a = (T+14, T+4)[i & 1]; b = a + 1
            e(f"""v_lshlrev_b32 v{a}, 16, v{r}
            v_and_b32 v{b}, s{sA}, v{r}
            v_pk_add_f32 v[{a}:{b}], v[{a}:{b}], v[{NM}:{NM+1}]
            v_cvt_pk_bf16_f32 v{r}, v{a}, v{b}
            v_lshlrev_b32 v{a}, 16, v{r}
            v_and_b32 v{b}, s{sA}, v{r}
            v_pk_mul_f32 v[{a}:{b}], v[{a}:{b}], v[{RS}:{RS+1}]
            v_cvt_pk_bf16_f32 v{r}, v{a}, v{b}""")
            if i % 4 == 3:
                j = i // 4
                e(f"""v_add_u32 v{T+6}, s{sB}, v{T+3}
                ds_write_b128 v{T+6}, v[{XR+4*j}:{XR+4*j+3}]
                s_add_u32 s{sB}, s{sB}, 8192
                s_cmp_ge_u32 s{sB}, 81920
                s_cselect_b32 s{sB}, 0, s{sB}""")
            if i % 8 == 5 and groups:
                ydma("\n".join(groups[:3])); groups = groups[3:]
        assert not groups
        self.stamp_flush()
        e(f"""s_waitcnt lgkmcnt(0)
        s_mul_i32 s{sTAG}, s{sTAG}, 0x9E3779B1
        s_add_u32 s{sTAG}, s{sTAG}, 0x7F4A7C15
        s_cmp_ge_u32 s{sWAVE}, 4
        s_cbranch_scc1 L_Y""")

    def ln_params(self, S, Q, n, NM, RS, t):
        self.e(f"""v_mul_f32 v{S}, {hx(f2u(1.0/n))}, v{S}
        v_mul_f32 v{Q}, {hx(f2u(1.0/n))}, v{Q}
        v_fma_f32 v{Q}, -v{S}, v{S}, v{Q}
        v_max_f32 v{Q}, 0, v{Q}
        v_cvt_pk_bf16_f32 v{t}, v{S}, v{Q}
        v_lshlrev_b32 v{NM}, 16, v{t}
        v_xor_b32 v{NM}, 0x80000000, v{NM}
        v_mov_b32 v{NM+1}, v{NM}
        v_and_b32 v{Q}, 0xffff0000, v{t}
        v_add_f32 v{Q}, {hx(f2u(1e-5))}, v{Q}
        v_cvt_pk_bf16_f32 v{t}, v{Q}, v{Q}
        v_lshlrev_b32 v{Q}, 16, v{t}
        v_sqrt_f32 v{Q}, v{Q}
        v_cvt_pk_bf16_f32 v{t}, v{Q}, v{Q}
        v_lshlrev_b32 v{Q}, 16, v{t}
        v_rcp_f32 v{RS}, v{Q}
        v_mov_b32 v{RS+1}, v{RS}""")


    def p1_reads(self, F):
        out = []
        for ks in range(2):
            Fk = F + 28*ks
            vx = self.vA0 if ks == 0 else self.vA1
            for a in range(2):
                out.append(f"ds_read_b128 v[{Fk+4*a}:{Fk+4*a+3}], v{vx} offset:{2048*a}")
            for j in range(5):
                base = self.vB0 if j < 4 else self.vB4
                off = ks*9728 + (32*j if j < 4 else 0)
                for h in range(2):
                    r = Fk + 8 + 4*j + 2*h
                    out.append(f"ds_read_b64_tr_b16 v[{r}:{r+1}], v{base} offset:{off + h*1152}")
        return out
    def p2_reads(self, F):
        out = []
        for ks in range(2):
            Fk = F + 28*ks
            vx = self.vA0 if ks == 0 else self.vA1
            out += [f"ds_read_b128 v[{Fk+4*a}:{Fk+4*a+3}], v{vx} offset:{2048*a}" for a in range(2)]
            for j in range(5):
                base = self.vB0 if j < 4 else self.vB4
                off = ks*9216 + (1024*j if j < 4 else 0)
                out.append(f"ds_read_b128 v[{Fk+8+4*j}:{Fk+8+4*j+3}], v{base} offset:{off}")
        return out
    def mfmas(self, F, swap, first=False):
        out = []
        for ks in range(2):
            Fk = F + 28*ks
            for j in range(5):
                for a in range(2):
                    c = self.ACC + 4*(2*j + a)
                    X = f"v[{Fk+4*a}:{Fk+4*a+3}]"; W = f"v[{Fk+8+4*j}:{Fk+8+4*j+3}]"
                    A, B = (W, X) if swap else (X, W)
                    C = "0" if (first and ks == 0) else f"v[{c}:{c+3}]"
                    out.append(f"v_mfma_f32_16x16x32_bf16 v[{c}:{c+3}], {A}, {B}, {C}")
        return out
    def interleave(self, reads, mf, per=2):
        out = []; ri = 0
        for m in mf:
            out.append(m)
            for _ in range(per):
                if ri < len(reads): out.append(reads[ri]); ri += 1
        out += reads[ri:]
        return out

    def compute_loop(self, n, swap, reads_fn, addr_fn, tagname, vmwait=False):
        e = self.e
        endw = f"s_waitcnt {'vmcnt(0) ' if vmwait else ''}lgkmcnt(0)"
        def stage(rd, mf):
            addr_fn()
            e("s_barrier")
            per = 2 if len(rd) > 16 else 1
            if self.o.get("noread"): rd = []
            if self.o.get("nomfma"): mf = []
            for s in self.interleave(rd, mf, per): e(s)
        F0, F1 = self.FS
        stage(reads_fn(F0), []); e(endw)
        stage(reads_fn(F1), self.mfmas(F0, swap, True)); e(endw)
        L = self.a.newlab("Lc" + tagname)
        e(f"s_mov_b32 s{sCNT}, {(n-2)//2}")
        self.a.lab(L)
        stage(reads_fn(F0), self.mfmas(F1, swap)); e(endw)
        stage(reads_fn(F1), self.mfmas(F0, swap))
        e(f"""s_sub_u32 s{sCNT}, s{sCNT}, 1
        s_cmp_lg_u32 s{sCNT}, 0
        {endw}
        s_cbranch_scc1 {L}""")
        return self.mfmas(F1, swap)

    def ring_addr(self, asz_total, bbase, bsz, nb):
        self.e(f"""v_add_u32 v{self.vA0}, s{sXOFF}, v{self.vX0}
        v_add_u32 v{self.vA1}, s{sXOFF}, v{self.vX1}
        v_add_u32 v{self.vB0}, s{sROFF}, v{self.vWB}
        v_add_u32 v{self.vB4}, s{sROFF}, v{self.vWB4}
        s_add_u32 s{sXOFF}, s{sXOFF}, 8192
        s_cmp_ge_u32 s{sXOFF}, {asz_total}
        s_cselect_b32 s{sXOFF}, 0, s{sXOFF}
        s_add_u32 s{sROFF}, s{sROFF}, {bsz}
        s_cmp_ge_u32 s{sROFF}, {bbase + nb*bsz}
        s_cselect_b32 s{sROFF}, {bbase}, s{sROFF}""")
    def p1_addr(self): self.ring_addr(81920, RING1, S1SZ, 4)
    def p2_addr(self): self.ring_addr(NA*8192, BRING, BSZ, NB)

    def gelu_pair(self, r, t, dst=None, packed=None):
        d = r if dst is None else dst
        self.e(f"""v_pk_mul_f32 v[{t}:{t+1}], v[{r}:{r+1}], v[{r}:{r+1}]
        v_pk_fma_f32 v[{t}:{t+1}], v[{t}:{t+1}], s[{sK1}:{sK1+1}], v[{self.vK0}:{self.vK0+1}]
        v_pk_mul_f32 v[{t}:{t+1}], v[{t}:{t+1}], v[{r}:{r+1}]
        v_exp_f32 v{t}, v{t}
        v_exp_f32 v{t+1}, v{t+1}
        v_pk_add_f32 v[{t}:{t+1}], v[{t}:{t+1}], 1.0 op_sel_hi:[1,0]
        v_rcp_f32 v{t}, v{t}
        v_rcp_f32 v{t+1}, v{t+1}
        v_pk_mul_f32 v[{t}:{t+1}], v[{t}:{t+1}], v[{r}:{r+1}]
        v_cvt_pk_bf16_f32 v{t if packed is None else packed}, v{t}, v{t+1}""")
        if packed is None:
            self.e(f"v_lshlrev_b32 v{d}, 16, v{t}\nv_and_b32 v{d+1}, s{sB}, v{t}")

    def gelu_list(self, r, t, packed=None, stats=None):
        L = [f"v_pk_mul_f32 v[{t}:{t+1}], v[{r}:{r+1}], v[{r}:{r+1}]",
             f"v_pk_fma_f32 v[{t}:{t+1}], v[{t}:{t+1}], s[{sK1}:{sK1+1}], v[{self.vK0}:{self.vK0+1}]",
             f"v_pk_mul_f32 v[{t}:{t+1}], v[{t}:{t+1}], v[{r}:{r+1}]",
             f"v_exp_f32 v{t}, v{t}", f"v_exp_f32 v{t+1}, v{t+1}",
             f"v_pk_add_f32 v[{t}:{t+1}], v[{t}:{t+1}], 1.0 op_sel_hi:[1,0]",
             f"v_rcp_f32 v{t}, v{t}", f"v_rcp_f32 v{t+1}, v{t+1}",
             f"v_pk_mul_f32 v[{t}:{t+1}], v[{t}:{t+1}], v[{r}:{r+1}]",
             f"v_cvt_pk_bf16_f32 v{t if packed is None else packed}, v{t}, v{t+1}"]
        if packed is None:
            L += [f"v_lshlrev_b32 v{r}, 16, v{t}", f"v_and_b32 v{r+1}, s{sB}, v{t}"]
        if stats:
            s_, q_ = stats
            L += [f"v_pk_add_f32 v[{s_}:{s_+1}], v[{s_}:{s_+1}], v[{r}:{r+1}]",
                  f"v_pk_fma_f32 v[{q_}:{q_+1}], v[{r}:{r+1}], v[{r}:{r+1}], v[{q_}:{q_+1}]"]
        return L
    def rr(self, lists):
        n = max(len(l) for l in lists)
        for i in range(n):
            for l in lists:
                if i < len(l): self.e(l[i])

    def dump_regs(self, r0, n, slot, vt):
        self.e(f"""s_lshl_b32 s{sA}, s2, 3
        s_add_u32 s{sA}, s{sA}, s{sWAVE}
        s_mul_i32 s{sA}, s{sA}, {n*256}
        s_add_u32 s{sA}, s{sA}, {WS_DBG + 0x100000 + slot*0x600000}
        v_lshlrev_b32 v{vt}, 2, v{self.vL}""")
        for i in range(n):
            self.e(f"buffer_store_dword v{r0+i}, v{vt}, {srd(SRD_WS)}, s{sA} offen\ns_add_u32 s{sA}, s{sA}, 256")


    P3ORD = [0,1,2,3, 4,5,6,7,24, 8,9,10,11, 12,13,14,15,25, 16,17,18,19, 20,21,22,23,26]
    NWS = 21
    XA = 208
    def wreg(self, pos, ee): return 40 + ((pos % self.NWS)*2 + ee)*4
    def wload(self, pos):
        ks = self.P3ORD[pos]
        out = []
        for ee in range(2):
            r = self.wreg(pos, ee)
            out.append(f"s_add_u32 s{sT}, s{93+ee}, {(ks//4)*4096}\nbuffer_load_dwordx4 v[{r}:{r+3}], v7, {srd(SRD_WS)}, s{sT} offen offset:{(ks%4)*1024} sc1")
        return out

    def x_path(self):
        e = self.e; T = self.vT; ACC = self.ACC; vL = self.vL
        self.stamp(0)
        e(f"s_mov_b32 s{sROFF}, {RING1}")
        tail = self.compute_loop(10, False, self.p1_reads, self.p1_addr, "p1a")
        e(f"""s_and_b32 s{sWSL}, s{sRB}, 7
        s_add_u32 s{sWSL}, s{sWSL}, 3
        s_cmp_ge_u32 s{sWSL}, 10
        s_cselect_b32 s{sT}, 10, 0
        s_sub_u32 s{sWSL}, s{sWSL}, s{sT}
        s_mul_i32 s{sWSOFF}, s{sWSL}, {64*3456}
        s_mul_i32 s{sA}, s{sCB}, 288
        s_add_u32 s{sWSOFF}, s{sWSOFF}, s{sA}
        s_lshl_b32 s{sWSLOT}, s{sW}, 10
        s_add_u32 s{sWSLOT}, s{sWSLOT}, {RING1 + S1SZ}
        s_mov_b32 s{sB}, 0xffff0000
        s_barrier""")
        for m in tail: e(m)
        self.stamp(1)
        SS = 192
        for i in range(16): e(f"v_mov_b32 v{SS+i}, 0")
        vmw = lambda n: f"s_waitcnt vmcnt({n})"
        def do_frag(j):
            self.rr([self.gelu_list(ACC + 4*(2*j + a) + 2*h, T + 2*(2*a + h), stats=(SS + 4*a + 2*h, SS + 8 + 4*a + 2*h))
                     for a in range(2) for h in range(2)])
        e("s_barrier")
        do_frag(0); do_frag(1)
        e("s_barrier")
        do_frag(2); do_frag(3)
        Ls = self.a.newlab("Lz4")
        e(f"s_cmp_eq_u32 s{sNH}, 1\ns_cbranch_scc1 {Ls}")
        do_frag(4)
        self.a.lab(Ls)
        cur = [SS + i for i in range(16)]
        steps = [(8, "row_mirror"), (4, "row_half_mirror"), (2, "quad_perm:[2,3,0,1]"), (1, "quad_perm:[1,0,3,2]")]
        for bit, mode in steps:
            e(f"v_and_b32 v{T}, {bit}, v{vL}\nv_cmp_ne_u32 vcc, 0, v{T}")
            n = len(cur) // 2
            for i in range(n):
                lo, hi = cur[i], cur[i + n]
                e(f"v_cndmask_b32 v{T+1+i}, v{hi}, v{lo}, vcc\nv_cndmask_b32 v{lo}, v{lo}, v{hi}, vcc")
            for i in range(n):
                e(f"v_add_f32_dpp v{cur[i]}, v{T+1+i}, v{cur[i]} {mode} row_mask:0xf bank_mask:0xf")
            cur = cur[:n]
        val = cur[0]
        e(f"""v_mov_b32 v{val+1}, s{sTAG}
        v_lshlrev_b32 v{T}, 3, v{vL}
        s_lshl_b32 s{sC}, s{sRB}, 1
        s_add_u32 s{sC}, s{sC}, s{sMH}
        s_mul_i32 s{sC}, s{sC}, {12*512}
        s_add_u32 s{sC}, s{sC}, {WS_STATS}
        s_lshl_b32 s{sA}, s{sCB}, 1
        s_add_u32 s{sA}, s{sA}, s{sNH}
        s_lshl_b32 s{sA}, s{sA}, 9
        s_add_u32 s{sA}, s{sA}, s{sC}
        buffer_store_dwordx2 v[{val}:{val+1}], v{T}, {srd(SRD_WS)}, s{sA} offen sc1""")
        self.stamp(2)
        self.issue_w(); self.issue_w()
        e(vmw(4))
        e("s_barrier")
        self.issue_w(); self.issue_w()
        e(vmw(8))
        e("s_barrier")
        self.issue_w()
        e(f"""v_lshlrev_b32 v7, 4, v{vL}
        v_and_b32 v{T+3}, 31, v{vL}
        v_min_u32 v{T+3}, 26, v{T+3}
        v_lshlrev_b32 v{T+3}, 7, v{T+3}
        s_min_u32 s{sA}, s{sCB}, 4
        s_lshl_b32 s91, s{sA}, 1
        s_add_u32 s91, s91, s{sMH}
        s_lshl_b32 s91, s91, 12
        s_add_u32 s91, s91, {WS_FWO}
        s_lshl_b32 s{sA}, s{sA}, 2
        s_add_u32 s{sA}, s{sA}, s{sW}
        s_mul_i32 s93, s{sA}, {2*27*1024}
        s_add_u32 s93, s93, {WS_WOT}
        s_add_u32 s94, s93, {27*1024}""")
        e(vmw(8))
        e("s_barrier")
        self.issue_w()
        e(vmw(8))
        e("s_barrier")
        self.issue_w()
        self.stamp(3)
        PR = 128
        L = self.a.newlab("Lst"); D = self.a.newlab("Lstd")
        e(f"s_mov_b32 s{sSPIN}, {SPIN_MAX}\ns_add_u32 s{sA}, s{sC}, 4096")
        def stat_loads():
            for p in range(12):
                e(f"buffer_load_dwordx2 v[{PR+2*p}:{PR+2*p+1}], v{T}, {srd(SRD_WS)}, s{sC if p < 8 else sA} offen offset:{512*(p%8)} sc1")
        stat_loads()
        e("s_waitcnt vmcnt(20)\ns_barrier")
        e("s_waitcnt vmcnt(16)\ns_barrier")
        e("s_waitcnt vmcnt(12)\ns_barrier")
        Lchk = self.a.newlab("Lchk")
        e(f"s_branch {Lchk}")
        self.a.lab(L)
        stat_loads()
        self.a.lab(Lchk)
        e("s_waitcnt vmcnt(0)")
        e(f"v_xor_b32 v{T+1}, s{sTAG}, v{PR+1}")
        for p in range(1, 12):
            e(f"v_xor_b32 v{T+2}, s{sTAG}, v{PR+2*p+1}\nv_or_b32 v{T+1}, v{T+1}, v{T+2}")
        e(f"""v_cmp_ne_u32 vcc, 0, v{T+1}
        s_cbranch_vccz {D}
        s_sub_u32 s{sSPIN}, s{sSPIN}, 1
        s_cmp_lg_u32 s{sSPIN}, 0
        s_cbranch_scc1 {L}""")
        self.a.lab(D)
        self.stamp(4)
        for p in range(1, 12):
            e(f"v_add_f32 v{PR}, v{PR}, v{PR+2*p}")
        e(f"v_mov_b32_dpp v{PR+1}, v{PR} row_ror:8 row_mask:0xf bank_mask:0xf")
        self.ln_params(PR, PR+1, 864, T+10, T+12, T+14)
        for i in range(8):
            e(f"v_mov_b32_dpp v{SS+i}, v{T+10} row_newbcast:{i} row_mask:0xf bank_mask:0xf")
            e(f"v_mov_b32_dpp v{SS+8+i}, v{T+12} row_newbcast:{i} row_mask:0xf bank_mask:0xf")
        e(f"""v_lshrrev_b32 v{T}, 4, v{vL}
        v_and_b32 v{T+1}, 1, v{T}
        v_lshrrev_b32 v{T}, 1, v{T}
        v_lshl_add_u32 v{T}, v{T+1}, 1, v{T}
        v_lshlrev_b32 v{T}, 8, v{T}
        v_and_b32 v{T+1}, 15, v{vL}
        v_lshl_add_u32 v{T}, v{T+1}, 4, v{T}
        s_lshl_b32 s{sA}, s{sCB}, 5
        s_add_u32 s{sA}, s{sA}, s{sRB}
        s_mul_i32 s{sA}, s{sA}, 18432
        s_mul_i32 s{sC}, s{sMH}, 9216
        s_add_u32 s{sA}, s{sA}, s{sC}
        s_add_u32 s{sA}, s{sA}, {WS_Z2}
        s_mul_i32 s{sC}, s{sNH}, 5120
        s_add_u32 s{sC}, s{sC}, s{sA}
        s_add_u32 s{sA}, s{sA}, 4096""")
        Q4 = PR
        Ls = self.a.newlab("Lz4b")
        for j in range(5):
            if j == 4: e(f"s_cmp_eq_u32 s{sNH}, 1\ns_cbranch_scc1 {Ls}")
            q = Q4 + 4*j
            ls = []
            for a in range(2):
                for h in range(2):
                    r = ACC + 4*(2*j + a) + 2*h
                    nm, rs = SS + 4*a + 2*h, SS + 8 + 4*a + 2*h
                    d = q + 2*a + h
                    ls.append([f"v_pk_add_f32 v[{r}:{r+1}], v[{r}:{r+1}], v[{nm}:{nm+1}]",
                    f"v_cvt_pk_bf16_f32 v{d}, v{r}, v{r+1}",
                    f"v_lshlrev_b32 v{r}, 16, v{d}",
                    f"v_and_b32 v{r+1}, s{sB}, v{d}",
                    f"v_pk_mul_f32 v[{r}:{r+1}], v[{r}:{r+1}], v[{rs}:{rs+1}]",
                    f"v_cvt_pk_bf16_f32 v{d}, v{r}, v{r+1}"])
            self.rr(ls)
            e(f"v_permlane16_swap_b32 v{q}, v{q+2}\nv_permlane16_swap_b32 v{q+1}, v{q+3}")
            if j < 4:
                e(f"buffer_store_dwordx4 v[{q}:{q+3}], v{T}, {srd(SRD_WS)}, s{sC} offen offset:{1024*j} sc1")
            else:
                e(f"buffer_store_dwordx4 v[{q}:{q+3}], v{T}, {srd(SRD_WS)}, s{sA} offen sc1")
        self.a.lab(Ls)
        self.x_p2_setup()
        e(f"""s_lshl_b32 s{sD}, s{sCB}, 2
        s_add_u32 s{sD}, s{sD}, s{sW}
        s_lshl_b32 s{sD}, s{sD}, 12
        s_add_u32 s{sD}, s{sD}, {WS_FZ2}
        s_lshl_b32 s{sA}, s{sRB}, 7
        s_add_u32 s{sA}, s{sA}, s{sD}
        s_waitcnt vmcnt(0)""")
        self.flag_store(sA, T+8)
        self.stamp(5)
        e("s_barrier")
        self.x_p2_loader()
        self.x_p3()

    def x_p2_setup(self):
        e = self.e; T = self.vT + 4; vL = self.vL
        e(f"s_lshl_b32 s{sT2}, s{sW}, 4")
        for i in range(2):
            e(f"""v_lshrrev_b32 v{T}, 3, v{vL}
            v_add_u32 v{T}, s{sT2}, v{T}
            v_add_u32 v{T}, {8*i}, v{T}
            v_bfe_u32 v{T+1}, v{T}, 1, 3
            v_and_b32 v{T+2}, 7, v{vL}
            v_xor_b32 v{T+1}, v{T+1}, v{T+2}
            v_lshlrev_b32 v{T+1}, 4, v{T+1}
            v_lshl_add_u32 v{2+i}, v{T}, 12, v{T+1}""")
        e(f"""v_and_b32 v5, 31, v{vL}
        v_lshlrev_b32 v5, 7, v5
        s_and_b32 s{sWSL}, s{sRB}, {self.o.get("rotmask", 7)}
        s_lshl_b32 s{sWSL}, s{sWSL}, {self.o.get("rotsh", 2)}
        s_mov_b32 s95, s{sWSL}
        s_lshl_b32 s{sWSOFF}, s{sRB}, 18
        s_lshl_b32 s{sT}, s{sWSL}, 7
        s_add_u32 s{sWSOFF}, s{sWSOFF}, s{sT}
        s_lshl_b32 s{sWSLOT}, s{sW}, 11
        s_mul_i32 s{sMASK}, s{sMH}, 9216
        s_mul_i32 s{sT}, s{sNH}, 5120
        s_add_u32 s{sMASK}, s{sMASK}, s{sT}
        s_lshl_b32 s{sT}, s{sCB}, 5
        s_add_u32 s{sT}, s{sT}, s{sWSL}
        s_mul_i32 s{sXOFF}, s{sT}, 18432
        s_add_u32 s{sXOFF}, s{sXOFF}, s{sMASK}
        s_add_u32 s{sXOFF}, s{sXOFF}, {WS_Z2}
        s_add_u32 s{sROFF}, s{sMASK}, {BRING}""")
    def issue_a(self):
        self.e(f"""s_mov_b32 m0, s{sWSLOT}
        s_add_u32 s{sWSL}, s{sWSL}, 1
        buffer_load_dwordx4 v2, {srd(SRD_WSP)}, s{sWSOFF} offen lds
        s_add_u32 m0, m0, 1024
        s_add_u32 s{sWSLOT}, s{sWSLOT}, 8192
        buffer_load_dwordx4 v3, {srd(SRD_WSP)}, s{sWSOFF} offen lds
        s_cmp_ge_u32 s{sWSLOT}, {NA*8192}
        s_cselect_b32 s{sT}, {NA*8192}, 0
        s_sub_u32 s{sWSLOT}, s{sWSLOT}, s{sT}
        s_add_u32 s{sWSOFF}, s{sWSOFF}, 128
        s_cmp_ge_u32 s{sWSL}, 32
        s_cselect_b32 s{sT}, 4096, 0
        s_and_b32 s{sWSL}, s{sWSL}, 31
        s_sub_u32 s{sWSOFF}, s{sWSOFF}, s{sT}""")
    def issue_b(self):
        e = self.e
        e(f"s_mov_b32 m0, s{sROFF}\ns_add_u32 s95, s95, 1")
        for i in range(4):
            e(f"buffer_load_dwordx4 v7, {srd(SRD_WS)}, s{sXOFF} offen offset:{1024*i} sc1 lds")
        L = self.a.newlab("Lsk")
        e(f"""s_cmp_eq_u32 s{sNH}, 1
        s_cbranch_scc1 {L}
        s_add_u32 m0, m0, 4096
        s_add_u32 s{sT}, s{sXOFF}, 4096
        buffer_load_dwordx4 v7, {srd(SRD_WS)}, s{sT} offen sc1 lds""")
        self.a.lab(L)
        e(f"""s_add_u32 s{sROFF}, s{sROFF}, {BSZ}
        s_cmp_ge_u32 s{sROFF}, {BRING + NB*BSZ}
        s_cselect_b32 s{sT}, {NB*BSZ}, 0
        s_sub_u32 s{sROFF}, s{sROFF}, s{sT}
        s_add_u32 s{sXOFF}, s{sXOFF}, 18432
        s_cmp_ge_u32 s95, 32
        s_cselect_b32 s{sT}, {32*18432}, 0
        s_and_b32 s95, s95, 31
        s_sub_u32 s{sXOFF}, s{sXOFF}, s{sT}""")
    def loop(self, n, fn, name):
        L = self.a.newlab(name)
        self.e(f"s_mov_b32 s{sCNT}, {n}")
        self.a.lab(L)
        fn()
        self.e(f"s_sub_u32 s{sCNT}, s{sCNT}, 1\ns_cmp_lg_u32 s{sCNT}, 0\ns_cbranch_scc1 {L}")

    def x_p2_loader(self):
        e = self.e; T = self.vT
        self.loop(NA, self.issue_a, "Lpa")
        self.poll(T+3, "s91", T)
        for pos in range(self.NWS):
            for s_ in self.wload(pos): e(s_)
        self.poll(5, f"s{sD}", T)
        self.stamp(6)
        self.issue_b(); self.issue_b()
        e("s_waitcnt vmcnt(4)\ns_barrier")
        self.issue_b(); self.issue_b()
        e("s_waitcnt vmcnt(8)")
        def full():
            e("s_barrier")
            self.stampd(12)
            self.issue_b(); self.issue_a()
            e("s_waitcnt vmcnt(12)")
        def bonly():
            e("s_barrier")
            self.issue_b()
            e("s_waitcnt vmcnt(8)")
        nfull = 32 - NA
        e("s_barrier"); self.issue_b(); self.issue_a(); e("s_waitcnt vmcnt(10)")
        self.loop(nfull - 1, full, "Lp2f")
        self.loop(32 - 3 - 1 - nfull, bonly, "Lp2b")
        e("s_barrier\ns_waitcnt vmcnt(4)")
        e("s_barrier\ns_waitcnt vmcnt(0)")
        e("s_barrier")
        self.stamp(7)

    def x_p3(self):
        e = self.e; T = self.vT; vL = self.vL; XA = self.XA
        XV, YV = 8, 24
        e(f"""v_and_b32 v2, 15, v{vL}
        v_mul_u32_u24 v2, 1280, v2
        v_lshrrev_b32 v3, 4, v{vL}
        v_lshl_add_u32 v4, v3, 3, v2
        s_min_u32 s{sB}, s{sCB}, 4
        s_mul_i32 s{sA}, s{sRB}, {64*1280}
        s_lshl_b32 s{sC}, s{sB}, 8
        s_add_u32 s{sA}, s{sA}, s{sC}
        s_lshl_b32 s{sC}, s{sW}, 6
        s_add_u32 s{sA}, s{sA}, s{sC}""")
        for b in range(4):
            e(f"s_add_u32 s{sT}, s{sA}, {b*16*1280}")
            for ee in range(2):
                r = XV + 2*(2*b + ee)
                e(f"buffer_load_dwordx2 v[{r}:{r+1}], v4, {srd(SRD_X)}, s{sT} offen offset:{32*ee}")
        e("s_barrier")
        e(f"v_lshlrev_b32 v5, 7, v{vL}\ns_mov_b32 s{sD}, {WS_FY}")
        self.poll(5, f"s{sD}", 6)
        e(f"""s_mul_i32 s{sC}, s{sRB}, {640*128}
        s_lshl_b32 s{sB}, s{sB}, 14
        s_add_u32 s{sC}, s{sC}, s{sB}
        s_lshl_b32 s{sB}, s{sW}, 12
        s_add_u32 s{sC}, s{sC}, s{sB}
        s_add_u32 s{sC}, s{sC}, {WS_YA}
        s_add_u32 s{sB}, s{sB}, {YAB}
        s_mov_b32 m0, s{sB}
        v_lshrrev_b32 v5, 2, v{vL}""")
        for i in range(4):
            e(f"buffer_load_dwordx4 v7, {srd(SRD_WS)}, s{sC} offen offset:{1024*i} sc1 lds")
        e(f"""v_lshlrev_b32 v5, 7, v5
        v_and_b32 v6, 3, v{vL}
        v_lshl_add_u32 v5, v6, 3, v5
        v_add_u32 v5, s{sB}, v5
        v_and_b32 v6, 1, v3
        v_lshlrev_b32 v6, 5, v6
        v_lshrrev_b32 v3, 1, v3
        v_lshl_add_u32 v6, v3, 4, v6
        v_add_u32 v6, v6, v2
        s_mov_b32 s{sB}, 0xffff0000
        s_waitcnt vmcnt(0)""")
        for b in range(4):
            for ee in range(2):
                r = YV + 2*(2*b + ee)
                e(f"ds_read_b64_tr_b16 v[{r}:{r+1}], v5 offset:{ee*2048 + b*32}")
        for i in range(32): e(f"v_accvgpr_write_b32 a{i}, 0")
        e("s_waitcnt lgkmcnt(0)")
        for i in range(16):
            e(f"""v_lshlrev_b32 v2, 16, v{XV+i}
            v_and_b32 v3, s{sB}, v{XV+i}
            v_lshlrev_b32 v4, 16, v{YV+i}
            v_and_b32 v5, s{sB}, v{YV+i}
            v_pk_add_f32 v[2:3], v[2:3], v[4:5]
            v_cvt_pk_bf16_f32 v{XA+i}, v2, v3""")
        e(f"""v_add_u32 v2, {HB}, v7
        v_add_u32 v3, 0x10000, v2
        v_lshlrev_b32 v4, 3, v{vL}
        v_add_u32 v4, {HB}, v4
        v_add_u32 v5, 0x10000, v4""")
        self.stamp(8)
        def hreads(ks, F):
            out = []
            for b in range(4):
                mh, a = b >> 1, b & 1
                if ks < 24:
                    cbp, p = divmod(ks, 4)
                    off = cbp*18432 + (9*mh + 5*(p >> 1) + 2*(p & 1) + a)*1024
                    out.append(f"ds_read_b128 v[{F+4*b}:{F+4*b+3}], v{2 + (off >> 16)} offset:{off & 0xffff}")
                else:
                    for hf in range(2):
                        cbp = 2*(ks - 24) + hf
                        off = cbp*18432 + (9*mh + 4)*1024 + a*512
                        out.append(f"ds_read_b64 v[{F+4*b+2*hf}:{F+4*b+2*hf+1}], v{4 + (off >> 16)} offset:{off & 0xffff}")
            return out
        FB = (8, 24)
        order = self.P3ORD
        Lidle = self.a.newlab("Lp3idle")
        e(f"s_cmp_eq_u32 s{sCB}, 5\ns_cbranch_scc1 {Lidle}")
        e("s_barrier")
        self.stamp(9)
        for s_ in hreads(order[0], FB[0]): e(s_)
        for pos, ks in enumerate(order):
            F = FB[pos & 1]
            nxt = []
            if pos < 26:
                nk = order[pos + 1]
                if nk < 24 and nk % 4 == 0: e("s_barrier")
                nxt = hreads(nk, FB[(pos + 1) & 1])
            if 1 <= pos <= 27 - self.NWS:
                for s_ in self.wload(self.NWS + pos - 1): e(s_)
            mf = []
            for b in range(4):
                for ee in range(2):
                    c = 4*(2*b + ee); w = self.wreg(pos, ee)
                    mf.append(f"v_mfma_f32_16x16x32_bf16 a[{c}:{c+3}], v[{w}:{w+3}], v[{F+4*b}:{F+4*b+3}], a[{c}:{c+3}]")
            e("s_waitcnt lgkmcnt(0)" + (" vmcnt(0)" if pos == self.NWS else ""))
            for s_ in self.interleave(nxt, mf, 2): e(s_)
        self.stamp(10)
        OV = 40
        p0, p2 = 8, 10
        for b in range(4):
            q = OV + 4*b
            for ee in range(2):
                for h in range(2):
                    xa = XA + 2*(2*b + ee) + h
                    c = 4*(2*b + ee) + 2*h
                    d = q + 2*ee + h
                    p0 = 8 + 4*((2*ee + h) % 4); p2 = p0 + 2
                    e(f"""v_accvgpr_read_b32 v{p2}, a{c}
                    v_accvgpr_read_b32 v{p2+1}, a{c+1}
                    v_lshlrev_b32 v{p0}, 16, v{xa}
                    v_and_b32 v{p0+1}, s{sB}, v{xa}""")
                    if self.o.get("eps"):
                        k = hx(f2u(1.0 + float(self.o["eps"])))
                        e(f"v_mul_f32 v{p2}, {k}, v{p2}\nv_mul_f32 v{p2+1}, {k}, v{p2+1}")
                    e(f"""v_cvt_pk_bf16_f32 v{d}, v{p2}, v{p2+1}
                    v_lshlrev_b32 v{p2}, 16, v{d}
                    v_and_b32 v{p2+1}, s{sB}, v{d}
                    v_pk_add_f32 v[{p0}:{p0+1}], v[{p0}:{p0+1}], v[{p2}:{p2+1}]
                    v_cvt_pk_bf16_f32 v{d}, v{p0}, v{p0+1}""")
            e(f"""v_permlane16_swap_b32 v{q}, v{q+2}
            v_permlane16_swap_b32 v{q+1}, v{q+3}
            s_add_u32 s{sT}, s{sA}, {b*16*1280}
            buffer_store_dwordx4 v[{q}:{q+3}], v6, {srd(SRD_OUT)}, s{sT} offen""")
        self.stamp(11)
        e(f"""s_cmp_lg_u32 s2, 0
        s_cbranch_scc1 L_end
        s_cmp_lg_u32 s{sW}, 0
        s_cbranch_scc1 L_end
        s_mov_b32 s{sA}, {WS_EPOCH}""")
        self.flag_store(sA, 8)
        self.a.lab(Lidle)
        e("s_branch L_end")

    def y_path(self):
        e = self.e; T = self.vT; ACC = self.ACC; vL = self.vL; Z1 = self.Z1
        self.a.lab("L_Y")
        self.stamp(0)
        vmw = lambda n: f"s_waitcnt vmcnt({n})"
        g, r, c4 = T, T+1, T+2
        e(f"""v_lshrrev_b32 v{g}, 4, v{vL}
        v_bfe_u32 v{r}, v{vL}, 2, 2
        v_and_b32 v{c4}, 3, v{vL}
        s_and_b32 s{sA}, s{sW}, 1
        s_lshl_b32 s{sB}, s{sA}, 5""")
        for rd in range(2):
            t, sw, ad = T+3, T+4, T+6+rd
            e(f"""v_lshl_add_u32 v{t}, v{g}, 3, v{r}
            v_add_u32 v{t}, {4*rd}, v{t}
            v_add_u32 v{t}, s{sB}, v{t}
            v_bfe_u32 v{sw}, v{t}, 1, 3
            v_lshrrev_b32 v{ad}, 1, v{c4}
            v_xor_b32 v{sw}, v{sw}, v{ad}
            v_lshlrev_b32 v{sw}, 4, v{sw}
            v_lshl_add_u32 v{ad}, v{t}, 7, v{sw}
            v_and_b32 v{sw}, 1, v{c4}
            v_lshl_add_u32 v{ad}, v{sw}, 3, v{ad}""")
        e(f"""v_and_b32 v{T+8}, 15, v{vL}
        v_lshlrev_b32 v{T+8}, 12, v{T+8}
        v_lshl_add_u32 v{T+8}, v{g}, 4, v{T+8}
        s_lshl_b32 s{sB}, s{sA}, 6
        v_add_u32 v{T+8}, s{sB}, v{T+8}
        s_mul_i32 s{sA}, s{sCB}, 7
        s_sub_u32 s{sB}, s{sCB}, 2
        s_max_i32 s{sB}, s{sB}, 0
        s_sub_u32 s{sA}, s{sA}, s{sB}
        s_lshr_b32 s{sB}, s{sW}, 1
        s_add_u32 s{sA}, s{sA}, s{sB}""")
        XQ = 40; XAD = 56
        for i in range(4):
            e(f"""s_add_u32 s{sB}, s{sA}, {2*i}
            s_and_b32 s{sC}, s{sB}, 3
            s_lshl_b32 s{sC}, s{sC}, 5
            s_lshr_b32 s{sD}, s{sB}, 2
            s_lshl_b32 s{sD}, s{sD}, 13""")
            for rd in range(2):
                e(f"v_xor_b32 v{XAD+2*i+rd}, s{sC}, v{T+6+rd}\nv_add_u32 v{XAD+2*i+rd}, s{sD}, v{XAD+2*i+rd}")
        e(f"""s_lshl_b32 s{sB}, s{sRB}, 7
        s_add_u32 s{sB}, s{sB}, {WS_XNT}
        s_lshl_b32 s{sA}, s{sA}, 16
        s_add_u32 s{sA}, s{sA}, s{sB}""")
        e(vmw(12))
        e("s_barrier")
        self.stamp(12)
        for i in range(8):
            e(f"ds_read_b64_tr_b16 v[{XQ+2*i}:{XQ+2*i+1}], v{XAD+i}")
        for i in range(4):
            e(f"""s_waitcnt lgkmcnt({6-2*i})
            buffer_store_dwordx4 v[{XQ+4*i}:{XQ+4*i+3}], v{T+8}, {srd(SRD_WS)}, s{sA} offen sc1
            s_add_u32 s{sA}, s{sA}, {2*65536}""")
        e(vmw(12))
        e("s_barrier")
        self.stamp(13)
        self.issue_w()
        e(vmw(12))
        e("s_barrier")
        self.stamp(14)
        self.issue_w()
        e(vmw(12))
        L = self.a.newlab("Ly1")
        e(f"s_mov_b32 s{sCNT}, 3")
        self.a.lab(L)
        e("s_barrier")
        self.stampd(12)
        Lc = self.a.newlab("Lcol")
        e(f"""s_cmp_lg_u32 s{sCNT}, 7
        s_cbranch_scc1 {Lc}
        s_sub_u32 s{sWSOFF}, s{sWSOFF}, 1728""")
        self.a.lab(Lc)
        Lf = self.a.newlab("Lfx")
        e(f"""s_cmp_lg_u32 s{sCNT}, 4
        s_cbranch_scc1 {Lf}
        s_cmp_lg_u32 s{sW}, 0
        s_cbranch_scc1 {Lf}
        s_lshl_b32 s{sA}, s{sCB}, 5
        s_add_u32 s{sA}, s{sA}, s{sRB}
        s_lshl_b32 s{sA}, s{sA}, 7
        s_add_u32 s{sA}, s{sA}, {WS_FXN}""")
        self.flag_store(sA, T)
        self.a.lab(Lf)
        self.issue_w()
        e(vmw(8))
        e(f"""s_add_u32 s{sCNT}, s{sCNT}, 1
        s_cmp_lt_u32 s{sCNT}, 10
        s_cbranch_scc1 {L}""")
        self.stamp(1)
        e(f"""s_mov_b32 s{sROFF}, {RING1 + 2*S1SZ}
        v_and_b32 v{T}, 15, v{vL}
        v_lshlrev_b32 v{T}, 1, v{T}
        s_lshl_b32 s{sA}, s{sRB}, 7
        s_lshl_b32 s{sB}, s{sMH}, 6
        s_add_u32 s{sA}, s{sA}, s{sB}
        buffer_load_ushort v34, v{T}, {srd(SRD_BSP)}, s{sA} offen
        buffer_load_ushort v36, v{T}, {srd(SRD_BSP)}, s{sA} offen offset:32""")
        tail = self.compute_loop(10, True, self.p1_reads, self.p1_addr, "p1b", vmwait=True)
        for m in tail: e(m)
        self.stamp(2)
        e(f"s_mov_b32 s{sB}, 0xffff0000")
        for i in range(0, 20, 4):
            self.rr([self.gelu_list(ACC + 2*(i+k), T + 2*k, packed=Z1 + i + k) for k in range(4)])
        e(f"""v_lshlrev_b32 v34, 16, v34
        v_lshlrev_b32 v36, 16, v36
        v_mov_b32 v35, v34
        v_mov_b32 v37, v36
        v_lshlrev_b32 v{self.vWB4}, 4, v{vL}
        s_mul_i32 s{sA}, s{sNH}, 5120
        v_add_u32 v{self.vWB}, s{sA}, v{self.vWB4}
        v_add_u32 v{self.vWB4}, 4096, v{self.vWB4}
        s_mov_b32 s{sROFF}, {BRING}
        s_mov_b32 s{sXOFF}, 0""")
        self.stamp(3)
        e("s_barrier")
        tail = self.compute_loop(32, True, self.p2_reads, self.p2_addr, "p2")
        e("s_barrier")
        for m in tail: e(m)
        self.stamp(4)
        HQ = 40
        e(f"""v_lshlrev_b32 v{T+8}, 4, v{vL}
        v_lshlrev_b32 v{T+9}, 3, v{vL}
        s_mul_i32 s{sA}, s{sRB}, 6
        s_add_u32 s{sA}, s{sA}, s{sCB}
        s_mul_i32 s{sA}, s{sA}, 18432
        s_mul_i32 s{sC}, s{sMH}, 9216
        s_add_u32 s{sA}, s{sA}, s{sC}
        s_mul_i32 s{sC}, s{sNH}, 5120
        s_add_u32 s{sA}, s{sA}, s{sC}
        s_add_u32 s{sA}, s{sA}, {WS_H}
        s_add_u32 s{sC}, s{sA}, 4096""")
        Ls = self.a.newlab("Lh4")
        tc = [0]
        def hval(j, a, h, d):
            r = ACC + 4*(2*j + a) + 2*h; z = Z1 + 2*(2*j + a) + h; b = 34 + 2*a
            t = T + 2*(tc[0] % 4); tc[0] += 1
            return [f"v_cvt_pk_bf16_f32 v{d}, v{r}, v{r+1}",
            f"v_lshlrev_b32 v{t}, 16, v{z}",
            f"v_lshlrev_b32 v{r}, 16, v{d}",
            f"v_and_b32 v{r+1}, s{sB}, v{d}",
            f"v_pk_add_f32 v[{r}:{r+1}], v[{r}:{r+1}], v[{b}:{b+1}]",
            f"v_and_b32 v{t+1}, s{sB}, v{z}",
            f"v_cvt_pk_bf16_f32 v{d}, v{r}, v{r+1}",
            f"v_lshlrev_b32 v{r}, 16, v{d}",
            f"v_and_b32 v{r+1}, s{sB}, v{d}",
            f"v_pk_mul_f32 v[{r}:{r+1}], v[{r}:{r+1}], v[{t}:{t+1}]",
            f"v_cvt_pk_bf16_f32 v{d}, v{r}, v{r+1}"]
        for p in range(2):
            for a in range(2):
                q = HQ + 4*(2*p + a)
                self.rr([hval(2*p + jj, a, h, q + 2*jj + h) for jj in range(2) for h in range(2)])
                e(f"buffer_store_dwordx4 v[{q}:{q+3}], v{T+8}, {srd(SRD_WS)}, s{sA} offen offset:{1024*(2*p+a)} sc1")
        e(f"s_cmp_eq_u32 s{sNH}, 1\ns_cbranch_scc1 {Ls}")
        self.rr([hval(4, a, h, HQ + 16 + 2*a + h) for a in range(2) for h in range(2)])
        for a in range(2):
            q = HQ + 16 + 2*a
            e(f"buffer_store_dwordx2 v[{q}:{q+1}], v{T+9}, {srd(SRD_WS)}, s{sC} offen offset:{512*a} sc1")
        self.a.lab(Ls)
        e(f"""s_lshl_b32 s{sD}, s{sRB}, 2
        s_add_u32 s{sD}, s{sD}, s{sW}
        s_lshl_b32 s{sD}, s{sD}, 10
        s_add_u32 s{sD}, s{sD}, {WS_FH}
        s_lshl_b32 s{sA}, s{sCB}, 7
        s_add_u32 s{sA}, s{sA}, s{sD}
        v_and_b32 v{T+2}, 7, v{vL}
        v_min_u32 v{T+2}, 5, v{T+2}
        v_lshlrev_b32 v{T+2}, 7, v{T+2}
        s_waitcnt vmcnt(0)""")
        self.flag_store(sA, T)
        self.stamp(5)
        e(f"s_cmp_eq_u32 s{sCB}, 5\ns_cbranch_scc1 L_end")
        e(f"""s_mul_i32 s{sA}, s{sMH}, 9216
        s_mul_i32 s{sC}, s{sNH}, 5120
        s_add_u32 s{sA}, s{sA}, s{sC}
        s_mul_i32 s{sC}, s{sRB}, {6*18432}
        s_add_u32 s{sC}, s{sC}, s{sA}
        s_add_u32 s{sC}, s{sC}, {WS_H}
        s_add_u32 s{sA}, s{sA}, {HB}""")
        self.poll(T+2, f"s{sD}", T+3)
        self.stamp(6)
        def hblk():
            Lk = self.a.newlab("Lhk")
            e(f"s_mov_b32 m0, s{sA}\ns_add_u32 s{sA}, s{sA}, 18432")
            for i in range(4):
                e(f"buffer_load_dwordx4 v{T+8}, {srd(SRD_WS)}, s{sC} offen offset:{1024*i} sc1 lds")
            e(f"""s_cmp_eq_u32 s{sNH}, 1
            s_cbranch_scc1 {Lk}
            s_add_u32 m0, m0, 4096
            s_add_u32 s{sT}, s{sC}, 4096
            buffer_load_dwordx4 v{T+8}, {srd(SRD_WS)}, s{sT} offen sc1 lds""")
            self.a.lab(Lk)
            e(f"s_add_u32 s{sC}, s{sC}, 18432")
        hblk(); hblk()
        def step():
            e("s_waitcnt vmcnt(4)\ns_barrier")
            hblk()
        self.loop(4, step, "Lhb")
        e("s_waitcnt vmcnt(4)\ns_barrier")
        e("s_waitcnt vmcnt(0)\ns_barrier")
        self.stamp(7)
        e("s_branch L_end")

    def build(self):
        from ssm import ssm_path
        self.entry()
        self.gemm_prologue()
        self.x_path()
        self.y_path()
        self.a.lab("L_ssm")
        if self.o.get("nossm"):
            self.e("s_branch L_end")
        else:
            ssm_path(self)
        self.a.lab("L_end")
        if self.o.get("stamps"):
            self.e(f"""s_mov_b64 exec, -1
            s_lshl_b32 s{sTM}, s2, 3
            s_add_u32 s{sTM}, s{sTM}, s{sWAVE}
            s_lshl_b32 s{sTM}, s{sTM}, 8
            s_add_u32 s{sTM}, s{sTM}, {WS_DBG}
            v_lshlrev_b32 v2, 2, v1
            buffer_store_dword v0, v2, {srd(SRD_WS)}, s{sTM} offen""")
        self.e("s_endpgm")
        self.a.lab("L_exit")
        self.e("s_endpgm")
        body = self.a.finalize()
        hdr = open("parallel_sum__ssm_conv_s4d__mixer_gmlp__prompt.s.ref").read().split("; Override launch")[0]
        s = hdr + "; @launch grid=(256,1,1) block=(512,1,1) lds=163840\n"
        s += f'.amdgcn_target "amdgcn-amd-amdhsa--gfx950"\n.text\n.globl {KNAME}\n.p2align 8\n.type {KNAME},@function\n{KNAME}:\n'
        s += body
        s += f""".section .rodata,"a"
.p2align 6
.amdhsa_kernel {KNAME}
  .amdhsa_next_free_vgpr 256
  .amdhsa_next_free_sgpr 102
  .amdhsa_accum_offset 224
  .amdhsa_group_segment_fixed_size 0
  .amdhsa_kernarg_size 120
  .amdhsa_user_sgpr_count 2
  .amdhsa_user_sgpr_kernarg_segment_ptr 1
  .amdhsa_system_sgpr_workgroup_id_x 1
.end_amdhsa_kernel
"""
        return s

if __name__ == "__main__":
    opts = {}
    out = "parallel_sum__ssm_conv_s4d__mixer_gmlp__prompt.s"
    for a in sys.argv[1:]:
        if a.startswith("-o"): out = a[2:]
        elif "=" in a:
            k, v = a.split("="); opts[k] = v
        else: opts[a] = True
    open(out, "w").write(G(opts).build())
```

```python
import re

TRANS = ("v_exp_f32", "v_log_f32", "v_rcp_f32", "v_rsq_f32", "v_sqrt_f32", "v_sin_f32", "v_cos_f32", "v_rcp_iflag_f32")
REG_RE = re.compile(r"(?<![\w.])(-?)(?:abs\()?([vsa])(?:(\d+)|\[(\d+):(\d+)\])")

def regs_of(tok):
    out = set()
    t = tok.strip()
    if t in ("vcc",):
        return {("s", 106), ("s", 107)}
    if t == "vcc_lo": return {("s", 106)}
    if t == "vcc_hi": return {("s", 107)}
    if t == "exec": return {("s", 126), ("s", 127)}
    if t == "m0": return {("s", 124)}
    m = REG_RE.match(t)
    if m:
        k = m.group(2)
        if m.group(3) is not None:
            out.add((k, int(m.group(3))))
        else:
            for i in range(int(m.group(4)), int(m.group(5)) + 1):
                out.add((k, i))
    return out

def split_ops(s):
    ops, depth, cur = [], 0, ""
    for ch in s:
        if ch in "[(": depth += 1
        if ch in "])": depth -= 1
        if ch == "," and depth == 0:
            ops.append(cur.strip()); cur = ""
        else:
            cur += ch
    if cur.strip(): ops.append(cur.strip())
    return ops

class Ins:
    __slots__ = ("text", "mn", "kind", "wr", "rd", "srcc", "ab", "dpp", "passes", "nops", "label", "target", "stdata", "sel")
    def __init__(self, text):
        self.text = text
        t = text.split(";")[0].strip()
        self.label = None; self.target = None
        self.wr = set(); self.rd = set(); self.srcc = set(); self.ab = set(); self.dpp = False; self.passes = 0; self.nops = 1
        self.stdata = set(); self.sel = False
        if t.endswith(":"):
            self.kind = "label"; self.label = t[:-1]; self.mn = ""; self.nops = 0; return
        if not t or t.startswith("."):
            self.kind = "none"; self.mn = ""; self.nops = 0; return
        parts = t.split(None, 1)
        mn = parts[0]; self.mn = mn
        rest = parts[1] if len(parts) > 1 else ""
        ops = split_ops(rest)
        clean = []
        mods = ""
        for o in ops:
            p = o.split()
            clean.append(p[0] if p else "")
            if len(p) > 1: mods += " " + " ".join(p[1:])
        ops = clean
        R = [regs_of(o) for o in ops]
        allr = lambda lst: set().union(*lst) if lst else set()
        if mn == "s_nop":
            self.kind = "salu"; self.nops = int(ops[0], 0) + 1; return
        if mn.startswith("s_cbranch") or mn == "s_branch":
            self.kind = "branch"; self.target = ops[0]; return
        if mn.startswith("v_mfma"):
            self.kind = "mfma"; self.wr = R[0]; self.ab = R[1] | R[2]; self.srcc = R[3]; self.rd = self.ab | self.srcc
            self.passes = 8 if "32x32" in mn else 4
            return
        if mn.startswith("v_"):
            self.kind = "valu"
            base = mn.replace("_e32", "").replace("_e64", "").replace("_dpp", "").replace("_sdwa", "")
            if base in TRANS: self.kind = "trans"
            if "_dpp" in mn or "row_" in mods or "quad_perm" in mods: self.dpp = True
            if "_sdwa" in mn or "op_sel" in mods and not mn.startswith("v_pk"): self.sel = True
            if base.startswith("v_permlane"):
                self.kind = "permlane"; self.wr = R[0] | R[1]; self.rd = R[0] | R[1]; return
            if base in ("v_readfirstlane_b32", "v_readlane_b32"):
                self.kind = "readlane"; self.wr = R[0]; self.rd = allr(R[1:]); return
            if base.startswith("v_cmp"):
                self.wr = R[0]; self.rd = allr(R[1:])
                if base.startswith("v_cmpx"): self.wr |= {("s",126),("s",127)}
                return
            if base in ("v_add_co_u32", "v_sub_co_u32", "v_addc_co_u32", "v_subb_co_u32", "v_mad_u64_u32"):
                self.wr = R[0] | R[1]; self.rd = allr(R[2:]); return
            self.wr = R[0]; self.rd = allr(R[1:])
            if base in ("v_fmac_f32", "v_dot2c_f32_bf16", "v_pk_fmac_f16") or self.dpp or "UNUSED_PRESERVE" in mods or base == "v_writelane_b32":
                self.rd |= R[0]
            if base.startswith("v_dot2"): self.kind = "dot"
            if base == "v_cndmask_b32" and len(ops) == 3: self.rd |= {("s",106),("s",107)}
            return
        if mn.startswith("ds_"):
            self.kind = "ds"
            if mn.startswith("ds_read") or mn.startswith("ds_bpermute") or mn.startswith("ds_permute") or mn.startswith("ds_swizzle") or "_rtn" in mn:
                self.wr = R[0]; self.rd = allr(R[1:])
                if "d16" in mn: self.rd |= R[0]
            else:
                self.rd = allr(R)
            return
        if mn.startswith("buffer_") or mn.startswith("global_"):
            self.kind = "vmem"
            if " lds" in (" " + mods) or mods.strip().endswith("lds"):
                self.rd = allr(R) | {("s", 124)}; self.kind = "vmem"; self.sel = True
                return
            if "load" in mn:
                self.wr = R[0]; self.rd = allr(R[1:])
            else:
                self.rd = allr(R)
                if "x3" in mn or "x4" in mn:
                    self.stdata = R[0] if mn.startswith("buffer_") else R[1]
            return
        if mn.startswith("s_"):
            self.kind = "salu"
            if mn.startswith("s_cmp") or mn in ("s_waitcnt", "s_barrier", "s_sleep", "s_setprio", "s_endpgm", "s_bitcmp0_b32", "s_bitcmp1_b32"):
                self.rd = allr(R)
            elif mn.startswith("s_load") or mn.startswith("s_memtime") or mn.startswith("s_memrealtime") or mn.startswith("s_getreg"):
                self.kind = "smem"; self.wr = R[0]; self.rd = allr(R[1:])
            else:
                self.wr = R[0]; self.rd = allr(R[1:])
                if "saveexec" in mn: self.wr |= {("s",126),("s",127)}
            return
        raise ValueError("unknown instr: " + text)

VAL = ("valu", "trans", "dot", "permlane", "readlane")
def isv(rs): return {r for r in rs if r[0] in "va"}
def iss(rs): return {r for r in rs if r[0] == "s"}

def required(p, c):
    n = 0
    pv, ps = isv(p.wr), iss(p.wr)
    if p.kind in VAL:
        if c.kind == "mfma" and pv & c.rd: n = max(n, 2)
        if c.dpp and pv & c.rd: n = max(n, 2)
        if c.kind == "permlane" and pv & c.rd: n = max(n, 2)
        if c.kind == "readlane" and pv & c.rd: n = max(n, 1)
        if p.kind == "trans" and c.kind in VAL + ("mfma",) and pv & (c.rd | c.wr): n = max(n, 1)
        if p.sel and c.kind in VAL and pv & (c.rd | c.wr): n = max(n, 1)
        if p.kind == "dot" and pv & (c.rd | c.wr) and not (c.kind == "dot" and c.mn == p.mn and not (pv & (c.rd - c.wr))): n = max(n, 3)
        if ps:
            if c.kind == "vmem" and ps & c.rd: n = max(n, 5)
            if c.kind == "readlane" and ps & c.rd: n = max(n, 4)
            if c.kind in VAL and ps & c.rd: n = max(n, 2)
            if c.kind in ("salu", "smem") and ps & c.rd: n = max(n, 1)
            if {("s",126)} & ps:
                if c.dpp: n = max(n, 5)
                if c.kind in ("mfma", "permlane", "readlane"): n = max(n, 4)
    if p.kind == "mfma":
        d = {4: (0, 6, 8, 8), 8: (0, 10, 12, 12)}[p.passes]
        if c.kind == "mfma":
            if pv & c.srcc:
                n = max(n, d[0] if (c.srcc == p.wr and c.passes == p.passes) else d[1])
            if pv & c.ab: n = max(n, d[2])
            if pv & c.wr and not (pv & c.srcc): n = max(n, d[1])
        elif c.kind in VAL + ("vmem", "ds"):
            if pv & (c.rd | c.wr): n = max(n, d[3])
        if c.kind in VAL and p.srcc & c.wr: n = max(n, {4: 3, 8: 7}[p.passes])
    if p.kind == "salu" and ("s", 124) in p.wr and c.kind == "vmem" and ("s", 124) in c.rd: n = max(n, 1)
    if p.kind == "vmem" and p.stdata and (p.stdata & c.wr): n = max(n, 2 if c.kind in VAL else 1)
    return n

WIN = 14
class Asm:
    def __init__(self):
        self.L = []
        self.uid = 0
    def e(self, s):
        for line in s.strip("\n").split("\n"):
            if line.strip(): self.L.append(Ins(line.strip()))
    def lab(self, name): self.L.append(Ins(name + ":"))
    def newlab(self, p="L"):
        self.uid += 1
        return f"{p}_{self.uid}"
    def _need(self, hist, c):
        need = 0; dist = 0
        for p in reversed(hist):
            if dist >= WIN: break
            r = required(p, c)
            if r > dist: need = max(need, r - dist)
            dist += p.nops
        return need
    def _sim(self, hist, seq):
        extra = 0; off = 0
        for c in seq:
            if c.kind in ("label", "none"): continue
            if off >= WIN: break
            dist = off
            for p in reversed(hist):
                if dist >= WIN: break
                r = required(p, c)
                if r > dist: extra = max(extra, r - dist)
                dist += p.nops
            off += c.nops
            if c.kind == "branch" and c.mn == "s_branch": break
        return extra
    def finalize(self):
        out = []; hist = []
        for c in self.L:
            if c.kind in ("label", "none"):
                out.append(c); continue
            n = self._need(hist, c)
            while n > 0:
                k = min(n, 16)
                nop = Ins(f"s_nop {k-1}"); out.append(nop); hist.append(nop); n -= k
            out.append(c); hist.append(c)
            if c.mn in ("s_branch", "s_endpgm"): hist = []
            hist = hist[-WIN-2:]
        labels = {c.label: i for i, c in enumerate(out) if c.kind == "label"}
        out2 = []; hist = []
        for i, c in enumerate(out):
            if c.kind == "branch":
                tgt = labels[c.target]
                n = self._sim(hist + [c], out[tgt:tgt + 40])
                while n > 0:
                    k = min(n, 16)
                    nop = Ins(f"s_nop {k-1}"); out2.append(nop); hist.append(nop); n -= k
            out2.append(c)
            if c.kind not in ("label", "none"):
                hist.append(c)
                if c.mn in ("s_branch", "s_endpgm"): hist = []
                hist = hist[-WIN-2:]
        return "\n".join((c.text if c.kind == "label" else "    " + c.text) for c in out2) + "\n"


import subprocess, os, tempfile
PROMO = ("v_mov_b32", "v_add_u32", "v_sub_u32", "v_subrev_u32", "v_lshlrev_b32", "v_lshrrev_b32", "v_and_b32", "v_or_b32", "v_xor_b32", "v_mul_f32", "v_add_f32",
         "v_exp_f32", "v_rcp_f32", "v_min_u32", "v_max_f32", "v_sin_f32", "v_cos_f32", "v_fract_f32", "v_sqrt_f32", "v_mul_u32_u24")
def sizes_of(body, extra=""):
    with tempfile.TemporaryDirectory() as d:
        p = os.path.join(d, "a.s")
        open(p, "w").write('.amdgcn_target "amdgcn-amd-amdhsa--gfx950"\n.text\n.p2align 8\nKSTART:\n' + body + extra)
        subprocess.run(["clang", "-x", "assembler", "-target", "amdgcn-amd-amdhsa", "-mcpu=gfx950", "-c", p, "-o", p + ".o"], check=True)
        out = subprocess.run(["llvm-objdump", "-d", "--mcpu=gfx950", p + ".o"], capture_output=True, text=True).stdout
    sz = []
    for line in out.splitlines():
        m = re.search(r"// [0-9A-F]{12}: ((?:[0-9A-F]{8} ?)+)", line)
        if m: sz.append(4 * len(m.group(1).split()))
    return sz

def align_pass(body, kname, extra="", minrun=4):
    lines = body.rstrip("\n").split("\n")
    idx = [i for i, l in enumerate(lines) if l.startswith("    ")]
    sz = sizes_of(body.replace(kname, "KSTART"), extra)[:len(idx)]
    assert len(sz) == len(idx)
    out = {}; off = 0
    n = len(idx)
    for k in range(n):
        if sz[k] == 8 and off % 8 == 4 and (k == 0 or sz[k-1] != 8):
            r = 0
            while k + r < n and sz[k + r] == 8: r += 1
            if r >= minrun:
                prev = lines[idx[k-1]].strip()
                mn = prev.split()[0]
                adjacent = True
                if mn in PROMO and sz[k-1] == 4 and "dpp" not in prev and "sdwa" not in prev:
                    lines[idx[k-1]] = "    " + mn + "_e64" + prev[len(mn):]
                    off += 4
                elif r >= 8:
                    out[idx[k]] = "    s_nop 0"
                    off += 4
        off += sz[k]
    res = []
    for i, l in enumerate(lines):
        if i in out: res.append(out[i])
        res.append(l)
    return "\n".join(res) + "\n"
```

```python
import math
from gen import *

SLOT = 17600; KCP = 4576; UOFF = 9152; UCP = 4224
TB = 8*SLOT; TSZ = 1568; ZI = 768
SRD_LAR, SRD_AIM, SRD_CR, SRD_CI, SRD_LDT, SRD_DSK = 8, 12, 16, 20, 24, 32
sCH, sSLOT, sTBL, sRND, sD0 = 66, 67, 68, 69, 70
sWJ, sKS, sLN = 71, 72, 73
sNIT, sMO, sPF, sPK, sPN, sWP = 75, 76, 77, 83, 84, 85
SRD_WO, SRD_PF, SRD_WI = 36, 52, 40
LOG2E = 1.4426950408889634

def ssm_path(g):
    e = g.e; a = g.a
    vL = 1
    T = 12; vZ = 10
    GA = 220
    e(f"""s_load_dwordx16 s[36:51], s[0:1], 0
    s_load_dwordx8 s[52:59], s[0:1], 64
    s_getpc_b64 s[62:63]
    L_pc0:
    s_sub_u32 s62, s62, L_pc0-{KNAME}
    s_subb_u32 s63, s63, 0
    v_and_b32 v{vL}, 63, v0
    s_sub_u32 s{sB}, s{sB}, 24
    s_lshl_b32 s{sB}, s{sB}, 3
    s_add_u32 s{sRB}, s{sB}, s{sA}
    s_mul_i32 s{sD0}, s{sRB}, 10
    s_add_u32 s{sCH}, s{sD0}, s{sWAVE}
    v_mov_b32 v{vZ}, 0""")
    if g.o.get("pfc", "1") == "1":
        e(f"""v_min_u32 v2, 5, v{vL}
        s_add_u32 s{sC}, s{sB}, s{sWAVE}
        s_mul_i32 s{sC}, s{sC}, 6
        v_add_u32 v2, s{sC}, v2
        v_lshlrev_b32 v2, 7, v2
        v_min_u32 v2, L_tabend-4-{KNAME}, v2
        global_load_dword v219, v2, s[62:63]""")
    e("s_waitcnt lgkmcnt(0)")
    g.mk_srd(SRD_LAR, 38, 640*128*2); g.mk_srd(SRD_AIM, 40, 640*128*2)
    g.mk_srd(SRD_CR, 42, 640*128*2); g.mk_srd(SRD_CI, 44, 640*128*2)
    g.mk_srd(SRD_LDT, 46, 640*2)
    def param_loads():
        e(f"""v_lshlrev_b32 v{T}, 2, v{vL}
        s_lshl_b32 s{sA}, s{sCH}, 8
        s_lshl_b32 s{sB}, s{sCH}, 1
        buffer_load_dword v{T+4}, v{T}, {srd(SRD_LAR)}, s{sA} offen
        buffer_load_dword v{T+5}, v{T}, {srd(SRD_AIM)}, s{sA} offen
        buffer_load_dword v{T+6}, v{T}, {srd(SRD_CR)}, s{sA} offen
        buffer_load_dword v{T+7}, v{T}, {srd(SRD_CI)}, s{sA} offen
        buffer_load_ushort v{T+8}, v{vZ}, {srd(SRD_LDT)}, s{sB} offen""")
    param_loads()
    e(f"s_load_dword s{sTAG}, s[64:65], {WS_EPOCH}")
    g.mk_srd(SRD_WS, 64, WS_SIZE)
    g.mk_srd(SRD_DSK, 48, 640*2)
    e(f"""s_mul_i32 s{sSLOT}, s{sWAVE}, {SLOT}
    s_mov_b32 s{sRND}, 0""")
    if g.o.get("kprio", "1") == "1":
        e(f"s_cmp_lt_u32 s{sWAVE}, 6\ns_cbranch_scc1 L_noprio\ns_setprio 3\nL_noprio:")
    vG, vJ = 2, 3
    vSW, vSR = 4, 5
    vT0, vT1a, vT1b, vT2 = 6, 7, 8, 9
    e(f"""v_lshrrev_b32 v{vG}, 4, v{vL}
    v_and_b32 v{vJ}, 15, v{vL}
    v_lshlrev_b32 v{vSW}, 3, v{vL}
    v_add_u32 v{vSW}, s{sSLOT}, v{vSW}
    v_mul_u32_u24 v{vSR}, 528, v{vJ}
    v_lshl_add_u32 v{vSR}, v{vG}, 4, v{vSR}
    v_add_u32 v{vSR}, s{sSLOT}, v{vSR}
    v_lshrrev_b32 v{T}, 1, v{vG}
    v_lshlrev_b32 v{T}, 7, v{T}
    v_lshl_add_u32 v{T}, v{vJ}, 3, v{T}
    v_and_b32 v{T+1}, 1, v{vG}
    v_lshl_add_u32 v{T}, v{T+1}, 2, v{T}
    v_lshlrev_b32 v{vT0}, 1, v{T}
    v_lshlrev_b32 v{T}, 6, v{vG}
    v_lshl_add_u32 v{T+1}, v{vJ}, 2, v{T}
    v_add_u32 v{T+1}, 256, v{T+1}
    v_lshl_add_u32 v{T+2}, v{vJ}, 1, v{T}
    v_add_u32 v{T+2}, 256, v{T+2}
    v_cmp_gt_u32 vcc, 2, v{vG}
    v_cndmask_b32 v{vT1a}, v{T+2}, v{T+1}, vcc
    v_mov_b32 v{T+3}, 32
    v_cndmask_b32 v{T+3}, v{T+3}, 2, vcc
    v_add_u32 v{vT1b}, v{vT1a}, v{T+3}
    v_lshlrev_b32 v{vT1a}, 1, v{vT1a}
    v_lshlrev_b32 v{vT1b}, 1, v{vT1b}
    v_add_u32 v{T}, v{T}, v{vJ}
    v_add_u32 v{T}, 512, v{T}
    v_lshlrev_b32 v{vT2}, 1, v{T}""")
    g.mk_srd(SRD_WO, 58, 864*640*2)
    g.mk_srd(SRD_WI, 52, 640*1728*2)
    g.mk_srd(SRD_PF, 54, 2048*2048*2)
    e(f"""s_mov_b32 s{sWJ}, 0
    s_cmp_ge_u32 s{sRB}, 54
    s_cbranch_scc1 L_wj_skip
    s_cmp_ge_u32 s{sWAVE}, 5
    s_cbranch_scc1 L_wj_skip
    s_mov_b32 s{sWJ}, 1
    s_lshr_b32 s{sKS}, s{sRB}, 1
    s_and_b32 s{sLN}, s{sRB}, 1
    s_mul_i32 s{sLN}, s{sLN}, 5
    s_add_u32 s{sLN}, s{sLN}, s{sWAVE}
    s_lshr_b32 s{sA}, s{sKS}, 2
    s_and_b32 s{sB}, s{sKS}, 3
    s_mul_i32 s{sA}, s{sA}, 9
    s_lshl_b32 s{sC}, s{sB}, 1
    s_add_u32 s{sA}, s{sA}, s{sC}
    s_lshr_b32 s{sC}, s{sB}, 1
    s_add_u32 s{sA}, s{sA}, s{sC}
    s_add_u32 s{sB}, s{sA}, 1
    s_sub_u32 s{sC}, s{sKS}, 24
    s_mul_i32 s{sC}, s{sC}, 18
    s_add_u32 s{sC}, s{sC}, 4
    s_add_u32 s{sD}, s{sC}, 9
    s_cmp_ge_u32 s{sKS}, 24
    s_cselect_b32 s{sA}, s{sC}, s{sA}
    s_cselect_b32 s{sB}, s{sD}, s{sB}
    s_mul_i32 s{sA}, s{sA}, {16*1280}
    s_mul_i32 s{sB}, s{sB}, {16*1280}
    s_lshl_b32 s{sC}, s{sLN}, 7
    s_add_u32 s{sA}, s{sA}, s{sC}
    s_add_u32 s{sB}, s{sB}, s{sC}
    v_lshrrev_b32 v{T}, 3, v{vL}
    v_mul_u32_u24 v{T}, 1280, v{T}
    v_and_b32 v{T+1}, 7, v{vL}
    v_lshl_add_u32 v{T}, v{T+1}, 4, v{T}
    s_add_u32 m0, s{sSLOT}, {UOFF + 128}
    s_add_u32 s{sC}, s{sA}, {8*1280}
    buffer_load_dwordx4 v{T}, {srd(SRD_WO)}, s{sA} offen lds
    s_add_u32 m0, m0, 1024
    s_add_u32 s{sD}, s{sB}, {8*1280}
    buffer_load_dwordx4 v{T}, {srd(SRD_WO)}, s{sC} offen lds
    s_add_u32 m0, m0, 1024
    s_nop 0
    buffer_load_dwordx4 v{T}, {srd(SRD_WO)}, s{sB} offen lds
    s_add_u32 m0, m0, 1024
    s_nop 0
    buffer_load_dwordx4 v{T}, {srd(SRD_WO)}, s{sD} offen lds""")
    a.lab("L_wj_skip")
    e(f"v_lshlrev_b32 v{T}, 4, v{vL}\nv_add_u32 v{T}, L_gtab-{KNAME}, v{T}")
    for i in range(9):
        if i == 4: e(f"v_add_u32 v{T}, 4096, v{T}")
        if i == 8: e(f"v_add_u32 v{T}, 4096, v{T}")
        e(f"global_load_dwordx4 v[{GA+4*i}:{GA+4*i+3}], v{T}, s[62:63] offset:{1024*(i%4)}")
    g.stamp(0)
    PFW = g.o.get("pfw", "1") == "1"
    NL = int(g.o.get("pfnl", 2))
    e(f"""v_lshrrev_b32 v216, 3, v{vL}
    v_lshlrev_b32 v216, 12, v216
    v_and_b32 v217, {NL-1}, v{vL}
    v_lshl_add_u32 v216, v217, 7, v216
    s_and_b32 s{sA}, s2, 7
    s_lshr_b32 s{sA}, s{sA}, 1
    s_lshl_b32 s{sA}, s{sA}, 21
    s_lshr_b32 s{sC}, s{sRB}, 3
    s_mov_b32 s{sPK}, 0
    s_lshl_b32 s{sC}, s{sC}, 18
    s_add_u32 s{sA}, s{sA}, s{sC}
    s_lshl_b32 s{sC}, s{sWAVE}, 15
    s_add_u32 s{sPF}, s{sA}, s{sC}
    s_mov_b32 s{sPN}, {32//NL}""")
    def pf_touch():
        if g.o.get("nopf"): return
        L = a.newlab("Lpf")
        e(f"""s_cmp_eq_u32 s{sPN}, 0
        s_cbranch_scc1 {L}
        s_add_u32 s{sT2}, s{sPF}, s{sPK}
        s_add_u32 s{sPK}, s{sPK}, {128*NL}
        s_and_b32 s{sPK}, s{sPK}, 4095
        s_sub_u32 s{sPN}, s{sPN}, 1
        buffer_load_dword v217, v216, {srd(SRD_PF)}, s{sT2} offen""")
        a.lab(L)
    AR, PH, CRp, CIp = 24, 26, 28, 30
    W = 32
    def C(i): return W + 4*i
    def re(c): return f"v[{c}:{c+1}]"
    def im(c): return f"v[{c+2}:{c+3}]"
    tp = T
    TMP = 176
    def cexp_l(c, p, k):
        lit = hx(f2u(float(p))); tp = TMP + 4*k
        return [f"v_mul_f32 v{tp}, {lit}, v{AR}", f"v_mul_f32 v{tp+1}, {lit}, v{AR+1}",
        f"v_mul_f32 v{tp+2}, {lit}, v{PH}", f"v_mul_f32 v{tp+3}, {lit}, v{PH+1}",
        f"v_exp_f32 v{tp}, v{tp}", f"v_exp_f32 v{tp+1}, v{tp+1}",
        f"v_fract_f32 v{tp+2}, v{tp+2}", f"v_fract_f32 v{tp+3}, v{tp+3}",
        f"v_cos_f32 v{c}, v{tp+2}", f"v_cos_f32 v{c+1}, v{tp+3}",
        f"v_sin_f32 v{c+2}, v{tp+2}", f"v_sin_f32 v{c+3}, v{tp+3}",
        f"v_pk_mul_f32 {re(c)}, {re(c)}, v[{tp}:{tp+1}]", f"v_pk_mul_f32 {im(c)}, {im(c)}, v[{tp}:{tp+1}]"]
    def cmul_l(z, x, y, k):
        tp = TMP + 4*k
        assert z not in (x, y)
        return [f"v_pk_mul_f32 v[{tp}:{tp+1}], {im(x)}, {im(y)}",
        f"v_pk_mul_f32 v[{tp+2}:{tp+3}], {im(x)}, {re(y)}",
        f"v_pk_fma_f32 {re(z)}, {re(x)}, {re(y)}, v[{tp}:{tp+1}] neg_lo:[0,0,1] neg_hi:[0,0,1]",
        f"v_pk_fma_f32 {im(z)}, {re(x)}, {im(y)}, v[{tp+2}:{tp+3}]"]
    def put_l(c, row, neg, k):
        d = 192 + 2*k
        n = "-" if neg else ""
        return [f"v_cvt_pk_f16_f32 v{d}, v{c}, {n}v{c+2}", f"v_cvt_pk_f16_f32 v{d+1}, v{c+1}, {n}v{c+3}",
                f"ds_write_b64 v{vSW}, v[{d}:{d+1}] offset:{528*row}"]
    def batch(jobs):
        for i in range(0, len(jobs), 4):
            g.rr([j(k) for k, j in enumerate(jobs[i:i+4])])
    def J_mul(z, x, y, row=None, neg=False):
        return lambda k: cmul_l(z, x, y, k) + (put_l(z, row, neg, k) if row is not None else [])
    def J_put(c, row, neg): return lambda k: put_l(c, row, neg, k)
    E2F = 112
    E1F = 144
    DD = 12
    vSC = 23
    e(f"s_mul_i32 s{sTBL}, s{sWAVE}, {TSZ}\ns_add_u32 s{sTBL}, s{sTBL}, {TB}")
    e("s_waitcnt vmcnt(9) lgkmcnt(0)")
    if PFW:
        e(f"""v_lshrrev_b32 v218, 3, v{vL}
        v_mul_u32_u24 v218, 3456, v218
        v_and_b32 v219, 7, v{vL}
        v_lshl_add_u32 v218, v219, 7, v218
        s_lshr_b32 s{sA}, s{sRB}, 3
        s_lshl_b32 s{sA}, s{sA}, 3
        s_add_u32 s{sA}, s{sA}, s{sWAVE}
        s_and_b32 s{sC}, s2, 1
        s_mul_i32 s{sC}, s{sC}, 768
        s_mul_i32 s{sWP}, s{sA}, {8*3456}
        s_add_u32 s{sWP}, s{sWP}, s{sC}""")
    a.lab("L_kgen")
    g.stamp(8)
    e(f"s_mov_b32 s{sB}, 0xffff0000")
    e(f"""s_cmp_lg_u32 s{sRND}, 0
    s_cbranch_scc1 L_r0_skip
    s_mul_i32 s{sTAG}, s{sTAG}, 0x9E3779B1
    s_add_u32 s{sTAG}, s{sTAG}, 0x7F4A7C15
    s_cmp_eq_u32 s{sWJ}, 0
    s_cbranch_scc1 L_wj2_skip
    v_lshrrev_b32 v{E1F+16}, 2, v{vL}
    v_lshlrev_b32 v{E1F+16}, 7, v{E1F+16}
    v_and_b32 v{E1F+17}, 3, v{vL}
    v_lshl_add_u32 v{E1F+16}, v{E1F+17}, 3, v{E1F+16}
    v_add_u32 v{E1F+16}, s{sSLOT}, v{E1F+16}
    v_lshlrev_b32 v{E1F+17}, 4, v{vL}""")
    for df in range(4):
        for hf in range(2):
            e(f"ds_read_b64_tr_b16 v[{E1F+4*df+2*hf}:{E1F+4*df+2*hf+1}], v{E1F+16} offset:{UOFF + 128 + hf*2048 + df*32}")
    e(f"""s_lshl_b32 s{sA}, s{sLN}, 2
    s_mul_i32 s{sA}, s{sA}, {27*1024}
    s_lshl_b32 s{sC}, s{sKS}, 10
    s_add_u32 s{sA}, s{sA}, s{sC}
    s_add_u32 s{sA}, s{sA}, {WS_WOT}
    s_waitcnt lgkmcnt(0)""")
    for df in range(4):
        e(f"buffer_store_dwordx4 v[{E1F+4*df}:{E1F+4*df+3}], v{E1F+17}, {srd(SRD_WS)}, s{sA} offen sc1\ns_add_u32 s{sA}, s{sA}, {27*1024}")
    a.lab("L_wj2_skip")
    if PFW:
        e(f"""buffer_load_dword v219, v218, {srd(SRD_WI)}, s{sWP} offen
        s_add_u32 s{sWP}, s{sWP}, {64*8*3456}
        buffer_load_dword v219, v218, {srd(SRD_WI)}, s{sWP} offen""")
    a.lab("L_r0_skip")
    g.stamp(9)
    e(f"""v_lshlrev_b32 v{T+8}, 16, v{T+8}
    v_mul_f32 v{T+8}, {hx(f2u(LOG2E))}, v{T+8}
    v_exp_f32 v{T+8}, v{T+8}
    v_lshlrev_b32 v{AR}, 16, v{T+4}
    v_and_b32 v{AR+1}, s{sB}, v{T+4}
    v_cvt_pk_bf16_f32 v{T+8}, v{T+8}, v{T+8}
    v_mul_f32 v{AR}, {hx(f2u(LOG2E))}, v{AR}
    v_mul_f32 v{AR+1}, {hx(f2u(LOG2E))}, v{AR+1}
    v_lshlrev_b32 v{T+8}, 16, v{T+8}
    v_exp_f32 v{AR}, v{AR}
    v_exp_f32 v{AR+1}, v{AR+1}
    v_lshlrev_b32 v{PH}, 16, v{T+5}
    v_and_b32 v{PH+1}, s{sB}, v{T+5}
    v_cvt_pk_bf16_f32 v{T+4}, v{AR}, v{AR+1}
    v_lshlrev_b32 v{AR}, 16, v{T+4}
    v_and_b32 v{AR+1}, s{sB}, v{T+4}
    v_mul_f32 v{AR}, v{AR}, v{T+8}
    v_mul_f32 v{AR+1}, v{AR+1}, v{T+8}
    v_mul_f32 v{AR}, {hx(f2u(-LOG2E))}, v{AR}
    v_mul_f32 v{AR+1}, {hx(f2u(-LOG2E))}, v{AR+1}
    v_mul_f32 v{PH}, v{PH}, v{T+8}
    v_mul_f32 v{PH+1}, v{PH+1}, v{T+8}
    v_mul_f32 v{PH}, {hx(f2u(1/(2*math.pi)))}, v{PH}
    v_mul_f32 v{PH+1}, {hx(f2u(1/(2*math.pi)))}, v{PH+1}
    v_lshlrev_b32 v{CRp}, 16, v{T+6}
    v_and_b32 v{CRp+1}, s{sB}, v{T+6}
    v_lshlrev_b32 v{CIp}, 16, v{T+7}
    v_and_b32 v{CIp+1}, s{sB}, v{T+7}
    v_max3_f32 v{T}, abs(v{CRp}), abs(v{CRp+1}), abs(v{CIp})
    v_max_f32 v{T}, abs(v{CIp+1}), v{T}""")
    for m in ("row_ror:8", "row_ror:4", "row_ror:2", "row_ror:1"):
        e(f"v_max_f32_dpp v{T}, v{T}, v{T} {m} row_mask:0xf bank_mask:0xf")
    e(f"""v_readlane_b32 s{sA}, v{T}, 0
    v_readlane_b32 s{sC}, v{T}, 16
    v_readlane_b32 s{sD}, v{T}, 32
    v_readlane_b32 s{sT}, v{T}, 48
    s_max_u32 s{sA}, s{sA}, s{sC}
    s_max_u32 s{sD}, s{sD}, s{sT}
    s_max_u32 s{sA}, s{sA}, s{sD}
    v_frexp_exp_i32_f32 v{T}, s{sA}
    v_sub_u32 v{T+1}, 0, v{T}
    v_ldexp_f32 v{C(0)}, v{CRp}, v{T+1}
    v_ldexp_f32 v{C(0)+1}, v{CRp+1}, v{T+1}
    v_ldexp_f32 v{C(0)+2}, v{CIp}, v{T+1}
    v_ldexp_f32 v{C(0)+3}, v{CIp+1}, v{T+1}
    v_add_f32 v{vSC}, v{T+8}, v{T+8}
    v_ldexp_f32 v{vSC}, v{vSC}, v{T}""")
    Tq = lambda q: C(q)
    P = lambda j: C(8 + j - 1)
    V = {1: C(16), 2: C(17), 4: C(18), 8: C(19)}
    SO = lambda k: E1F + 4*k
    g.rr([cexp_l(P(1), 8, 0), cexp_l(V[1], 128, 1)])
    e(f"v_mov_b32 v{SO(0)}, 1.0\nv_mov_b32 v{SO(0)+1}, 1.0\nv_mov_b32 v{SO(0)+2}, 0\nv_mov_b32 v{SO(0)+3}, 0")
    batch([J_mul(P(2), P(1), P(1), 2, True), J_mul(V[2], V[1], V[1]), J_mul(Tq(1), Tq(0), V[1]), J_put(SO(0), 0, True)])
    batch([J_mul(P(4), P(2), P(2), 4, True), J_mul(P(3), P(2), P(1), 3, True), J_mul(V[4], V[2], V[2]), J_put(P(1), 1, True)])
    batch([J_mul(P(8), P(4), P(4), 8, True), J_mul(P(5), P(4), P(1), 5, True), J_mul(P(6), P(4), P(2), 6, True), J_mul(P(7), P(4), P(3), 7, True)])
    batch([J_mul(SO(k % 4), P(8), P(k + 1), 9 + k, True) for k in range(7)] + [J_mul(V[8], V[4], V[4])])
    for ks in range(8):
        e(f"ds_read_b128 v[{E2F+4*ks}:{E2F+4*ks+3}], v{vSR} offset:{64*ks}")
    pf_touch()
    g.stamp(10)
    R = P
    g.rr([cexp_l(R(1), 1, 0), cmul_l(Tq(2), Tq(0), V[2], 1) + cmul_l(Tq(4), Tq(0), V[4], 1) + cmul_l(Tq(5), Tq(1), V[4], 1),
          cmul_l(Tq(3), Tq(1), V[2], 2) + put_l(Tq(0), 0, False, 2) + put_l(Tq(1), 8, False, 2)])
    batch([J_mul(R(2), R(1), R(1)), J_mul(Tq(6), Tq(2), V[4]), J_mul(Tq(7), Tq(3), V[4]), J_mul(SO(0), Tq(0), R(1), 1)])
    batch([J_mul(R(4), R(2), R(2)), J_mul(R(3), R(2), R(1)), J_mul(SO(1), Tq(1), R(1), 9), J_mul(SO(2), Tq(0), R(2), 2)])
    batch([J_mul(R(5), R(4), R(1)), J_mul(R(6), R(4), R(2)), J_mul(R(7), R(4), R(3)), J_mul(SO(3), Tq(1), R(2), 10)])
    batch([J_mul(SO(k % 4), Tq(k & 1), R(3 + (k >> 1)), 8*(k & 1) + 3 + (k >> 1)) for k in range(10)])
    def tile_rd():
        for ks in range(8):
            e(f"ds_read_b128 v[{E1F+4*ks}:{E1F+4*ks+3}], v{vSR} offset:{64*ks}")
    def tile_mma(nafter):
        for ks in range(8):
            e(f"s_waitcnt lgkmcnt({7-ks})")
            e(f"v_mfma_f32_16x16x32_f16 v[{DD}:{DD+3}], v[{E1F+4*ks}:{E1F+4*ks+3}], v[{E2F+4*ks}:{E2F+4*ks+3}], {'0' if ks == 0 else f'v[{DD}:{DD+3}]'}")
    def tile_fin():
        for r in range(4): e(f"v_mul_f32 v{DD+r}, v{DD+r}, v{vSC}")
        e(f"v_cvt_pk_bf16_f32 v{DD}, v{DD}, v{DD+1}\nv_cvt_pk_bf16_f32 v{DD+1}, v{DD+2}, v{DD+3}")
    def taddr(v, d): e(f"v_add_u32 v{d}, s{sTBL}, v{v}")
    SO2 = lambda k: 200 + 4*k
    tile_rd(); tile_mma(0); pf_touch()
    g.stamp(11)
    jobs = []
    for q in range(2):
        jobs.append(J_put(Tq(2 + q), 4*q, False))
        for r in range(1, 4): jobs.append(J_mul(SO2(len(jobs) % 4), Tq(2 + q), R(2*r), 4*q + r))
    for q in range(4):
        jobs.append(J_put(Tq(4 + q), 8 + 2*q, False))
        jobs.append(J_mul(SO2(len(jobs) % 4), Tq(4 + q), R(4), 8 + 2*q + 1))
    batch(jobs[:4])
    tile_fin(); taddr(vT0, DD+2)
    e(f"ds_write_b64 v{DD+2}, v[{DD}:{DD+1}]")
    batch(jobs[4:])
    tile_rd(); tile_mma(0); pf_touch()
    jobs = [J_mul(R(1), Tq(0), V[8], 0)] + [J_mul(SO2(q % 4), Tq(q), V[8], q) for q in range(1, 8)]
    batch(jobs[:4])
    tile_fin(); taddr(vT1a, DD+2); taddr(vT1b, DD+3)
    e(f"ds_write_b32 v{DD+2}, v{DD}\nds_write_b32 v{DD+3}, v{DD+1}")
    batch(jobs[4:])
    batch([J_mul(SO2(0), R(1), V[8], 8)])
    tile_rd(); tile_mma(0)
    g.stamp(12)
    e(f"""s_cmp_lg_u32 s{sRND}, 0
    s_cbranch_scc1 L_wj3_skip
    s_cmp_eq_u32 s{sWJ}, 0
    s_cbranch_scc1 L_wj3_skip
    s_lshl_b32 s{sA}, s{sLN}, 5
    s_add_u32 s{sA}, s{sA}, s{sKS}
    s_lshl_b32 s{sA}, s{sA}, 7
    s_add_u32 s{sA}, s{sA}, {WS_FWO}
    s_waitcnt vmcnt(0)""")
    g.flag_store(sA, T+4)
    a.lab("L_wj3_skip")
    pf_touch()
    tile_fin(); taddr(vT2, DD+2)
    e(f"""ds_write_b16 v{DD+2}, v{DD}
    ds_write_b16_d16_hi v{DD+2}, v{DD} offset:32
    ds_write_b16 v{DD+2}, v{DD+1} offset:64
    ds_write_b16_d16_hi v{DD+2}, v{DD+1} offset:96
    v_mov_b32 v{DD+3}, s{sTBL}
    ds_write_b32 v{DD+3}, v{vZ} offset:{2*ZI}""")
    e(f"""s_cmp_lg_u32 s{sRND}, 0
    s_cbranch_scc1 L_kgen_done
    s_cmp_lt_u32 s{sWAVE}, 6
    s_cbranch_scc1 L_kgen_done
    s_mov_b32 s{sRND}, 1
    s_add_u32 s{sCH}, s{sCH}, 2
    s_add_u32 s{sTBL}, s{sTBL}, {2*TSZ}""")
    param_loads()
    e("s_waitcnt vmcnt(0)\ns_branch L_kgen")
    a.lab("L_kgen_done")
    g.stamp(1)
    vKA, vUB, vKW, vZW, vL16, vEU, vES, vYO, vFL = 60, 61, 62, 63, 64, 65, 66, 67, 68
    vKAc, vUBc = 69, 70
    vDS = 172
    def fetch_u():
        e(f"""s_lshr_b32 s{sA}, s{sCH}, 4
        s_mov_b32 s{sD}, {WS_FXN}""")
        for th in (7, 14, 20, 26, 32):
            e(f"s_cmp_ge_u32 s{sA}, {th}\ns_cselect_b32 s{sT}, 16384, 0\ns_add_u32 s{sD}, s{sD}, s{sT}")
        e(f"""s_cmp_eq_u32 s{sD}, {WS_FXN + 16384}
        s_cselect_b32 s{sT}, 1, 0
        s_xor_b32 s{sA}, s{sA}, s{sT}
        s_and_b32 s{sA}, s{sA}, 1
        s_lshl_b32 s{sA}, s{sA}, 13
        s_add_u32 s{sD}, s{sD}, s{sA}""")
        g.poll(vFL, f"s{sD}", T+4)
        g.stamp(3)
        e(f"""s_lshl_b32 s{sA}, s{sCH}, 12
        s_add_u32 s{sA}, s{sA}, {WS_XNT}
        s_sub_u32 s{sC}, s{sA}, 4
        s_add_u32 m0, s{sSLOT}, {UOFF + UCP + 64}
        s_lshl_b32 s{sB}, s{sCH}, 1""")
        for i in range(4): e(f"buffer_load_dwordx4 v{vL16}, {srd(SRD_WS)}, s{sA} offen offset:{1024*i} sc1 lds")
        e(f"s_add_u32 m0, s{sSLOT}, {UOFF + 64}\ns_nop 0")
        for i in range(4): e(f"buffer_load_dwordx4 v{vL16}, {srd(SRD_WS)}, s{sC} offen offset:{1024*i} sc1 lds")
        e(f"""buffer_load_ushort v{vDS}, v{vZ}, {srd(SRD_DSK)}, s{sB} offen""")
    e(f"""v_lshlrev_b32 v{vL16}, 4, v{vL}
    s_add_u32 s{sCH}, s{sD0}, s{sWAVE}
    s_waitcnt vmcnt(4)""")
    e(f"""v_and_b32 v{T}, 1, v{vJ}
    v_mul_u32_u24 v{vKA}, {KCP}, v{T}
    v_lshrrev_b32 v{T+1}, 1, v{vJ}
    v_lshlrev_b32 v{T+1}, 6, v{T+1}
    v_lshl_add_u32 v{T+1}, v{vG}, 4, v{T+1}
    v_sub_u32 v{vKA}, v{vKA}, v{T+1}
    v_add_u32 v{vKA}, {4528 - 3584}, v{vKA}
    v_add_u32 v{vKA}, s{sSLOT}, v{vKA}
    v_mul_u32_u24 v{vUB}, {UCP}, v{T}
    v_or_b32 v{T+1}, 1, v{vJ}
    v_lshl_add_u32 v{vUB}, v{T+1}, 2, v{vUB}
    v_lshlrev_b32 v{T+1}, 4, v{vG}
    v_sub_u32 v{vUB}, v{vUB}, v{T+1}
    v_add_u32 v{vUB}, {UOFF + 52 + 448}, v{vUB}
    v_add_u32 v{vUB}, s{sSLOT}, v{vUB}
    v_lshlrev_b32 v{vL16}, 4, v{vL}
    v_add_u32 v{vKW}, s{sSLOT}, v{vL16}
    v_and_b32 v{T}, 31, v{vL}
    v_min_u32 v{T}, 29, v{T}
    v_lshlrev_b32 v{T}, 4, v{T}
    v_lshrrev_b32 v{T+1}, 5, v{vL}
    v_mul_u32_u24 v{T+1}, {KCP}, v{T+1}
    v_add3_u32 v{vZW}, v{T}, v{T+1}, s{sSLOT}
    v_lshlrev_b32 v{vES}, 7, v{vG}
    v_lshl_add_u32 v{vES}, v{vJ}, 2, v{vES}
    v_add_u32 v{vES}, s{sSLOT}, v{vES}
    v_add_u32 v{vEU}, {UOFF + UCP + 64}, v{vES}
    v_lshrrev_b32 v{T}, 3, v{vL}
    s_mov_b32 s{sA}, {640*128}
    v_mul_lo_u32 v{vYO}, v{T}, s{sA}
    v_and_b32 v{T}, 7, v{vL}
    v_lshl_add_u32 v{vYO}, v{T}, 4, v{vYO}
    v_lshlrev_b32 v{vFL}, 7, v{vL}""")
    ZQ = 72
    for i in range(4): e(f"v_mov_b32 v{ZQ+i}, 0")
    e(f"""v_and_b32 v{T}, 3, v{vL}
    v_lshlrev_b32 v{T}, 4, v{T}
    v_bfe_u32 v{T+1}, v{vL}, 2, 1
    v_mul_u32_u24 v{T+1}, {UCP}, v{T+1}
    v_add3_u32 v{T}, v{T}, v{T+1}, s{sSLOT}
    ds_write_b128 v{T}, v[{ZQ}:{ZQ+3}] offset:{UOFF}
    s_mov_b32 s{sRND}, 0
    s_mov_b32 s{sNIT}, 8
    s_mov_b32 s{sMO}, 0
    s_add_u32 s{sCH}, s{sD0}, s{sWAVE}
    s_mul_i32 s{sTBL}, s{sWAVE}, {TSZ}
    s_add_u32 s{sTBL}, s{sTBL}, {TB}""")
    for i in range(36): e(f"v_add_u32 v{GA+i}, s{sTBL}, v{GA+i}")
    e("s_setprio 0")
    g.stamp(2)
    AF = 76
    BF = 108
    AC = 140
    GV = 76
    OQ = 112
    a.lab("L_conv")
    for m in range(4):
        for ee in range(9):
            e(f"ds_read_u16 v{GV+9*m+ee}, v{GA+9*m+ee}")
        if m % 2 == 1 or True:
            e("s_waitcnt lgkmcnt(0)")
            q = OQ + 8*(m & 1)
            b = GV + 9*m
            for i in range(4):
                e(f"v_lshl_or_b32 v{q+i}, v{b+2*i+2}, 16, v{b+2*i+1}")
                e(f"v_lshl_or_b32 v{q+4+i}, v{b+2*i+1}, 16, v{b+2*i}")
            e(f"ds_write_b128 v{vKW}, v[{q}:{q+3}] offset:{1024*m}\nds_write_b128 v{vKW}, v[{q+4}:{q+7}] offset:{KCP + 1024*m}")
    e(f"ds_write_b128 v{vZW}, v[{ZQ}:{ZQ+3}] offset:4096")
    e(f"""v_mov_b32 v{vKAc}, v{vKA}
    v_mov_b32 v{vUBc}, v{vUB}
    v_mov_b32 v{T}, s{sSLOT}""")
    g.stamp(13)
    e(f"s_cmp_lg_u32 s{sRND}, 0\ns_cbranch_scc1 L_nofetch")
    fetch_u()
    a.lab("L_nofetch")
    for i in range(32): e(f"v_mov_b32 v{AC+i}, 0")
    e(f"""s_mov_b32 s{sCNT}, s{sNIT}
    v_subrev_u32 v{vKAc}, s{sMO}, v{vKAc}
    v_subrev_u32 v{vUBc}, s{sMO}, v{vUBc}
    s_waitcnt vmcnt(0)
    ds_write_b32 v{T}, v{vZ} offset:{UOFF + 64}""")
    pf_touch(); pf_touch(); pf_touch(); pf_touch()
    g.stamp(4)
    a.lab("L_mu0")
    def rd(m):
        return [f"ds_read_b128 v[{AF+4*m}:{AF+4*m+3}], v{vKAc} offset:{512*(7-m)}",
                f"ds_read_b64 v[{BF+4*m}:{BF+4*m+1}], v{vUBc} offset:{512*m}",
                f"ds_read_b64 v[{BF+4*m+2}:{BF+4*m+3}], v{vUBc} offset:{512*m+8}"]
    for m in range(5):
        for s in rd(m): e(s)
    issued = 5
    for m in range(8):
        e(f"s_waitcnt lgkmcnt({3*(issued-1-m)})")
        pairs = [(m, b) for b in range(m+1) if m + b <= 7] + [(u, m) for u in range(m) if u + m <= 7]
        for k, (u, b) in enumerate(pairs):
            c = AC + 4*(u + b)
            e(f"v_mfma_f32_16x16x32_bf16 v[{c}:{c+3}], v[{AF+4*u}:{AF+4*u+3}], v[{BF+4*b}:{BF+4*b+3}], v[{c}:{c+3}]")
        if issued < 8:
            for s in rd(issued): e(s)
            issued += 1
    pf_touch()
    e(f"""v_subrev_u32 v{vKAc}, 64, v{vKAc}
    v_subrev_u32 v{vUBc}, 64, v{vUBc}
    s_sub_u32 s{sCNT}, s{sCNT}, 1
    s_cmp_lg_u32 s{sCNT}, 0
    s_cbranch_scc1 L_mu0""")
    g.stamp(5)
    e(f"""s_cmp_eq_u32 s{sRND}, 0
    s_cbranch_scc1 L_epi
    s_cmp_lt_u32 s{sWAVE}, 2
    s_cbranch_scc1 L_red_rd""")
    for c in range(8): e(f"ds_write_b128 v{vKW}, v[{AC+4*c}:{AC+4*c+3}] offset:{1024*c}")
    e("s_waitcnt lgkmcnt(0)\ns_barrier\ns_branch L_conv_done")
    a.lab("L_red_rd")
    e("s_barrier")
    for c in range(8): e(f"ds_read_b128 v[{BF+4*c}:{BF+4*c+3}], v{vKW} offset:{2*SLOT + 1024*c}")
    for c in range(8):
        e(f"s_waitcnt lgkmcnt({7-c})")
        e(f"v_pk_add_f32 v[{AC+4*c}:{AC+4*c+1}], v[{AC+4*c}:{AC+4*c+1}], v[{BF+4*c}:{BF+4*c+1}]\nv_pk_add_f32 v[{AC+4*c+2}:{AC+4*c+3}], v[{AC+4*c+2}:{AC+4*c+3}], v[{BF+4*c+2}:{BF+4*c+3}]")
    a.lab("L_epi")
    UV = AF
    for c in range(8):
        e(f"ds_read2_b32 v[{UV+2*c}:{UV+2*c+1}], v{vEU} offset0:{128*c % 256} offset1:{(128*c + 16) % 256}" if c < 2 else "")
    for c in range(2, 8):
        e(f"ds_read_b32 v{UV+2*c}, v{vEU} offset:{512*c}\nds_read_b32 v{UV+2*c+1}, v{vEU} offset:{512*c+64}")
    e(f"""v_lshlrev_b32 v{vDS}, 16, v{vDS}
    v_mov_b32 v{vDS+1}, v{vDS}
    s_mov_b32 s{sB}, 0xffff0000
    s_waitcnt lgkmcnt(0)""")
    for c in range(8):
        for h in range(2):
            y = AC + 4*c + 2*h; u = UV + 2*c + h
            p0, p1 = T, T+2
            p0 = T + 2*h
            e(f"""v_lshlrev_b32 v{p0}, 16, v{u}
            v_and_b32 v{p0+1}, s{sB}, v{u}
            v_pk_fma_f32 v[{y}:{y+1}], v[{p0}:{p0+1}], v[{vDS}:{vDS+1}], v[{y}:{y+1}]
            v_cvt_pk_bf16_f32 v{y}, v{y}, v{y+1}
            ds_write_b32 v{vES}, v{y} offset:{512*c + 64*h}""")
    for i in range(4):
        e(f"ds_read_b128 v[{BF+4*i}:{BF+4*i+3}], v{vKW} offset:{1024*i}")
    e(f"""s_lshl_b32 s{sA}, s{sCH}, 7
    s_add_u32 s{sA}, s{sA}, {WS_YA}""")
    for i in range(4):
        e(f"""s_waitcnt lgkmcnt({3-i})
        buffer_store_dwordx4 v[{BF+4*i}:{BF+4*i+3}], v{vYO}, {srd(SRD_WS)}, s{sA} offen sc1
        s_add_u32 s{sA}, s{sA}, {8*640*128}""")
    g.stamp(6)
    e(f"""s_cmp_lg_u32 s{sRND}, 0
    s_cbranch_scc1 L_conv_done
    s_barrier
    s_cmp_ge_u32 s{sWAVE}, 4
    s_cbranch_scc1 L_conv_idle
    s_mov_b32 s{sRND}, 1
    s_mov_b32 s{sNIT}, 4
    s_lshr_b32 s{sMO}, s{sWAVE}, 1
    s_lshl_b32 s{sMO}, s{sMO}, 8
    s_and_b32 s{sA}, s{sWAVE}, 1
    s_add_u32 s{sCH}, s{sD0}, 8
    s_add_u32 s{sCH}, s{sCH}, s{sA}
    s_add_u32 s{sA}, s{sA}, 8
    s_sub_u32 s{sA}, s{sA}, s{sWAVE}
    s_mul_i32 s{sA}, s{sA}, {TSZ}""")
    for i in range(36): e(f"v_add_u32 v{GA+i}, s{sA}, v{GA+i}")
    fetch_u()
    e("s_branch L_conv")
    a.lab("L_conv_idle")
    e("s_barrier")
    a.lab("L_conv_done")
    e(f"""s_waitcnt vmcnt(0)
    s_barrier
    s_cmp_lg_u32 s{sWAVE}, 0
    s_cbranch_scc1 L_end
    s_lshl_b32 s{sA}, s{sRB}, 7
    s_add_u32 s{sA}, s{sA}, {WS_FY}""")
    g.flag_store(sA, T)
    g.stamp(7)
    e("s_branch L_end")


def gtab():
    import numpy as np
    def bf16r(l):
        u = int(np.float32(l).view(np.uint32))
        u = (u + 0x7FFF + ((u >> 16) & 1)) >> 16
        return u
    out = []
    for q in range(9):
        for lane in range(64):
            for k in range(4):
                m, ee = divmod(4*q + k, 9)
                l = 2047 - 8*(lane + 64*m) - ee
                idx = ZI if l < 0 else (l if l < 128 else bf16r(l) - 0x4300 + 128)
                out.append(2*idx)
    return out
```

```python
import sys, math, struct
from asmlib import Asm

KNAME = "parallel_sum__ssm_conv_s4d__mixer_gmlp__prompt_kernel"
def f2u(x): return struct.unpack("<I", struct.pack("<f", x))[0]
def hx(x): return f"0x{x:08x}"

WS_EPOCH = 0
WS_FXN   = 0xE0000
WS_FZ2   = 0x20000
WS_FH    = 0x40000
WS_FY    = 0x60000
WS_FWO   = 0x70000
WS_WOT   = 0xF00000 - 0x20000
WS_STATS = 0x80000
WS_XNT   = 0x100000
WS_Z2    = 0x400000
WS_H     = 0x800000
WS_YA    = 0xC00000
WS_DBG   = 0x1000000
WS_SIZE  = 0x2000000

XT = 0; RING1 = 81920; S1SZ = 19456; RSTAB = 159744
NA = 8; BRING = 65536; NB = 4; BSZ = 18432
HB = 49152; YAB = 16384; XB = 32768

sWAVE, sRB, sCB, sTAG, sT = 3, 4, 5, 6, 7
SRD_X, SRD_WIN, SRD_WSP, SRD_WOUT, SRD_OUT, SRD_WS, SRD_BSP = 8, 12, 16, 20, 24, 28, 32
def srd(n): return f"s[{n}:{n+3}]"
sW, sMH, sNH = 66, 67, 68
sWSLOT, sWSOFF, sWSL = 69, 70, 71
sXOFF, sROFF, sCNT = 72, 73, 74
sK1 = 76
sA, sB, sC, sD = 78, 79, 80, 81
sSPIN = 82
sMASK = 84
sE0 = 86
sTM = 88
sTM0 = 90
sT2 = 92
sW0 = 83
SPIN_MAX = 200000

class G:
    def __init__(self, opts):
        self.a = Asm(); self.o = opts; self.nstamp = 0
    def e(self, s):
        if self.o.get("nodma"):
            s = "\n".join(l for l in s.split("\n") if not l.strip().endswith(" lds"))
        if self.o.get("nosc1"):
            s = s.replace(" sc1 lds", " lds")
        self.a.e(s)

    def mk_srd(self, d, p, nbytes):
        self.e(f"""s_mov_b32 s{d}, s{p}
        s_mov_b32 s{d+1}, s{p+1}
        s_mov_b32 s{d+2}, {nbytes}
        s_mov_b32 s{d+3}, 0x20000""")

    def stamp(self, idx, vt=None):
        if not self.o.get("stamps"): return
        self.e(f"""s_memtime s[{sTM}:{sTM+1}]
        s_waitcnt lgkmcnt(0)
        s_sub_u32 s{sTM}, s{sTM}, s{sTM0}
        v_writelane_b32 v0, s{sTM}, {idx}""")

    def stamp_s(self, k):
        if not self.o.get("stamps"): return
        self.e(f"""s_memtime s[{sTM}:{sTM+1}]
        s_waitcnt lgkmcnt(0)
        s_sub_u32 s{96+k}, s{sTM}, s{sTM0}""")
    def stamp_flush(self):
        if not self.o.get("stamps"): return
        for k in range(4): self.e(f"v_writelane_b32 v0, s{96+k}, {40+k}")

    def stampd(self, base):
        if not self.o.get("fine"): return
        self.e(f"""s_memtime s[{sTM}:{sTM+1}]
        s_waitcnt lgkmcnt(0)
        s_sub_u32 s{sTM}, s{sTM}, s{sTM0}
        s_add_u32 m0, s{sCNT}, {base}
        s_nop 1
        v_writelane_b32 v0, s{sTM}, m0""")

    def poll(self, voff, soff, vtmp):
        L = self.a.newlab("Lpoll"); D = self.a.newlab("Lpolld")
        self.e(f"s_mov_b32 s{sSPIN}, {SPIN_MAX}")
        self.a.lab(L)
        self.e(f"""buffer_load_dword v{vtmp}, v{voff}, {srd(SRD_WS)}, {soff} offen sc1
        s_waitcnt vmcnt(0)
        v_cmp_ne_u32 vcc, s{sTAG}, v{vtmp}
        s_cbranch_vccz {D}
        s_sleep 1
        s_sub_u32 s{sSPIN}, s{sSPIN}, 1
        s_cmp_lg_u32 s{sSPIN}, 0
        s_cbranch_scc1 {L}""")
        self.a.lab(D)

    def flag_store(self, soff_sreg, vt):
        self.e(f"""v_mov_b32 v{vt}, s{sTAG}
        v_mov_b32 v{vt+1}, 0
        s_mov_b64 s[{sE0}:{sE0+1}], exec
        s_mov_b64 exec, 1
        buffer_store_dword v{vt}, v{vt+1}, {srd(SRD_WS)}, s{soff_sreg} offen sc1
        s_mov_b64 exec, s[{sE0}:{sE0+1}]""")

    def entry(self):
        e = self.e
        e(f"""s_cmp_ge_u32 s2, 256
        s_cbranch_scc1 L_exit
        s_load_dwordx2 s[36:37], s[0:1], 0
        s_load_dwordx2 s[64:65], s[0:1], 112
        v_lshrrev_b32 v1, 6, v0
        s_and_b32 s{sA}, s2, 7
        s_lshr_b32 s{sB}, s2, 3""")
        if self.o.get("stamps"):
            e(f"s_memtime s[{sTM0}:{sTM0+1}]\ns_memrealtime s[100:101]")
        e(f"""v_readfirstlane_b32 s{sWAVE}, v1
        s_cmp_ge_u32 s{sB}, 24
        s_cbranch_scc1 L_ssm
        s_lshr_b32 s{sRB}, s{sA}, 1
        s_lshl_b32 s{sRB}, s{sRB}, 3
        s_and_b32 s{sC}, s{sB}, 7
        s_add_u32 s{sRB}, s{sRB}, s{sC}""")

    def entry2(self):
        e = self.e
        e(f"""s_load_dwordx8 s[52:59], s[0:1], 64
        s_load_dwordx2 s[60:61], s[0:1], 96
        s_load_dword s{sTAG}, s[64:65], {WS_EPOCH}
        s_and_b32 s{sCB}, s2, 1
        s_mul_i32 s{sCB}, s{sCB}, 3
        s_lshr_b32 s{sC}, s2, 6
        s_add_u32 s{sCB}, s{sCB}, s{sC}
        s_and_b32 s{sW}, s{sWAVE}, 3
        s_lshr_b32 s{sMH}, s{sW}, 1
        s_and_b32 s{sNH}, s{sW}, 1""")
        self.mk_srd(SRD_WS, 64, WS_SIZE)
    def entry3(self):
        self.e("s_waitcnt lgkmcnt(0)")
        self.mk_srd(SRD_WIN, 52, 640*1728*2)
        self.mk_srd(SRD_WSP, 54, 2048*2048*2)
        self.mk_srd(SRD_BSP, 56, 2048*2)
        self.mk_srd(SRD_OUT, 60, 2048*640*2)

    vL = 1
    vWOFF = 2
    vX0, vX1 = 8, 9
    vWB, vWB4 = 10, 11
    vA0, vA1, vB0, vB4 = 12, 13, 14, 15
    vT = 16
    vK0 = 32
    FS = (40, 96)
    ACC = 152
    Z1 = 192
    XR = 40

    def w_ops(self):
        g = [f"""s_mov_b32 m0, s{sWSLOT}
        s_add_u32 s{sWSLOT}, s{sWSLOT}, {S1SZ}
        buffer_load_dwordx4 v{self.vWOFF}, {srd(SRD_WIN)}, s{sWSOFF} offen lds"""]
        for i in range(1, 4):
            g.append(f"buffer_load_dwordx4 v{self.vWOFF+i}, {srd(SRD_WIN)}, s{sWSOFF} offen offset:{1024*i} lds")
        L = self.a.newlab("Lsk")
        g.append(f"""s_cmp_eq_u32 s{sW}, 3
        s_cbranch_scc1 {L}
        s_add_u32 m0, m0, 4096
        s_nop 0
        buffer_load_dwordx4 v{self.vWOFF+4}, {srd(SRD_WIN)}, s{sWSOFF} offen lds
        {L}:
        s_cmp_ge_u32 s{sWSLOT}, {RING1 + 4*S1SZ}
        s_cselect_b32 s{sWSLOT}, s{sW0}, s{sWSLOT}
        s_add_u32 s{sWSOFF}, s{sWSOFF}, {64*3456}
        s_cmp_ge_u32 s{sWSOFF}, {640*3456}
        s_cselect_b32 s{sWSOFF}, s{sWSL}, s{sWSOFF}""")
        return g
    def issue_w(self):
        for g in self.w_ops(): self.e(g)

    def gemm_prologue(self):
        e = self.e; T = self.vT; XR = self.XR; vL = self.vL
        sXS = sROFF
        e(f"""v_and_b32 v{vL}, 63, v0
        s_lshr_b32 s{sA}, s2, 6
        s_mul_i32 s{sA}, s{sA}, 3
        s_add_u32 s{sA}, s{sA}, s{sWAVE}
        s_and_b32 s{sA}, s{sA}, 7
        s_lshl_b32 s{sA}, s{sA}, 3
        v_lshrrev_b32 v{T}, 3, v{vL}
        v_add_u32 v{T}, s{sA}, v{T}
        v_and_b32 v{T+1}, 7, v0
        v_mul_u32_u24 v{T+2}, 1280, v{T}
        v_lshl_add_u32 v{T+2}, v{T+1}, 4, v{T+2}
        s_mul_i32 s{sA}, s{sRB}, {64*1280}
        s_and_b32 s{sXS}, s{sRB}, 7
        s_lshl_b32 s{sB}, s{sXS}, 7
        s_waitcnt lgkmcnt(0)""")
        self.mk_srd(SRD_X, 36, 2048*640*2)
        self.stamp_s(0)
        for j in range(10):
            e(f"""s_add_u32 s{sC}, s{sA}, s{sB}
            buffer_load_dwordx4 v[{XR+4*j}:{XR+4*j+3}], v{T+2}, {srd(SRD_X)}, s{sC} offen
            s_add_u32 s{sB}, s{sB}, 128
            s_cmp_ge_u32 s{sB}, 1280
            s_cselect_b32 s{sB}, 0, s{sB}""")
        self.entry2()
        e(f"s_mul_i32 s{sA}, s{sW}, 320")
        for i in range(5):
            p, gq, rem, k8, d = T+4, T+5, T+6, T+7, self.vWOFF + i
            e(f"""v_add_u32 v{p}, s{sA}, v{vL}
            s_add_u32 s{sA}, s{sA}, 64
            v_mul_u32_u24 v{gq}, 6899, v{p}
            v_lshrrev_b32 v{gq}, 20, v{gq}
            v_mul_u32_u24 v{rem}, 152, v{gq}
            v_sub_u32 v{rem}, v{p}, v{rem}
            v_mul_u32_u24 v{k8}, 3641, v{rem}
            v_lshrrev_b32 v{k8}, 16, v{k8}
            v_mul_u32_u24 v{d}, 18, v{k8}
            v_sub_u32 v{rem}, v{rem}, v{d}
            v_lshrrev_b32 v{p}, 3, v{k8}
            v_lshl_add_u32 v{k8}, v{gq}, 3, v{k8}
            v_mul_u32_u24 v{d}, 3456, v{k8}
            v_lshl_add_u32 v{d}, v{rem}, 4, v{d}
            v_lshl_or_b32 v{d}, v{p}, 30, v{d}""")
            if 1 <= i <= 3: e(f"v_subrev_u32 v{d}, {1024*i}, v{d}")
        e(f"""s_and_b32 s{sA}, s{sRB}, 7
        s_mul_i32 s{sWSOFF}, s{sA}, {64*3456}
        s_lshl_b32 s{sXOFF}, s{sA}, 13
        s_mul_i32 s{sWSL}, s{sCB}, 288
        s_add_u32 s{sWSL}, s{sWSL}, 1728
        s_add_u32 s{sWSOFF}, s{sWSOFF}, s{sWSL}
        s_mul_i32 s{sW0}, s{sW}, 5120
        s_add_u32 s{sW0}, s{sW0}, {RING1}
        s_mov_b32 s{sWSLOT}, s{sW0}""")
        g, c15 = T+4, T+5
        e(f"""v_bfe_u32 v{T+3}, v{T}, 1, 3
        v_xor_b32 v{T+3}, v{T+3}, v{T+1}
        v_lshlrev_b32 v{T+3}, 4, v{T+3}
        v_lshl_add_u32 v{T+3}, v{T}, 7, v{T+3}
        v_lshrrev_b32 v{g}, 4, v{vL}
        v_and_b32 v{c15}, 15, v{vL}
        v_lshrrev_b32 v{T+6}, 1, v{c15}
        v_xor_b32 v{T+6}, v{T+6}, v{g}
        v_lshlrev_b32 v{T+6}, 4, v{T+6}
        v_lshl_add_u32 v{self.vX0}, v{c15}, 7, v{T+6}
        s_lshl_b32 s{sA}, s{sMH}, 12
        v_add_u32 v{self.vX0}, s{sA}, v{self.vX0}
        v_xor_b32 v{self.vX1}, 64, v{self.vX0}
        v_mul_u32_u24 v{self.vWB4}, 2432, v{g}
        v_bfe_u32 v{T+6}, v{vL}, 2, 2
        v_mul_u32_u24 v{T+6}, 288, v{T+6}
        v_add_u32 v{self.vWB4}, v{self.vWB4}, v{T+6}
        v_and_b32 v{T+6}, 3, v{vL}
        v_lshl_add_u32 v{self.vWB4}, v{T+6}, 3, v{self.vWB4}
        s_mul_i32 s{sA}, s{sNH}, 160
        v_add_u32 v{self.vWB}, s{sA}, v{self.vWB4}
        v_add_u32 v{self.vWB4}, 128, v{self.vWB4}
        s_mov_b32 s{sK1}, {hx(f2u(-2.302208198*0.044715))}
        s_mov_b32 s{sK1+1}, {hx(f2u(-2.302208198*0.044715))}
        v_mov_b32 v{self.vK0}, {hx(f2u(-2.302208198))}
        v_mov_b32 v{self.vK0+1}, {hx(f2u(-2.302208198))}""")
        self.entry3()
        def ydma(grp):
            L = self.a.newlab("Lyd")
            e(f"s_cmp_lt_u32 s{sWAVE}, 4\ns_cbranch_scc1 {L}")
            e(grp)
            self.a.lab(L)
        ydma("\n".join(self.w_ops() + self.w_ops()))
        S, Q = T+8, T+9
        e(f"""v_mov_b32 v{S}, 0
        v_mov_b32 v{Q}, 0
        s_mov_b32 s{sA}, 0x3f803f80
        s_cmp_lt_u32 s{sWAVE}, 4""")
        for j in range(10):
            e(f"s_cbranch_scc1 Lxw{j}\ns_waitcnt vmcnt({9-j+8})\ns_branch Lxv{j}\nLxw{j}:\ns_waitcnt vmcnt({9-j})\nLxv{j}:")
            if j == 9: self.stamp_s(3)
            for i in range(4*j, 4*j+4):
                e(f"v_dot2c_f32_bf16 v{S}, s{sA}, v{XR+i}\nv_dot2c_f32_bf16 v{Q}, v{XR+i}, v{XR+i}")
        for m in ("quad_perm:[1,0,3,2]", "quad_perm:[2,3,0,1]", "row_half_mirror"):
            e(f"v_add_f32_dpp v{S}, v{S}, v{S} {m} row_mask:0xf bank_mask:0xf\nv_add_f32_dpp v{Q}, v{Q}, v{Q} {m} row_mask:0xf bank_mask:0xf")
        self.ln_params(S, Q, 640, T+10, T+12, T+14)
        NM, RS = T+10, T+12
        e(f"""s_mov_b32 s{sA}, 0x00003f80
        s_mov_b32 s{sC}, 0x3f800000
        s_lshl_b32 s{sB}, s{sXS}, 13
        v_lshlrev_b32 v{T+7}, 2, v{T}
        ds_write_b32 v{T+7}, v{RS} offset:{RSTAB - 98304}""".replace(f"v_lshlrev_b32 v{T+7}, 2, v{T}", f"v_lshlrev_b32 v{T+7}, 2, v{T}\n        v_add_u32 v{T+7}, 98304, v{T+7}"))
        TP = 80
        for j in range(10):
            ls = []
            for k in range(4):
                r = XR + 4*j + k; a = TP + 2*k; b = a + 1
                ls.append([f"v_dot2_f32_bf16 v{a}, v{r}, s{sA}, v{NM}", f"v_dot2_f32_bf16 v{b}, v{r}, s{sC}, v{NM}",
                           f"v_cvt_pk_bf16_f32 v{r}, v{a}, v{b}"])
            self.rr(ls)
            e(f"""v_add_u32 v{T+6}, s{sB}, v{T+3}
            ds_write_b128 v{T+6}, v[{XR+4*j}:{XR+4*j+3}]
            s_add_u32 s{sB}, s{sB}, 8192
            s_cmp_ge_u32 s{sB}, 81920
            s_cselect_b32 s{sB}, 0, s{sB}""")
        self.stamp_flush()
        e(f"""s_waitcnt lgkmcnt(0)
        s_mul_i32 s{sTAG}, s{sTAG}, 0x9E3779B1
        s_add_u32 s{sTAG}, s{sTAG}, 0x7F4A7C15
        s_cmp_ge_u32 s{sWAVE}, 4
        s_cbranch_scc1 L_Y""")

    def ln_params(self, S, Q, n, NM, RS, t):
        self.e(f"""v_mul_f32 v{S}, {hx(f2u(1.0/n))}, v{S}
        v_mul_f32 v{Q}, {hx(f2u(1.0/n))}, v{Q}
        v_fma_f32 v{Q}, -v{S}, v{S}, v{Q}
        v_max_f32 v{Q}, 0, v{Q}
        v_cvt_pk_bf16_f32 v{t}, v{S}, v{Q}
        v_lshlrev_b32 v{NM}, 16, v{t}
        v_xor_b32 v{NM}, 0x80000000, v{NM}
        v_mov_b32 v{NM+1}, v{NM}
        v_and_b32 v{Q}, 0xffff0000, v{t}
        v_add_f32 v{Q}, {hx(f2u(1e-5))}, v{Q}
        v_cvt_pk_bf16_f32 v{t}, v{Q}, v{Q}
        v_lshlrev_b32 v{Q}, 16, v{t}
        v_sqrt_f32 v{Q}, v{Q}
        v_cvt_pk_bf16_f32 v{t}, v{Q}, v{Q}
        v_lshlrev_b32 v{Q}, 16, v{t}
        v_rcp_f32 v{RS}, v{Q}
        v_mov_b32 v{RS+1}, v{RS}""")


    def p1_reads(self, F):
        out = []
        for ks in range(2):
            Fk = F + 28*ks
            vx = self.vA0 if ks == 0 else self.vA1
            for a in range(2):
                out.append(f"ds_read_b128 v[{Fk+4*a}:{Fk+4*a+3}], v{vx} offset:{2048*a}")
            for j in range(5):
                base = self.vB0 if j < 4 else self.vB4
                off = ks*9728 + (32*j if j < 4 else 0)
                for h in range(2):
                    r = Fk + 8 + 4*j + 2*h
                    out.append(f"ds_read_b64_tr_b16 v[{r}:{r+1}], v{base} offset:{off + h*1152}")
        return out
    def p2_reads(self, F):
        out = []
        for ks in range(2):
            Fk = F + 28*ks
            vx = self.vA0 if ks == 0 else self.vA1
            out += [f"ds_read_b128 v[{Fk+4*a}:{Fk+4*a+3}], v{vx} offset:{2048*a}" for a in range(2)]
            for j in range(5):
                base = self.vB0 if j < 4 else self.vB4
                off = ks*9216 + (1024*j if j < 4 else 0)
                out.append(f"ds_read_b128 v[{Fk+8+4*j}:{Fk+8+4*j+3}], v{base} offset:{off}")
        return out
    def mfmas(self, F, swap, first=False):
        out = []
        for ks in range(2):
            Fk = F + 28*ks
            for j in range(5):
                for a in range(2):
                    c = self.ACC + 4*(2*j + a)
                    X = f"v[{Fk+4*a}:{Fk+4*a+3}]"; W = f"v[{Fk+8+4*j}:{Fk+8+4*j+3}]"
                    A, B = (W, X) if swap else (X, W)
                    C = "0" if (first and ks == 0) else f"v[{c}:{c+3}]"
                    out.append(f"v_mfma_f32_16x16x32_bf16 v[{c}:{c+3}], {A}, {B}, {C}")
        return out
    def interleave(self, reads, mf, per=2):
        out = []; ri = 0
        for m in mf:
            out.append(m)
            for _ in range(per):
                if ri < len(reads): out.append(reads[ri]); ri += 1
        out += reads[ri:]
        return out

    def compute_loop(self, n, swap, reads_fn, addr_fn, tagname, vmwait=False, first=None, mid=None):
        e = self.e
        endw = f"s_waitcnt {'vmcnt(0) ' if vmwait else ''}lgkmcnt(0)"
        def stage(rd, mf, extra=()):
            e("s_barrier")
            per = 2 if len(rd) > 16 else 1
            if self.o.get("noread"): rd = []
            if self.o.get("nomfma"): mf = []
            fill = list(rd) + addr_fn() + list(extra)
            out = []; ri = 0
            for k, m in enumerate(mf):
                out.append(m)
                for _ in range(per if ri < len(rd) else 2):
                    if ri < len(fill): out.append(fill[ri]); ri += 1
            out += fill[ri:]
            for s in out: e(s)
        F0, F1 = self.FS
        for s in addr_fn(): e(s)
        if first:
            e("s_barrier"); first()
            for s in reads_fn(F0) + addr_fn(): e(s)
        else:
            stage(reads_fn(F0), [])
        e(endw)
        stage(reads_fn(F1), self.mfmas(F0, swap, True), [f"s_mov_b32 s{sCNT}, {(n-2)//2}"]); e(endw)
        L = self.a.newlab("Lc" + tagname)
        self.a.lab(L)
        stage(reads_fn(F0), self.mfmas(F1, swap))
        if mid: mid()
        e(endw)
        stage(reads_fn(F1), self.mfmas(F0, swap), [f"s_sub_u32 s{sCNT}, s{sCNT}, 1", f"s_cmp_lg_u32 s{sCNT}, 0"])
        e(f"{endw}\ns_cbranch_scc1 {L}")
        return self.mfmas(F1, swap)

    def ring_addr(self, asz_total, bbase, bsz, nb):
        return [f"v_add_u32 v{self.vA0}, s{sXOFF}, v{self.vX0}", f"v_add_u32 v{self.vA1}, s{sXOFF}, v{self.vX1}",
        f"v_add_u32 v{self.vB0}, s{sROFF}, v{self.vWB}", f"v_add_u32 v{self.vB4}, s{sROFF}, v{self.vWB4}",
        f"s_add_u32 s{sXOFF}, s{sXOFF}, 8192", f"s_cmp_ge_u32 s{sXOFF}, {asz_total}", f"s_cselect_b32 s{sXOFF}, 0, s{sXOFF}",
        f"s_add_u32 s{sROFF}, s{sROFF}, {bsz}", f"s_cmp_ge_u32 s{sROFF}, {bbase + nb*bsz}", f"s_cselect_b32 s{sROFF}, {bbase}, s{sROFF}"]
    def p1_addr(self): return self.ring_addr(81920, RING1, S1SZ, 4)
    def p2_addr(self): return self.ring_addr(NA*8192, BRING, BSZ, NB)

    def gelu_pair(self, r, t, dst=None, packed=None):
        d = r if dst is None else dst
        self.e(f"""v_pk_mul_f32 v[{t}:{t+1}], v[{r}:{r+1}], v[{r}:{r+1}]
        v_pk_fma_f32 v[{t}:{t+1}], v[{t}:{t+1}], s[{sK1}:{sK1+1}], v[{self.vK0}:{self.vK0+1}]
        v_pk_mul_f32 v[{t}:{t+1}], v[{t}:{t+1}], v[{r}:{r+1}]
        v_exp_f32 v{t}, v{t}
        v_exp_f32 v{t+1}, v{t+1}
        v_pk_add_f32 v[{t}:{t+1}], v[{t}:{t+1}], 1.0 op_sel_hi:[1,0]
        v_rcp_f32 v{t}, v{t}
        v_rcp_f32 v{t+1}, v{t+1}
        v_pk_mul_f32 v[{t}:{t+1}], v[{t}:{t+1}], v[{r}:{r+1}]
        v_cvt_pk_bf16_f32 v{t if packed is None else packed}, v{t}, v{t+1}""")
        if packed is None:
            self.e(f"v_lshlrev_b32 v{d}, 16, v{t}\nv_and_b32 v{d+1}, s{sB}, v{t}")

    def gelu_list(self, r, t, sc, packed=None, stats=None):
        L = [f"v_pk_mul_f32 v[{r}:{r+1}], v[{r}:{r+1}], v[{sc}:{sc+1}]",
             f"v_pk_mul_f32 v[{t}:{t+1}], v[{r}:{r+1}], v[{r}:{r+1}]",
             f"v_pk_fma_f32 v[{t}:{t+1}], v[{t}:{t+1}], s[{sK1}:{sK1+1}], v[{self.vK0}:{self.vK0+1}]",
             f"v_pk_mul_f32 v[{t}:{t+1}], v[{t}:{t+1}], v[{r}:{r+1}]",
             f"v_exp_f32 v{t}, v{t}", f"v_exp_f32 v{t+1}, v{t+1}",
             f"v_pk_add_f32 v[{t}:{t+1}], v[{t}:{t+1}], 1.0 op_sel_hi:[1,0]",
             f"v_rcp_f32 v{t}, v{t}", f"v_rcp_f32 v{t+1}, v{t+1}"]
        d = r if packed is None else packed
        L += [f"v_pk_mul_f32 v[{d}:{d+1}], v[{t}:{t+1}], v[{r}:{r+1}]"]
        if stats:
            s_, q_ = stats
            L += [f"v_pk_add_f32 v[{s_}:{s_+1}], v[{s_}:{s_+1}], v[{r}:{r+1}]",
                  f"v_pk_fma_f32 v[{q_}:{q_+1}], v[{r}:{r+1}], v[{r}:{r+1}], v[{q_}:{q_+1}]"]
        return L
    def rr(self, lists):
        n = max(len(l) for l in lists)
        for i in range(n):
            for l in lists:
                if i < len(l): self.e(l[i])

    def dump_regs(self, r0, n, slot, vt):
        self.e(f"""s_lshl_b32 s{sA}, s2, 3
        s_add_u32 s{sA}, s{sA}, s{sWAVE}
        s_mul_i32 s{sA}, s{sA}, {n*256}
        s_add_u32 s{sA}, s{sA}, {WS_DBG + 0x100000 + slot*0x600000}
        v_lshlrev_b32 v{vt}, 2, v{self.vL}""")
        for i in range(n):
            self.e(f"buffer_store_dword v{r0+i}, v{vt}, {srd(SRD_WS)}, s{sA} offen\ns_add_u32 s{sA}, s{sA}, 256")


    NWS = 21
    A3 = 224
    sBO = 44
    def wreg(self, pos, ee): return 40 + ((pos % self.NWS)*2 + ee)*4
    def wload(self, pos):
        out = []
        for ee in range(2):
            r = self.wreg(pos, ee)
            off = f"s{self.sBO + (pos >> 2)}" if pos < 24 else str(6*4096)
            out.append(f"s_add_u32 s{sT}, s{93+ee}, {off}\nbuffer_load_dwordx4 v[{r}:{r+3}], v7, {srd(SRD_WS)}, s{sT} offen offset:{(pos%4)*1024} sc1")
        return out
    def blk_offsets(self, mul):
        self.e(f"s_mul_i32 s{self.sBO}, s{sCB}, {mul}\ns_lshr_b32 s{sT}, s2, 6\ns_mov_b32 s50, 0")
        for j in range(1, 6):
            self.e(f"""s_add_u32 s{sT2}, s{sT}, s{sCB}
            s_add_u32 s{sT2}, s{sT2}, 1
            s_cmp_ge_u32 s{sT2}, 6
            s_cselect_b32 s51, 6, 0
            s_sub_u32 s{sT2}, s{sT2}, s51
            s_mul_i32 s{self.sBO+j}, s{sT2}, {mul}
            s_lshl_b32 s{sT2}, s{sT2}, 2
            s_lshl_b32 s{sT2}, {j}, s{sT2}
            s_or_b32 s50, s50, s{sT2}
            s_add_u32 s{sT}, s{sT}, 1
            s_cmp_ge_u32 s{sT}, 5
            s_cselect_b32 s{sT}, 0, s{sT}""")

    def x_path(self):
        e = self.e; T = self.vT; ACC = self.ACC; vL = self.vL
        self.stamp(0)
        g, r, c4 = T, T+1, T+2
        e(f"""v_lshrrev_b32 v{g}, 4, v{vL}
        v_bfe_u32 v{r}, v{vL}, 2, 2
        v_and_b32 v{c4}, 3, v{vL}
        s_and_b32 s{sA}, s{sW}, 1
        s_lshl_b32 s{sB}, s{sA}, 5""")
        for rd in range(2):
            t, sw, ad = T+3, T+4, T+6+rd
            e(f"""v_lshl_add_u32 v{t}, v{g}, 3, v{r}
            v_add_u32 v{t}, {4*rd}, v{t}
            v_add_u32 v{t}, s{sB}, v{t}
            v_bfe_u32 v{sw}, v{t}, 1, 3
            v_lshrrev_b32 v{ad}, 1, v{c4}
            v_xor_b32 v{sw}, v{sw}, v{ad}
            v_lshlrev_b32 v{sw}, 4, v{sw}
            v_lshl_add_u32 v{ad}, v{t}, 7, v{sw}
            v_and_b32 v{sw}, 1, v{c4}
            v_lshl_add_u32 v{ad}, v{sw}, 3, v{ad}""")
        e(f"""v_and_b32 v{T+8}, 15, v{vL}
        v_lshlrev_b32 v{T+8}, 12, v{T+8}
        v_lshl_add_u32 v{T+8}, v{g}, 4, v{T+8}
        s_lshl_b32 s{sB}, s{sA}, 6
        v_add_u32 v{T+8}, s{sB}, v{T+8}
        s_lshl_b32 s{sB}, s{sA}, 7
        s_add_u32 s{sB}, s{sB}, {RSTAB}
        v_lshlrev_b32 v{T+9}, 5, v{g}
        v_add_u32 v{T+9}, s{sB}, v{T+9}
        s_mul_i32 s{sA}, s{sCB}, 7
        s_sub_u32 s{sB}, s{sCB}, 2
        s_max_i32 s{sB}, s{sB}, 0
        s_sub_u32 s{sA}, s{sA}, s{sB}
        s_lshr_b32 s{sB}, s{sW}, 1
        s_add_u32 s{sA}, s{sA}, s{sB}""")
        XQ = 192; XAD = 208
        for i in range(4):
            e(f"""s_add_u32 s{sB}, s{sA}, {2*i}
            s_and_b32 s{sC}, s{sB}, 3
            s_lshl_b32 s{sC}, s{sC}, 5
            s_lshr_b32 s{sD}, s{sB}, 2
            s_lshl_b32 s{sD}, s{sD}, 13""")
            for rd in range(2):
                e(f"v_xor_b32 v{XAD+2*i+rd}, s{sC}, v{T+6+rd}\nv_add_u32 v{XAD+2*i+rd}, s{sD}, v{XAD+2*i+rd}")
        e(f"""s_lshl_b32 s{sB}, s{sRB}, 7
        s_add_u32 s{sB}, s{sB}, {WS_XNT}
        s_lshl_b32 s{sA}, s{sA}, 16
        s_add_u32 s{sA}, s{sA}, s{sB}""")
        def publish():
            e(f"ds_read_b128 v[216:219], v{T+9}\nds_read_b128 v[220:223], v{T+9} offset:16")
            for i in range(8):
                e(f"ds_read_b64_tr_b16 v[{XQ+2*i}:{XQ+2*i+1}], v{XAD+i}")
            e(f"s_mov_b32 s{sB}, 0xffff0000")
            for i in range(4):
                e(f"s_waitcnt lgkmcnt({6-2*i})")
                ls = []
                for k in range(4):
                    r = XQ + 4*i + k; a = 224 + 2*k
                    ls.append([f"v_lshlrev_b32 v{a}, 16, v{r}", f"v_and_b32 v{a+1}, s{sB}, v{r}",
                               f"v_pk_mul_f32 v[{a}:{a+1}], v[{a}:{a+1}], v[{216+2*k}:{217+2*k}]", f"v_cvt_pk_bf16_f32 v{r}, v{a}, v{a+1}"])
                self.rr(ls)
                e(f"""buffer_store_dwordx4 v[{XQ+4*i}:{XQ+4*i+3}], v{T+8}, {srd(SRD_WS)}, s{sA} offen sc1
                s_add_u32 s{sA}, s{sA}, {2*65536}""")
        e(f"""s_lshl_b32 s{sD}, s{sCB}, 2
        s_add_u32 s{sD}, s{sD}, s{sW}
        s_lshl_b32 s{sD}, s{sD}, 5
        s_add_u32 s{sD}, s{sD}, s{sRB}
        s_lshl_b32 s{sD}, s{sD}, 7
        s_add_u32 s{sD}, s{sD}, {WS_FXN}""")
        def xnflag():
            Lf = self.a.newlab("Lfx")
            e(f"s_cmp_lg_u32 s{sCNT}, {self.o.get('xnf', 4)}\ns_cbranch_scc1 {Lf}\ns_waitcnt vmcnt(0)")
            self.flag_store(sD, T)
            self.a.lab(Lf)
        e(f"s_mov_b32 s{sROFF}, {RING1}")
        tail = self.compute_loop(10, False, self.p1_reads, self.p1_addr, "p1a", first=publish, mid=xnflag)
        e(f"""s_and_b32 s{sA}, s{sRB}, 7
        s_add_u32 s{sA}, s{sA}, 3
        s_cmp_ge_u32 s{sA}, 10
        s_cselect_b32 s{sA}, 0, s{sA}
        s_mul_i32 s{sWSOFF}, s{sA}, {64*3456}
        s_mul_i32 s{sWSL}, s{sCB}, 288
        s_add_u32 s{sWSOFF}, s{sWSOFF}, s{sWSL}
        s_add_u32 s{sWSLOT}, s{sW0}, {S1SZ}
        s_mov_b32 s{sB}, 0xffff0000""")
        hold = int(self.o.get("hold", 2))
        if hold < 3: e("s_barrier")
        e(f"""v_lshrrev_b32 v{T}, 4, v{vL}
        v_lshlrev_b32 v{T}, 4, v{T}
        s_lshl_b32 s{sA}, s{sMH}, 7
        s_add_u32 s{sA}, s{sA}, {RSTAB}
        v_add_u32 v{T}, s{sA}, v{T}
        ds_read_b128 v[208:211], v{T}
        ds_read_b128 v[212:215], v{T} offset:64""")
        for m in tail: e(m)
        e("s_waitcnt lgkmcnt(0)")
        self.stamp(1)
        SS = 192
        for i in range(16): e(f"v_mov_b32 v{SS+i}, 0")
        vmw = lambda n: f"s_waitcnt vmcnt({n})"
        def do_frag(j):
            self.rr([self.gelu_list(ACC + 4*(2*j + a) + 2*h, T + 2*(2*a + h), 208 + 4*a + 2*h, stats=(SS + 4*a + 2*h, SS + 8 + 4*a + 2*h))
                     for a in range(2) for h in range(2)])
        if hold < 2: e("s_barrier")
        do_frag(0); do_frag(1)
        if hold < 1: e("s_barrier")
        do_frag(2); do_frag(3)
        Ls = self.a.newlab("Lz4")
        e(f"s_cmp_eq_u32 s{sNH}, 1\ns_cbranch_scc1 {Ls}")
        do_frag(4)
        self.a.lab(Ls)
        for i in range(8):
            e(f"v_add_f32_dpp v{SS+i}, v{SS+i}, v{SS+i} row_mirror row_mask:0xf bank_mask:0x3")
        for i in range(8):
            e(f"v_add_f32_dpp v{SS+i}, v{SS+8+i}, v{SS+8+i} row_mirror row_mask:0xf bank_mask:0xc")
        for i in range(4):
            e(f"v_add_f32_dpp v{SS+i}, v{SS+i}, v{SS+i} row_half_mirror row_mask:0xf bank_mask:0x5")
        for i in range(4):
            e(f"v_add_f32_dpp v{SS+i}, v{SS+4+i}, v{SS+4+i} row_half_mirror row_mask:0xf bank_mask:0xa")
        for i in range(4):
            e(f"v_add_f32_dpp v{SS+i}, v{SS+i}, v{SS+i} quad_perm:[2,3,0,1] row_mask:0xf bank_mask:0xf")
        for i in range(4):
            e(f"v_add_f32_dpp v{SS+8+2*i}, v{SS+i}, v{SS+i} quad_perm:[1,0,3,2] row_mask:0xf bank_mask:0xf")
            e(f"v_mov_b32 v{SS+9+2*i}, s{sTAG}")
        e(f"""v_lshlrev_b32 v{T}, 3, v{vL}
        v_and_b32 v{T+1}, 0x1e0, v{T}
        s_lshl_b32 s{sC}, s{sRB}, 1
        s_add_u32 s{sC}, s{sC}, s{sMH}
        s_mul_i32 s{sC}, s{sC}, {12*512}
        s_add_u32 s{sC}, s{sC}, {WS_STATS}
        s_lshl_b32 s{sA}, s{sCB}, 1
        s_add_u32 s{sA}, s{sA}, s{sNH}
        s_lshl_b32 s{sA}, s{sA}, 9
        s_add_u32 s{sA}, s{sA}, s{sC}
        buffer_store_dwordx4 v[{SS+8}:{SS+11}], v{T+1}, {srd(SRD_WS)}, s{sA} offen sc1
        buffer_store_dwordx4 v[{SS+12}:{SS+15}], v{T+1}, {srd(SRD_WS)}, s{sA} offen offset:16 sc1""")
        self.stamp(2)
        if hold >= 3: e("s_barrier")
        self.issue_w()
        if hold >= 2: e("s_barrier")
        self.issue_w()
        if hold >= 1: e("s_barrier")
        e(vmw(4))
        e("s_barrier")
        self.issue_w(); self.issue_w()
        e(vmw(8))
        e("s_barrier")
        self.issue_w()
        e(vmw(8))
        e("s_barrier")
        self.issue_w()
        e(vmw(8))
        e("s_barrier")
        PR = 128
        L = self.a.newlab("Lst"); D = self.a.newlab("Lstd")
        e(f"s_mov_b32 s{sSPIN}, {SPIN_MAX}\ns_add_u32 s{sA}, s{sC}, 4096")
        def stat_loads():
            for p in range(12):
                e(f"buffer_load_dwordx2 v[{PR+2*p}:{PR+2*p+1}], v{T}, {srd(SRD_WS)}, s{sC if p < 8 else sA} offen offset:{512*(p%8)} sc1")
        stat_loads()
        self.issue_w()
        self.stamp(3)
        e("s_waitcnt vmcnt(20)\ns_barrier")
        Lchk = self.a.newlab("Lchk")
        e(f"s_branch {Lchk}")
        self.a.lab(L)
        stat_loads()
        self.a.lab(Lchk)
        e("s_waitcnt vmcnt(0)")
        e(f"v_xor_b32 v{T+1}, s{sTAG}, v{PR+1}")
        for p in range(1, 12):
            e(f"v_xor_b32 v{T+2}, s{sTAG}, v{PR+2*p+1}\nv_or_b32 v{T+1}, v{T+1}, v{T+2}")
        e(f"""v_cmp_ne_u32 vcc, 0, v{T+1}
        s_cbranch_vccz {D}
        s_sub_u32 s{sSPIN}, s{sSPIN}, 1
        s_cmp_lg_u32 s{sSPIN}, 0
        s_cbranch_scc1 {L}""")
        self.a.lab(D)
        self.stamp(4)
        for p in range(1, 12):
            e(f"v_add_f32 v{PR}, v{PR}, v{PR+2*p}")
        e(f"v_mov_b32_dpp v{PR+1}, v{PR} row_ror:8 row_mask:0xf bank_mask:0xf")
        self.ln_params(PR, PR+1, 864, T+10, T+12, T+14)
        e(f"v_mul_f32 v{T+10}, v{T+10}, v{T+12}")
        for i in range(8):
            e(f"v_mov_b32_dpp v{SS+i}, v{T+10} row_newbcast:{i} row_mask:0xf bank_mask:0xf")
            e(f"v_mov_b32_dpp v{SS+8+i}, v{T+12} row_newbcast:{i} row_mask:0xf bank_mask:0xf")
        e(f"""v_lshrrev_b32 v{T}, 4, v{vL}
        v_and_b32 v{T+1}, 1, v{T}
        v_lshrrev_b32 v{T}, 1, v{T}
        v_lshl_add_u32 v{T}, v{T+1}, 1, v{T}
        v_lshlrev_b32 v{T}, 8, v{T}
        v_and_b32 v{T+1}, 15, v{vL}
        v_lshl_add_u32 v{T}, v{T+1}, 4, v{T}
        s_lshl_b32 s{sA}, s{sCB}, 5
        s_add_u32 s{sA}, s{sA}, s{sRB}
        s_mul_i32 s{sA}, s{sA}, 18432
        s_mul_i32 s{sC}, s{sMH}, 9216
        s_add_u32 s{sA}, s{sA}, s{sC}
        s_add_u32 s{sA}, s{sA}, {WS_Z2}
        s_mul_i32 s{sC}, s{sNH}, 5120
        s_add_u32 s{sC}, s{sC}, s{sA}
        s_add_u32 s{sA}, s{sA}, 4096""")
        Q4 = PR
        Ls = self.a.newlab("Lz4b")
        for j in range(5):
            if j == 4: e(f"s_cmp_eq_u32 s{sNH}, 1\ns_cbranch_scc1 {Ls}")
            q = Q4 + 4*j
            ls = []
            for a in range(2):
                for h in range(2):
                    r = ACC + 4*(2*j + a) + 2*h
                    nm, rs = SS + 4*a + 2*h, SS + 8 + 4*a + 2*h
                    d = q + 2*a + h
                    ls.append([f"v_pk_fma_f32 v[{r}:{r+1}], v[{r}:{r+1}], v[{rs}:{rs+1}], v[{nm}:{nm+1}]",
                    f"v_cvt_pk_bf16_f32 v{d}, v{r}, v{r+1}"])
            self.rr(ls)
            e(f"v_permlane16_swap_b32 v{q}, v{q+2}\nv_permlane16_swap_b32 v{q+1}, v{q+3}")
            if j < 4:
                e(f"buffer_store_dwordx4 v[{q}:{q+3}], v{T}, {srd(SRD_WS)}, s{sC} offen offset:{1024*j} sc1")
            else:
                e(f"buffer_store_dwordx4 v[{q}:{q+3}], v{T}, {srd(SRD_WS)}, s{sA} offen sc1")
        self.a.lab(Ls)
        e("s_barrier")
        e(f"""s_lshl_b32 s{sD}, s{sCB}, 2
        s_add_u32 s{sD}, s{sD}, s{sW}
        s_lshl_b32 s{sD}, s{sD}, 12
        s_add_u32 s{sD}, s{sD}, {WS_FZ2}
        v_lshlrev_b32 v7, 4, v{vL}
        v_and_b32 v{T+3}, 31, v{vL}
        v_min_u32 v{T+3}, 26, v{T+3}
        v_lshlrev_b32 v{T+3}, 7, v{T+3}
        s_min_u32 s{sA}, s{sCB}, 4
        s_lshl_b32 s91, s{sA}, 1
        s_add_u32 s91, s91, s{sMH}
        s_lshl_b32 s91, s91, 12
        s_add_u32 s91, s91, {WS_FWO}
        s_lshl_b32 s{sA}, s{sA}, 2
        s_add_u32 s{sA}, s{sA}, s{sW}
        s_mul_i32 s93, s{sA}, {2*27*1024}
        s_add_u32 s93, s93, {WS_WOT}
        s_add_u32 s94, s93, {27*1024}""")
        self.x_p2_setup()
        e(f"s_add_u32 s{sWSOFF}, s{sWSOFF}, {NA*128}")
        e("s_barrier")
        self.blk_offsets(4096)
        e("s_barrier")
        e(f"""s_lshl_b32 s{sA}, s{sRB}, 7
        s_add_u32 s{sA}, s{sA}, s{sD}
        s_waitcnt vmcnt(0)""")
        self.flag_store(sA, T+8)
        self.stamp(5)
        self.poll(T+3, "s91", T)
        self.x_p2_loader()
        self.x_p3()

    def x_p2_setup(self):
        e = self.e; T = self.vT + 4; vL = self.vL
        e(f"s_lshl_b32 s{sT2}, s{sW}, 4")
        for i in range(2):
            e(f"""v_lshrrev_b32 v{T}, 3, v{vL}
            v_add_u32 v{T}, s{sT2}, v{T}
            v_add_u32 v{T}, {8*i}, v{T}
            v_bfe_u32 v{T+1}, v{T}, 1, 3
            v_and_b32 v{T+2}, 7, v{vL}
            v_xor_b32 v{T+1}, v{T+1}, v{T+2}
            v_lshlrev_b32 v{T+1}, 4, v{T+1}
            v_lshl_add_u32 v{2+i}, v{T}, 12, v{T+1}""")
        e(f"""v_subrev_u32 v3, 1024, v3
        v_and_b32 v5, 31, v{vL}
        v_lshlrev_b32 v5, 7, v5
        s_lshl_b32 s{sWSOFF}, s{sRB}, 18
        s_lshl_b32 s{sWSLOT}, s{sW}, 11
        s_mul_i32 s{sROFF}, s{sMH}, 9216
        s_mul_i32 s{sT}, s{sNH}, 5120
        s_add_u32 s{sROFF}, s{sROFF}, s{sT}
        s_mul_i32 s{sXOFF}, s{sCB}, {32*18432}
        s_add_u32 s{sXOFF}, s{sXOFF}, s{sROFF}
        s_add_u32 s{sXOFF}, s{sXOFF}, {WS_Z2}
        s_add_u32 s95, s{sXOFF}, 4096
        s_add_u32 s{sROFF}, s{sROFF}, {BRING}""")
    def issue_a(self, i):
        self.e(f"""s_add_u32 m0, s{sWSLOT}, {8192*i}
        s_nop 0
        buffer_load_dwordx4 v2, {srd(SRD_WSP)}, s{sWSOFF} offen lds
        buffer_load_dwordx4 v3, {srd(SRD_WSP)}, s{sWSOFF} offen offset:1024 lds
        s_add_u32 s{sWSOFF}, s{sWSOFF}, 128""")
    def issue_b(self, slot, five):
        e = self.e
        e(f"s_add_u32 m0, s{sROFF}, {BSZ*slot}\ns_nop 0")
        for i in range(4):
            e(f"buffer_load_dwordx4 v7, {srd(SRD_WS)}, s{sXOFF} offen offset:{1024*i} sc1 lds")
        if five:
            e(f"""s_add_u32 m0, s{sROFF}, {BSZ*slot + 4096}
            s_add_u32 s{sXOFF}, s{sXOFF}, 18432
            buffer_load_dwordx4 v7, {srd(SRD_WS)}, s95 offen sc1 lds
            s_add_u32 s95, s95, 18432""")
        else:
            e(f"s_add_u32 s{sXOFF}, s{sXOFF}, 18432")
    def loop(self, n, fn, name):
        L = self.a.newlab(name)
        self.e(f"s_mov_b32 s{sCNT}, {n}")
        self.a.lab(L)
        fn()
        self.e(f"s_sub_u32 s{sCNT}, s{sCNT}, 1\ns_cmp_lg_u32 s{sCNT}, 0\ns_cbranch_scc1 {L}")

    def x_p2_loader(self):
        e = self.e; T = self.vT
        self.poll(5, f"s{sD}", T)
        self.stamp(6)
        Lfour = self.a.newlab("Lp2four"); Ldone = self.a.newlab("Lp2done")
        e(f"""v_min_u32 v4, 53, v{self.vL}
        v_lshlrev_b32 v4, 7, v4
        s_and_b32 s{sT2}, s{sRB}, 7
        s_mul_i32 s{sT2}, s{sT2}, {54*128}
        s_add_u32 s{sT2}, s{sT2}, s93
        s_cmp_eq_u32 s{sNH}, 1
        s_cbranch_scc1 {Lfour}""")
        for five in (True, False):
            nb = 5 if five else 4
            self.issue_b(0, five); self.issue_b(1, five)
            e(f"s_waitcnt vmcnt({nb})\ns_barrier")
            self.issue_b(2, five); self.issue_b(3, five)
            e(f"s_waitcnt vmcnt({2*nb})")
            def grp(withA):
                for i in range(4):
                    e("s_barrier")
                    if i == 0: self.stampd(12)
                    self.issue_b(i, five)
                    if withA: self.issue_a(i)
                    e(f"s_waitcnt vmcnt({2*nb + 2 if withA else 2*nb})")
                if withA: e(f"s_xor_b32 s{sWSLOT}, s{sWSLOT}, 32768")
            def grp_t():
                grp(True)
                if self.o.get("wtouch", "1") == "1":
                    Lt = self.a.newlab("Lwt")
                    e(f"s_cmp_lg_u32 s{sCNT}, 2\ns_cbranch_scc1 {Lt}\nbuffer_load_dword v6, v4, {srd(SRD_WS)}, s{sT2} offen sc1")
                    self.a.lab(Lt)
            self.loop(6, grp_t, "Lp2f")
            grp(False)
            if five:
                e(f"s_branch {Ldone}")
                self.a.lab(Lfour)
        self.a.lab(Ldone)
        wl = [s_ for pos in range(self.NWS) for s_ in self.wload(pos)]
        e("s_barrier")
        for s_ in wl[:5]: e(s_)
        e("s_waitcnt vmcnt(9)\ns_barrier")
        for s_ in wl[5:10]: e(s_)
        e("s_waitcnt vmcnt(10)\ns_barrier")
        for s_ in wl[10:16]: e(s_)
        self.wl_rest = wl[16:]
        self.stamp(7)

    def x_p3(self):
        e = self.e; T = self.vT; vL = self.vL; A3 = self.A3
        e("s_barrier")
        Lidle = self.a.newlab("Lp3idle")
        e(f"s_cmp_eq_u32 s{sCB}, 5\ns_cbranch_scc1 {Lidle}")
        for s_ in self.wl_rest: e(s_)
        e(f"""v_and_b32 v2, 15, v{vL}
        v_mul_u32_u24 v2, 1280, v2
        v_lshrrev_b32 v3, 4, v{vL}
        s_mul_i32 s{sA}, s{sRB}, {64*1280}
        s_lshl_b32 s{sC}, s{sCB}, 8
        s_add_u32 s{sA}, s{sA}, s{sC}
        s_lshl_b32 s{sC}, s{sW}, 6
        s_add_u32 s{sA}, s{sA}, s{sC}
        v_and_b32 v6, 1, v3
        v_lshlrev_b32 v6, 5, v6
        v_lshrrev_b32 v3, 1, v3
        v_lshl_add_u32 v6, v3, 4, v6
        v_add_u32 v6, v6, v2
        s_mov_b32 s{sB}, 0xffff0000
        v_add_u32 v2, {HB}, v7
        v_add_u32 v3, 0x10000, v2
        v_lshlrev_b32 v4, 3, v{vL}""")
        self.stamp(8)
        def hreads(pos, F):
            out = []
            if pos < 24:
                j, p = divmod(pos, 4)
                for b in range(4):
                    mh, a = b >> 1, b & 1
                    off = j*18432 + (9*mh + 5*(p >> 1) + 2*(p & 1) + a)*1024
                    out.append(f"ds_read_b128 v[{F+4*b}:{F+4*b+3}], v{2 + (off >> 16)} offset:{off & 0xffff}")
            else:
                for hf in range(2):
                    cbp = 2*(pos - 24) + hf
                    pre = f"""s_bfe_u32 s{sT}, s50, {(4 << 16) | (4*cbp)}
                    s_mul_i32 s{sT}, s{sT}, 18432
                    s_add_u32 s{sT}, s{sT}, {HB + 4096}
                    v_add_u32 v{2+hf}, s{sT}, v4
                    """
                    for b in range(4):
                        mh, a = b >> 1, b & 1
                        out.append(pre + f"ds_read_b64 v[{F+4*b+2*hf}:{F+4*b+2*hf+1}], v{2+hf} offset:{9216*mh + a*512}")
                        pre = ""
            return out
        FB = (8, 24, 208)
        e("s_barrier")
        self.stamp(9)
        for s_ in hreads(0, FB[0]) + hreads(1, FB[1]): e(s_)
        issued = 2*self.NWS
        NL = 27 - self.NWS
        XV = self.wreg(NL, 0)
        YV = self.wreg(NL + 2, 0)
        XA = self.wreg(NL + 4, 0)
        e(f"""v_lshrrev_b32 v5, 2, v{vL}
        v_lshlrev_b32 v5, 7, v5
        v_and_b32 v{A3}, 3, v{vL}
        v_lshl_add_u32 v5, v{A3}, 3, v5
        s_lshl_b32 s{sC}, s{sW}, 12
        s_add_u32 s{sC}, s{sC}, {YAB}
        v_add_u32 v5, s{sC}, v5""")
        prev = 4
        for pos in range(27):
            if pos == NL + 6:
                e(f"""v_and_b32 v{XA+2}, 15, v{vL}
                v_lshrrev_b32 v{XA+3}, 5, v{vL}
                s_lshl_b32 s{sC}, s{sW}, 2
                v_add_u32 v{XA+3}, s{sC}, v{XA+3}
                v_xor_b32 v{XA+3}, v{XA+3}, v{XA+2}
                v_lshlrev_b32 v{XA+3}, 4, v{XA+3}
                v_lshl_add_u32 v{XA}, v{XA+2}, 8, v{XA+3}
                v_bfe_u32 v{XA+3}, v{vL}, 4, 1
                v_lshl_add_u32 v{XA}, v{XA+3}, 3, v{XA}
                v_add_u32 v{XA}, {XB}, v{XA}
                v_xor_b32 v{XA+1}, 32, v{XA}""")
            F = FB[pos % 3]
            nxt = []
            if pos < 25:
                if (pos + 2) % 4 == 0 and pos + 2 < 24:
                    if self.o.get("fine"): self.stamp(28 + (pos + 2)//4)
                    e("s_barrier")
                    if self.o.get("fine"): self.stamp(22 + (pos + 2)//4)
                nxt = hreads(pos + 2, FB[(pos + 2) % 3])
            mf = []
            for b in range(4):
                for ee in range(2):
                    c = A3 + 4*(2*b + ee); w = self.wreg(pos, ee)
                    C = "0" if pos == 0 else f"v[{c}:{c+3}]"
                    mf.append(f"v_mfma_f32_16x16x32_bf16 v[{c}:{c+3}], v[{w}:{w+3}], v[{F+4*b}:{F+4*b+3}], {C}")
            e(f"s_waitcnt lgkmcnt({prev}) vmcnt({issued - 2*(pos + 1)})")
            for s_ in self.interleave(nxt, mf, 1): e(s_)
            prev = len(nxt)
            if pos < NL:
                for s_ in self.wload(self.NWS + pos): e(s_)
                issued += 2
            if pos == 24:
                for b in range(4):
                    for ee in range(2):
                        r = 2*(2*b + ee)
                        e(f"ds_read_b64_tr_b16 v[{YV+r}:{YV+r+1}], v5 offset:{ee*2048 + b*32}")
                prev += 7
            if pos == 25:
                for b in range(4):
                    for ee in range(2):
                        r = 2*(2*b + ee)
                        e(f"ds_read_b64 v[{XV+r}:{XV+r+1}], v{XA+ee} offset:{4096*b}")
                prev = 15
        self.stamp(10)
        e("s_waitcnt lgkmcnt(0)")
        for i in range(16):
            t = 8 + 4*(i & 3)
            e(f"""v_lshlrev_b32 v{t}, 16, v{XV+i}
            v_and_b32 v{t+1}, s{sB}, v{XV+i}
            v_lshlrev_b32 v{t+2}, 16, v{YV+i}
            v_and_b32 v{t+3}, s{sB}, v{YV+i}
            v_pk_add_f32 v[{t}:{t+1}], v[{t}:{t+1}], v[{t+2}:{t+3}]
            v_pk_add_f32 v[{A3+2*i}:{A3+2*i+1}], v[{A3+2*i}:{A3+2*i+1}], v[{t}:{t+1}]""")
        OV = 40
        for b in range(4):
            q = OV + 4*b
            for k in range(4):
                c = A3 + 8*b + 2*k; i = 4*b + k; t = 8 + 2*k
                e(f"v_cvt_pk_bf16_f32 v{q+k}, v{c}, v{c+1}")
            e(f"""v_permlane16_swap_b32 v{q}, v{q+2}
            v_permlane16_swap_b32 v{q+1}, v{q+3}
            s_add_u32 s{sT}, s{sA}, {b*16*1280}
            buffer_store_dwordx4 v[{q}:{q+3}], v6, {srd(SRD_OUT)}, s{sT} offen""")
        self.stamp(11)
        e(f"""s_cmp_lg_u32 s2, 0
        s_cbranch_scc1 L_end
        s_cmp_lg_u32 s{sW}, 0
        s_cbranch_scc1 L_end
        v_lshlrev_b32 v8, 7, v{vL}
        s_mov_b32 s{sD}, {WS_FY}
        s_mov_b32 s{sA}, {WS_EPOCH}""")
        self.poll(8, f"s{sD}", 9)
        self.flag_store(sA, 8)
        self.a.lab(Lidle)
        e("s_branch L_end")

    def y_p3_setup(self):
        e = self.e; T = self.vT; vL = self.vL
        e(f"""s_lshl_b32 s{sD}, s{sRB}, 2
        s_add_u32 s{sD}, s{sD}, s{sW}
        s_lshl_b32 s{sD}, s{sD}, 10
        s_add_u32 s{sD}, s{sD}, {WS_FH}
        s_lshl_b32 s95, s{sCB}, 7
        s_add_u32 s95, s95, s{sD}
        v_min_u32 v{T+2}, 5, v{vL}
        v_lshlrev_b32 v{T+2}, 7, v{T+2}
        v_add_u32 v{T+2}, s{sD}, v{T+2}
        s_min_u32 s{sC}, s{sCB}, 4
        s_mul_i32 s{sA}, s{sC}, 51
        s_lshr_b32 s{sA}, s{sA}, 2
        v_and_b32 v{T+3}, 15, v{vL}
        v_add_u32 v{T+3}, s{sA}, v{T+3}
        v_min_u32 v{T+3}, 63, v{T+3}
        v_lshlrev_b32 v{T+3}, 7, v{T+3}
        v_add_u32 v{T+3}, {WS_FY}, v{T+3}
        v_cmp_lt_u32 vcc, 15, v{vL}
        v_cndmask_b32 v{T+2}, v{T+2}, v{T+3}, vcc
        s_mul_i32 s93, s{sMH}, 9216
        s_mul_i32 s{sA}, s{sNH}, 5120
        s_add_u32 s93, s93, s{sA}
        s_mul_i32 s94, s{sRB}, {6*18432}
        s_add_u32 s94, s94, s93
        s_add_u32 s94, s94, {WS_H}
        s_add_u32 s93, s93, {HB}
        s_mul_i32 s91, s{sRB}, {64*1280}
        s_lshl_b32 s{sA}, s{sC}, 8
        s_add_u32 s91, s91, s{sA}
        s_mul_i32 s{sA}, s{sW}, {16*1280}
        s_add_u32 s91, s91, s{sA}
        s_mul_i32 s{sMASK}, s{sRB}, {640*128}
        s_lshl_b32 s{sA}, s{sC}, 14
        s_add_u32 s{sMASK}, s{sMASK}, s{sA}
        s_lshl_b32 s{sA}, s{sW}, 12
        s_add_u32 s{sMASK}, s{sMASK}, s{sA}
        s_add_u32 s{sMASK}, s{sMASK}, {WS_YA}""")
        for i in range(4):
            e(f"""v_lshrrev_b32 v{T+4}, 4, v{vL}
            v_add_u32 v{T+4}, {4*i}, v{T+4}
            v_and_b32 v{T+5}, 15, v{vL}
            v_xor_b32 v{T+5}, v{T+5}, v{T+4}
            v_mul_u32_u24 v{T+4}, 1280, v{T+4}
            v_lshl_add_u32 v{T+12+i}, v{T+5}, 4, v{T+4}""")
            if i: e(f"v_subrev_u32 v{T+12+i}, {1024*i}, v{T+12+i}")

    def y_path(self):
        e = self.e; T = self.vT; ACC = self.ACC; vL = self.vL; Z1 = self.Z1
        self.a.lab("L_Y")
        self.stamp(0)
        vmw = lambda n: f"s_waitcnt vmcnt({n})"
        e(vmw(4))
        e("s_barrier")
        self.stamp(12)
        self.issue_w(); self.issue_w()
        e(vmw(8))
        L = self.a.newlab("Ly1")
        e(f"s_mov_b32 s{sCNT}, 1")
        self.a.lab(L)
        e("s_barrier")
        self.stampd(12)
        Lc = self.a.newlab("Lcol")
        e(f"""s_cmp_lg_u32 s{sCNT}, 7
        s_cbranch_scc1 {Lc}
        s_sub_u32 s{sWSOFF}, s{sWSOFF}, 1728
        s_sub_u32 s{sWSL}, s{sWSL}, 1728""")
        self.a.lab(Lc)
        self.issue_w()
        e(vmw(8))
        e(f"""s_add_u32 s{sCNT}, s{sCNT}, 1
        s_cmp_lt_u32 s{sCNT}, 10
        s_cbranch_scc1 {L}""")
        self.stamp(1)
        e(f"""s_mov_b32 s{sROFF}, {RING1 + 2*S1SZ}
        v_and_b32 v{T}, 15, v{vL}
        v_lshlrev_b32 v{T}, 1, v{T}
        s_lshl_b32 s{sA}, s{sRB}, 7
        s_lshl_b32 s{sB}, s{sMH}, 6
        s_add_u32 s{sA}, s{sA}, s{sB}
        buffer_load_ushort v34, v{T}, {srd(SRD_BSP)}, s{sA} offen
        buffer_load_ushort v36, v{T}, {srd(SRD_BSP)}, s{sA} offen offset:32
        v_lshlrev_b32 v{T}, 1, v{T}
        s_lshl_b32 s{sA}, s{sMH}, 7
        s_add_u32 s{sA}, s{sA}, {RSTAB}
        v_add_u32 v{T}, s{sA}, v{T}
        ds_read_b32 v{T+8}, v{T}
        ds_read_b32 v{T+10}, v{T} offset:64""")
        tail = self.compute_loop(10, True, self.p1_reads, self.p1_addr, "p1b", vmwait=True)
        e("s_barrier")
        for m in tail: e(m)
        self.stamp(2)
        self.x_p2_setup()
        for i in range(NA): self.issue_a(i)
        e(f"s_mov_b32 s{sB}, 0xffff0000")
        e(f"v_mov_b32 v{T+9}, v{T+8}\nv_mov_b32 v{T+11}, v{T+10}")
        for i in range(0, 20, 4):
            self.rr([self.gelu_list(ACC + 2*(i+k), T + 2*k, T + 8 + 2*(k >> 1), packed=Z1 + 2*(i + k)) for k in range(4)])
        e(f"""v_lshlrev_b32 v34, 16, v34
        v_lshlrev_b32 v36, 16, v36
        v_mov_b32 v35, v34
        v_mov_b32 v37, v36
        v_lshlrev_b32 v{self.vWB4}, 4, v{vL}
        s_mul_i32 s{sA}, s{sNH}, 5120
        v_add_u32 v{self.vWB}, s{sA}, v{self.vWB4}
        v_add_u32 v{self.vWB4}, 4096, v{self.vWB4}
        s_mov_b32 s{sROFF}, {BRING}
        s_mov_b32 s{sXOFF}, 0""")
        self.blk_offsets(18432)
        self.y_p3_setup()
        e("s_waitcnt vmcnt(0)")
        self.stamp(3)
        tail = self.compute_loop(32, True, self.p2_reads, self.p2_addr, "p2")
        e("s_barrier")
        for m in tail: e(m)
        self.stamp(4)
        HQ = 40
        e(f"""v_lshlrev_b32 v{T+8}, 4, v{vL}
        v_lshlrev_b32 v{T+9}, 3, v{vL}
        s_mul_i32 s{sA}, s{sRB}, 6
        s_add_u32 s{sA}, s{sA}, s{sCB}
        s_mul_i32 s{sA}, s{sA}, 18432
        s_mul_i32 s{sC}, s{sMH}, 9216
        s_mul_i32 s{sD}, s{sNH}, 5120
        s_add_u32 s{sC}, s{sC}, s{sD}
        s_add_u32 s{sA}, s{sA}, s{sC}
        s_add_u32 s{sA}, s{sA}, {WS_H}
        s_add_u32 s{sC}, s{sC}, {HB}
        v_add_u32 v{T+10}, s{sC}, v{T+8}
        v_add_u32 v{T+11}, s{sC}, v{T+9}
        s_add_u32 s{sC}, s{sA}, 4096""")
        Ls = self.a.newlab("Lh4")
        tc = [0]
        def hval(j, a, h, d):
            r = ACC + 4*(2*j + a) + 2*h; z = Z1 + 4*(2*j + a) + 2*h; b = 34 + 2*a
            return [f"v_pk_add_f32 v[{r}:{r+1}], v[{r}:{r+1}], v[{b}:{b+1}]",
            f"v_pk_mul_f32 v[{r}:{r+1}], v[{r}:{r+1}], v[{z}:{z+1}]",
            f"v_cvt_pk_bf16_f32 v{d}, v{r}, v{r+1}"]
        for p in range(2):
            for a in range(2):
                q = HQ + 4*(2*p + a)
                self.rr([hval(2*p + jj, a, h, q + 2*jj + h) for jj in range(2) for h in range(2)])
                e(f"buffer_store_dwordx4 v[{q}:{q+3}], v{T+8}, {srd(SRD_WS)}, s{sA} offen offset:{1024*(2*p+a)} sc1")
                e(f"ds_write_b128 v{T+10}, v[{q}:{q+3}] offset:{1024*(2*p+a)}")
        e(f"s_cmp_eq_u32 s{sNH}, 1\ns_cbranch_scc1 {Ls}")
        self.rr([hval(4, a, h, HQ + 16 + 2*a + h) for a in range(2) for h in range(2)])
        for a in range(2):
            q = HQ + 16 + 2*a
            e(f"buffer_store_dwordx2 v[{q}:{q+1}], v{T+9}, {srd(SRD_WS)}, s{sC} offen offset:{512*a} sc1")
            e(f"ds_write_b64 v{T+11}, v[{q}:{q+1}] offset:{4096 + 512*a}")
        self.a.lab(Ls)
        e(f"s_lshl_b32 s{sB}, s{sW}, 12\ns_mov_b32 s{sD}, s{sMASK}\ns_waitcnt vmcnt(0)")
        self.flag_store(95, T)
        self.stamp(5)
        e(f"s_add_u32 m0, s{sB}, {XB}\ns_nop 0")
        for i in range(4):
            e(f"buffer_load_dwordx4 v{T+12+i}, {srd(SRD_X)}, s91 offen offset:{1024*i} lds")
        self.poll(T+2, "0", T+3)
        self.stamp(6)
        def hblk(j):
            Lk = self.a.newlab("Lhk")
            e(f"s_add_u32 m0, s93, {18432*j}\ns_add_u32 s{sT}, s94, s{self.sBO+j}")
            for i in range(4):
                e(f"buffer_load_dwordx4 v{T+8}, {srd(SRD_WS)}, s{sT} offen offset:{1024*i} sc1 lds")
            e(f"""s_cmp_eq_u32 s{sNH}, 1
            s_cbranch_scc1 {Lk}
            s_add_u32 m0, m0, 4096
            s_add_u32 s{sT}, s{sT}, 4096
            buffer_load_dwordx4 v{T+8}, {srd(SRD_WS)}, s{sT} offen sc1 lds""")
            self.a.lab(Lk)
        hblk(1); hblk(2)
        e(f"s_cmp_eq_u32 s{sCB}, 5\ns_cbranch_scc1 L_end")
        e("s_waitcnt lgkmcnt(0)\ns_barrier")
        hblk(3)
        e("s_waitcnt vmcnt(8)\ns_barrier")
        hblk(4); hblk(5)
        e(f"s_add_u32 m0, s{sB}, {YAB}\ns_nop 0")
        for i in range(4):
            e(f"buffer_load_dwordx4 v{T+8}, {srd(SRD_WS)}, s{sD} offen offset:{1024*i} sc1 lds")
        for n in (16, 12, 8, 0):
            e(f"s_waitcnt vmcnt({n})\ns_barrier")
        self.stamp(7)
        e("s_branch L_end")

    def build(self):
        from ssm import ssm_path
        self.entry()
        self.gemm_prologue()
        self.x_path()
        self.y_path()
        self.a.lab("L_ssm")
        if self.o.get("nossm"):
            self.e("s_branch L_end")
        else:
            ssm_path(self)
        self.a.lab("L_end")
        if self.o.get("stamps"):
            self.e(f"""s_mov_b64 exec, -1
            s_waitcnt vmcnt(0)
            s_memrealtime s[{sTM}:{sTM+1}]
            s_waitcnt lgkmcnt(0)
            v_writelane_b32 v0, s100, 62
            v_writelane_b32 v0, s{sTM}, 63
            s_lshl_b32 s{sTM}, s2, 3
            s_add_u32 s{sTM}, s{sTM}, s{sWAVE}
            s_lshl_b32 s{sTM}, s{sTM}, 8
            s_add_u32 s{sTM}, s{sTM}, {WS_DBG}
            v_lshlrev_b32 v2, 2, v1
            buffer_store_dword v0, v2, {srd(SRD_WS)}, s{sTM} offen""")
        self.e("s_endpgm")
        self.a.lab("L_exit")
        self.e("s_endpgm")
        body = self.a.finalize()
        if self.o.get("align", "1") == "1":
            from asmlib import align_pass
            body = align_pass(body, KNAME, extra="L_gtab:\nL_tabend:\n")
        hdr = open("parallel_sum__ssm_conv_s4d__mixer_gmlp__prompt.s.ref").read().split("; Override launch")[0]
        s = hdr + "; @launch grid=(256,1,1) block=(512,1,1) lds=163840\n"
        s += f'.amdgcn_target "amdgcn-amd-amdhsa--gfx950"\n.text\n.globl {KNAME}\n.p2align 8\n.type {KNAME},@function\n{KNAME}:\n'
        s += body
        from ssm import gtab
        t = gtab()
        s += ".p2align 8\n.type L_gtab,@object\nL_gtab:\n"
        for i in range(0, len(t), 16): s += ".long " + ", ".join(str(v) for v in t[i:i+16]) + "\n"
        s += "L_tabend:\n"
        s += f""".section .rodata,"a"
.p2align 6
.amdhsa_kernel {KNAME}
  .amdhsa_next_free_vgpr 256
  .amdhsa_next_free_sgpr 102
  .amdhsa_accum_offset 256
  .amdhsa_group_segment_fixed_size 0
  .amdhsa_kernarg_size 120
  .amdhsa_user_sgpr_count 2
  .amdhsa_user_sgpr_kernarg_segment_ptr 1
  .amdhsa_system_sgpr_workgroup_id_x 1
.end_amdhsa_kernel
"""
        return s

if __name__ == "__main__":
    opts = {}
    out = "parallel_sum__ssm_conv_s4d__mixer_gmlp__prompt.s"
    for a in sys.argv[1:]:
        if a.startswith("-o"): out = a[2:]
        elif "=" in a:
            k, v = a.split("="); opts[k] = v
        else: opts[a] = True
    open(out, "w").write(G(opts).build())
```

```python
import math
from gen import *

SLOT = 17600; KCP = 4576; UOFF = 9152; UCP = 4224
TB = 8*SLOT; TSZ = 1568; ZI = 768
SRD_LAR, SRD_AIM, SRD_CR, SRD_CI, SRD_LDT, SRD_DSK = 8, 12, 16, 20, 24, 32
sCH, sSLOT, sTBL, sRND, sD0 = 66, 67, 68, 69, 70
sWJ, sKS, sLN = 71, 72, 73
sNIT, sMO, sPF, sPK, sPN, sWP = 75, 76, 77, 83, 84, 85
sC2, sUF, sF1, sF2 = 91, 93, 94, 95
SRD_WO, SRD_PF, SRD_WI = 36, 52, 40
LOG2E = 1.4426950408889634

def ssm_path(g):
    e = g.e; a = g.a
    vL = 1
    T = 12; vZ = 10
    GA = 220
    e(f"""s_load_dwordx16 s[36:51], s[0:1], 0
    s_load_dwordx8 s[52:59], s[0:1], 64
    s_getpc_b64 s[62:63]
    L_pc0:
    s_sub_u32 s62, s62, L_pc0-{KNAME}
    s_subb_u32 s63, s63, 0
    v_and_b32 v{vL}, 63, v0
    s_sub_u32 s{sB}, s{sB}, 24
    s_lshl_b32 s{sB}, s{sB}, 3
    s_add_u32 s{sRB}, s{sB}, s{sA}
    s_mul_i32 s{sD0}, s{sRB}, 10
    s_add_u32 s{sCH}, s{sD0}, s{sWAVE}
    v_mov_b32 v{vZ}, 0""")
    if g.o.get("pfc", "1") == "1":
        e(f"""v_min_u32 v2, 5, v{vL}
        s_add_u32 s{sC}, s{sB}, s{sWAVE}
        s_mul_i32 s{sC}, s{sC}, 6
        v_add_u32 v2, s{sC}, v2
        v_lshlrev_b32 v2, 7, v2
        v_min_u32 v2, L_tabend-4-{KNAME}, v2
        global_load_dword v219, v2, s[62:63]""")
    e("s_waitcnt lgkmcnt(0)")
    g.mk_srd(SRD_LAR, 38, 640*128*2); g.mk_srd(SRD_AIM, 40, 640*128*2)
    g.mk_srd(SRD_CR, 42, 640*128*2); g.mk_srd(SRD_CI, 44, 640*128*2)
    g.mk_srd(SRD_LDT, 46, 640*2)
    def param_loads():
        e(f"""v_lshlrev_b32 v{T}, 2, v{vL}
        s_lshl_b32 s{sA}, s{sCH}, 8
        s_lshl_b32 s{sB}, s{sCH}, 1
        buffer_load_dword v{T+4}, v{T}, {srd(SRD_LAR)}, s{sA} offen
        buffer_load_dword v{T+5}, v{T}, {srd(SRD_AIM)}, s{sA} offen
        buffer_load_dword v{T+6}, v{T}, {srd(SRD_CR)}, s{sA} offen
        buffer_load_dword v{T+7}, v{T}, {srd(SRD_CI)}, s{sA} offen
        buffer_load_ushort v{T+8}, v{vZ}, {srd(SRD_LDT)}, s{sB} offen""")
    param_loads()
    g.mk_srd(SRD_WI, 52, 640*1728*2)
    e(f"s_load_dword s{sTAG}, s[64:65], {WS_EPOCH}")
    g.mk_srd(SRD_WS, 64, WS_SIZE)
    g.mk_srd(SRD_DSK, 48, 640*2)
    e(f"""s_mul_i32 s{sSLOT}, s{sWAVE}, {SLOT}
    s_mov_b32 s{sRND}, 0""")
    if g.o.get("kprio", "1") == "1":
        e(f"s_cmp_lt_u32 s{sWAVE}, 6\ns_cbranch_scc1 L_noprio\ns_setprio 3\nL_noprio:")
    vG, vJ = 2, 3
    vSW, vSR = 4, 5
    vT0, vT1a, vT1b, vT2 = 6, 7, 8, 9
    e(f"""v_lshrrev_b32 v{vG}, 4, v{vL}
    v_and_b32 v{vJ}, 15, v{vL}
    v_lshlrev_b32 v{vSW}, 3, v{vL}
    v_add_u32 v{vSW}, s{sSLOT}, v{vSW}
    v_mul_u32_u24 v{vSR}, 528, v{vJ}
    v_lshl_add_u32 v{vSR}, v{vG}, 4, v{vSR}
    v_add_u32 v{vSR}, s{sSLOT}, v{vSR}
    v_lshrrev_b32 v{T}, 1, v{vG}
    v_lshlrev_b32 v{T}, 7, v{T}
    v_lshl_add_u32 v{T}, v{vJ}, 3, v{T}
    v_and_b32 v{T+1}, 1, v{vG}
    v_lshl_add_u32 v{T}, v{T+1}, 2, v{T}
    v_lshlrev_b32 v{vT0}, 1, v{T}
    v_lshlrev_b32 v{T}, 6, v{vG}
    v_lshl_add_u32 v{T+1}, v{vJ}, 2, v{T}
    v_add_u32 v{T+1}, 256, v{T+1}
    v_lshl_add_u32 v{T+2}, v{vJ}, 1, v{T}
    v_add_u32 v{T+2}, 256, v{T+2}
    v_cmp_gt_u32 vcc, 2, v{vG}
    v_cndmask_b32 v{vT1a}, v{T+2}, v{T+1}, vcc
    v_mov_b32 v{T+3}, 32
    v_cndmask_b32 v{T+3}, v{T+3}, 2, vcc
    v_add_u32 v{vT1b}, v{vT1a}, v{T+3}
    v_lshlrev_b32 v{vT1a}, 1, v{vT1a}
    v_lshlrev_b32 v{vT1b}, 1, v{vT1b}
    v_add_u32 v{T}, v{T}, v{vJ}
    v_add_u32 v{T}, 512, v{T}
    v_lshlrev_b32 v{vT2}, 1, v{T}""")
    g.mk_srd(SRD_WO, 58, 864*640*2)
    g.mk_srd(SRD_PF, 54, 2048*2048*2)
    e(f"""s_mov_b32 s{sWJ}, 0
    s_cmp_ge_u32 s{sRB}, 54
    s_cbranch_scc1 L_wj_skip
    s_cmp_ge_u32 s{sWAVE}, 5
    s_cbranch_scc1 L_wj_skip
    s_mov_b32 s{sWJ}, 1
    s_lshr_b32 s{sKS}, s{sRB}, 1
    s_and_b32 s{sLN}, s{sRB}, 1
    s_mul_i32 s{sLN}, s{sLN}, 5
    s_add_u32 s{sLN}, s{sLN}, s{sWAVE}
    s_lshr_b32 s{sA}, s{sKS}, 2
    s_and_b32 s{sB}, s{sKS}, 3
    s_mul_i32 s{sA}, s{sA}, 9
    s_lshl_b32 s{sC}, s{sB}, 1
    s_add_u32 s{sA}, s{sA}, s{sC}
    s_lshr_b32 s{sC}, s{sB}, 1
    s_add_u32 s{sA}, s{sA}, s{sC}
    s_add_u32 s{sB}, s{sA}, 1
    s_sub_u32 s{sC}, s{sKS}, 24
    s_mul_i32 s{sC}, s{sC}, 18
    s_add_u32 s{sC}, s{sC}, 4
    s_add_u32 s{sD}, s{sC}, 9
    s_cmp_ge_u32 s{sKS}, 24
    s_cselect_b32 s{sA}, s{sC}, s{sA}
    s_cselect_b32 s{sB}, s{sD}, s{sB}
    s_mul_i32 s{sA}, s{sA}, {16*1280}
    s_mul_i32 s{sB}, s{sB}, {16*1280}
    s_lshl_b32 s{sC}, s{sLN}, 7
    s_add_u32 s{sA}, s{sA}, s{sC}
    s_add_u32 s{sB}, s{sB}, s{sC}
    v_lshrrev_b32 v{T}, 3, v{vL}
    v_mul_u32_u24 v{T}, 1280, v{T}
    v_and_b32 v{T+1}, 7, v{vL}
    v_lshl_add_u32 v{T}, v{T+1}, 4, v{T}
    s_add_u32 m0, s{sSLOT}, {UOFF + 128}
    s_add_u32 s{sC}, s{sA}, {8*1280}
    buffer_load_dwordx4 v{T}, {srd(SRD_WO)}, s{sA} offen lds
    s_add_u32 m0, m0, 1024
    s_add_u32 s{sD}, s{sB}, {8*1280}
    buffer_load_dwordx4 v{T}, {srd(SRD_WO)}, s{sC} offen lds
    s_add_u32 m0, m0, 1024
    s_nop 0
    buffer_load_dwordx4 v{T}, {srd(SRD_WO)}, s{sB} offen lds
    s_add_u32 m0, m0, 1024
    s_nop 0
    buffer_load_dwordx4 v{T}, {srd(SRD_WO)}, s{sD} offen lds""")
    a.lab("L_wj_skip")
    e(f"v_lshlrev_b32 v{T}, 4, v{vL}\nv_add_u32 v{T}, L_gtab-{KNAME}, v{T}")
    for i in range(9):
        if i == 4: e(f"v_add_u32 v{T}, 4096, v{T}")
        if i == 8: e(f"v_add_u32 v{T}, 4096, v{T}")
        e(f"global_load_dwordx4 v[{GA+4*i}:{GA+4*i+3}], v{T}, s[62:63] offset:{1024*(i%4)}")
    PFM = g.o.get("pfw", "1")
    npf = 0
    if PFM == "1":
        npf = 1
        e(f"""v_min_u32 v218, 33, v{vL}
        v_lshlrev_b32 v218, 7, v218
        s_lshl_b32 s{sA}, s{sRB}, 3
        s_add_u32 s{sA}, s{sA}, s{sWAVE}
        s_mul_i32 s{sA}, s{sA}, {34*128}
        buffer_load_dword v219, v218, {srd(SRD_WI)}, s{sA} offen""")
    if PFM == "2":
        npf = 1
        e(f"""v_lshrrev_b32 v218, 3, v{vL}
        v_mul_u32_u24 v218, 3456, v218
        v_and_b32 v219, 7, v{vL}
        v_lshl_add_u32 v218, v219, 7, v218
        s_lshr_b32 s{sA}, s{sRB}, 3
        s_lshl_b32 s{sA}, s{sA}, 3
        s_add_u32 s{sA}, s{sA}, s{sWAVE}
        s_and_b32 s{sC}, s2, 1
        s_mul_i32 s{sWP}, s{sA}, {8*3456}
        s_mul_i32 s{sD}, s{sC}, 896
        s_add_u32 s{sD}, s{sD}, 1664
        s_add_u32 s{sD}, s{sD}, s{sWP}
        buffer_load_dword v219, v218, {srd(SRD_WI)}, s{sD} offen
        s_add_u32 s{sPK}, s{sD}, {64*8*3456}
        s_mul_i32 s{sC}, s{sC}, 768
        s_add_u32 s{sWP}, s{sWP}, s{sC}""")
    g.stamp(0)
    PFW = False
    e(f"""v_and_b32 v216, 3, v{vL}
    v_lshlrev_b32 v216, 7, v216
    v_bfe_u32 v217, v{vL}, 2, 2
    v_lshl_add_u32 v216, v217, 12, v216
    s_and_b32 s{sA}, s2, 7
    s_lshl_b32 s{sA}, s{sA}, 3
    s_lshr_b32 s{sC}, s{sRB}, 3
    s_add_u32 s{sA}, s{sA}, s{sC}
    s_lshl_b32 s{sA}, s{sA}, 3
    s_add_u32 s{sA}, s{sA}, s{sWAVE}
    s_lshl_b32 s{sPF}, s{sA}, 14
    s_mov_b32 s{sPN}, 8""")
    def pf_touch():
        if g.o.get("nopf"): return
        L = a.newlab("Lpf")
        e(f"""s_cmp_eq_u32 s{sPN}, 0
        s_cbranch_scc1 {L}
        buffer_load_dword v217, v216, {srd(SRD_PF)}, s{sPF} offen
        s_add_u32 s{sPF}, s{sPF}, 512
        s_sub_u32 s{sPN}, s{sPN}, 1""")
        a.lab(L)
    NK = int(g.o.get("pfk", 0))
    kc = [0]
    def pf_k():
        kc[0] += 1
        if PFM == "2" and kc[0] <= 3:
            L = a.newlab("Lpw")
            e(f"s_cmp_lg_u32 s{sRND}, 0\ns_cbranch_scc1 {L}")
            if kc[0] == 1: e(f"buffer_load_dword v219, v215, {srd(SRD_WI)}, s{sPK} offen")
            if kc[0] == 2: e(f"buffer_load_dword v219, v215, {srd(SRD_WI)}, s{sWP} offen\ns_add_u32 s{sWP}, s{sWP}, {64*8*3456}")
            if kc[0] == 3: e(f"buffer_load_dword v219, v215, {srd(SRD_WI)}, s{sWP} offen")
            a.lab(L)
        if kc[0] > 6 - NK: pf_touch()
    vL16 = 11; vFL = 218; vDS = 22
    def xn_addr(sch, sdst):
        e(f"s_lshr_b32 s{sA}, s{sch}, 4\ns_mov_b32 s{sdst}, {WS_FXN}")
        for th in (7, 14, 20, 26, 32):
            e(f"s_cmp_ge_u32 s{sA}, {th}\ns_cselect_b32 s{sT}, 4096, 0\ns_add_u32 s{sdst}, s{sdst}, s{sT}")
    XF = 24
    def xn_load(): e(f"buffer_load_dwordx4 v[{XF}:{XF+3}], v{vFL}, {srd(SRD_WS)}, s{sF1} offen sc1")
    def xn_check():
        e(f"""v_xor_b32 v{XF}, s{sTAG}, v{XF}
        v_xor_b32 v{XF+1}, s{sTAG}, v{XF+1}
        v_xor_b32 v{XF+2}, s{sTAG}, v{XF+2}
        v_xor_b32 v{XF+3}, s{sTAG}, v{XF+3}
        v_or3_b32 v{XF}, v{XF}, v{XF+1}, v{XF+2}
        v_or_b32 v{XF}, v{XF}, v{XF+3}
        v_cmp_ne_u32 vcc, 0, v{XF}""")
    def u_dma(sch):
        e(f"""s_lshl_b32 s{sA}, s{sch}, 12
        s_add_u32 s{sA}, s{sA}, {WS_XNT}
        s_sub_u32 s{sC}, s{sA}, 4
        s_add_u32 m0, s{sSLOT}, {UOFF + UCP + 64}
        s_lshl_b32 s{sD}, s{sch}, 1""")
        for i in range(4): e(f"buffer_load_dwordx4 v{vL16}, {srd(SRD_WS)}, s{sA} offen offset:{1024*i} sc1 lds")
        e(f"s_add_u32 m0, s{sSLOT}, {UOFF + 64}\ns_nop 0")
        for i in range(4): e(f"buffer_load_dwordx4 v{vL16}, {srd(SRD_WS)}, s{sC} offen offset:{1024*i} sc1 lds")
        e(f"buffer_load_ushort v{vDS}, v{vZ}, {srd(SRD_DSK)}, s{sD} offen")
    e(f"""v_lshlrev_b32 v{vL16}, 4, v{vL}
    s_and_b32 s{sC2}, s{sWAVE}, 1
    s_add_u32 s{sC2}, s{sC2}, s{sD0}
    s_add_u32 s{sC2}, s{sC2}, 8
    s_mov_b32 s{sUF}, 0""")
    xn_addr(sCH, sF1); xn_addr(sC2, sF2)
    AR, PH, CRp, CIp = 24, 26, 28, 30
    W = 32
    def C(i): return W + 4*i
    def re(c): return f"v[{c}:{c+1}]"
    def im(c): return f"v[{c+2}:{c+3}]"
    tp = T
    TMP = 176
    def cexp_l(c, p, k):
        lit = hx(f2u(float(p))); tp = TMP + 4*k
        return [f"v_mul_f32 v{tp}, {lit}, v{AR}", f"v_mul_f32 v{tp+1}, {lit}, v{AR+1}",
        f"v_mul_f32 v{tp+2}, {lit}, v{PH}", f"v_mul_f32 v{tp+3}, {lit}, v{PH+1}",
        f"v_exp_f32 v{tp}, v{tp}", f"v_exp_f32 v{tp+1}, v{tp+1}",
        f"v_fract_f32 v{tp+2}, v{tp+2}", f"v_fract_f32 v{tp+3}, v{tp+3}",
        f"v_cos_f32 v{c}, v{tp+2}", f"v_cos_f32 v{c+1}, v{tp+3}",
        f"v_sin_f32 v{c+2}, v{tp+2}", f"v_sin_f32 v{c+3}, v{tp+3}",
        f"v_pk_mul_f32 {re(c)}, {re(c)}, v[{tp}:{tp+1}]", f"v_pk_mul_f32 {im(c)}, {im(c)}, v[{tp}:{tp+1}]"]
    def cmul_l(z, x, y, k):
        tp = TMP + 4*k
        assert z not in (x, y)
        return [f"v_pk_mul_f32 v[{tp}:{tp+1}], {im(x)}, {im(y)}",
        f"v_pk_mul_f32 v[{tp+2}:{tp+3}], {im(x)}, {re(y)}",
        f"v_pk_fma_f32 {re(z)}, {re(x)}, {re(y)}, v[{tp}:{tp+1}] neg_lo:[0,0,1] neg_hi:[0,0,1]",
        f"v_pk_fma_f32 {im(z)}, {re(x)}, {im(y)}, v[{tp+2}:{tp+3}]"]
    def put_l(c, row, neg, k):
        d = 192 + 2*k
        n = "-" if neg else ""
        return [f"v_cvt_pk_f16_f32 v{d}, v{c}, {n}v{c+2}", f"v_cvt_pk_f16_f32 v{d+1}, v{c+1}, {n}v{c+3}",
                f"ds_write_b64 v{vSW}, v[{d}:{d+1}] offset:{528*row}"]
    def batch(jobs):
        for i in range(0, len(jobs), 4):
            g.rr([j(k) for k, j in enumerate(jobs[i:i+4])])
    def J_mul(z, x, y, row=None, neg=False):
        return lambda k: cmul_l(z, x, y, k) + (put_l(z, row, neg, k) if row is not None else [])
    def J_put(c, row, neg): return lambda k: put_l(c, row, neg, k)
    E2F = 112
    E1F = 144
    DD = 12
    vSC = 23
    e(f"s_mul_i32 s{sTBL}, s{sWAVE}, {TSZ}\ns_add_u32 s{sTBL}, s{sTBL}, {TB}")
    e(f"s_waitcnt vmcnt({9+npf}) lgkmcnt(0)")
    if PFW:
        e(f"""v_lshrrev_b32 v218, 3, v{vL}
        v_mul_u32_u24 v218, 3456, v218
        v_and_b32 v219, 7, v{vL}
        v_lshl_add_u32 v218, v219, 7, v218
        s_lshr_b32 s{sA}, s{sRB}, 3
        s_lshl_b32 s{sA}, s{sA}, 3
        s_add_u32 s{sA}, s{sA}, s{sWAVE}
        s_and_b32 s{sC}, s2, 1
        s_mul_i32 s{sC}, s{sC}, 768
        s_mul_i32 s{sWP}, s{sA}, {8*3456}
        s_add_u32 s{sWP}, s{sWP}, s{sC}""")
    a.lab("L_kgen")
    g.stamp(8)
    e(f"s_mov_b32 s{sB}, 0xffff0000")
    e(f"""s_cmp_lg_u32 s{sRND}, 0
    s_cbranch_scc1 L_r0_skip
    s_mul_i32 s{sTAG}, s{sTAG}, 0x9E3779B1
    s_add_u32 s{sTAG}, s{sTAG}, 0x7F4A7C15
    s_cmp_eq_u32 s{sWJ}, 0
    s_cbranch_scc1 L_wj2_skip
    v_lshrrev_b32 v{E1F+16}, 2, v{vL}
    v_lshlrev_b32 v{E1F+16}, 7, v{E1F+16}
    v_and_b32 v{E1F+17}, 3, v{vL}
    v_lshl_add_u32 v{E1F+16}, v{E1F+17}, 3, v{E1F+16}
    v_add_u32 v{E1F+16}, s{sSLOT}, v{E1F+16}
    v_lshlrev_b32 v{E1F+17}, 4, v{vL}""")
    for df in range(4):
        for hf in range(2):
            e(f"ds_read_b64_tr_b16 v[{E1F+4*df+2*hf}:{E1F+4*df+2*hf+1}], v{E1F+16} offset:{UOFF + 128 + hf*2048 + df*32}")
    e(f"""s_lshl_b32 s{sA}, s{sLN}, 2
    s_mul_i32 s{sA}, s{sA}, {27*1024}
    s_lshl_b32 s{sC}, s{sKS}, 10
    s_add_u32 s{sA}, s{sA}, s{sC}
    s_add_u32 s{sA}, s{sA}, {WS_WOT}
    s_waitcnt lgkmcnt(0)""")
    for df in range(4):
        e(f"buffer_store_dwordx4 v[{E1F+4*df}:{E1F+4*df+3}], v{E1F+17}, {srd(SRD_WS)}, s{sA} offen sc1\ns_add_u32 s{sA}, s{sA}, {27*1024}")
    a.lab("L_wj2_skip")
    if PFW:
        e(f"""buffer_load_dword v219, v218, {srd(SRD_WI)}, s{sWP} offen
        s_add_u32 s{sWP}, s{sWP}, {64*8*3456}
        buffer_load_dword v219, v218, {srd(SRD_WI)}, s{sWP} offen""")
    a.lab("L_r0_skip")
    e(f"""v_mov_b32 v215, v218
    s_sub_u32 s{sA}, s{sF2}, s{sF1}
    v_lshrrev_b32 v{vFL}, 5, v{vL}
    v_mul_lo_u32 v{vFL}, v{vFL}, s{sA}
    v_and_b32 v214, 31, v{vL}
    v_lshl_add_u32 v{vFL}, v214, 7, v{vFL}""")
    g.stamp(9)
    e(f"""v_lshlrev_b32 v{T+8}, 16, v{T+8}
    v_mul_f32 v{T+8}, {hx(f2u(LOG2E))}, v{T+8}
    v_exp_f32 v{T+8}, v{T+8}
    v_lshlrev_b32 v{AR}, 16, v{T+4}
    v_and_b32 v{AR+1}, s{sB}, v{T+4}
    v_cvt_pk_bf16_f32 v{T+8}, v{T+8}, v{T+8}
    v_mul_f32 v{AR}, {hx(f2u(LOG2E))}, v{AR}
    v_mul_f32 v{AR+1}, {hx(f2u(LOG2E))}, v{AR+1}
    v_lshlrev_b32 v{T+8}, 16, v{T+8}
    v_exp_f32 v{AR}, v{AR}
    v_exp_f32 v{AR+1}, v{AR+1}
    v_lshlrev_b32 v{PH}, 16, v{T+5}
    v_and_b32 v{PH+1}, s{sB}, v{T+5}
    v_cvt_pk_bf16_f32 v{T+4}, v{AR}, v{AR+1}
    v_lshlrev_b32 v{AR}, 16, v{T+4}
    v_and_b32 v{AR+1}, s{sB}, v{T+4}
    v_mul_f32 v{AR}, v{AR}, v{T+8}
    v_mul_f32 v{AR+1}, v{AR+1}, v{T+8}
    v_mul_f32 v{AR}, {hx(f2u(-LOG2E))}, v{AR}
    v_mul_f32 v{AR+1}, {hx(f2u(-LOG2E))}, v{AR+1}
    v_mul_f32 v{PH}, v{PH}, v{T+8}
    v_mul_f32 v{PH+1}, v{PH+1}, v{T+8}
    v_mul_f32 v{PH}, {hx(f2u(1/(2*math.pi)))}, v{PH}
    v_mul_f32 v{PH+1}, {hx(f2u(1/(2*math.pi)))}, v{PH+1}
    v_lshlrev_b32 v{CRp}, 16, v{T+6}
    v_and_b32 v{CRp+1}, s{sB}, v{T+6}
    v_lshlrev_b32 v{CIp}, 16, v{T+7}
    v_and_b32 v{CIp+1}, s{sB}, v{T+7}
    v_max3_f32 v{T}, abs(v{CRp}), abs(v{CRp+1}), abs(v{CIp})
    v_max_f32 v{T}, abs(v{CIp+1}), v{T}""")
    for m in ("row_ror:8", "row_ror:4", "row_ror:2", "row_ror:1"):
        e(f"v_max_f32_dpp v{T}, v{T}, v{T} {m} row_mask:0xf bank_mask:0xf")
    e(f"""v_readlane_b32 s{sA}, v{T}, 0
    v_readlane_b32 s{sC}, v{T}, 16
    v_readlane_b32 s{sD}, v{T}, 32
    v_readlane_b32 s{sT}, v{T}, 48
    s_max_u32 s{sA}, s{sA}, s{sC}
    s_max_u32 s{sD}, s{sD}, s{sT}
    s_max_u32 s{sA}, s{sA}, s{sD}
    v_frexp_exp_i32_f32 v{T}, s{sA}
    v_sub_u32 v{T+1}, 0, v{T}
    v_ldexp_f32 v{C(0)}, v{CRp}, v{T+1}
    v_ldexp_f32 v{C(0)+1}, v{CRp+1}, v{T+1}
    v_ldexp_f32 v{C(0)+2}, v{CIp}, v{T+1}
    v_ldexp_f32 v{C(0)+3}, v{CIp+1}, v{T+1}
    v_add_f32 v{vSC}, v{T+8}, v{T+8}
    v_ldexp_f32 v{vSC}, v{vSC}, v{T}""")
    e(f"""s_cmp_lg_u32 s{sRND}, 0
    s_cbranch_scc1 L_np2
    s_cmp_lt_u32 s{sWAVE}, 6
    s_cbranch_scc1 L_np2
    s_add_u32 s{sCH}, s{sCH}, 2""")
    param_loads()
    e(f"s_mov_b32 s{sB}, 0xffff0000")
    a.lab("L_np2")
    Tq = lambda q: C(q)
    P = lambda j: C(8 + j - 1)
    V = {1: C(16), 2: C(17), 4: C(18), 8: C(19)}
    SO = lambda k: E1F + 4*k
    pf_k()
    g.rr([cexp_l(P(1), 8, 0), cexp_l(V[1], 128, 1)])
    e(f"v_mov_b32 v{SO(0)}, 1.0\nv_mov_b32 v{SO(0)+1}, 1.0\nv_mov_b32 v{SO(0)+2}, 0\nv_mov_b32 v{SO(0)+3}, 0")
    batch([J_mul(P(2), P(1), P(1), 2, True), J_mul(V[2], V[1], V[1]), J_mul(Tq(1), Tq(0), V[1]), J_put(SO(0), 0, True)])
    batch([J_mul(P(4), P(2), P(2), 4, True), J_mul(P(3), P(2), P(1), 3, True), J_mul(V[4], V[2], V[2]), J_put(P(1), 1, True)])
    pf_k()
    batch([J_mul(P(8), P(4), P(4), 8, True), J_mul(P(5), P(4), P(1), 5, True), J_mul(P(6), P(4), P(2), 6, True), J_mul(P(7), P(4), P(3), 7, True)])
    batch([J_mul(SO(k % 4), P(8), P(k + 1), 9 + k, True) for k in range(7)] + [J_mul(V[8], V[4], V[4])])
    for ks in range(8):
        e(f"ds_read_b128 v[{E2F+4*ks}:{E2F+4*ks+3}], v{vSR} offset:{64*ks}")
    pf_k()
    g.stamp(10)
    R = P
    g.rr([cexp_l(R(1), 1, 0), cmul_l(Tq(2), Tq(0), V[2], 1) + cmul_l(Tq(4), Tq(0), V[4], 1) + cmul_l(Tq(5), Tq(1), V[4], 1),
          cmul_l(Tq(3), Tq(1), V[2], 2) + put_l(Tq(0), 0, False, 2) + put_l(Tq(1), 8, False, 2)])
    batch([J_mul(R(2), R(1), R(1)), J_mul(Tq(6), Tq(2), V[4]), J_mul(Tq(7), Tq(3), V[4]), J_mul(SO(0), Tq(0), R(1), 1)])
    batch([J_mul(R(4), R(2), R(2)), J_mul(R(3), R(2), R(1)), J_mul(SO(1), Tq(1), R(1), 9), J_mul(SO(2), Tq(0), R(2), 2)])
    pf_k()
    batch([J_mul(R(5), R(4), R(1)), J_mul(R(6), R(4), R(2)), J_mul(R(7), R(4), R(3)), J_mul(SO(3), Tq(1), R(2), 10)])
    batch([J_mul(SO(k % 4), Tq(k & 1), R(3 + (k >> 1)), 8*(k & 1) + 3 + (k >> 1)) for k in range(10)])
    def tile_rd():
        for ks in range(8):
            e(f"ds_read_b128 v[{E1F+4*ks}:{E1F+4*ks+3}], v{vSR} offset:{64*ks}")
    def tile_mma(nafter):
        for ks in range(8):
            e(f"s_waitcnt lgkmcnt({7-ks})")
            e(f"v_mfma_f32_16x16x32_f16 v[{DD}:{DD+3}], v[{E1F+4*ks}:{E1F+4*ks+3}], v[{E2F+4*ks}:{E2F+4*ks+3}], {'0' if ks == 0 else f'v[{DD}:{DD+3}]'}")
    def tile_fin():
        for r in range(4): e(f"v_mul_f32 v{DD+r}, v{DD+r}, v{vSC}")
        e(f"v_cvt_pk_bf16_f32 v{DD}, v{DD}, v{DD+1}\nv_cvt_pk_bf16_f32 v{DD+1}, v{DD+2}, v{DD+3}")
    def taddr(v, d): e(f"v_add_u32 v{d}, s{sTBL}, v{v}")
    SO2 = lambda k: 200 + 4*k
    tile_rd(); tile_mma(0); pf_k()
    g.stamp(11)
    jobs = []
    for q in range(2):
        jobs.append(J_put(Tq(2 + q), 4*q, False))
        for r in range(1, 4): jobs.append(J_mul(SO2(len(jobs) % 4), Tq(2 + q), R(2*r), 4*q + r))
    for q in range(4):
        jobs.append(J_put(Tq(4 + q), 8 + 2*q, False))
        jobs.append(J_mul(SO2(len(jobs) % 4), Tq(4 + q), R(4), 8 + 2*q + 1))
    batch(jobs[:4])
    tile_fin(); taddr(vT0, DD+2)
    e(f"ds_write_b64 v{DD+2}, v[{DD}:{DD+1}]")
    pf_k()
    batch(jobs[4:])
    tile_rd(); tile_mma(0)
    xn_load()
    jobs = [J_mul(R(1), Tq(0), V[8], 0)] + [J_mul(SO2(q % 4), Tq(q), V[8], q) for q in range(1, 8)]
    batch(jobs[:4])
    tile_fin(); taddr(vT1a, DD+2); taddr(vT1b, DD+3)
    e(f"ds_write_b32 v{DD+2}, v{DD}\nds_write_b32 v{DD+3}, v{DD+1}")
    batch(jobs[4:])
    batch([J_mul(SO2(0), R(1), V[8], 8)])
    tile_rd(); tile_mma(0)
    g.stamp(12)
    e(f"""s_waitcnt vmcnt(0)
    s_cmp_lg_u32 s{sUF}, 0
    s_cbranch_scc1 L_uf_skip""")
    xn_check()
    e(f"""s_cbranch_vccnz L_uf_skip
    s_mov_b32 s{sUF}, 1
    s_add_u32 s{sT2}, s{sD0}, s{sWAVE}""")
    u_dma(sT2)
    a.lab("L_uf_skip")
    e(f"""s_cmp_lg_u32 s{sRND}, 0
    s_cbranch_scc1 L_wj3_skip
    s_cmp_eq_u32 s{sWJ}, 0
    s_cbranch_scc1 L_wj3_skip
    s_lshl_b32 s{sA}, s{sLN}, 5
    s_add_u32 s{sA}, s{sA}, s{sKS}
    s_lshl_b32 s{sA}, s{sA}, {FS}
    s_add_u32 s{sA}, s{sA}, {WS_FWO}""")
    g.flag_store(sA, 28)
    a.lab("L_wj3_skip")
    tile_fin(); taddr(vT2, DD+2)
    e(f"""ds_write_b16 v{DD+2}, v{DD}
    ds_write_b16_d16_hi v{DD+2}, v{DD} offset:32
    ds_write_b16 v{DD+2}, v{DD+1} offset:64
    ds_write_b16_d16_hi v{DD+2}, v{DD+1} offset:96
    v_mov_b32 v{DD+3}, s{sTBL}
    ds_write_b32 v{DD+3}, v{vZ} offset:{2*ZI}""")
    e(f"""s_cmp_lg_u32 s{sRND}, 0
    s_cbranch_scc1 L_kgen_done
    s_cmp_lt_u32 s{sWAVE}, 6
    s_cbranch_scc1 L_kgen_done
    s_mov_b32 s{sRND}, 1
    s_add_u32 s{sTBL}, s{sTBL}, {2*TSZ}
    s_branch L_kgen""")
    a.lab("L_kgen_done")
    g.stamp(1)
    vKA, vUB, vKW, vZW, vEU, vES, vYO = 60, 61, 62, 63, 65, 66, 67
    vKAc, vUBc = 69, 70
    vDP = 172
    e(f"s_add_u32 s{sCH}, s{sD0}, s{sWAVE}")
    e(f"""v_and_b32 v{T}, 1, v{vJ}
    v_mul_u32_u24 v{vKA}, {KCP}, v{T}
    v_lshrrev_b32 v{T+1}, 1, v{vJ}
    v_lshlrev_b32 v{T+1}, 6, v{T+1}
    v_lshl_add_u32 v{T+1}, v{vG}, 4, v{T+1}
    v_sub_u32 v{vKA}, v{vKA}, v{T+1}
    v_add_u32 v{vKA}, {4528 - 3584}, v{vKA}
    v_add_u32 v{vKA}, s{sSLOT}, v{vKA}
    v_mul_u32_u24 v{vUB}, {UCP}, v{T}
    v_or_b32 v{T+1}, 1, v{vJ}
    v_lshl_add_u32 v{vUB}, v{T+1}, 2, v{vUB}
    v_lshlrev_b32 v{T+1}, 4, v{vG}
    v_sub_u32 v{vUB}, v{vUB}, v{T+1}
    v_add_u32 v{vUB}, {UOFF + 52 + 448}, v{vUB}
    v_add_u32 v{vUB}, s{sSLOT}, v{vUB}
    v_add_u32 v{vKW}, s{sSLOT}, v{vL16}
    v_and_b32 v{T}, 31, v{vL}
    v_min_u32 v{T}, 29, v{T}
    v_lshlrev_b32 v{T}, 4, v{T}
    v_lshrrev_b32 v{T+1}, 5, v{vL}
    v_mul_u32_u24 v{T+1}, {KCP}, v{T+1}
    v_add3_u32 v{vZW}, v{T}, v{T+1}, s{sSLOT}
    v_lshlrev_b32 v{vES}, 7, v{vG}
    v_lshl_add_u32 v{vES}, v{vJ}, 2, v{vES}
    v_add_u32 v{vES}, s{sSLOT}, v{vES}
    v_add_u32 v{vEU}, {UOFF + UCP + 64}, v{vES}
    v_lshrrev_b32 v{T}, 3, v{vL}
    s_mov_b32 s{sA}, {640*128}
    v_mul_lo_u32 v{vYO}, v{T}, s{sA}
    v_and_b32 v{T}, 7, v{vL}
    v_lshl_add_u32 v{vYO}, v{T}, 4, v{vYO}""")
    ZQ = 72
    for i in range(4): e(f"v_mov_b32 v{ZQ+i}, 0")
    e(f"""v_and_b32 v{T}, 3, v{vL}
    v_lshlrev_b32 v{T}, 4, v{T}
    v_bfe_u32 v{T+1}, v{vL}, 2, 1
    v_mul_u32_u24 v{T+1}, {UCP}, v{T+1}
    v_add3_u32 v{T}, v{T}, v{T+1}, s{sSLOT}
    ds_write_b128 v{T}, v[{ZQ}:{ZQ+3}] offset:{UOFF}
    s_mov_b32 s{sRND}, 0
    s_mov_b32 s{sNIT}, 8
    s_mov_b32 s{sMO}, 0
    s_add_u32 s{sCH}, s{sD0}, s{sWAVE}
    s_mul_i32 s{sTBL}, s{sWAVE}, {TSZ}
    s_add_u32 s{sTBL}, s{sTBL}, {TB}""")
    for i in range(36): e(f"v_add_u32 v{GA+i}, s{sTBL}, v{GA+i}")
    e("s_setprio 0")
    g.stamp(2)
    AF = 76
    BF = 108
    AC = 140
    GV = 76
    OQ = 112
    a.lab("L_conv")
    for m in range(4):
        for ee in range(9):
            e(f"ds_read_u16 v{GV+9*m+ee}, v{GA+9*m+ee}")
        if m % 2 == 1 or True:
            e("s_waitcnt lgkmcnt(0)")
            q = OQ + 8*(m & 1)
            b = GV + 9*m
            for i in range(4):
                e(f"v_lshl_or_b32 v{q+i}, v{b+2*i+2}, 16, v{b+2*i+1}")
                e(f"v_lshl_or_b32 v{q+4+i}, v{b+2*i+1}, 16, v{b+2*i}")
            e(f"ds_write_b128 v{vKW}, v[{q}:{q+3}] offset:{1024*m}\nds_write_b128 v{vKW}, v[{q+4}:{q+7}] offset:{KCP + 1024*m}")
    e(f"ds_write_b128 v{vZW}, v[{ZQ}:{ZQ+3}] offset:4096")
    e(f"""v_mov_b32 v{vKAc}, v{vKA}
    v_mov_b32 v{vUBc}, v{vUB}
    v_mov_b32 v{T}, s{sSLOT}""")
    g.stamp(13)
    e(f"s_cmp_lg_u32 s{sUF}, 0\ns_cbranch_scc1 L_nofetch")
    e(f"s_mov_b32 s{sSPIN}, {SPIN_MAX}")
    a.lab("L_xpoll")
    xn_load()
    e("s_waitcnt vmcnt(0)")
    xn_check()
    e(f"""s_cbranch_vccz L_xpolld
    s_mov_b64 exec, vcc
    s_sleep {g.o.get("xslp", 12)}
    s_sub_u32 s{sSPIN}, s{sSPIN}, 1
    s_cmp_lg_u32 s{sSPIN}, 0
    s_cbranch_scc1 L_xpoll""")
    a.lab("L_xpolld")
    e("s_mov_b64 exec, -1")
    g.stamp(3)
    u_dma(sCH)
    e(f"s_mov_b32 s{sUF}, 1")
    a.lab("L_nofetch")
    for i in range(32): e(f"v_mov_b32 v{AC+i}, 0")
    e(f"""s_mov_b32 s{sCNT}, s{sNIT}
    v_subrev_u32 v{vKAc}, s{sMO}, v{vKAc}
    v_subrev_u32 v{vUBc}, s{sMO}, v{vUBc}
    s_waitcnt vmcnt(0)
    ds_write_b32 v{T}, v{vZ} offset:{UOFF + 64}
    v_lshlrev_b32 v{vDP}, 16, v{vDS}
    v_mov_b32 v{vDP+1}, v{vDP}""")
    for _ in range(int(g.o.get('pfpre', 2))): pf_touch()
    g.stamp(4)
    a.lab("L_mu0")
    def rd(m):
        return [f"ds_read_b128 v[{AF+4*m}:{AF+4*m+3}], v{vKAc} offset:{512*(7-m)}",
                f"ds_read_b64 v[{BF+4*m}:{BF+4*m+1}], v{vUBc} offset:{512*m}",
                f"ds_read_b64 v[{BF+4*m+2}:{BF+4*m+3}], v{vUBc} offset:{512*m+8}"]
    for m in range(5):
        for s in rd(m): e(s)
    issued = 5
    for m in range(8):
        e(f"s_waitcnt lgkmcnt({3*(issued-1-m)})")
        pairs = [(m, b) for b in range(m+1) if m + b <= 7] + [(u, m) for u in range(m) if u + m <= 7]
        for k, (u, b) in enumerate(pairs):
            c = AC + 4*(u + b)
            e(f"v_mfma_f32_16x16x32_bf16 v[{c}:{c+3}], v[{AF+4*u}:{AF+4*u+3}], v[{BF+4*b}:{BF+4*b+3}], v[{c}:{c+3}]")
        if issued < 8:
            for s in rd(issued): e(s)
            issued += 1
    pf_touch()
    e(f"""v_subrev_u32 v{vKAc}, 64, v{vKAc}
    v_subrev_u32 v{vUBc}, 64, v{vUBc}
    s_sub_u32 s{sCNT}, s{sCNT}, 1
    s_cmp_lg_u32 s{sCNT}, 0
    s_cbranch_scc1 L_mu0""")
    g.stamp(5)
    e(f"""s_cmp_eq_u32 s{sRND}, 0
    s_cbranch_scc1 L_epi
    s_cmp_lt_u32 s{sWAVE}, 2
    s_cbranch_scc1 L_red_rd""")
    for c in range(8): e(f"ds_write_b128 v{vKW}, v[{AC+4*c}:{AC+4*c+3}] offset:{1024*c}")
    e("s_waitcnt lgkmcnt(0)\ns_barrier\ns_branch L_conv_done")
    a.lab("L_red_rd")
    e("s_barrier")
    for c in range(8): e(f"ds_read_b128 v[{BF+4*c}:{BF+4*c+3}], v{vKW} offset:{2*SLOT + 1024*c}")
    for c in range(8):
        e(f"s_waitcnt lgkmcnt({7-c})")
        e(f"v_pk_add_f32 v[{AC+4*c}:{AC+4*c+1}], v[{AC+4*c}:{AC+4*c+1}], v[{BF+4*c}:{BF+4*c+1}]\nv_pk_add_f32 v[{AC+4*c+2}:{AC+4*c+3}], v[{AC+4*c+2}:{AC+4*c+3}], v[{BF+4*c+2}:{BF+4*c+3}]")
    a.lab("L_epi")
    UV = AF
    for c in range(8):
        e(f"ds_read2_b32 v[{UV+2*c}:{UV+2*c+1}], v{vEU} offset0:{128*c % 256} offset1:{(128*c + 16) % 256}" if c < 2 else "")
    for c in range(2, 8):
        e(f"ds_read_b32 v{UV+2*c}, v{vEU} offset:{512*c}\nds_read_b32 v{UV+2*c+1}, v{vEU} offset:{512*c+64}")
    e(f"""s_mov_b32 s{sB}, 0xffff0000
    s_waitcnt lgkmcnt(0)
    s_cmp_lg_u32 s{sRND}, 0
    s_cbranch_scc1 L_nou2
    s_cmp_ge_u32 s{sWAVE}, 4
    s_cbranch_scc1 L_nou2""")
    u_dma(sC2)
    a.lab("L_nou2")
    for c in range(8):
        for h in range(2):
            y = AC + 4*c + 2*h; u = UV + 2*c + h
            p0, p1 = T, T+2
            p0 = T + 2*h
            e(f"""v_lshlrev_b32 v{p0}, 16, v{u}
            v_and_b32 v{p0+1}, s{sB}, v{u}
            v_pk_fma_f32 v[{y}:{y+1}], v[{p0}:{p0+1}], v[{vDP}:{vDP+1}], v[{y}:{y+1}]
            v_cvt_pk_bf16_f32 v{y}, v{y}, v{y+1}
            ds_write_b32 v{vES}, v{y} offset:{512*c + 64*h}""")
    for i in range(4):
        e(f"ds_read_b128 v[{BF+4*i}:{BF+4*i+3}], v{vKW} offset:{1024*i}")
    e(f"""s_lshl_b32 s{sA}, s{sCH}, 7
    s_add_u32 s{sA}, s{sA}, {WS_YA}""")
    for i in range(4):
        e(f"""s_waitcnt lgkmcnt({3-i})
        buffer_store_dwordx4 v[{BF+4*i}:{BF+4*i+3}], v{vYO}, {srd(SRD_WS)}, s{sA} offen sc1
        s_add_u32 s{sA}, s{sA}, {8*640*128}""")
    pf_touch(); pf_touch()
    g.stamp(6)
    e(f"""s_cmp_lg_u32 s{sRND}, 0
    s_cbranch_scc1 L_conv_done
    s_barrier
    s_cmp_ge_u32 s{sWAVE}, 4
    s_cbranch_scc1 L_conv_idle
    s_mov_b32 s{sRND}, 1
    s_mov_b32 s{sNIT}, 4
    s_lshr_b32 s{sMO}, s{sWAVE}, 1
    s_lshl_b32 s{sMO}, s{sMO}, 8
    s_and_b32 s{sA}, s{sWAVE}, 1
    s_add_u32 s{sCH}, s{sD0}, 8
    s_add_u32 s{sCH}, s{sCH}, s{sA}
    s_add_u32 s{sA}, s{sA}, 8
    s_sub_u32 s{sA}, s{sA}, s{sWAVE}
    s_mul_i32 s{sA}, s{sA}, {TSZ}""")
    for i in range(36): e(f"v_add_u32 v{GA+i}, s{sA}, v{GA+i}")
    e("s_branch L_conv")
    a.lab("L_conv_idle")
    e("s_barrier")
    a.lab("L_conv_done")
    e(f"""s_waitcnt vmcnt(0)
    s_barrier
    s_cmp_lg_u32 s{sWAVE}, 0
    s_cbranch_scc1 L_end
    s_lshl_b32 s{sA}, s{sRB}, {FS}
    s_add_u32 s{sA}, s{sA}, {WS_FY}""")
    g.flag_store(sA, T)
    g.stamp(7)
    e("s_branch L_end")


def gtab():
    import numpy as np
    def bf16r(l):
        u = int(np.float32(l).view(np.uint32))
        u = (u + 0x7FFF + ((u >> 16) & 1)) >> 16
        return u
    out = []
    for q in range(9):
        for lane in range(64):
            for k in range(4):
                m, ee = divmod(4*q + k, 9)
                l = 2047 - 8*(lane + 64*m) - ee
                idx = ZI if l < 0 else (l if l < 128 else bf16r(l) - 0x4300 + 128)
                out.append(2*idx)
    return out
```

```python
import sys, math, struct
from asmlib import Asm

KNAME = "parallel_sum__ssm_conv_s4d__mixer_gmlp__prompt_kernel"
def f2u(x): return struct.unpack("<I", struct.pack("<f", x))[0]
def hx(x): return f"0x{x:08x}"

WS_EPOCH = 0
WS_FXN   = 0xE0000
WS_FZ2   = 0x20000
WS_FH    = 0x40000
WS_FY    = 0x60000
WS_FWO   = 0x70000
WS_WOT   = 0xF00000 - 0x20000
WS_STATS = 0x80000
WS_XNT   = 0x100000
WS_Z2    = 0x400000
WS_H     = 0x800000
WS_YA    = 0xC00000
WS_DBG   = 0x1000000
WS_SIZE  = 0x2000000

FS = 7
XT = 0; RING1 = 81920; S1SZ = 20480; RSTAB = RING1 + 3*S1SZ
NA = 8; BRING = 65536; NB = 4; BSZ = 18432
HB = 49152; YAB = 16384; XB = 32768

sWAVE, sRB, sCB, sTAG, sT = 3, 4, 5, 6, 7
SRD_X, SRD_WIN, SRD_WSP, SRD_WOUT, SRD_OUT, SRD_WS, SRD_BSP = 8, 12, 16, 20, 24, 28, 32
def srd(n): return f"s[{n}:{n+3}]"
sW, sMH, sNH = 66, 67, 68
sWSLOT, sWSOFF, sWSL = 69, 70, 71
sXOFF, sROFF, sCNT = 72, 73, 74
sK1 = 76
sA, sB, sC, sD = 78, 79, 80, 81
sSPIN = 82
sMASK = 84
sE0 = 86
sTM = 88
sTM0 = 90
sT2 = 92
sW0 = 83
SPIN_MAX = 200000

class G:
    def __init__(self, opts):
        self.a = Asm(); self.o = opts; self.nstamp = 0
    def e(self, s):
        if self.o.get("nodma"):
            s = "\n".join(l for l in s.split("\n") if not l.strip().endswith(" lds"))
        if self.o.get("ntx"):
            s = s.replace(f"{srd(SRD_X)}, s{sC} offen", f"{srd(SRD_X)}, s{sC} offen nt")
        if self.o.get("nosc1"):
            s = s.replace(" sc1 lds", " lds")
        self.a.e(s)

    def capture(self, fn):
        old = self.a; self.a = Asm(); self.a.uid = old.uid + 1000
        fn()
        out = [i.text for i in self.a.L]
        self.a = old
        return out
    def mk_srd(self, d, p, nbytes):
        self.e(f"""s_mov_b32 s{d}, s{p}
        s_mov_b32 s{d+1}, s{p+1}
        s_mov_b32 s{d+2}, {nbytes}
        s_mov_b32 s{d+3}, 0x20000""")

    def stamp(self, idx, vt=None):
        if not self.o.get("stamps"): return
        self.e(f"""s_memtime s[{sTM}:{sTM+1}]
        s_waitcnt lgkmcnt(0)
        s_sub_u32 s{sTM}, s{sTM}, s{sTM0}
        v_writelane_b32 v0, s{sTM}, {idx}""")

    def stamp_s(self, k):
        if not self.o.get("stamps"): return
        self.e(f"""s_memtime s[{sTM}:{sTM+1}]
        s_waitcnt lgkmcnt(0)
        s_sub_u32 s{96+k}, s{sTM}, s{sTM0}""")
    def stamp_flush(self):
        if not self.o.get("stamps"): return
        for k in range(4): self.e(f"v_writelane_b32 v0, s{96+k}, {40+k}")

    def stampd(self, base):
        if not self.o.get("fine"): return
        self.e(f"""s_memtime s[{sTM}:{sTM+1}]
        s_waitcnt lgkmcnt(0)
        s_sub_u32 s{sTM}, s{sTM}, s{sTM0}
        s_add_u32 m0, s{sCNT}, {base}
        s_nop 1
        v_writelane_b32 v0, s{sTM}, m0""")

    def poll(self, voff, soff, vtmp, sleep=None):
        L = self.a.newlab("Lpoll"); D = self.a.newlab("Lpolld")
        sl = sleep if sleep is not None else int(self.o.get("slp", 3))
        self.e(f"s_mov_b32 s{sSPIN}, {SPIN_MAX}")
        self.a.lab(L)
        self.e(f"""buffer_load_dword v{vtmp}, v{voff}, {srd(SRD_WS)}, {soff} offen sc1
        s_waitcnt vmcnt(0)
        v_cmp_ne_u32 vcc, s{sTAG}, v{vtmp}
        s_cbranch_vccz {D}
        s_mov_b64 exec, vcc
        s_sleep {sl}
        s_sub_u32 s{sSPIN}, s{sSPIN}, 1
        s_cmp_lg_u32 s{sSPIN}, 0
        s_cbranch_scc1 {L}""")
        self.a.lab(D)
        self.e("s_mov_b64 exec, -1")

    def flag_store(self, soff_sreg, vt):
        self.e(f"""v_mov_b32 v{vt}, s{sTAG}
        v_mov_b32 v{vt+1}, 0
        s_mov_b64 s[{sE0}:{sE0+1}], exec
        s_mov_b64 exec, 1
        buffer_store_dword v{vt}, v{vt+1}, {srd(SRD_WS)}, s{soff_sreg} offen sc1
        s_mov_b64 exec, s[{sE0}:{sE0+1}]""")

    def entry(self):
        e = self.e
        e(f"""s_cmp_ge_u32 s2, 256
        s_cbranch_scc1 L_exit
        s_load_dwordx2 s[36:37], s[0:1], 0
        s_load_dwordx2 s[64:65], s[0:1], 112
        v_lshrrev_b32 v1, 6, v0
        s_and_b32 s{sA}, s2, 7
        s_lshr_b32 s{sB}, s2, 3""")
        if self.o.get("stamps") or self.o.get("dbgt"):
            e(f"s_memtime s[{sTM0}:{sTM0+1}]\ns_memrealtime s[100:101]")
        e(f"""v_readfirstlane_b32 s{sWAVE}, v1
        s_cmp_ge_u32 s{sB}, 24
        s_cbranch_scc1 L_ssm
        s_lshr_b32 s{sRB}, s{sA}, 1
        s_lshl_b32 s{sRB}, s{sRB}, 3
        s_and_b32 s{sC}, s{sB}, 7
        s_add_u32 s{sRB}, s{sRB}, s{sC}""")

    def entry2(self):
        e = self.e
        e(f"""s_load_dwordx8 s[52:59], s[0:1], 64
        s_load_dwordx2 s[60:61], s[0:1], 96
        s_load_dword s{sTAG}, s[64:65], {WS_EPOCH}
        s_and_b32 s{sCB}, s2, 1
        s_mul_i32 s{sCB}, s{sCB}, 3
        s_lshr_b32 s{sC}, s2, 6
        s_add_u32 s{sCB}, s{sCB}, s{sC}
        s_and_b32 s{sW}, s{sWAVE}, 3
        s_lshr_b32 s{sMH}, s{sW}, 1
        s_and_b32 s{sNH}, s{sW}, 1""")
        self.mk_srd(SRD_WS, 64, WS_SIZE)
    def entry3(self):
        self.e("s_waitcnt lgkmcnt(0)")
        self.mk_srd(SRD_WIN, 52, 640*1728*2)
        self.mk_srd(SRD_WSP, 54, 2048*2048*2)
        self.mk_srd(SRD_BSP, 56, 2048*2)
        self.mk_srd(SRD_OUT, 60, 2048*640*2)

    vL = 1
    vWOFF = 2
    vX0, vX1 = 8, 9
    vWB, vWB4 = 10, 11
    vA0, vA1, vB0, vB4 = 12, 13, 14, 15
    vWB1, vB1 = 38, 39
    vT = 16
    vK0 = 32
    FS = (40, 96)
    ACC = 152
    Z1 = 192
    XR = 40

    def w_ops(self):
        g = [f"""s_mov_b32 m0, s{sWSLOT}
        s_add_u32 s{sWSLOT}, s{sWSLOT}, {S1SZ}
        buffer_load_dwordx4 v{self.vWOFF}, {srd(SRD_WIN)}, s{sWSOFF} offen lds"""]
        for i in range(1, 4):
            g.append(f"buffer_load_dwordx4 v{self.vWOFF+i}, {srd(SRD_WIN)}, s{sWSOFF} offen offset:{1024*i} lds")
        g.append(f"""s_add_u32 m0, m0, 4096
        s_cmp_ge_u32 s{sWSLOT}, {RING1 + 4*S1SZ}
        buffer_load_dwordx4 v{self.vWOFF+4}, {srd(SRD_WIN)}, s{sWSOFF} offen lds
        s_cselect_b32 s{sWSLOT}, s{sW0}, s{sWSLOT}
        s_add_u32 s{sWSOFF}, s{sWSOFF}, {64*3456}
        s_cmp_ge_u32 s{sWSOFF}, {640*3456}
        s_cselect_b32 s{sWSOFF}, s{sWSL}, s{sWSOFF}""")
        return g
    def issue_w(self):
        for g in self.w_ops(): self.e(g)

    def gemm_prologue(self):
        e = self.e; T = self.vT; XR = self.XR; vL = self.vL
        sXS = sROFF
        e(f"""v_and_b32 v{vL}, 63, v0
        s_lshr_b32 s{sA}, s2, 6
        s_mul_i32 s{sA}, s{sA}, 3
        s_add_u32 s{sA}, s{sA}, s{sWAVE}
        s_and_b32 s{sA}, s{sA}, 7
        s_lshl_b32 s{sA}, s{sA}, 3
        v_lshrrev_b32 v{T}, 3, v{vL}
        v_add_u32 v{T}, s{sA}, v{T}
        v_and_b32 v{T+1}, 7, v0
        v_mul_u32_u24 v{T+2}, 1280, v{T}
        v_lshl_add_u32 v{T+2}, v{T+1}, 4, v{T+2}
        s_mul_i32 s{sA}, s{sRB}, {64*1280}
        s_and_b32 s{sXS}, s{sRB}, 7
        s_lshl_b32 s{sB}, s{sXS}, 7
        s_waitcnt lgkmcnt(0)""")
        self.mk_srd(SRD_X, 36, 2048*640*2)
        self.stamp_s(0)
        for j in range(10):
            e(f"""s_add_u32 s{sC}, s{sA}, s{sB}
            buffer_load_dwordx4 v[{XR+4*j}:{XR+4*j+3}], v{T+2}, {srd(SRD_X)}, s{sC} offen
            s_add_u32 s{sB}, s{sB}, 128
            s_cmp_ge_u32 s{sB}, 1280
            s_cselect_b32 s{sB}, 0, s{sB}""")
        self.entry2()
        e(f"s_mul_i32 s{sA}, s{sW}, 320")
        for i in range(5):
            p, k, c, d = T+4, T+5, T+6, self.vWOFF + i
            e(f"""v_add_u32 v{p}, s{sA}, v{vL}
            s_add_u32 s{sA}, s{sA}, 64
            v_mul_u32_u24 v{k}, 3277, v{p}
            v_lshrrev_b32 v{k}, 16, v{k}
            v_mul_u32_u24 v{c}, 20, v{k}
            v_sub_u32 v{c}, v{p}, v{c}
            v_bfe_u32 v{p}, v{k}, 3, 1
            v_lshlrev_b32 v{p}, 1, v{p}
            v_xor_b32 v{c}, v{c}, v{p}
            v_mul_u32_u24 v{d}, 3456, v{k}
            v_lshl_add_u32 v{d}, v{c}, 4, v{d}""")
            if 1 <= i <= 3: e(f"v_subrev_u32 v{d}, {1024*i}, v{d}")
        e(f"""s_and_b32 s{sA}, s{sRB}, 7
        s_mul_i32 s{sWSOFF}, s{sA}, {64*3456}
        s_lshl_b32 s{sXOFF}, s{sA}, 13
        s_mul_i32 s{sWSL}, s{sCB}, 288
        s_and_b32 s{sWSL}, s{sWSL}, 0xffffffc0
        s_add_u32 s{sWSL}, s{sWSL}, 1728
        s_add_u32 s{sWSOFF}, s{sWSOFF}, s{sWSL}
        s_mul_i32 s{sW0}, s{sW}, 5120
        s_add_u32 s{sW0}, s{sW0}, {RING1}
        s_mov_b32 s{sWSLOT}, s{sW0}""")
        g, c15 = T+4, T+5
        e(f"""v_bfe_u32 v{T+3}, v{T}, 1, 3
        v_xor_b32 v{T+3}, v{T+3}, v{T+1}
        v_lshlrev_b32 v{T+3}, 4, v{T+3}
        v_lshl_add_u32 v{T+3}, v{T}, 7, v{T+3}
        v_lshrrev_b32 v{g}, 4, v{vL}
        v_and_b32 v{c15}, 15, v{vL}
        v_lshrrev_b32 v{T+6}, 1, v{c15}
        v_xor_b32 v{T+6}, v{T+6}, v{g}
        v_lshlrev_b32 v{T+6}, 4, v{T+6}
        v_lshl_add_u32 v{self.vX0}, v{c15}, 7, v{T+6}
        s_lshl_b32 s{sA}, s{sMH}, 12
        v_add_u32 v{self.vX0}, s{sA}, v{self.vX0}
        v_xor_b32 v{self.vX1}, 64, v{self.vX0}
        v_mul_u32_u24 v{self.vWB4}, 2560, v{g}
        v_bfe_u32 v{T+6}, v{vL}, 2, 2
        v_mul_u32_u24 v{T+6}, 320, v{T+6}
        v_add_u32 v{self.vWB4}, v{self.vWB4}, v{T+6}
        v_and_b32 v{T+6}, 3, v{vL}
        v_lshl_add_u32 v{self.vWB4}, v{T+6}, 3, v{self.vWB4}
        v_and_b32 v{T+6}, 1, v{g}
        v_lshlrev_b32 v{T+6}, 5, v{T+6}
        s_and_b32 s{sC}, s{sCB}, 1
        s_mul_i32 s{sA}, s{sNH}, 5
        s_add_u32 s{sA}, s{sA}, s{sC}
        s_lshl_b32 s{sA}, s{sA}, 5
        v_xor_b32 v{T+7}, s{sA}, v{T+6}
        v_add_u32 v{self.vWB}, v{T+7}, v{self.vWB4}
        s_add_u32 s{sA}, s{sA}, 32
        v_xor_b32 v{T+7}, s{sA}, v{T+6}
        v_add_u32 v{self.vWB1}, v{T+7}, v{self.vWB4}
        s_lshl_b32 s{sC}, s{sC}, 5
        s_add_u32 s{sC}, s{sC}, 128
        v_xor_b32 v{T+7}, s{sC}, v{T+6}
        v_add_u32 v{self.vWB4}, v{T+7}, v{self.vWB4}
        s_mov_b32 s{sK1}, {hx(f2u(-2.302208198*0.044715))}
        s_mov_b32 s{sK1+1}, {hx(f2u(-2.302208198*0.044715))}
        v_mov_b32 v{self.vK0}, {hx(f2u(-2.302208198))}
        v_mov_b32 v{self.vK0+1}, {hx(f2u(-2.302208198))}""")
        self.entry3()
        def ydma(grp):
            L = self.a.newlab("Lyd")
            e(f"s_cmp_lt_u32 s{sWAVE}, 4\ns_cbranch_scc1 {L}")
            e(grp)
            self.a.lab(L)
        ydma("\n".join(self.w_ops() + self.w_ops()))
        S, Q = T+8, T+9
        e(f"""v_mov_b32 v{S}, 0
        v_mov_b32 v{Q}, 0
        s_mov_b32 s{sA}, 0x3f803f80
        s_cmp_lt_u32 s{sWAVE}, 4""")
        for j in range(10):
            e(f"s_cbranch_scc1 Lxw{j}\ns_waitcnt vmcnt({9-j+10})\ns_branch Lxv{j}\nLxw{j}:\ns_waitcnt vmcnt({9-j})\nLxv{j}:")
            if j == 9: self.stamp_s(3)
            for i in range(4*j, 4*j+4):
                e(f"v_dot2c_f32_bf16 v{S}, s{sA}, v{XR+i}\nv_dot2c_f32_bf16 v{Q}, v{XR+i}, v{XR+i}")
        for m in ("quad_perm:[1,0,3,2]", "quad_perm:[2,3,0,1]", "row_half_mirror"):
            e(f"v_add_f32_dpp v{S}, v{S}, v{S} {m} row_mask:0xf bank_mask:0xf\nv_add_f32_dpp v{Q}, v{Q}, v{Q} {m} row_mask:0xf bank_mask:0xf")
        self.ln_params(S, Q, 640, T+10, T+12, T+14)
        NM, RS = T+10, T+12
        e(f"""s_mov_b32 s{sA}, 0x00003f80
        s_mov_b32 s{sC}, 0x3f800000
        s_lshl_b32 s{sB}, s{sXS}, 13
        v_lshlrev_b32 v{T+7}, 2, v{T}
        ds_write_b32 v{T+7}, v{RS} offset:{RSTAB - 98304}""".replace(f"v_lshlrev_b32 v{T+7}, 2, v{T}", f"v_lshlrev_b32 v{T+7}, 2, v{T}\n        v_add_u32 v{T+7}, 98304, v{T+7}"))
        TP = 80
        for j in range(10):
            ls = []
            for k in range(4):
                r = XR + 4*j + k; a = TP + 2*k; b = a + 1
                ls.append([f"v_dot2_f32_bf16 v{a}, v{r}, s{sA}, v{NM}", f"v_dot2_f32_bf16 v{b}, v{r}, s{sC}, v{NM}",
                           f"v_cvt_pk_bf16_f32 v{r}, v{a}, v{b}"])
            self.rr(ls)
            e(f"""v_add_u32 v{T+6}, s{sB}, v{T+3}
            ds_write_b128 v{T+6}, v[{XR+4*j}:{XR+4*j+3}]
            s_add_u32 s{sB}, s{sB}, 8192
            s_cmp_ge_u32 s{sB}, 81920
            s_cselect_b32 s{sB}, 0, s{sB}""")
        self.stamp_flush()
        e(f"""s_waitcnt lgkmcnt(0)
        s_mul_i32 s{sTAG}, s{sTAG}, 0x9E3779B1
        s_add_u32 s{sTAG}, s{sTAG}, 0x7F4A7C15
        s_cmp_ge_u32 s{sWAVE}, 4
        s_cbranch_scc1 L_Y""")

    def ln_params(self, S, Q, n, NM, RS, t):
        self.e(f"""v_mul_f32 v{S}, {hx(f2u(1.0/n))}, v{S}
        v_mul_f32 v{Q}, {hx(f2u(1.0/n))}, v{Q}
        v_fma_f32 v{Q}, -v{S}, v{S}, v{Q}
        v_max_f32 v{Q}, 0, v{Q}
        v_cvt_pk_bf16_f32 v{t}, v{S}, v{Q}
        v_lshlrev_b32 v{NM}, 16, v{t}
        v_xor_b32 v{NM}, 0x80000000, v{NM}
        v_mov_b32 v{NM+1}, v{NM}
        v_and_b32 v{Q}, 0xffff0000, v{t}
        v_add_f32 v{Q}, {hx(f2u(1e-5))}, v{Q}
        v_cvt_pk_bf16_f32 v{t}, v{Q}, v{Q}
        v_lshlrev_b32 v{Q}, 16, v{t}
        v_sqrt_f32 v{Q}, v{Q}
        v_cvt_pk_bf16_f32 v{t}, v{Q}, v{Q}
        v_lshlrev_b32 v{Q}, 16, v{t}
        v_rcp_f32 v{RS}, v{Q}
        v_mov_b32 v{RS+1}, v{RS}""")


    def p1_reads(self, F):
        out = []
        for ks in range(2):
            Fk = F + 28*ks
            vx = self.vA0 if ks == 0 else self.vA1
            for a in range(2):
                out.append(f"ds_read_b128 v[{Fk+4*a}:{Fk+4*a+3}], v{vx} offset:{2048*a}")
            for j in range(5):
                base = self.vB4 if j == 4 else (self.vB0, self.vB1)[j & 1]
                off = ks*10240 + (64*(j >> 1) if j < 4 else 0)
                for h in range(2):
                    r = Fk + 8 + 4*j + 2*h
                    out.append(f"ds_read_b64_tr_b16 v[{r}:{r+1}], v{base} offset:{off + h*1280}")
        return out
    def p2_reads(self, F):
        out = []
        for ks in range(2):
            Fk = F + 28*ks
            vx = self.vA0 if ks == 0 else self.vA1
            out += [f"ds_read_b128 v[{Fk+4*a}:{Fk+4*a+3}], v{vx} offset:{2048*a}" for a in range(2)]
            for j in range(5):
                base = self.vB0 if j < 4 else self.vB4
                off = ks*9216 + (1024*j if j < 4 else 0)
                out.append(f"ds_read_b128 v[{Fk+8+4*j}:{Fk+8+4*j+3}], v{base} offset:{off}")
        return out
    def mfmas(self, F, swap, first=False):
        out = []
        for ks in range(2):
            Fk = F + 28*ks
            for j in range(5):
                for a in range(2):
                    c = self.ACC + 4*(2*j + a)
                    X = f"v[{Fk+4*a}:{Fk+4*a+3}]"; W = f"v[{Fk+8+4*j}:{Fk+8+4*j+3}]"
                    A, B = (W, X) if swap else (X, W)
                    C = "0" if (first and ks == 0) else f"v[{c}:{c+3}]"
                    out.append(f"v_mfma_f32_16x16x32_bf16 v[{c}:{c+3}], {A}, {B}, {C}")
        return out
    def interleave(self, reads, mf, per=2):
        out = []; ri = 0
        for m in mf:
            out.append(m)
            for _ in range(per):
                if ri < len(reads): out.append(reads[ri]); ri += 1
        out += reads[ri:]
        return out

    def compute_loop(self, n, swap, reads_fn, addr_fn, tagname, vmwait=False, first=None, mid=None, peel=None):
        e = self.e
        endw = f"s_waitcnt {'vmcnt(0) ' if vmwait else ''}lgkmcnt(0)"
        def stage(rd, mf, extra=(), per2=2):
            e("s_barrier")
            per = 2 if len(rd) > 16 else 1
            if self.o.get("noread"): rd = []
            if self.o.get("nomfma"): mf = []
            fill = list(rd) + addr_fn() + list(extra)
            out = []; ri = 0
            for k, m in enumerate(mf):
                out.append(m)
                for _ in range(per if ri < len(rd) else per2):
                    if ri < len(fill): out.append(fill[ri]); ri += 1
            out += fill[ri:]
            for s in out: e(s)
        F0, F1 = self.FS
        for s in addr_fn(): e(s)
        stage(reads_fn(F0), [], first[0] if first else ())
        e(endw)
        stage(reads_fn(F1), self.mfmas(F0, swap, True), [f"s_mov_b32 s{sCNT}, {(n-2)//2}"] + (first[1] if first else []), 5 if first else 2); e(endw)
        if peel: e(peel)
        L = self.a.newlab("Lc" + tagname)
        self.a.lab(L)
        stage(reads_fn(F0), self.mfmas(F1, swap))
        if mid: mid()
        e(endw)
        stage(reads_fn(F1), self.mfmas(F0, swap), [f"s_sub_u32 s{sCNT}, s{sCNT}, 1", f"s_cmp_lg_u32 s{sCNT}, 0"])
        e(f"{endw}\ns_cbranch_scc1 {L}")
        return self.mfmas(F1, swap)

    def ring_addr(self, asz_total, bbase, bsz, nb):
        return [f"v_add_u32 v{self.vA0}, s{sXOFF}, v{self.vX0}", f"v_add_u32 v{self.vA1}, s{sXOFF}, v{self.vX1}",
        f"v_add_u32 v{self.vB0}, s{sROFF}, v{self.vWB}", f"v_add_u32 v{self.vB4}, s{sROFF}, v{self.vWB4}",
        f"s_add_u32 s{sXOFF}, s{sXOFF}, 8192", f"s_cmp_ge_u32 s{sXOFF}, {asz_total}", f"s_cselect_b32 s{sXOFF}, 0, s{sXOFF}",
        f"s_add_u32 s{sROFF}, s{sROFF}, {bsz}", f"s_cmp_ge_u32 s{sROFF}, {bbase + nb*bsz}", f"s_cselect_b32 s{sROFF}, {bbase}, s{sROFF}"]
    def p1_addr(self): return [f"v_add_u32 v{self.vB1}, s{sROFF}, v{self.vWB1}"] + self.ring_addr(81920, RING1, S1SZ, 4)
    def p2_addr(self): return self.ring_addr(NA*8192, BRING, BSZ, NB)

    def gelu_pair(self, r, t, dst=None, packed=None):
        d = r if dst is None else dst
        self.e(f"""v_pk_mul_f32 v[{t}:{t+1}], v[{r}:{r+1}], v[{r}:{r+1}]
        v_pk_fma_f32 v[{t}:{t+1}], v[{t}:{t+1}], s[{sK1}:{sK1+1}], v[{self.vK0}:{self.vK0+1}]
        v_pk_mul_f32 v[{t}:{t+1}], v[{t}:{t+1}], v[{r}:{r+1}]
        v_exp_f32 v{t}, v{t}
        v_exp_f32 v{t+1}, v{t+1}
        v_pk_add_f32 v[{t}:{t+1}], v[{t}:{t+1}], 1.0 op_sel_hi:[1,0]
        v_rcp_f32 v{t}, v{t}
        v_rcp_f32 v{t+1}, v{t+1}
        v_pk_mul_f32 v[{t}:{t+1}], v[{t}:{t+1}], v[{r}:{r+1}]
        v_cvt_pk_bf16_f32 v{t if packed is None else packed}, v{t}, v{t+1}""")
        if packed is None:
            self.e(f"v_lshlrev_b32 v{d}, 16, v{t}\nv_and_b32 v{d+1}, s{sB}, v{t}")

    def gelu_list(self, r, t, sc, packed=None, stats=None):
        L = [f"v_pk_mul_f32 v[{r}:{r+1}], v[{r}:{r+1}], v[{sc}:{sc+1}]",
             f"v_pk_mul_f32 v[{t}:{t+1}], v[{r}:{r+1}], v[{r}:{r+1}]",
             f"v_pk_fma_f32 v[{t}:{t+1}], v[{t}:{t+1}], s[{sK1}:{sK1+1}], v[{self.vK0}:{self.vK0+1}]",
             f"v_pk_mul_f32 v[{t}:{t+1}], v[{t}:{t+1}], v[{r}:{r+1}]",
             f"v_exp_f32 v{t}, v{t}", f"v_exp_f32 v{t+1}, v{t+1}",
             f"v_pk_add_f32 v[{t}:{t+1}], v[{t}:{t+1}], 1.0 op_sel_hi:[1,0]",
             f"v_rcp_f32 v{t}, v{t}", f"v_rcp_f32 v{t+1}, v{t+1}"]
        d = r if packed is None else packed
        L += [f"v_pk_mul_f32 v[{d}:{d+1}], v[{t}:{t+1}], v[{r}:{r+1}]"]
        if stats:
            s_, q_ = stats
            L += [f"v_pk_add_f32 v[{s_}:{s_+1}], v[{s_}:{s_+1}], v[{r}:{r+1}]",
                  f"v_pk_fma_f32 v[{q_}:{q_+1}], v[{r}:{r+1}], v[{r}:{r+1}], v[{q_}:{q_+1}]"]
        return L
    def rr(self, lists):
        n = max(len(l) for l in lists)
        for i in range(n):
            for l in lists:
                if i < len(l): self.e(l[i])

    def dump_regs(self, r0, n, slot, vt):
        self.e(f"""s_lshl_b32 s{sA}, s2, 3
        s_add_u32 s{sA}, s{sA}, s{sWAVE}
        s_mul_i32 s{sA}, s{sA}, {n*256}
        s_add_u32 s{sA}, s{sA}, {WS_DBG + 0x100000 + slot*0x600000}
        v_lshlrev_b32 v{vt}, 2, v{self.vL}""")
        for i in range(n):
            self.e(f"buffer_store_dword v{r0+i}, v{vt}, {srd(SRD_WS)}, s{sA} offen\ns_add_u32 s{sA}, s{sA}, 256")


    NWS = 21
    A3 = 224
    sBO = 44
    def wreg(self, pos, ee): return 40 + ((pos % self.NWS)*2 + ee)*4
    def wload(self, pos):
        out = []
        for ee in range(2):
            r = self.wreg(pos, ee)
            off = f"s{self.sBO + (pos >> 2)}" if pos < 24 else str(6*4096)
            out.append(f"s_add_u32 s{sT}, s{93+ee}, {off}\nbuffer_load_dwordx4 v[{r}:{r+3}], v7, {srd(SRD_WS)}, s{sT} offen offset:{(pos%4)*1024} sc1")
        return out
    def blk_offsets(self, mul):
        self.e(f"s_mul_i32 s{self.sBO}, s{sCB}, {mul}\ns_lshr_b32 s{sT}, s2, 6\ns_mov_b32 s50, 0")
        for j in range(1, 6):
            self.e(f"""s_add_u32 s{sT2}, s{sT}, s{sCB}
            s_add_u32 s{sT2}, s{sT2}, 1
            s_cmp_ge_u32 s{sT2}, 6
            s_cselect_b32 s51, 6, 0
            s_sub_u32 s{sT2}, s{sT2}, s51
            s_mul_i32 s{self.sBO+j}, s{sT2}, {mul}
            s_lshl_b32 s{sT2}, s{sT2}, 2
            s_lshl_b32 s{sT2}, {j}, s{sT2}
            s_or_b32 s50, s50, s{sT2}
            s_add_u32 s{sT}, s{sT}, 1
            s_cmp_ge_u32 s{sT}, 5
            s_cselect_b32 s{sT}, 0, s{sT}""")

    def x_path(self):
        e = self.e; T = self.vT; ACC = self.ACC; vL = self.vL
        self.stamp(0)
        g, r, c4 = T, T+1, T+2
        e(f"""v_lshrrev_b32 v{g}, 4, v{vL}
        v_bfe_u32 v{r}, v{vL}, 2, 2
        v_and_b32 v{c4}, 3, v{vL}
        s_and_b32 s{sA}, s{sW}, 1
        s_lshl_b32 s{sB}, s{sA}, 5""")
        for rd in range(2):
            t, sw, ad = T+3, T+4, T+6+rd
            e(f"""v_lshl_add_u32 v{t}, v{g}, 3, v{r}
            v_add_u32 v{t}, {4*rd}, v{t}
            v_add_u32 v{t}, s{sB}, v{t}
            v_bfe_u32 v{sw}, v{t}, 1, 3
            v_lshrrev_b32 v{ad}, 1, v{c4}
            v_xor_b32 v{sw}, v{sw}, v{ad}
            v_lshlrev_b32 v{sw}, 4, v{sw}
            v_lshl_add_u32 v{ad}, v{t}, 7, v{sw}
            v_and_b32 v{sw}, 1, v{c4}
            v_lshl_add_u32 v{ad}, v{sw}, 3, v{ad}""")
        e(f"""v_and_b32 v{T+8}, 15, v{vL}
        v_lshlrev_b32 v{T+8}, 12, v{T+8}
        v_lshl_add_u32 v{T+8}, v{g}, 4, v{T+8}
        s_lshl_b32 s{sB}, s{sA}, 6
        v_add_u32 v{T+8}, s{sB}, v{T+8}
        s_lshl_b32 s{sB}, s{sA}, 7
        s_add_u32 s{sB}, s{sB}, {RSTAB}
        v_lshlrev_b32 v{T+9}, 5, v{g}
        v_add_u32 v{T+9}, s{sB}, v{T+9}
        s_mul_i32 s{sA}, s{sCB}, 7
        s_sub_u32 s{sB}, s{sCB}, 2
        s_max_i32 s{sB}, s{sB}, 0
        s_sub_u32 s{sA}, s{sA}, s{sB}
        s_lshr_b32 s{sB}, s{sW}, 1
        s_add_u32 s{sA}, s{sA}, s{sB}""")
        XQ = 192; XAD = 208
        for i in range(4):
            e(f"""s_add_u32 s{sB}, s{sA}, {2*i}
            s_and_b32 s{sC}, s{sB}, 3
            s_lshl_b32 s{sC}, s{sC}, 5
            s_lshr_b32 s{sD}, s{sB}, 2
            s_lshl_b32 s{sD}, s{sD}, 13""")
            for rd in range(2):
                e(f"v_xor_b32 v{XAD+2*i+rd}, s{sC}, v{T+6+rd}\nv_add_u32 v{XAD+2*i+rd}, s{sD}, v{XAD+2*i+rd}")
        e(f"""s_lshl_b32 s{sB}, s{sRB}, 7
        s_add_u32 s{sB}, s{sB}, {WS_XNT}
        s_lshl_b32 s{sA}, s{sA}, 16
        s_add_u32 s{sA}, s{sA}, s{sB}""")
        e(f"""v_lshlrev_b32 v{T+10}, 4, v{g}
        s_lshl_b32 s{sB}, s{sMH}, 7
        s_add_u32 s{sB}, s{sB}, {RSTAB}
        v_add_u32 v{T+10}, s{sB}, v{T+10}""")
        pub_rd = [f"ds_read_b128 v[216:219], v{T+9}", f"ds_read_b128 v[220:223], v{T+9} offset:16",
                  f"ds_read_b128 v[232:235], v{T+10}", f"ds_read_b128 v[236:239], v{T+10} offset:64"]
        pub_rd += [f"ds_read_b64_tr_b16 v[{XQ+2*i}:{XQ+2*i+1}], v{XAD+i}" for i in range(8)]
        pub = []
        for i in range(4):
            for k in range(4):
                r = XQ + 4*i + k; a = 224 + 2*k
                pub += [f"v_lshlrev_b32 v{a}, 16, v{r}", f"v_and_b32 v{a+1}, s{sB}, v{r}",
                        f"v_pk_mul_f32 v[{a}:{a+1}], v[{a}:{a+1}], v[{216+2*k}:{217+2*k}]", f"v_cvt_pk_bf16_f32 v{r}, v{a}, v{a+1}"]
            pub.append(f"buffer_store_dwordx4 v[{XQ+4*i}:{XQ+4*i+3}], v{T+8}, {srd(SRD_WS)}, s{sA} offen sc1\ns_add_u32 s{sA}, s{sA}, {2*65536}")
        e(f"s_mov_b32 s{sB}, 0xffff0000")
        e(f"""s_lshl_b32 s{sD}, s{sCB}, 5
        s_add_u32 s{sD}, s{sD}, s{sRB}
        s_lshl_b32 s{sD}, s{sD}, 5
        s_add_u32 s{sD}, s{sD}, s{sW}
        s_lshl_b32 s{sD}, s{sD}, 2
        s_add_u32 s{sD}, s{sD}, {WS_FXN}""")
        def xnflag():
            Lf = self.a.newlab("Lfx")
            e(f"s_cmp_lg_u32 s{sCNT}, {self.o.get('xnf', 3)}\ns_cbranch_scc1 {Lf}\ns_waitcnt vmcnt(0)")
            self.flag_store(sD, T)
            self.a.lab(Lf)
        e(f"s_mov_b32 s{sROFF}, {RING1}")
        tail = self.compute_loop(10, False, self.p1_reads, self.p1_addr, "p1a", first=(pub_rd, pub), mid=xnflag)
        e(f"""s_and_b32 s{sA}, s{sRB}, 7
        s_add_u32 s{sA}, s{sA}, 3
        s_cmp_ge_u32 s{sA}, 10
        s_cselect_b32 s{sA}, 0, s{sA}
        s_mul_i32 s{sWSOFF}, s{sA}, {64*3456}
        s_sub_u32 s{sWSL}, s{sWSL}, 1728
        s_add_u32 s{sWSOFF}, s{sWSOFF}, s{sWSL}
        s_add_u32 s{sWSLOT}, s{sW0}, {S1SZ}
        s_mov_b32 s{sB}, 0xffff0000""")
        hold = int(self.o.get("hold", 2))
        if hold < 3: e("s_barrier")
        for m in tail: e(m)
        e("s_waitcnt lgkmcnt(0)")
        self.stamp(1)
        SS = 192
        for i in range(16): e(f"v_mov_b32 v{SS+i}, 0")
        vmw = lambda n: f"s_waitcnt vmcnt({n})"
        def do_frag(j):
            self.rr([self.gelu_list(ACC + 4*(2*j + a) + 2*h, T + 2*(2*a + h), 232 + 4*a + 2*h, stats=(SS + 4*a + 2*h, SS + 8 + 4*a + 2*h))
                     for a in range(2) for h in range(2)])
        if hold < 2: e("s_barrier")
        do_frag(0); do_frag(1)
        if hold < 1: e("s_barrier")
        do_frag(2); do_frag(3)
        Ls = self.a.newlab("Lz4")
        e(f"s_cmp_eq_u32 s{sNH}, 1\ns_cbranch_scc1 {Ls}")
        do_frag(4)
        self.a.lab(Ls)
        for i in range(8):
            e(f"v_add_f32_dpp v{SS+i}, v{SS+i}, v{SS+i} row_mirror row_mask:0xf bank_mask:0x3")
        for i in range(8):
            e(f"v_add_f32_dpp v{SS+i}, v{SS+8+i}, v{SS+8+i} row_mirror row_mask:0xf bank_mask:0xc")
        for i in range(4):
            e(f"v_add_f32_dpp v{SS+i}, v{SS+i}, v{SS+i} row_half_mirror row_mask:0xf bank_mask:0x5")
        for i in range(4):
            e(f"v_add_f32_dpp v{SS+i}, v{SS+4+i}, v{SS+4+i} row_half_mirror row_mask:0xf bank_mask:0xa")
        for i in range(4):
            e(f"v_add_f32_dpp v{SS+i}, v{SS+i}, v{SS+i} quad_perm:[2,3,0,1] row_mask:0xf bank_mask:0xf")
        for i in range(4):
            e(f"v_add_f32_dpp v{SS+8+2*i}, v{SS+i}, v{SS+i} quad_perm:[1,0,3,2] row_mask:0xf bank_mask:0xf")
            e(f"v_mov_b32 v{SS+9+2*i}, s{sTAG}")
        e(f"""v_lshlrev_b32 v{T}, 3, v{vL}
        v_and_b32 v{T+1}, 0x1e0, v{T}
        s_lshl_b32 s{sC}, s{sRB}, 1
        s_add_u32 s{sC}, s{sC}, s{sMH}
        s_mul_i32 s{sC}, s{sC}, {12*512}
        s_add_u32 s{sC}, s{sC}, {WS_STATS}
        s_lshl_b32 s{sA}, s{sCB}, 1
        s_add_u32 s{sA}, s{sA}, s{sNH}
        s_lshl_b32 s{sA}, s{sA}, 9
        s_add_u32 s{sA}, s{sA}, s{sC}
        buffer_store_dwordx4 v[{SS+8}:{SS+11}], v{T+1}, {srd(SRD_WS)}, s{sA} offen sc1
        buffer_store_dwordx4 v[{SS+12}:{SS+15}], v{T+1}, {srd(SRD_WS)}, s{sA} offen offset:16 sc1""")
        self.stamp(2)
        if hold >= 3: e("s_barrier")
        self.issue_w()
        if hold >= 2: e("s_barrier")
        self.issue_w()
        if hold >= 1: e("s_barrier")
        e(vmw(5))
        e("s_barrier")
        self.issue_w(); self.issue_w()
        e(vmw(10))
        e("s_barrier")
        self.issue_w()
        e(vmw(10))
        e("s_barrier")
        self.issue_w()
        e(vmw(10))
        e("s_barrier")
        PR = 128
        L = self.a.newlab("Lst"); D = self.a.newlab("Lstd")
        e(f"s_mov_b32 s{sSPIN}, {SPIN_MAX}\ns_add_u32 s{sA}, s{sC}, 4096")
        def stat_loads():
            for p in range(12):
                e(f"buffer_load_dwordx2 v[{PR+2*p}:{PR+2*p+1}], v{T}, {srd(SRD_WS)}, s{sC if p < 8 else sA} offen offset:{512*(p%8)} sc1")
        stat_loads()
        self.issue_w()
        self.stamp(3)
        e("s_waitcnt vmcnt(22)\ns_barrier")
        Lchk = self.a.newlab("Lchk")
        e(f"s_branch {Lchk}")
        self.a.lab(L)
        stat_loads()
        self.a.lab(Lchk)
        e("s_waitcnt vmcnt(0)")
        e(f"v_xor_b32 v{T+1}, s{sTAG}, v{PR+1}")
        for p in range(1, 12):
            e(f"v_xor_b32 v{T+2}, s{sTAG}, v{PR+2*p+1}\nv_or_b32 v{T+1}, v{T+1}, v{T+2}")
        e(f"""v_cmp_ne_u32 vcc, 0, v{T+1}
        s_cbranch_vccz {D}
        s_sleep 2
        s_sub_u32 s{sSPIN}, s{sSPIN}, 1
        s_cmp_lg_u32 s{sSPIN}, 0
        s_cbranch_scc1 {L}""")
        self.a.lab(D)
        self.stamp(4)
        for p in range(1, 12):
            e(f"v_add_f32 v{PR}, v{PR}, v{PR+2*p}")
        e(f"v_mov_b32_dpp v{PR+1}, v{PR} row_ror:8 row_mask:0xf bank_mask:0xf")
        self.ln_params(PR, PR+1, 864, T+10, T+12, T+14)
        e(f"v_mul_f32 v{T+10}, v{T+10}, v{T+12}")
        for i in range(8):
            e(f"v_mov_b32_dpp v{SS+i}, v{T+10} row_newbcast:{i} row_mask:0xf bank_mask:0xf")
            e(f"v_mov_b32_dpp v{SS+8+i}, v{T+12} row_newbcast:{i} row_mask:0xf bank_mask:0xf")
        e(f"""v_lshrrev_b32 v{T}, 4, v{vL}
        v_and_b32 v{T+1}, 1, v{T}
        v_lshrrev_b32 v{T}, 1, v{T}
        v_lshl_add_u32 v{T}, v{T+1}, 1, v{T}
        v_lshlrev_b32 v{T}, 8, v{T}
        v_and_b32 v{T+1}, 15, v{vL}
        v_lshl_add_u32 v{T}, v{T+1}, 4, v{T}
        s_lshl_b32 s{sA}, s{sCB}, 5
        s_add_u32 s{sA}, s{sA}, s{sRB}
        s_mul_i32 s{sA}, s{sA}, 18432
        s_mul_i32 s{sC}, s{sMH}, 9216
        s_add_u32 s{sA}, s{sA}, s{sC}
        s_add_u32 s{sA}, s{sA}, {WS_Z2}
        s_mul_i32 s{sC}, s{sNH}, 5120
        s_add_u32 s{sC}, s{sC}, s{sA}
        s_add_u32 s{sA}, s{sA}, 4096""")
        Q4 = PR
        Ls = self.a.newlab("Lz4b")
        for j in range(5):
            if j == 4: e(f"s_cmp_eq_u32 s{sNH}, 1\ns_cbranch_scc1 {Ls}")
            q = Q4 + 4*j
            ls = []
            for a in range(2):
                for h in range(2):
                    r = ACC + 4*(2*j + a) + 2*h
                    nm, rs = SS + 4*a + 2*h, SS + 8 + 4*a + 2*h
                    d = q + 2*a + h
                    ls.append([f"v_pk_fma_f32 v[{r}:{r+1}], v[{r}:{r+1}], v[{rs}:{rs+1}], v[{nm}:{nm+1}]",
                    f"v_cvt_pk_bf16_f32 v{d}, v{r}, v{r+1}"])
            self.rr(ls)
            e(f"v_permlane16_swap_b32 v{q}, v{q+2}\nv_permlane16_swap_b32 v{q+1}, v{q+3}")
            if j < 4:
                e(f"buffer_store_dwordx4 v[{q}:{q+3}], v{T}, {srd(SRD_WS)}, s{sC} offen offset:{1024*j} sc1")
            else:
                e(f"buffer_store_dwordx4 v[{q}:{q+3}], v{T}, {srd(SRD_WS)}, s{sA} offen sc1")
        self.a.lab(Ls)
        e("s_barrier")
        e(f"""s_lshl_b32 s{sD}, s{sCB}, 2
        s_add_u32 s{sD}, s{sD}, s{sW}
        s_lshl_b32 s{sD}, s{sD}, {5+FS}
        s_add_u32 s{sD}, s{sD}, {WS_FZ2}
        v_lshlrev_b32 v7, 4, v{vL}
        v_and_b32 v{T+3}, 31, v{vL}
        v_min_u32 v{T+3}, 26, v{T+3}
        v_lshlrev_b32 v{T+3}, {FS}, v{T+3}
        s_min_u32 s{sA}, s{sCB}, 4
        s_lshl_b32 s91, s{sA}, 1
        s_add_u32 s91, s91, s{sMH}
        s_lshl_b32 s91, s91, {5+FS}
        s_add_u32 s91, s91, {WS_FWO}
        s_lshl_b32 s{sA}, s{sA}, 2
        s_add_u32 s{sA}, s{sA}, s{sW}
        s_mul_i32 s93, s{sA}, {2*27*1024}
        s_add_u32 s93, s93, {WS_WOT}
        s_add_u32 s94, s93, {27*1024}""")
        self.x_p2_setup()
        e(f"s_add_u32 s{sWSOFF}, s{sWSOFF}, {NA*128}")
        e("s_barrier")
        self.blk_offsets(4096)
        e("s_barrier")
        e(f"""s_lshl_b32 s{sA}, s{sRB}, {FS}
        s_add_u32 s{sA}, s{sA}, s{sD}
        s_waitcnt vmcnt(0)""")
        self.flag_store(sA, T+8)
        self.stamp(5)
        if self.o.get("selft", "1") == "1":
            e(f"""s_lshl_b32 s{sT}, s{sNH}, 3
            s_sub_u32 s{sT}, 39, s{sT}
            v_min_u32 v{T+4}, s{sT}, v{vL}
            v_lshlrev_b32 v{T+4}, 7, v{T+4}
            buffer_load_dword v{T+5}, v{T+4}, {srd(SRD_WS)}, s{sC} offen sc1""")
        self.poll(T+3, "s91", T)
        self.x_p2_loader()
        self.x_p3()

    def x_p2_setup(self):
        e = self.e; T = self.vT + 4; vL = self.vL
        e(f"s_lshl_b32 s{sT2}, s{sW}, 4")
        for i in range(2):
            e(f"""v_lshrrev_b32 v{T}, 3, v{vL}
            v_add_u32 v{T}, s{sT2}, v{T}
            v_add_u32 v{T}, {8*i}, v{T}
            v_bfe_u32 v{T+1}, v{T}, 1, 3
            v_and_b32 v{T+2}, 7, v{vL}
            v_xor_b32 v{T+1}, v{T+1}, v{T+2}
            v_lshlrev_b32 v{T+1}, 4, v{T+1}
            v_lshl_add_u32 v{2+i}, v{T}, 12, v{T+1}""")
        e(f"""v_subrev_u32 v3, 1024, v3
        v_and_b32 v5, 31, v{vL}
        v_lshlrev_b32 v5, {FS}, v5
        s_lshl_b32 s{sWSOFF}, s{sRB}, 18
        s_lshl_b32 s{sWSLOT}, s{sW}, 11
        s_mul_i32 s{sROFF}, s{sMH}, 9216
        s_mul_i32 s{sT}, s{sNH}, 5120
        s_add_u32 s{sROFF}, s{sROFF}, s{sT}
        s_mul_i32 s{sXOFF}, s{sCB}, {32*18432}
        s_add_u32 s{sXOFF}, s{sXOFF}, s{sROFF}
        s_add_u32 s{sXOFF}, s{sXOFF}, {WS_Z2}
        s_add_u32 s95, s{sXOFF}, 4096
        s_add_u32 s{sROFF}, s{sROFF}, {BRING}""")
    def issue_a(self, i):
        self.e(f"""s_add_u32 m0, s{sWSLOT}, {8192*i}
        s_nop 0
        buffer_load_dwordx4 v2, {srd(SRD_WSP)}, s{sWSOFF} offen lds
        buffer_load_dwordx4 v3, {srd(SRD_WSP)}, s{sWSOFF} offen offset:1024 lds
        s_add_u32 s{sWSOFF}, s{sWSOFF}, 128""")
    def issue_b(self, slot, five):
        e = self.e
        e(f"s_add_u32 m0, s{sROFF}, {BSZ*slot}\ns_nop 0")
        for i in range(4):
            e(f"buffer_load_dwordx4 v7, {srd(SRD_WS)}, s{sXOFF} offen offset:{1024*i} sc1 lds")
        if five:
            e(f"""s_add_u32 m0, s{sROFF}, {BSZ*slot + 4096}
            s_add_u32 s{sXOFF}, s{sXOFF}, 18432
            buffer_load_dwordx4 v7, {srd(SRD_WS)}, s95 offen sc1 lds
            s_add_u32 s95, s95, 18432""")
        else:
            e(f"s_add_u32 s{sXOFF}, s{sXOFF}, 18432")
    def loop(self, n, fn, name):
        L = self.a.newlab(name)
        self.e(f"s_mov_b32 s{sCNT}, {n}")
        self.a.lab(L)
        fn()
        self.e(f"s_sub_u32 s{sCNT}, s{sCNT}, 1\ns_cmp_lg_u32 s{sCNT}, 0\ns_cbranch_scc1 {L}")

    def x_p2_loader(self):
        e = self.e; T = self.vT
        self.poll(5, f"s{sD}", T)
        self.stamp(6)
        Lfour = self.a.newlab("Lp2four"); Ldone = self.a.newlab("Lp2done")
        e(f"""v_min_u32 v4, 53, v{self.vL}
        v_lshlrev_b32 v4, 7, v4
        s_and_b32 s{sT2}, s{sRB}, 7
        s_mul_i32 s{sT2}, s{sT2}, {54*128}
        s_add_u32 s{sT2}, s{sT2}, s93
        s_cmp_eq_u32 s{sNH}, 1
        s_cbranch_scc1 {Lfour}""")
        for five in (True, False):
            nb = 5 if five else 4
            self.issue_b(0, five); self.issue_b(1, five)
            e(f"s_waitcnt vmcnt({nb})\ns_barrier")
            self.issue_b(2, five); self.issue_b(3, five)
            e(f"s_waitcnt vmcnt({2*nb})")
            def grp(withA):
                for i in range(4):
                    e("s_barrier")
                    if i == 0: self.stampd(12)
                    self.issue_b(i, five)
                    if withA: self.issue_a(i)
                    e(f"s_waitcnt vmcnt({2*nb + 2 if withA else 2*nb})")
                if withA: e(f"s_xor_b32 s{sWSLOT}, s{sWSLOT}, 32768")
            def grp_t():
                grp(True)
                if self.o.get("wtouch", "0") == "1":
                    Lt = self.a.newlab("Lwt")
                    e(f"s_cmp_lg_u32 s{sCNT}, 2\ns_cbranch_scc1 {Lt}\nbuffer_load_dword v6, v4, {srd(SRD_WS)}, s{sT2} offen sc1")
                    self.a.lab(Lt)
            self.loop(6, grp_t, "Lp2f")
            grp(False)
            if five:
                e(f"s_branch {Ldone}")
                self.a.lab(Lfour)
        self.a.lab(Ldone)
        wl = [s_ for pos in range(self.NWS) for s_ in self.wload(pos)]
        e("s_barrier")
        for s_ in wl[:5]: e(s_)
        e("s_waitcnt vmcnt(9)\ns_barrier")
        for s_ in wl[5:10]: e(s_)
        e("s_waitcnt vmcnt(10)\ns_barrier")
        for s_ in wl[10:16]: e(s_)
        self.wl_rest = wl[16:]
        self.stamp(7)

    def x_p3(self):
        e = self.e; T = self.vT; vL = self.vL; A3 = self.A3
        e("s_barrier")
        Lidle = self.a.newlab("Lp3idle")
        e(f"s_cmp_eq_u32 s{sCB}, 5\ns_cbranch_scc1 {Lidle}")
        for s_ in self.wl_rest: e(s_)
        e(f"""v_and_b32 v2, 15, v{vL}
        v_mul_u32_u24 v2, 1280, v2
        v_lshrrev_b32 v3, 4, v{vL}
        s_mul_i32 s{sA}, s{sRB}, {64*1280}
        s_lshl_b32 s{sC}, s{sCB}, 8
        s_add_u32 s{sA}, s{sA}, s{sC}
        s_lshl_b32 s{sC}, s{sW}, 6
        s_add_u32 s{sA}, s{sA}, s{sC}
        v_and_b32 v6, 1, v3
        v_lshlrev_b32 v6, 5, v6
        v_lshrrev_b32 v3, 1, v3
        v_lshl_add_u32 v6, v3, 4, v6
        v_add_u32 v6, v6, v2
        s_mov_b32 s{sB}, 0xffff0000
        v_add_u32 v2, {HB}, v7
        v_add_u32 v3, 0x10000, v2
        v_lshlrev_b32 v4, 3, v{vL}""")
        self.stamp(8)
        def hreads(pos, F):
            out = []
            if pos < 24:
                j, p = divmod(pos, 4)
                for b in range(4):
                    mh, a = b >> 1, b & 1
                    off = j*18432 + (9*mh + 5*(p >> 1) + 2*(p & 1) + a)*1024
                    out.append(f"ds_read_b128 v[{F+4*b}:{F+4*b+3}], v{2 + (off >> 16)} offset:{off & 0xffff}")
            else:
                for hf in range(2):
                    cbp = 2*(pos - 24) + hf
                    pre = f"""s_bfe_u32 s{sT}, s50, {(4 << 16) | (4*cbp)}
                    s_mul_i32 s{sT}, s{sT}, 18432
                    s_add_u32 s{sT}, s{sT}, {HB + 4096}
                    v_add_u32 v{2+hf}, s{sT}, v4
                    """
                    for b in range(4):
                        mh, a = b >> 1, b & 1
                        out.append(pre + f"ds_read_b64 v[{F+4*b+2*hf}:{F+4*b+2*hf+1}], v{2+hf} offset:{9216*mh + a*512}")
                        pre = ""
            return out
        FB = (8, 24, 208)
        e("s_barrier")
        self.stamp(9)
        for s_ in hreads(0, FB[0]) + hreads(1, FB[1]): e(s_)
        issued = 2*self.NWS
        NL = 27 - self.NWS
        XV = self.wreg(NL, 0)
        YV = self.wreg(NL + 2, 0)
        XA = self.wreg(NL + 4, 0)
        e(f"""v_lshrrev_b32 v5, 2, v{vL}
        v_lshlrev_b32 v5, 7, v5
        v_and_b32 v{A3}, 3, v{vL}
        v_lshl_add_u32 v5, v{A3}, 3, v5
        s_lshl_b32 s{sC}, s{sW}, 12
        s_add_u32 s{sC}, s{sC}, {YAB}
        v_add_u32 v5, s{sC}, v5""")
        prev = 4
        for pos in range(27):
            if pos == NL + 6:
                e(f"""v_and_b32 v{XA+2}, 15, v{vL}
                v_lshrrev_b32 v{XA+3}, 5, v{vL}
                s_lshl_b32 s{sC}, s{sW}, 2
                v_add_u32 v{XA+3}, s{sC}, v{XA+3}
                v_xor_b32 v{XA+3}, v{XA+3}, v{XA+2}
                v_lshlrev_b32 v{XA+3}, 4, v{XA+3}
                v_lshl_add_u32 v{XA}, v{XA+2}, 8, v{XA+3}
                v_bfe_u32 v{XA+3}, v{vL}, 4, 1
                v_lshl_add_u32 v{XA}, v{XA+3}, 3, v{XA}
                v_add_u32 v{XA}, {XB}, v{XA}
                v_xor_b32 v{XA+1}, 32, v{XA}""")
            F = FB[pos % 3]
            nxt = []
            def fbar(j):
                if self.o.get("fine"): self.stamp(28 + j)
                e("s_barrier")
                if self.o.get("fine"): self.stamp(22 + j)
            if pos == 4:
                fbar(1)
                for s_ in hreads(4, FB[1]) + hreads(5, FB[2]): e(s_)
                prev = 4
            if pos < 25 and pos not in (2, 3):
                if (pos + 2) % 4 == 0 and pos + 2 < 24: fbar((pos + 2)//4)
                nxt = hreads(pos + 2, FB[(pos + 2) % 3])
            mf = []
            for b in range(4):
                for ee in range(2):
                    c = A3 + 4*(2*b + ee); w = self.wreg(pos, ee)
                    C = "0" if pos == 0 else f"v[{c}:{c+3}]"
                    mf.append(f"v_mfma_f32_16x16x32_bf16 v[{c}:{c+3}], v[{w}:{w+3}], v[{F+4*b}:{F+4*b+3}], {C}")
            e(f"s_waitcnt lgkmcnt({prev}) vmcnt({issued - 2*(pos + 1)})")
            for s_ in self.interleave(nxt, mf, 1): e(s_)
            prev = len(nxt)
            if pos < NL:
                for s_ in self.wload(self.NWS + pos): e(s_)
                issued += 2
            if pos == 24:
                for b in range(4):
                    for ee in range(2):
                        r = 2*(2*b + ee)
                        e(f"ds_read_b64_tr_b16 v[{YV+r}:{YV+r+1}], v5 offset:{ee*2048 + b*32}")
                prev += 7
            if pos == 25:
                for b in range(4):
                    for ee in range(2):
                        r = 2*(2*b + ee)
                        e(f"ds_read_b64 v[{XV+r}:{XV+r+1}], v{XA+ee} offset:{4096*b}")
                prev = 15
        self.stamp(10)
        e("s_waitcnt lgkmcnt(0)")
        for i in range(16):
            t = 8 + 4*(i & 3)
            e(f"""v_lshlrev_b32 v{t}, 16, v{XV+i}
            v_and_b32 v{t+1}, s{sB}, v{XV+i}
            v_lshlrev_b32 v{t+2}, 16, v{YV+i}
            v_and_b32 v{t+3}, s{sB}, v{YV+i}
            v_pk_add_f32 v[{t}:{t+1}], v[{t}:{t+1}], v[{t+2}:{t+3}]
            v_pk_add_f32 v[{A3+2*i}:{A3+2*i+1}], v[{A3+2*i}:{A3+2*i+1}], v[{t}:{t+1}]""")
        OV = 40
        for b in range(4):
            q = OV + 4*b
            for k in range(4):
                c = A3 + 8*b + 2*k; i = 4*b + k; t = 8 + 2*k
                e(f"v_cvt_pk_bf16_f32 v{q+k}, v{c}, v{c+1}")
            e(f"""v_permlane16_swap_b32 v{q}, v{q+2}
            v_permlane16_swap_b32 v{q+1}, v{q+3}
            s_add_u32 s{sT}, s{sA}, {b*16*1280}
            buffer_store_dwordx4 v[{q}:{q+3}], v6, {srd(SRD_OUT)}, s{sT} offen""")
        self.stamp(11)
        e(f"""s_cmp_lg_u32 s2, 0
        s_cbranch_scc1 L_end
        s_cmp_lg_u32 s{sW}, 0
        s_cbranch_scc1 L_end
        v_lshlrev_b32 v8, {FS}, v{vL}
        s_mov_b32 s{sD}, {WS_FY}
        s_mov_b32 s{sA}, {WS_EPOCH}""")
        self.poll(8, f"s{sD}", 9)
        self.flag_store(sA, 8)
        if self.o.get("dbgt"):
            e(f"""s_load_dwordx2 s[40:41], s[0:1], 104
            s_waitcnt vmcnt(0)
            s_memtime s[{sTM}:{sTM+1}]
            s_memrealtime s[98:99]
            s_waitcnt lgkmcnt(0)
            s_sub_u32 s{sTM}, s{sTM}, s{sTM0}
            s_sub_u32 s98, s98, s100
            v_mov_b32 v8, s{sTM}
            v_mov_b32 v9, s98
            v_mov_b32 v10, 0
            global_store_dwordx2 v10, v[8:9], s[40:41]""")
        self.a.lab(Lidle)
        e("s_branch L_end")

    def y_p3_setup(self):
        e = self.e; T = self.vT; vL = self.vL
        e(f"""s_lshl_b32 s{sD}, s{sRB}, 2
        s_add_u32 s{sD}, s{sD}, s{sW}
        s_lshl_b32 s{sD}, s{sD}, {3+FS}
        s_add_u32 s{sD}, s{sD}, {WS_FH}
        s_lshl_b32 s85, s{sCB}, {FS}
        s_add_u32 s85, s85, s{sD}
        v_min_u32 v6, 5, v{vL}
        v_lshlrev_b32 v6, {FS}, v6
        v_add_u32 v6, s{sD}, v6
        s_min_u32 s{sC}, s{sCB}, 4
        s_mul_i32 s{sA}, s{sC}, 51
        s_lshr_b32 s{sA}, s{sA}, 2
        v_and_b32 v{T+3}, 15, v{vL}
        v_add_u32 v{T+3}, s{sA}, v{T+3}
        v_min_u32 v{T+3}, 63, v{T+3}
        v_lshlrev_b32 v{T+3}, {FS}, v{T+3}
        v_add_u32 v{T+3}, {WS_FY}, v{T+3}
        v_cmp_lt_u32 vcc, 15, v{vL}
        v_cndmask_b32 v6, v6, v{T+3}, vcc
        s_mul_i32 s93, s{sMH}, 9216
        s_mul_i32 s{sA}, s{sNH}, 5120
        s_add_u32 s93, s93, s{sA}
        s_mul_i32 s94, s{sRB}, {6*18432}
        s_add_u32 s94, s94, s93
        s_add_u32 s94, s94, {WS_H}
        s_add_u32 s93, s93, {HB}
        s_mul_i32 s91, s{sRB}, {64*1280}
        s_lshl_b32 s{sA}, s{sC}, 8
        s_add_u32 s91, s91, s{sA}
        s_mul_i32 s{sA}, s{sW}, {16*1280}
        s_add_u32 s91, s91, s{sA}
        s_mul_i32 s{sMASK}, s{sRB}, {640*128}
        s_lshl_b32 s{sA}, s{sC}, 14
        s_add_u32 s{sMASK}, s{sMASK}, s{sA}
        s_lshl_b32 s{sA}, s{sW}, 12
        s_add_u32 s{sMASK}, s{sMASK}, s{sA}
        s_add_u32 s{sMASK}, s{sMASK}, {WS_YA}""")
        for i in range(4):
            e(f"""v_lshrrev_b32 v{T+4}, 4, v{vL}
            v_add_u32 v{T+4}, {4*i}, v{T+4}
            v_and_b32 v{T+5}, 15, v{vL}
            v_xor_b32 v{T+5}, v{T+5}, v{T+4}
            v_mul_u32_u24 v{T+4}, 1280, v{T+4}
            v_lshl_add_u32 v{T+12+i}, v{T+5}, 4, v{T+4}""")
            if i: e(f"v_subrev_u32 v{T+12+i}, {1024*i}, v{T+12+i}")

    def y_path(self):
        e = self.e; T = self.vT; ACC = self.ACC; vL = self.vL; Z1 = self.Z1
        self.a.lab("L_Y")
        self.stamp(0)
        vmw = lambda n: f"s_waitcnt vmcnt({n})"
        e(f"""v_and_b32 v{T}, 15, v{vL}
        v_lshlrev_b32 v{T}, 2, v{T}
        s_lshl_b32 s{sA}, s{sMH}, 7
        s_add_u32 s{sA}, s{sA}, {RSTAB}
        v_add_u32 v{T}, s{sA}, v{T}""")
        e(vmw(5))
        e("s_barrier")
        self.stamp(12)
        e(f"ds_read_b32 v{T+8}, v{T}\nds_read_b32 v{T+10}, v{T} offset:64")
        self.issue_w()
        e("s_waitcnt vmcnt(5) lgkmcnt(0)\ns_barrier")
        self.issue_w(); self.issue_w()
        e(vmw(10))
        L = self.a.newlab("Ly1")
        e(f"s_mov_b32 s{sCNT}, 2")
        self.a.lab(L)
        e("s_barrier")
        self.stampd(12)
        Lc = self.a.newlab("Lcol")
        e(f"""s_cmp_lg_u32 s{sCNT}, 7
        s_cbranch_scc1 {Lc}
        s_sub_u32 s{sWSOFF}, s{sWSOFF}, 1728
        s_sub_u32 s{sWSL}, s{sWSL}, 1728""")
        self.a.lab(Lc)
        self.issue_w()
        e(vmw(10))
        e(f"""s_add_u32 s{sCNT}, s{sCNT}, 1
        s_cmp_lt_u32 s{sCNT}, 10
        s_cbranch_scc1 {L}""")
        self.stamp(1)
        ysetup = self.capture(lambda: (self.blk_offsets(18432), self.y_p3_setup()))
        e(f"""s_mov_b32 s{sROFF}, {RING1 + 2*S1SZ}
        v_and_b32 v{T}, 15, v{vL}
        v_lshlrev_b32 v{T}, 1, v{T}
        s_lshl_b32 s{sA}, s{sRB}, 7
        s_lshl_b32 s{sB}, s{sMH}, 6
        s_add_u32 s{sA}, s{sA}, s{sB}
        buffer_load_ushort v34, v{T}, {srd(SRD_BSP)}, s{sA} offen
        buffer_load_ushort v36, v{T}, {srd(SRD_BSP)}, s{sA} offen offset:32""")
        tail = self.compute_loop(10, True, self.p1_reads, self.p1_addr, "p1b", vmwait=True, first=(ysetup, []))
        e("s_barrier")
        for m in tail: e(m)
        self.stamp(2)
        self.x_p2_setup()
        for i in range(NA): self.issue_a(i)
        e(f"s_mov_b32 s{sB}, 0xffff0000")
        e(f"v_mov_b32 v{T+9}, v{T+8}\nv_mov_b32 v{T+11}, v{T+10}")
        for i in range(0, 20, 4):
            self.rr([self.gelu_list(ACC + 2*(i+k), T + 2*k, T + 8 + 2*(k >> 1), packed=Z1 + 2*(i + k)) for k in range(4)])
        e(f"""v_lshlrev_b32 v34, 16, v34
        v_lshlrev_b32 v36, 16, v36
        v_mov_b32 v35, v34
        v_mov_b32 v37, v36
        v_lshlrev_b32 v{self.vWB4}, 4, v{vL}
        s_mul_i32 s{sA}, s{sNH}, 5120
        v_add_u32 v{self.vWB}, s{sA}, v{self.vWB4}
        v_add_u32 v{self.vWB4}, 4096, v{self.vWB4}
        s_mov_b32 s{sROFF}, {BRING}
        s_mov_b32 s{sXOFF}, 0""")
        e("s_waitcnt vmcnt(12)")
        self.stamp(3)
        ZD = int(self.o.get("zd", 0))
        e(f"""v_min_u32 v4, 8, v{vL}
        v_lshlrev_b32 v4, 7, v4
        s_and_b32 s{sA}, s{sRB}, 7
        s_lshl_b32 s{sA}, s{sA}, 2
        s_add_u32 s{sA}, s{sA}, s{sW}
        s_mul_i32 s{sWSL}, s{sA}, {9*128}
        s_mul_i32 s{sC}, s{sCB}, {32*18432}
        s_add_u32 s{sWSL}, s{sWSL}, s{sC}
        s_add_u32 s{sWSL}, s{sWSL}, {WS_Z2 + ZD*18432}
        s_min_u32 s{sC}, s{sCB}, 4
        s_mul_i32 s{sC}, s{sC}, {8*27*1024}
        s_mul_i32 s{sA}, s{sA}, {54*128}
        s_add_u32 s{sW0}, s{sC}, s{sA}
        s_add_u32 s{sW0}, s{sW0}, {WS_WOT}
        v_min_u32 v7, 53, v{vL}
        v_lshlrev_b32 v7, 7, v7""")
        def ztouch():
            if ZD:
                Lz = self.a.newlab("Lzt")
                e(f"""s_cmp_le_u32 s{sCNT}, {(ZD-2)//2}
                s_cbranch_scc1 {Lz}
                buffer_load_dword v5, v4, {srd(SRD_WS)}, s{sWSL} offen sc1
                s_add_u32 s{sWSL}, s{sWSL}, {2*18432}""")
                self.a.lab(Lz)
            Lw = self.a.newlab("Lwt")
            e(f"s_cmp_lg_u32 s{sCNT}, 6\ns_cbranch_scc1 {Lw}\nbuffer_load_dword v5, v7, {srd(SRD_WS)}, s{sW0} offen sc1")
            self.a.lab(Lw)
        tail = self.compute_loop(32, True, self.p2_reads, self.p2_addr, "p2", mid=ztouch, peel="s_waitcnt vmcnt(0)")
        e("s_barrier")
        for m in tail: e(m)
        self.stamp(4)
        HQ = 40
        e(f"""v_lshlrev_b32 v{T+8}, 4, v{vL}
        v_lshlrev_b32 v{T+9}, 3, v{vL}
        s_mul_i32 s{sA}, s{sRB}, 6
        s_add_u32 s{sA}, s{sA}, s{sCB}
        s_mul_i32 s{sA}, s{sA}, 18432
        s_mul_i32 s{sC}, s{sMH}, 9216
        s_mul_i32 s{sD}, s{sNH}, 5120
        s_add_u32 s{sC}, s{sC}, s{sD}
        s_add_u32 s{sA}, s{sA}, s{sC}
        s_add_u32 s{sA}, s{sA}, {WS_H}
        s_add_u32 s{sC}, s{sC}, {HB}
        v_add_u32 v{T+10}, s{sC}, v{T+8}
        v_add_u32 v{T+11}, s{sC}, v{T+9}
        s_add_u32 s{sC}, s{sA}, 4096""")
        Ls = self.a.newlab("Lh4")
        tc = [0]
        def hval(j, a, h, d):
            r = ACC + 4*(2*j + a) + 2*h; z = Z1 + 4*(2*j + a) + 2*h; b = 34 + 2*a
            return [f"v_pk_add_f32 v[{r}:{r+1}], v[{r}:{r+1}], v[{b}:{b+1}]",
            f"v_pk_mul_f32 v[{r}:{r+1}], v[{r}:{r+1}], v[{z}:{z+1}]",
            f"v_cvt_pk_bf16_f32 v{d}, v{r}, v{r+1}"]
        for p in range(2):
            for a in range(2):
                q = HQ + 4*(2*p + a)
                self.rr([hval(2*p + jj, a, h, q + 2*jj + h) for jj in range(2) for h in range(2)])
                e(f"buffer_store_dwordx4 v[{q}:{q+3}], v{T+8}, {srd(SRD_WS)}, s{sA} offen offset:{1024*(2*p+a)} sc1")
                e(f"ds_write_b128 v{T+10}, v[{q}:{q+3}] offset:{1024*(2*p+a)}")
        e(f"s_cmp_eq_u32 s{sNH}, 1\ns_cbranch_scc1 {Ls}")
        self.rr([hval(4, a, h, HQ + 16 + 2*a + h) for a in range(2) for h in range(2)])
        for a in range(2):
            q = HQ + 16 + 2*a
            e(f"buffer_store_dwordx2 v[{q}:{q+1}], v{T+9}, {srd(SRD_WS)}, s{sC} offen offset:{512*a} sc1")
            e(f"ds_write_b64 v{T+11}, v[{q}:{q+1}] offset:{4096 + 512*a}")
        self.a.lab(Ls)
        e(f"s_lshl_b32 s{sB}, s{sW}, 12\ns_mov_b32 s{sD}, s{sMASK}\ns_waitcnt vmcnt(0)")
        self.flag_store(85, T)
        if self.o.get("selft", "1") == "1":
            e(f"""s_lshl_b32 s{sT}, s{sNH}, 3
            s_sub_u32 s{sT}, 39, s{sT}
            v_min_u32 v{T+4}, s{sT}, v{vL}
            v_lshlrev_b32 v{T+4}, 7, v{T+4}
            buffer_load_dword v{T+5}, v{T+4}, {srd(SRD_WS)}, s{sA} offen sc1""")
        e("s_waitcnt lgkmcnt(0)\ns_barrier")
        self.stamp(5)
        e(f"s_add_u32 m0, s{sB}, {XB}\ns_nop 0")
        for i in range(4):
            e(f"buffer_load_dwordx4 v{T+12+i}, {srd(SRD_X)}, s91 offen offset:{1024*i} lds")
        self.poll(6, "0", T+3)
        self.stamp(6)
        def hblk(j):
            Lk = self.a.newlab("Lhk")
            e(f"s_add_u32 m0, s93, {18432*j}\ns_add_u32 s{sT}, s94, s{self.sBO+j}")
            for i in range(4):
                e(f"buffer_load_dwordx4 v{T+8}, {srd(SRD_WS)}, s{sT} offen offset:{1024*i} sc1 lds")
            e(f"""s_cmp_eq_u32 s{sNH}, 1
            s_cbranch_scc1 {Lk}
            s_add_u32 m0, m0, 4096
            s_add_u32 s{sT}, s{sT}, 4096
            buffer_load_dwordx4 v{T+8}, {srd(SRD_WS)}, s{sT} offen sc1 lds""")
            self.a.lab(Lk)
        hblk(1); hblk(2)
        e(f"s_cmp_eq_u32 s{sCB}, 5\ns_cbranch_scc1 L_end")
        hblk(3)
        e("s_waitcnt vmcnt(8)\ns_barrier")
        hblk(4); hblk(5)
        e(f"s_add_u32 m0, s{sB}, {YAB}\ns_nop 0")
        for i in range(4):
            e(f"buffer_load_dwordx4 v{T+8}, {srd(SRD_WS)}, s{sD} offen offset:{1024*i} sc1 lds")
        for n in (16, 12, 8, 0):
            e(f"s_waitcnt vmcnt({n})\ns_barrier")
        self.stamp(7)
        e("s_branch L_end")

    def build(self):
        from ssm import ssm_path
        self.entry()
        self.gemm_prologue()
        self.x_path()
        self.y_path()
        self.a.lab("L_ssm")
        if self.o.get("nossm"):
            self.e("s_branch L_end")
        else:
            ssm_path(self)
        self.a.lab("L_end")
        if self.o.get("stamps"):
            self.e(f"""s_mov_b64 exec, -1
            s_waitcnt vmcnt(0)
            s_memrealtime s[{sTM}:{sTM+1}]
            s_waitcnt lgkmcnt(0)
            v_writelane_b32 v0, s100, 62
            v_writelane_b32 v0, s{sTM}, 63
            s_lshl_b32 s{sTM}, s2, 3
            s_add_u32 s{sTM}, s{sTM}, s{sWAVE}
            s_lshl_b32 s{sTM}, s{sTM}, 8
            s_add_u32 s{sTM}, s{sTM}, {WS_DBG}
            v_lshlrev_b32 v2, 2, v1
            buffer_store_dword v0, v2, {srd(SRD_WS)}, s{sTM} offen""")
        self.e("s_endpgm")
        self.a.lab("L_exit")
        self.e("s_endpgm")
        body = self.a.finalize()
        if self.o.get("align", "1") == "1":
            from asmlib import align_pass
            body = align_pass(body, KNAME, extra="L_gtab:\nL_tabend:\n")
        hdr = open("parallel_sum__ssm_conv_s4d__mixer_gmlp__prompt.s.ref").read().split("; Override launch")[0]
        s = hdr + "; @launch grid=(256,1,1) block=(512,1,1) lds=163840\n"
        s += f'.amdgcn_target "amdgcn-amd-amdhsa--gfx950"\n.text\n.globl {KNAME}\n.p2align 8\n.type {KNAME},@function\n{KNAME}:\n'
        s += body
        from ssm import gtab
        t = gtab()
        s += ".p2align 8\n.type L_gtab,@object\nL_gtab:\n"
        for i in range(0, len(t), 16): s += ".long " + ", ".join(str(v) for v in t[i:i+16]) + "\n"
        s += "L_tabend:\n"
        s += f""".section .rodata,"a"
.p2align 6
.amdhsa_kernel {KNAME}
  .amdhsa_next_free_vgpr 256
  .amdhsa_next_free_sgpr 102
  .amdhsa_accum_offset 256
  .amdhsa_group_segment_fixed_size 0
  .amdhsa_kernarg_size 120
  .amdhsa_user_sgpr_count 2
  .amdhsa_user_sgpr_kernarg_segment_ptr 1
  .amdhsa_system_sgpr_workgroup_id_x 1
.end_amdhsa_kernel
"""
        return s

if __name__ == "__main__":
    opts = {}
    out = "parallel_sum__ssm_conv_s4d__mixer_gmlp__prompt.s"
    for a in sys.argv[1:]:
        if a.startswith("-o"): out = a[2:]
        elif "=" in a:
            k, v = a.split("="); opts[k] = v
        else: opts[a] = True
    open(out, "w").write(G(opts).build())
```

```python
import math
from gen import *

SLOT = 17600; KCP = 4576; UOFF = 9152; UCP = 4224
TB = 8*SLOT; TSZ = 1568; ZI = 768
SRD_LAR, SRD_AIM, SRD_CR, SRD_CI, SRD_LDT, SRD_DSK = 8, 12, 16, 20, 24, 32
sCH, sSLOT, sTBL, sRND, sD0 = 66, 67, 68, 69, 70
sWJ, sKS, sLN = 71, 72, 73
sNIT, sMO, sPF, sPK, sPN, sWP = 75, 76, 77, 83, 84, 85
sC2, sUF, sF1, sF2 = 91, 93, 94, 95
SRD_WO, SRD_PF, SRD_WI = 36, 52, 40
LOG2E = 1.4426950408889634

def ssm_path(g):
    e = g.e; a = g.a
    vL = 1
    T = 12; vZ = 10
    GA = 220
    e(f"""s_load_dwordx16 s[36:51], s[0:1], 0
    s_load_dwordx8 s[52:59], s[0:1], 64
    s_getpc_b64 s[62:63]
    L_pc0:
    s_sub_u32 s62, s62, L_pc0-{KNAME}
    s_subb_u32 s63, s63, 0
    v_and_b32 v{vL}, 63, v0
    s_sub_u32 s{sB}, s{sB}, 24
    s_lshl_b32 s{sB}, s{sB}, 3
    s_add_u32 s{sRB}, s{sB}, s{sA}
    s_mul_i32 s{sD0}, s{sRB}, 10
    s_add_u32 s{sCH}, s{sD0}, s{sWAVE}
    v_mov_b32 v{vZ}, 0""")
    if g.o.get("pfc", "1") == "1":
        e(f"""v_min_u32 v2, 5, v{vL}
        s_add_u32 s{sC}, s{sB}, s{sWAVE}
        s_mul_i32 s{sC}, s{sC}, 6
        v_add_u32 v2, s{sC}, v2
        v_lshlrev_b32 v2, 7, v2
        v_min_u32 v2, L_tabend-4-{KNAME}, v2
        global_load_dword v219, v2, s[62:63]""")
    e("s_waitcnt lgkmcnt(0)")
    g.mk_srd(SRD_LAR, 38, 640*128*2); g.mk_srd(SRD_AIM, 40, 640*128*2)
    g.mk_srd(SRD_CR, 42, 640*128*2); g.mk_srd(SRD_CI, 44, 640*128*2)
    g.mk_srd(SRD_LDT, 46, 640*2)
    def param_loads():
        e(f"""v_lshlrev_b32 v{T}, 2, v{vL}
        s_lshl_b32 s{sA}, s{sCH}, 8
        s_lshl_b32 s{sB}, s{sCH}, 1
        buffer_load_dword v{T+4}, v{T}, {srd(SRD_LAR)}, s{sA} offen
        buffer_load_dword v{T+5}, v{T}, {srd(SRD_AIM)}, s{sA} offen
        buffer_load_dword v{T+6}, v{T}, {srd(SRD_CR)}, s{sA} offen
        buffer_load_dword v{T+7}, v{T}, {srd(SRD_CI)}, s{sA} offen
        buffer_load_ushort v{T+8}, v{vZ}, {srd(SRD_LDT)}, s{sB} offen""")
    param_loads()
    g.mk_srd(SRD_WI, 52, 640*1728*2)
    e(f"s_load_dword s{sTAG}, s[64:65], {WS_EPOCH}")
    g.mk_srd(SRD_WS, 64, WS_SIZE)
    g.mk_srd(SRD_DSK, 48, 640*2)
    e(f"""s_mul_i32 s{sSLOT}, s{sWAVE}, {SLOT}
    s_mov_b32 s{sRND}, 0""")
    if g.o.get("kprio", "1") == "1":
        e(f"s_cmp_lt_u32 s{sWAVE}, 6\ns_cbranch_scc1 L_noprio\ns_setprio 3\nL_noprio:")
    vG, vJ = 2, 3
    vSW, vSR = 4, 5
    vT0, vT1a, vT1b, vT2 = 6, 7, 8, 9
    e(f"""v_lshrrev_b32 v{vG}, 4, v{vL}
    v_and_b32 v{vJ}, 15, v{vL}
    v_lshlrev_b32 v{vSW}, 3, v{vL}
    v_add_u32 v{vSW}, s{sSLOT}, v{vSW}
    v_mul_u32_u24 v{vSR}, 528, v{vJ}
    v_lshl_add_u32 v{vSR}, v{vG}, 4, v{vSR}
    v_add_u32 v{vSR}, s{sSLOT}, v{vSR}
    v_lshrrev_b32 v{T}, 1, v{vG}
    v_lshlrev_b32 v{T}, 7, v{T}
    v_lshl_add_u32 v{T}, v{vJ}, 3, v{T}
    v_and_b32 v{T+1}, 1, v{vG}
    v_lshl_add_u32 v{T}, v{T+1}, 2, v{T}
    v_lshlrev_b32 v{vT0}, 1, v{T}
    v_lshlrev_b32 v{T}, 6, v{vG}
    v_lshl_add_u32 v{T+1}, v{vJ}, 2, v{T}
    v_add_u32 v{T+1}, 256, v{T+1}
    v_lshl_add_u32 v{T+2}, v{vJ}, 1, v{T}
    v_add_u32 v{T+2}, 256, v{T+2}
    v_cmp_gt_u32 vcc, 2, v{vG}
    v_cndmask_b32 v{vT1a}, v{T+2}, v{T+1}, vcc
    v_mov_b32 v{T+3}, 32
    v_cndmask_b32 v{T+3}, v{T+3}, 2, vcc
    v_add_u32 v{vT1b}, v{vT1a}, v{T+3}
    v_lshlrev_b32 v{vT1a}, 1, v{vT1a}
    v_lshlrev_b32 v{vT1b}, 1, v{vT1b}
    v_add_u32 v{T}, v{T}, v{vJ}
    v_add_u32 v{T}, 512, v{T}
    v_lshlrev_b32 v{vT2}, 1, v{T}""")
    g.mk_srd(SRD_WO, 58, 864*640*2)
    g.mk_srd(SRD_PF, 54, 2048*2048*2)
    e(f"""s_mov_b32 s{sWJ}, 0
    s_cmp_ge_u32 s{sRB}, 54
    s_cbranch_scc1 L_wj_skip
    s_cmp_ge_u32 s{sWAVE}, 5
    s_cbranch_scc1 L_wj_skip
    s_mov_b32 s{sWJ}, 1
    s_lshr_b32 s{sKS}, s{sRB}, 1
    s_and_b32 s{sLN}, s{sRB}, 1
    s_mul_i32 s{sLN}, s{sLN}, 5
    s_add_u32 s{sLN}, s{sLN}, s{sWAVE}
    s_lshr_b32 s{sA}, s{sKS}, 2
    s_and_b32 s{sB}, s{sKS}, 3
    s_mul_i32 s{sA}, s{sA}, 9
    s_lshl_b32 s{sC}, s{sB}, 1
    s_add_u32 s{sA}, s{sA}, s{sC}
    s_lshr_b32 s{sC}, s{sB}, 1
    s_add_u32 s{sA}, s{sA}, s{sC}
    s_add_u32 s{sB}, s{sA}, 1
    s_sub_u32 s{sC}, s{sKS}, 24
    s_mul_i32 s{sC}, s{sC}, 18
    s_add_u32 s{sC}, s{sC}, 4
    s_add_u32 s{sD}, s{sC}, 9
    s_cmp_ge_u32 s{sKS}, 24
    s_cselect_b32 s{sA}, s{sC}, s{sA}
    s_cselect_b32 s{sB}, s{sD}, s{sB}
    s_mul_i32 s{sA}, s{sA}, {16*1280}
    s_mul_i32 s{sB}, s{sB}, {16*1280}
    s_lshl_b32 s{sC}, s{sLN}, 7
    s_add_u32 s{sA}, s{sA}, s{sC}
    s_add_u32 s{sB}, s{sB}, s{sC}
    v_lshrrev_b32 v{T}, 3, v{vL}
    v_mul_u32_u24 v{T}, 1280, v{T}
    v_and_b32 v{T+1}, 7, v{vL}
    v_lshl_add_u32 v{T}, v{T+1}, 4, v{T}
    s_add_u32 m0, s{sSLOT}, {UOFF + 128}
    s_add_u32 s{sC}, s{sA}, {8*1280}
    buffer_load_dwordx4 v{T}, {srd(SRD_WO)}, s{sA} offen lds
    s_add_u32 m0, m0, 1024
    s_add_u32 s{sD}, s{sB}, {8*1280}
    buffer_load_dwordx4 v{T}, {srd(SRD_WO)}, s{sC} offen lds
    s_add_u32 m0, m0, 1024
    s_nop 0
    buffer_load_dwordx4 v{T}, {srd(SRD_WO)}, s{sB} offen lds
    s_add_u32 m0, m0, 1024
    s_nop 0
    buffer_load_dwordx4 v{T}, {srd(SRD_WO)}, s{sD} offen lds""")
    a.lab("L_wj_skip")
    e(f"v_lshlrev_b32 v{T}, 4, v{vL}\nv_add_u32 v{T}, L_gtab-{KNAME}, v{T}")
    for i in range(9):
        if i == 4: e(f"v_add_u32 v{T}, 4096, v{T}")
        if i == 8: e(f"v_add_u32 v{T}, 4096, v{T}")
        e(f"global_load_dwordx4 v[{GA+4*i}:{GA+4*i+3}], v{T}, s[62:63] offset:{1024*(i%4)}")
    PFM = g.o.get("pfw", "1")
    npf = 0
    if PFM == "1":
        npf = 1
        e(f"""v_min_u32 v218, 33, v{vL}
        v_lshlrev_b32 v218, 7, v218
        s_lshl_b32 s{sA}, s{sRB}, 3
        s_add_u32 s{sA}, s{sA}, s{sWAVE}
        s_mul_i32 s{sA}, s{sA}, {34*128}
        buffer_load_dword v219, v218, {srd(SRD_WI)}, s{sA} offen""")
    if PFM == "2":
        npf = 1
        e(f"""v_lshrrev_b32 v218, 3, v{vL}
        v_mul_u32_u24 v218, 3456, v218
        v_and_b32 v219, 7, v{vL}
        v_lshl_add_u32 v218, v219, 7, v218
        s_lshr_b32 s{sA}, s{sRB}, 3
        s_lshl_b32 s{sA}, s{sA}, 3
        s_add_u32 s{sA}, s{sA}, s{sWAVE}
        s_and_b32 s{sC}, s2, 1
        s_mul_i32 s{sWP}, s{sA}, {8*3456}
        s_mul_i32 s{sD}, s{sC}, 896
        s_add_u32 s{sD}, s{sD}, 1664
        s_add_u32 s{sD}, s{sD}, s{sWP}
        buffer_load_dword v219, v218, {srd(SRD_WI)}, s{sD} offen
        s_add_u32 s{sPK}, s{sD}, {64*8*3456}
        s_mul_i32 s{sC}, s{sC}, 768
        s_add_u32 s{sWP}, s{sWP}, s{sC}""")
    g.stamp(0)
    PFW = False
    e(f"""v_and_b32 v216, 3, v{vL}
    v_lshlrev_b32 v216, 7, v216
    v_bfe_u32 v217, v{vL}, 2, 2
    v_lshl_add_u32 v216, v217, 12, v216
    s_and_b32 s{sA}, s2, 7
    s_lshl_b32 s{sA}, s{sA}, 3
    s_lshr_b32 s{sC}, s{sRB}, 3
    s_add_u32 s{sA}, s{sA}, s{sC}
    s_lshl_b32 s{sA}, s{sA}, 3
    s_add_u32 s{sA}, s{sA}, s{sWAVE}
    s_lshl_b32 s{sPF}, s{sA}, 14
    s_mov_b32 s{sPN}, 8""")
    def pf_touch():
        if g.o.get("nopf"): return
        L = a.newlab("Lpf")
        e(f"""s_cmp_eq_u32 s{sPN}, 0
        s_cbranch_scc1 {L}
        buffer_load_dword v217, v216, {srd(SRD_PF)}, s{sPF} offen
        s_add_u32 s{sPF}, s{sPF}, 512
        s_sub_u32 s{sPN}, s{sPN}, 1""")
        a.lab(L)
    NK = int(g.o.get("pfk", 0))
    kc = [0]
    def pf_k():
        kc[0] += 1
        if PFM == "2" and kc[0] <= 3:
            L = a.newlab("Lpw")
            e(f"s_cmp_lg_u32 s{sRND}, 0\ns_cbranch_scc1 {L}")
            if kc[0] == 1: e(f"buffer_load_dword v219, v215, {srd(SRD_WI)}, s{sPK} offen")
            if kc[0] == 2: e(f"buffer_load_dword v219, v215, {srd(SRD_WI)}, s{sWP} offen\ns_add_u32 s{sWP}, s{sWP}, {64*8*3456}")
            if kc[0] == 3: e(f"buffer_load_dword v219, v215, {srd(SRD_WI)}, s{sWP} offen")
            a.lab(L)
        if kc[0] > 6 - NK: pf_touch()
    vL16 = 11; vFL = 218; vDS = 22
    def xn_addr(sch, sdst):
        e(f"s_lshr_b32 s{sA}, s{sch}, 4\ns_mov_b32 s{sdst}, {WS_FXN}")
        for th in (7, 14, 20, 26, 32):
            e(f"s_cmp_ge_u32 s{sA}, {th}\ns_cselect_b32 s{sT}, 4096, 0\ns_add_u32 s{sdst}, s{sdst}, s{sT}")
    XF = 24
    def xn_load(): e(f"buffer_load_dwordx4 v[{XF}:{XF+3}], v{vFL}, {srd(SRD_WS)}, s{sF1} offen sc1")
    def xn_check():
        e(f"""v_xor_b32 v{XF}, s{sTAG}, v{XF}
        v_xor_b32 v{XF+1}, s{sTAG}, v{XF+1}
        v_xor_b32 v{XF+2}, s{sTAG}, v{XF+2}
        v_xor_b32 v{XF+3}, s{sTAG}, v{XF+3}
        v_or3_b32 v{XF}, v{XF}, v{XF+1}, v{XF+2}
        v_or_b32 v{XF}, v{XF}, v{XF+3}
        v_cmp_ne_u32 vcc, 0, v{XF}""")
    def u_dma(sch):
        e(f"""s_lshl_b32 s{sA}, s{sch}, 12
        s_add_u32 s{sA}, s{sA}, {WS_XNT}
        s_sub_u32 s{sC}, s{sA}, 4
        s_add_u32 m0, s{sSLOT}, {UOFF + UCP + 64}
        s_lshl_b32 s{sD}, s{sch}, 1""")
        for i in range(4): e(f"buffer_load_dwordx4 v{vL16}, {srd(SRD_WS)}, s{sA} offen offset:{1024*i} sc1 lds")
        e(f"s_add_u32 m0, s{sSLOT}, {UOFF + 64}\ns_nop 0")
        for i in range(4): e(f"buffer_load_dwordx4 v{vL16}, {srd(SRD_WS)}, s{sC} offen offset:{1024*i} sc1 lds")
        e(f"buffer_load_ushort v{vDS}, v{vZ}, {srd(SRD_DSK)}, s{sD} offen")
    e(f"""v_lshlrev_b32 v{vL16}, 4, v{vL}
    s_and_b32 s{sC2}, s{sWAVE}, 1
    s_add_u32 s{sC2}, s{sC2}, s{sD0}
    s_add_u32 s{sC2}, s{sC2}, 8
    s_mov_b32 s{sUF}, 0""")
    xn_addr(sCH, sF1); xn_addr(sC2, sF2)
    AR, PH, CRp, CIp = 24, 26, 28, 30
    W = 32
    def C(i): return W + 4*i
    def re(c): return f"v[{c}:{c+1}]"
    def im(c): return f"v[{c+2}:{c+3}]"
    tp = T
    TMP = 176
    def cexp_l(c, p, k):
        lit = hx(f2u(float(p))); tp = TMP + 4*k
        return [f"v_mul_f32 v{tp}, {lit}, v{AR}", f"v_mul_f32 v{tp+1}, {lit}, v{AR+1}",
        f"v_mul_f32 v{tp+2}, {lit}, v{PH}", f"v_mul_f32 v{tp+3}, {lit}, v{PH+1}",
        f"v_exp_f32 v{tp}, v{tp}", f"v_exp_f32 v{tp+1}, v{tp+1}",
        f"v_fract_f32 v{tp+2}, v{tp+2}", f"v_fract_f32 v{tp+3}, v{tp+3}",
        f"v_cos_f32 v{c}, v{tp+2}", f"v_cos_f32 v{c+1}, v{tp+3}",
        f"v_sin_f32 v{c+2}, v{tp+2}", f"v_sin_f32 v{c+3}, v{tp+3}",
        f"v_pk_mul_f32 {re(c)}, {re(c)}, v[{tp}:{tp+1}]", f"v_pk_mul_f32 {im(c)}, {im(c)}, v[{tp}:{tp+1}]"]
    def cmul_l(z, x, y, k):
        tp = TMP + 4*k
        assert z not in (x, y)
        return [f"v_pk_mul_f32 v[{tp}:{tp+1}], {im(x)}, {im(y)}",
        f"v_pk_mul_f32 v[{tp+2}:{tp+3}], {im(x)}, {re(y)}",
        f"v_pk_fma_f32 {re(z)}, {re(x)}, {re(y)}, v[{tp}:{tp+1}] neg_lo:[0,0,1] neg_hi:[0,0,1]",
        f"v_pk_fma_f32 {im(z)}, {re(x)}, {im(y)}, v[{tp+2}:{tp+3}]"]
    def put_l(c, row, neg, k):
        d = 192 + 2*k
        n = "-" if neg else ""
        return [f"v_cvt_pk_f16_f32 v{d}, v{c}, {n}v{c+2}", f"v_cvt_pk_f16_f32 v{d+1}, v{c+1}, {n}v{c+3}",
                f"ds_write_b64 v{vSW}, v[{d}:{d+1}] offset:{528*row}"]
    def batch(jobs):
        for i in range(0, len(jobs), 4):
            g.rr([j(k) for k, j in enumerate(jobs[i:i+4])])
    def J_mul(z, x, y, row=None, neg=False):
        return lambda k: cmul_l(z, x, y, k) + (put_l(z, row, neg, k) if row is not None else [])
    def J_put(c, row, neg): return lambda k: put_l(c, row, neg, k)
    E2F = 112
    E1F = 144
    DD = 12
    vSC = 23
    e(f"s_mul_i32 s{sTBL}, s{sWAVE}, {TSZ}\ns_add_u32 s{sTBL}, s{sTBL}, {TB}")
    e(f"s_waitcnt vmcnt({9+npf}) lgkmcnt(0)")
    if PFW:
        e(f"""v_lshrrev_b32 v218, 3, v{vL}
        v_mul_u32_u24 v218, 3456, v218
        v_and_b32 v219, 7, v{vL}
        v_lshl_add_u32 v218, v219, 7, v218
        s_lshr_b32 s{sA}, s{sRB}, 3
        s_lshl_b32 s{sA}, s{sA}, 3
        s_add_u32 s{sA}, s{sA}, s{sWAVE}
        s_and_b32 s{sC}, s2, 1
        s_mul_i32 s{sC}, s{sC}, 768
        s_mul_i32 s{sWP}, s{sA}, {8*3456}
        s_add_u32 s{sWP}, s{sWP}, s{sC}""")
    a.lab("L_kgen")
    g.stamp(8)
    e(f"s_mov_b32 s{sB}, 0xffff0000")
    e(f"""s_cmp_lg_u32 s{sRND}, 0
    s_cbranch_scc1 L_r0_skip
    s_mul_i32 s{sTAG}, s{sTAG}, 0x9E3779B1
    s_add_u32 s{sTAG}, s{sTAG}, 0x7F4A7C15
    s_cmp_eq_u32 s{sWJ}, 0
    s_cbranch_scc1 L_wj2_skip
    v_lshrrev_b32 v{E1F+16}, 2, v{vL}
    v_lshlrev_b32 v{E1F+16}, 7, v{E1F+16}
    v_and_b32 v{E1F+17}, 3, v{vL}
    v_lshl_add_u32 v{E1F+16}, v{E1F+17}, 3, v{E1F+16}
    v_add_u32 v{E1F+16}, s{sSLOT}, v{E1F+16}
    v_lshlrev_b32 v{E1F+17}, 4, v{vL}""")
    for df in range(4):
        for hf in range(2):
            e(f"ds_read_b64_tr_b16 v[{E1F+4*df+2*hf}:{E1F+4*df+2*hf+1}], v{E1F+16} offset:{UOFF + 128 + hf*2048 + df*32}")
    e(f"""s_lshl_b32 s{sA}, s{sLN}, 2
    s_mul_i32 s{sA}, s{sA}, {27*1024}
    s_lshl_b32 s{sC}, s{sKS}, 10
    s_add_u32 s{sA}, s{sA}, s{sC}
    s_add_u32 s{sA}, s{sA}, {WS_WOT}
    s_waitcnt lgkmcnt(0)""")
    for df in range(4):
        e(f"buffer_store_dwordx4 v[{E1F+4*df}:{E1F+4*df+3}], v{E1F+17}, {srd(SRD_WS)}, s{sA} offen sc1\ns_add_u32 s{sA}, s{sA}, {27*1024}")
    a.lab("L_wj2_skip")
    if PFW:
        e(f"""buffer_load_dword v219, v218, {srd(SRD_WI)}, s{sWP} offen
        s_add_u32 s{sWP}, s{sWP}, {64*8*3456}
        buffer_load_dword v219, v218, {srd(SRD_WI)}, s{sWP} offen""")
    a.lab("L_r0_skip")
    e(f"""v_mov_b32 v215, v218
    s_sub_u32 s{sA}, s{sF2}, s{sF1}
    v_lshrrev_b32 v{vFL}, 5, v{vL}
    v_mul_lo_u32 v{vFL}, v{vFL}, s{sA}
    v_and_b32 v214, 31, v{vL}
    v_lshl_add_u32 v{vFL}, v214, 7, v{vFL}""")
    g.stamp(9)
    e(f"""v_lshlrev_b32 v{T+8}, 16, v{T+8}
    v_mul_f32 v{T+8}, {hx(f2u(LOG2E))}, v{T+8}
    v_exp_f32 v{T+8}, v{T+8}
    v_lshlrev_b32 v{AR}, 16, v{T+4}
    v_and_b32 v{AR+1}, s{sB}, v{T+4}
    v_cvt_pk_bf16_f32 v{T+8}, v{T+8}, v{T+8}
    v_mul_f32 v{AR}, {hx(f2u(LOG2E))}, v{AR}
    v_mul_f32 v{AR+1}, {hx(f2u(LOG2E))}, v{AR+1}
    v_lshlrev_b32 v{T+8}, 16, v{T+8}
    v_exp_f32 v{AR}, v{AR}
    v_exp_f32 v{AR+1}, v{AR+1}
    v_lshlrev_b32 v{PH}, 16, v{T+5}
    v_and_b32 v{PH+1}, s{sB}, v{T+5}
    v_cvt_pk_bf16_f32 v{T+4}, v{AR}, v{AR+1}
    v_lshlrev_b32 v{AR}, 16, v{T+4}
    v_and_b32 v{AR+1}, s{sB}, v{T+4}
    v_mul_f32 v{AR}, v{AR}, v{T+8}
    v_mul_f32 v{AR+1}, v{AR+1}, v{T+8}
    v_mul_f32 v{AR}, {hx(f2u(-LOG2E))}, v{AR}
    v_mul_f32 v{AR+1}, {hx(f2u(-LOG2E))}, v{AR+1}
    v_mul_f32 v{PH}, v{PH}, v{T+8}
    v_mul_f32 v{PH+1}, v{PH+1}, v{T+8}
    v_mul_f32 v{PH}, {hx(f2u(1/(2*math.pi)))}, v{PH}
    v_mul_f32 v{PH+1}, {hx(f2u(1/(2*math.pi)))}, v{PH+1}
    v_lshlrev_b32 v{CRp}, 16, v{T+6}
    v_and_b32 v{CRp+1}, s{sB}, v{T+6}
    v_lshlrev_b32 v{CIp}, 16, v{T+7}
    v_and_b32 v{CIp+1}, s{sB}, v{T+7}
    v_max3_f32 v{T}, abs(v{CRp}), abs(v{CRp+1}), abs(v{CIp})
    v_max_f32 v{T}, abs(v{CIp+1}), v{T}""")
    for m in ("row_ror:8", "row_ror:4", "row_ror:2", "row_ror:1"):
        e(f"v_max_f32_dpp v{T}, v{T}, v{T} {m} row_mask:0xf bank_mask:0xf")
    e(f"""v_readlane_b32 s{sA}, v{T}, 0
    v_readlane_b32 s{sC}, v{T}, 16
    v_readlane_b32 s{sD}, v{T}, 32
    v_readlane_b32 s{sT}, v{T}, 48
    s_max_u32 s{sA}, s{sA}, s{sC}
    s_max_u32 s{sD}, s{sD}, s{sT}
    s_max_u32 s{sA}, s{sA}, s{sD}
    v_frexp_exp_i32_f32 v{T}, s{sA}
    v_sub_u32 v{T+1}, 0, v{T}
    v_ldexp_f32 v{C(0)}, v{CRp}, v{T+1}
    v_ldexp_f32 v{C(0)+1}, v{CRp+1}, v{T+1}
    v_ldexp_f32 v{C(0)+2}, v{CIp}, v{T+1}
    v_ldexp_f32 v{C(0)+3}, v{CIp+1}, v{T+1}
    v_add_f32 v{vSC}, v{T+8}, v{T+8}
    v_ldexp_f32 v{vSC}, v{vSC}, v{T}""")
    e(f"""s_cmp_lg_u32 s{sRND}, 0
    s_cbranch_scc1 L_np2
    s_cmp_lt_u32 s{sWAVE}, 6
    s_cbranch_scc1 L_np2
    s_add_u32 s{sCH}, s{sCH}, 2""")
    param_loads()
    e(f"s_mov_b32 s{sB}, 0xffff0000")
    a.lab("L_np2")
    Tq = lambda q: C(q)
    P = lambda j: C(8 + j - 1)
    V = {1: C(16), 2: C(17), 4: C(18), 8: C(19)}
    SO = lambda k: E1F + 4*k
    pf_k()
    g.rr([cexp_l(P(1), 8, 0), cexp_l(V[1], 128, 1)])
    e(f"v_mov_b32 v{SO(0)}, 1.0\nv_mov_b32 v{SO(0)+1}, 1.0\nv_mov_b32 v{SO(0)+2}, 0\nv_mov_b32 v{SO(0)+3}, 0")
    batch([J_mul(P(2), P(1), P(1), 2, True), J_mul(V[2], V[1], V[1]), J_mul(Tq(1), Tq(0), V[1]), J_put(SO(0), 0, True)])
    batch([J_mul(P(4), P(2), P(2), 4, True), J_mul(P(3), P(2), P(1), 3, True), J_mul(V[4], V[2], V[2]), J_put(P(1), 1, True)])
    pf_k()
    batch([J_mul(P(8), P(4), P(4), 8, True), J_mul(P(5), P(4), P(1), 5, True), J_mul(P(6), P(4), P(2), 6, True), J_mul(P(7), P(4), P(3), 7, True)])
    batch([J_mul(SO(k % 4), P(8), P(k + 1), 9 + k, True) for k in range(7)] + [J_mul(V[8], V[4], V[4])])
    for ks in range(8):
        e(f"ds_read_b128 v[{E2F+4*ks}:{E2F+4*ks+3}], v{vSR} offset:{64*ks}")
    pf_k()
    g.stamp(10)
    R = P
    g.rr([cexp_l(R(1), 1, 0), cmul_l(Tq(2), Tq(0), V[2], 1) + cmul_l(Tq(4), Tq(0), V[4], 1) + cmul_l(Tq(5), Tq(1), V[4], 1),
          cmul_l(Tq(3), Tq(1), V[2], 2) + put_l(Tq(0), 0, False, 2) + put_l(Tq(1), 8, False, 2)])
    batch([J_mul(R(2), R(1), R(1)), J_mul(Tq(6), Tq(2), V[4]), J_mul(Tq(7), Tq(3), V[4]), J_mul(SO(0), Tq(0), R(1), 1)])
    batch([J_mul(R(4), R(2), R(2)), J_mul(R(3), R(2), R(1)), J_mul(SO(1), Tq(1), R(1), 9), J_mul(SO(2), Tq(0), R(2), 2)])
    pf_k()
    batch([J_mul(R(5), R(4), R(1)), J_mul(R(6), R(4), R(2)), J_mul(R(7), R(4), R(3)), J_mul(SO(3), Tq(1), R(2), 10)])
    batch([J_mul(SO(k % 4), Tq(k & 1), R(3 + (k >> 1)), 8*(k & 1) + 3 + (k >> 1)) for k in range(10)])
    def tile_rd():
        for ks in range(8):
            e(f"ds_read_b128 v[{E1F+4*ks}:{E1F+4*ks+3}], v{vSR} offset:{64*ks}")
    def tile_mma(nafter):
        for ks in range(8):
            e(f"s_waitcnt lgkmcnt({7-ks})")
            e(f"v_mfma_f32_16x16x32_f16 v[{DD}:{DD+3}], v[{E1F+4*ks}:{E1F+4*ks+3}], v[{E2F+4*ks}:{E2F+4*ks+3}], {'0' if ks == 0 else f'v[{DD}:{DD+3}]'}")
    def tile_fin():
        for r in range(4): e(f"v_mul_f32 v{DD+r}, v{DD+r}, v{vSC}")
        e(f"v_cvt_pk_bf16_f32 v{DD}, v{DD}, v{DD+1}\nv_cvt_pk_bf16_f32 v{DD+1}, v{DD+2}, v{DD+3}")
    def taddr(v, d): e(f"v_add_u32 v{d}, s{sTBL}, v{v}")
    SO2 = lambda k: 200 + 4*k
    tile_rd(); tile_mma(0); pf_k()
    g.stamp(11)
    jobs = []
    for q in range(2):
        jobs.append(J_put(Tq(2 + q), 4*q, False))
        for r in range(1, 4): jobs.append(J_mul(SO2(len(jobs) % 4), Tq(2 + q), R(2*r), 4*q + r))
    for q in range(4):
        jobs.append(J_put(Tq(4 + q), 8 + 2*q, False))
        jobs.append(J_mul(SO2(len(jobs) % 4), Tq(4 + q), R(4), 8 + 2*q + 1))
    batch(jobs[:4])
    tile_fin(); taddr(vT0, DD+2)
    e(f"ds_write_b64 v{DD+2}, v[{DD}:{DD+1}]")
    pf_k()
    batch(jobs[4:])
    tile_rd(); tile_mma(0)
    xn_load()
    jobs = [J_mul(R(1), Tq(0), V[8], 0)] + [J_mul(SO2(q % 4), Tq(q), V[8], q) for q in range(1, 8)]
    batch(jobs[:4])
    tile_fin(); taddr(vT1a, DD+2); taddr(vT1b, DD+3)
    e(f"ds_write_b32 v{DD+2}, v{DD}\nds_write_b32 v{DD+3}, v{DD+1}")
    batch(jobs[4:])
    batch([J_mul(SO2(0), R(1), V[8], 8)])
    tile_rd(); tile_mma(0)
    g.stamp(12)
    e(f"""s_waitcnt vmcnt(0)
    s_cmp_lg_u32 s{sUF}, 0
    s_cbranch_scc1 L_uf_skip""")
    xn_check()
    e(f"""s_cbranch_vccnz L_uf_skip
    s_mov_b32 s{sUF}, 1
    s_add_u32 s{sT2}, s{sD0}, s{sWAVE}""")
    u_dma(sT2)
    a.lab("L_uf_skip")
    e(f"""s_cmp_lg_u32 s{sRND}, 0
    s_cbranch_scc1 L_wj3_skip
    s_cmp_eq_u32 s{sWJ}, 0
    s_cbranch_scc1 L_wj3_skip
    s_lshl_b32 s{sA}, s{sLN}, 5
    s_add_u32 s{sA}, s{sA}, s{sKS}
    s_lshl_b32 s{sA}, s{sA}, {FS}
    s_add_u32 s{sA}, s{sA}, {WS_FWO}""")
    g.flag_store(sA, 28)
    a.lab("L_wj3_skip")
    tile_fin(); taddr(vT2, DD+2)
    e(f"""ds_write_b16 v{DD+2}, v{DD}
    ds_write_b16_d16_hi v{DD+2}, v{DD} offset:32
    ds_write_b16 v{DD+2}, v{DD+1} offset:64
    ds_write_b16_d16_hi v{DD+2}, v{DD+1} offset:96
    v_mov_b32 v{DD+3}, s{sTBL}
    ds_write_b32 v{DD+3}, v{vZ} offset:{2*ZI}""")
    e(f"""s_cmp_lg_u32 s{sRND}, 0
    s_cbranch_scc1 L_kgen_done
    s_cmp_lt_u32 s{sWAVE}, 6
    s_cbranch_scc1 L_kgen_done
    s_mov_b32 s{sRND}, 1
    s_add_u32 s{sTBL}, s{sTBL}, {2*TSZ}
    s_branch L_kgen""")
    a.lab("L_kgen_done")
    g.stamp(1)
    vKA, vUB, vKW, vZW, vEU, vES, vYO = 60, 61, 62, 63, 65, 66, 67
    vKAc, vUBc = 69, 70
    vDP = 172
    e(f"s_add_u32 s{sCH}, s{sD0}, s{sWAVE}")
    e(f"""v_and_b32 v{T}, 1, v{vJ}
    v_mul_u32_u24 v{vKA}, {KCP}, v{T}
    v_lshrrev_b32 v{T+1}, 1, v{vJ}
    v_lshlrev_b32 v{T+1}, 6, v{T+1}
    v_lshl_add_u32 v{T+1}, v{vG}, 4, v{T+1}
    v_sub_u32 v{vKA}, v{vKA}, v{T+1}
    v_add_u32 v{vKA}, {4528 - 3584}, v{vKA}
    v_add_u32 v{vKA}, s{sSLOT}, v{vKA}
    v_mul_u32_u24 v{vUB}, {UCP}, v{T}
    v_or_b32 v{T+1}, 1, v{vJ}
    v_lshl_add_u32 v{vUB}, v{T+1}, 2, v{vUB}
    v_lshlrev_b32 v{T+1}, 4, v{vG}
    v_sub_u32 v{vUB}, v{vUB}, v{T+1}
    v_add_u32 v{vUB}, {UOFF + 52 + 448}, v{vUB}
    v_add_u32 v{vUB}, s{sSLOT}, v{vUB}
    v_add_u32 v{vKW}, s{sSLOT}, v{vL16}
    v_and_b32 v{T}, 31, v{vL}
    v_min_u32 v{T}, 29, v{T}
    v_lshlrev_b32 v{T}, 4, v{T}
    v_lshrrev_b32 v{T+1}, 5, v{vL}
    v_mul_u32_u24 v{T+1}, {KCP}, v{T+1}
    v_add3_u32 v{vZW}, v{T}, v{T+1}, s{sSLOT}
    v_lshlrev_b32 v{vES}, 7, v{vG}
    v_lshl_add_u32 v{vES}, v{vJ}, 2, v{vES}
    v_add_u32 v{vES}, s{sSLOT}, v{vES}
    v_add_u32 v{vEU}, {UOFF + UCP + 64}, v{vES}
    v_lshrrev_b32 v{T}, 3, v{vL}
    s_mov_b32 s{sA}, {640*128}
    v_mul_lo_u32 v{vYO}, v{T}, s{sA}
    v_and_b32 v{T}, 7, v{vL}
    v_lshl_add_u32 v{vYO}, v{T}, 4, v{vYO}""")
    ZQ = 72
    for i in range(4): e(f"v_mov_b32 v{ZQ+i}, 0")
    e(f"""v_and_b32 v{T}, 3, v{vL}
    v_lshlrev_b32 v{T}, 4, v{T}
    v_bfe_u32 v{T+1}, v{vL}, 2, 1
    v_mul_u32_u24 v{T+1}, {UCP}, v{T+1}
    v_add3_u32 v{T}, v{T}, v{T+1}, s{sSLOT}
    ds_write_b128 v{T}, v[{ZQ}:{ZQ+3}] offset:{UOFF}
    s_mov_b32 s{sRND}, 0
    s_mov_b32 s{sNIT}, 8
    s_mov_b32 s{sMO}, 0
    s_add_u32 s{sCH}, s{sD0}, s{sWAVE}
    s_mul_i32 s{sTBL}, s{sWAVE}, {TSZ}
    s_add_u32 s{sTBL}, s{sTBL}, {TB}""")
    for i in range(36): e(f"v_add_u32 v{GA+i}, s{sTBL}, v{GA+i}")
    e("s_setprio 0")
    g.stamp(2)
    AF = 76
    BF = 108
    AC = 140
    GV = 76
    OQ = 112
    a.lab("L_conv")
    for m in range(4):
        for ee in range(9):
            e(f"ds_read_u16 v{GV+9*m+ee}, v{GA+9*m+ee}")
        if m % 2 == 1 or True:
            e("s_waitcnt lgkmcnt(0)")
            q = OQ + 8*(m & 1)
            b = GV + 9*m
            for i in range(4):
                e(f"v_lshl_or_b32 v{q+i}, v{b+2*i+2}, 16, v{b+2*i+1}")
                e(f"v_lshl_or_b32 v{q+4+i}, v{b+2*i+1}, 16, v{b+2*i}")
            e(f"ds_write_b128 v{vKW}, v[{q}:{q+3}] offset:{1024*m}\nds_write_b128 v{vKW}, v[{q+4}:{q+7}] offset:{KCP + 1024*m}")
    e(f"ds_write_b128 v{vZW}, v[{ZQ}:{ZQ+3}] offset:4096")
    e(f"""v_mov_b32 v{vKAc}, v{vKA}
    v_mov_b32 v{vUBc}, v{vUB}
    v_mov_b32 v{T}, s{sSLOT}""")
    g.stamp(13)
    e(f"s_cmp_lg_u32 s{sUF}, 0\ns_cbranch_scc1 L_nofetch")
    e(f"s_mov_b32 s{sSPIN}, {SPIN_MAX}")
    a.lab("L_xpoll")
    xn_load()
    e("s_waitcnt vmcnt(0)")
    xn_check()
    e(f"""s_cbranch_vccz L_xpolld
    s_mov_b64 exec, vcc
    s_sleep {g.o.get("xslp", 12)}
    s_sub_u32 s{sSPIN}, s{sSPIN}, 1
    s_cmp_lg_u32 s{sSPIN}, 0
    s_cbranch_scc1 L_xpoll""")
    a.lab("L_xpolld")
    e("s_mov_b64 exec, -1")
    g.stamp(3)
    u_dma(sCH)
    e(f"s_mov_b32 s{sUF}, 1")
    a.lab("L_nofetch")
    for i in range(32): e(f"v_mov_b32 v{AC+i}, 0")
    e(f"""s_mov_b32 s{sCNT}, s{sNIT}
    v_subrev_u32 v{vKAc}, s{sMO}, v{vKAc}
    v_subrev_u32 v{vUBc}, s{sMO}, v{vUBc}
    s_waitcnt vmcnt(0)
    ds_write_b32 v{T}, v{vZ} offset:{UOFF + 64}
    v_lshlrev_b32 v{vDP}, 16, v{vDS}
    v_mov_b32 v{vDP+1}, v{vDP}""")
    if g.o.get("pfq", "1") == "1":
        e(f"""s_cmp_lg_u32 s{sRND}, 0
        s_cbranch_scc1 L_pfq
        v_lshrrev_b32 v214, 3, v{vL}
        v_lshlrev_b32 v214, 12, v214
        v_and_b32 v215, 7, v{vL}
        v_lshl_add_u32 v214, v215, 7, v214
        s_and_b32 s{sA}, s2, 6
        s_lshl_b32 s{sA}, s{sA}, 2
        s_lshr_b32 s{sC}, s{sRB}, 3
        s_add_u32 s{sA}, s{sA}, s{sC}
        s_lshl_b32 s{sA}, s{sA}, 3
        s_add_u32 s{sA}, s{sA}, s{sWAVE}
        s_lshl_b32 s{sA}, s{sA}, 15
        buffer_load_dword v217, v214, {srd(SRD_PF)}, s{sA} offen
        s_add_u32 s{sPF}, s{sPF}, 1024
        s_mov_b32 s{sPN}, 6""")
        a.lab("L_pfq")
    else:
        for _ in range(2): pf_touch()
    g.stamp(4)
    a.lab("L_mu0")
    def rd(m):
        return [f"ds_read_b128 v[{AF+4*m}:{AF+4*m+3}], v{vKAc} offset:{512*(7-m)}",
                f"ds_read_b64 v[{BF+4*m}:{BF+4*m+1}], v{vUBc} offset:{512*m}",
                f"ds_read_b64 v[{BF+4*m+2}:{BF+4*m+3}], v{vUBc} offset:{512*m+8}"]
    for m in range(5):
        for s in rd(m): e(s)
    issued = 5
    for m in range(8):
        e(f"s_waitcnt lgkmcnt({3*(issued-1-m)})")
        pairs = [(m, b) for b in range(m+1) if m + b <= 7] + [(u, m) for u in range(m) if u + m <= 7]
        for k, (u, b) in enumerate(pairs):
            c = AC + 4*(u + b)
            e(f"v_mfma_f32_16x16x32_bf16 v[{c}:{c+3}], v[{AF+4*u}:{AF+4*u+3}], v[{BF+4*b}:{BF+4*b+3}], v[{c}:{c+3}]")
        if issued < 8:
            for s in rd(issued): e(s)
            issued += 1
    pf_touch()
    e(f"""v_subrev_u32 v{vKAc}, 64, v{vKAc}
    v_subrev_u32 v{vUBc}, 64, v{vUBc}
    s_sub_u32 s{sCNT}, s{sCNT}, 1
    s_cmp_lg_u32 s{sCNT}, 0
    s_cbranch_scc1 L_mu0""")
    g.stamp(5)
    e(f"""s_cmp_eq_u32 s{sRND}, 0
    s_cbranch_scc1 L_epi
    s_cmp_lt_u32 s{sWAVE}, 2
    s_cbranch_scc1 L_red_rd""")
    for c in range(8): e(f"ds_write_b128 v{vKW}, v[{AC+4*c}:{AC+4*c+3}] offset:{1024*c}")
    e("s_waitcnt lgkmcnt(0)\ns_barrier\ns_branch L_conv_done")
    a.lab("L_red_rd")
    e("s_barrier")
    for c in range(8): e(f"ds_read_b128 v[{BF+4*c}:{BF+4*c+3}], v{vKW} offset:{2*SLOT + 1024*c}")
    for c in range(8):
        e(f"s_waitcnt lgkmcnt({7-c})")
        e(f"v_pk_add_f32 v[{AC+4*c}:{AC+4*c+1}], v[{AC+4*c}:{AC+4*c+1}], v[{BF+4*c}:{BF+4*c+1}]\nv_pk_add_f32 v[{AC+4*c+2}:{AC+4*c+3}], v[{AC+4*c+2}:{AC+4*c+3}], v[{BF+4*c+2}:{BF+4*c+3}]")
    a.lab("L_epi")
    UV = AF
    for c in range(8):
        e(f"ds_read2_b32 v[{UV+2*c}:{UV+2*c+1}], v{vEU} offset0:{128*c % 256} offset1:{(128*c + 16) % 256}" if c < 2 else "")
    for c in range(2, 8):
        e(f"ds_read_b32 v{UV+2*c}, v{vEU} offset:{512*c}\nds_read_b32 v{UV+2*c+1}, v{vEU} offset:{512*c+64}")
    e(f"""s_mov_b32 s{sB}, 0xffff0000
    s_waitcnt lgkmcnt(0)
    s_cmp_lg_u32 s{sRND}, 0
    s_cbranch_scc1 L_nou2
    s_cmp_ge_u32 s{sWAVE}, 4
    s_cbranch_scc1 L_nou2""")
    u_dma(sC2)
    a.lab("L_nou2")
    for c in range(8):
        for h in range(2):
            y = AC + 4*c + 2*h; u = UV + 2*c + h
            p0, p1 = T, T+2
            p0 = T + 2*h
            e(f"""v_lshlrev_b32 v{p0}, 16, v{u}
            v_and_b32 v{p0+1}, s{sB}, v{u}
            v_pk_fma_f32 v[{y}:{y+1}], v[{p0}:{p0+1}], v[{vDP}:{vDP+1}], v[{y}:{y+1}]
            v_cvt_pk_bf16_f32 v{y}, v{y}, v{y+1}
            ds_write_b32 v{vES}, v{y} offset:{512*c + 64*h}""")
    for i in range(4):
        e(f"ds_read_b128 v[{BF+4*i}:{BF+4*i+3}], v{vKW} offset:{1024*i}")
    e(f"""s_lshl_b32 s{sA}, s{sCH}, 7
    s_add_u32 s{sA}, s{sA}, {WS_YA}""")
    for i in range(4):
        e(f"""s_waitcnt lgkmcnt({3-i})
        buffer_store_dwordx4 v[{BF+4*i}:{BF+4*i+3}], v{vYO}, {srd(SRD_WS)}, s{sA} offen sc1
        s_add_u32 s{sA}, s{sA}, {8*640*128}""")
    pf_touch(); pf_touch()
    g.stamp(6)
    e(f"""s_cmp_lg_u32 s{sRND}, 0
    s_cbranch_scc1 L_conv_done
    s_barrier
    s_cmp_ge_u32 s{sWAVE}, 4
    s_cbranch_scc1 L_conv_idle
    s_mov_b32 s{sRND}, 1
    s_mov_b32 s{sNIT}, 4
    s_lshr_b32 s{sMO}, s{sWAVE}, 1
    s_lshl_b32 s{sMO}, s{sMO}, 8
    s_and_b32 s{sA}, s{sWAVE}, 1
    s_add_u32 s{sCH}, s{sD0}, 8
    s_add_u32 s{sCH}, s{sCH}, s{sA}
    s_add_u32 s{sA}, s{sA}, 8
    s_sub_u32 s{sA}, s{sA}, s{sWAVE}
    s_mul_i32 s{sA}, s{sA}, {TSZ}""")
    for i in range(36): e(f"v_add_u32 v{GA+i}, s{sA}, v{GA+i}")
    e("s_branch L_conv")
    a.lab("L_conv_idle")
    if g.o.get("hwarm"):
        e(f"""s_lshl_b32 s{sA}, s{sRB}, 2
        s_add_u32 s{sA}, s{sA}, s{sWAVE}
        s_sub_u32 s{sA}, s{sA}, 4
        s_mul_i32 s{sA}, s{sA}, {108*128}
        s_add_u32 s{sA}, s{sA}, {WS_H}
        v_min_u32 v216, 53, v{vL}
        v_lshlrev_b32 v216, 7, v216
        buffer_load_dword v217, v216, {srd(SRD_WS)}, s{sA} offen sc1
        s_add_u32 s{sA}, s{sA}, {54*128}
        buffer_load_dword v217, v216, {srd(SRD_WS)}, s{sA} offen sc1""")
    if g.o.get("swt", "1") == "1":
        e(f"""s_lshr_b32 s{sA}, s{sRB}, 3
        s_lshl_b32 s{sA}, s{sA}, 2
        s_add_u32 s{sA}, s{sA}, s{sWAVE}
        s_sub_u32 s{sA}, s{sA}, 4
        s_and_b32 s{sC}, s2, 1
        s_mul_i32 s{sD}, s{sC}, {24*27*1024}
        s_mul_i32 s{sC}, s{sC}, 54
        s_sub_u32 s{sC}, 162, s{sC}
        s_mul_i32 s{sA}, s{sA}, s{sC}
        s_lshl_b32 s{sA}, s{sA}, 7
        s_add_u32 s{sA}, s{sA}, s{sD}
        s_add_u32 s{sA}, s{sA}, {WS_WOT}
        v_min_u32 v216, 53, v{vL}
        v_lshlrev_b32 v216, 7, v216
        buffer_load_dword v217, v216, {srd(SRD_WS)}, s{sA} offen sc1
        s_add_u32 s{sA}, s{sA}, {54*128}
        buffer_load_dword v217, v216, {srd(SRD_WS)}, s{sA} offen sc1
        s_add_u32 s{sA}, s{sA}, {54*128}
        buffer_load_dword v217, v216, {srd(SRD_WS)}, s{sA} offen sc1""")
    e("s_barrier")
    a.lab("L_conv_done")
    e(f"""s_waitcnt vmcnt(0)
    s_barrier
    s_cmp_lg_u32 s{sWAVE}, 0
    s_cbranch_scc1 L_end
    s_lshl_b32 s{sA}, s{sRB}, {FS}
    s_add_u32 s{sA}, s{sA}, {WS_FY}""")
    g.flag_store(sA, T)
    g.stamp(7)
    e("s_branch L_end")


def gtab():
    import numpy as np
    def bf16r(l):
        u = int(np.float32(l).view(np.uint32))
        u = (u + 0x7FFF + ((u >> 16) & 1)) >> 16
        return u
    out = []
    for q in range(9):
        for lane in range(64):
            for k in range(4):
                m, ee = divmod(4*q + k, 9)
                l = 2047 - 8*(lane + 64*m) - ee
                idx = ZI if l < 0 else (l if l < 128 else bf16r(l) - 0x4300 + 128)
                out.append(2*idx)
    return out
```

```python
import sys, math, struct
from asmlib import Asm

KNAME = "parallel_sum__ssm_conv_s4d__mixer_gmlp__prompt_kernel"
def f2u(x): return struct.unpack("<I", struct.pack("<f", x))[0]
def hx(x): return f"0x{x:08x}"

WS_EPOCH = 0
WS_FXN   = 0xE0000
WS_FZ2   = 0x20000
WS_FH    = 0x40000
WS_FY    = 0x60000
WS_FWO   = 0x70000
WS_WOT   = 0xF00000 - 0x20000
WS_STATS = 0x80000
WS_XNT   = 0x100000
WS_Z2    = 0x400000
WS_H     = 0x800000
WS_YA    = 0xC00000
WS_DBG   = 0x1000000
WS_SIZE  = 0x2000000

FS = 7
XT = 0; RING1 = 81920; S1SZ = 20480; RSTAB = RING1 + 3*S1SZ
NA = 8; BRING = 65536; NB = 4; BSZ = 18432
HB = 49152; YAB = 16384; XB = 32768

sWAVE, sRB, sCB, sTAG, sT = 3, 4, 5, 6, 7
SRD_X, SRD_WIN, SRD_WSP, SRD_WOUT, SRD_OUT, SRD_WS, SRD_BSP = 8, 12, 16, 20, 24, 28, 32
def srd(n): return f"s[{n}:{n+3}]"
sW, sMH, sNH = 66, 67, 68
sWSLOT, sWSOFF, sWSL = 69, 70, 71
sXOFF, sROFF, sCNT = 72, 73, 74
sK1 = 76
sA, sB, sC, sD = 78, 79, 80, 81
sSPIN = 82
sMASK = 84
sE0 = 86
sTM = 88
sTM0 = 90
sT2 = 92
sW0 = 83
SPIN_MAX = 200000

class G:
    def __init__(self, opts):
        self.a = Asm(); self.o = opts; self.nstamp = 0
    def e(self, s):
        if self.o.get("nodma"):
            s = "\n".join(l for l in s.split("\n") if not l.strip().endswith(" lds"))
        if self.o.get("ntx"):
            s = s.replace(f"{srd(SRD_X)}, s{sC} offen", f"{srd(SRD_X)}, s{sC} offen nt")
        if self.o.get("novalu") and getattr(self, "inpro", False):
            s = "\n".join(l for l in s.split("\n") if not (l.strip().startswith("v_dot2") or l.strip().startswith("v_cvt_pk_bf16_f32 v4") or l.strip().startswith("v_cvt_pk_bf16_f32 v5") or l.strip().startswith("v_cvt_pk_bf16_f32 v6") or l.strip().startswith("v_cvt_pk_bf16_f32 v7")))
        if self.o.get("nosc1"):
            s = s.replace(" sc1 lds", " lds")
        self.a.e(s)

    def capture(self, fn):
        old = self.a; self.a = Asm(); self.a.uid = old.uid + 1000
        fn()
        out = [i.text for i in self.a.L]
        self.a = old
        return out
    def mk_srd(self, d, p, nbytes):
        self.e(f"""s_mov_b32 s{d}, s{p}
        s_mov_b32 s{d+1}, s{p+1}
        s_mov_b32 s{d+2}, {nbytes}
        s_mov_b32 s{d+3}, 0x20000""")

    def stamp(self, idx, vt=None):
        if not self.o.get("stamps"): return
        self.e(f"""s_memtime s[{sTM}:{sTM+1}]
        s_waitcnt lgkmcnt(0)
        s_sub_u32 s{sTM}, s{sTM}, s{sTM0}
        v_writelane_b32 v0, s{sTM}, {idx}""")

    def stamp_s(self, k):
        if not self.o.get("stamps"): return
        self.e(f"""s_memtime s[{sTM}:{sTM+1}]
        s_waitcnt lgkmcnt(0)
        s_sub_u32 s{96+k}, s{sTM}, s{sTM0}""")
    def stamp_flush(self):
        if not self.o.get("stamps"): return
        for k in range(4): self.e(f"v_writelane_b32 v0, s{96+k}, {40+k}")

    def stampd(self, base):
        if not self.o.get("fine"): return
        self.e(f"""s_memtime s[{sTM}:{sTM+1}]
        s_waitcnt lgkmcnt(0)
        s_sub_u32 s{sTM}, s{sTM}, s{sTM0}
        s_add_u32 m0, s{sCNT}, {base}
        s_nop 1
        v_writelane_b32 v0, s{sTM}, m0""")

    def poll(self, voff, soff, vtmp, sleep=None):
        L = self.a.newlab("Lpoll"); D = self.a.newlab("Lpolld")
        sl = sleep if sleep is not None else int(self.o.get("slp", 3))
        self.e(f"s_mov_b32 s{sSPIN}, {SPIN_MAX}")
        self.a.lab(L)
        self.e(f"""buffer_load_dword v{vtmp}, v{voff}, {srd(SRD_WS)}, {soff} offen sc1
        s_waitcnt vmcnt(0)
        v_cmp_ne_u32 vcc, s{sTAG}, v{vtmp}
        s_cbranch_vccz {D}
        s_mov_b64 exec, vcc
        s_sleep {sl}
        s_sub_u32 s{sSPIN}, s{sSPIN}, 1
        s_cmp_lg_u32 s{sSPIN}, 0
        s_cbranch_scc1 {L}""")
        self.a.lab(D)
        self.e("s_mov_b64 exec, -1")

    def flag_store(self, soff_sreg, vt):
        self.e(f"""v_mov_b32 v{vt}, s{sTAG}
        v_lshlrev_b32 v{vt+1}, 2, v1
        s_mov_b32 exec_hi, 0
        buffer_store_dword v{vt}, v{vt+1}, {srd(SRD_WS)}, s{soff_sreg} offen sc1
        s_mov_b64 exec, -1""")

    def entry(self):
        e = self.e
        e(f"""s_cmp_ge_u32 s2, 256
        s_cbranch_scc1 L_exit
        s_load_dwordx2 s[36:37], s[0:1], 0
        s_load_dwordx2 s[52:53], s[0:1], 64
        s_load_dwordx2 s[64:65], s[0:1], 112
        v_lshrrev_b32 v1, 6, v0
        s_and_b32 s{sA}, s2, 7
        s_lshr_b32 s{sB}, s2, 3""")
        if self.o.get("stamps") or self.o.get("dbgt"):
            e(f"s_memtime s[{sTM0}:{sTM0+1}]\ns_memrealtime s[100:101]")
        e(f"""v_readfirstlane_b32 s{sWAVE}, v1
        s_cmp_ge_u32 s{sB}, 24
        s_cbranch_scc1 L_ssm
        s_lshr_b32 s{sRB}, s{sA}, 1
        s_lshl_b32 s{sRB}, s{sRB}, 3
        s_and_b32 s{sC}, s{sB}, 7
        s_add_u32 s{sRB}, s{sRB}, s{sC}""")

    def entry2(self):
        e = self.e
        e(f"""s_load_dwordx4 s[56:59], s[0:1], 72
        s_load_dwordx2 s[60:61], s[0:1], 96
        s_load_dword s{sTAG}, s[64:65], {WS_EPOCH}
        s_lshr_b32 s{sMH}, s{sW}, 1
        s_and_b32 s{sNH}, s{sW}, 1""")
        self.mk_srd(SRD_WS, 64, WS_SIZE)
    def entry3(self):
        self.e("s_waitcnt lgkmcnt(0)")
        self.mk_srd(SRD_WSP, 56, 2048*2048*2)
        self.mk_srd(SRD_BSP, 58, 2048*2)
        self.mk_srd(SRD_OUT, 60, 2048*640*2)

    vL = 1
    vWOFF = 2
    vX0, vX1 = 8, 9
    vWB, vWB4 = 10, 11
    vA0, vA1, vB0, vB4 = 12, 13, 14, 15
    vWB1, vB1 = 38, 39
    vT = 16
    vK0 = 32
    FS = (40, 96)
    ACC = 152
    Z1 = 192
    XR = 40

    def w_ops(self):
        g = [f"""s_mov_b32 m0, s{sWSLOT}
        s_add_u32 s{sWSLOT}, s{sWSLOT}, {S1SZ}
        buffer_load_dwordx4 v{self.vWOFF}, {srd(SRD_WIN)}, s{sWSOFF} offen lds"""]
        for i in range(1, 4):
            g.append(f"buffer_load_dwordx4 v{self.vWOFF+i}, {srd(SRD_WIN)}, s{sWSOFF} offen offset:{1024*i} lds")
        g.append(f"""s_add_u32 m0, m0, 4096
        s_cmp_ge_u32 s{sWSLOT}, {RING1 + 4*S1SZ}
        buffer_load_dwordx4 v{self.vWOFF+4}, {srd(SRD_WIN)}, s{sWSOFF} offen lds
        s_cselect_b32 s{sWSLOT}, s{sW0}, s{sWSLOT}
        s_add_u32 s{sWSOFF}, s{sWSOFF}, {64*3456}
        s_cmp_ge_u32 s{sWSOFF}, {640*3456}
        s_cselect_b32 s{sWSOFF}, s{sWSL}, s{sWSOFF}""")
        return g
    def issue_w(self):
        for g in self.w_ops(): self.e(g)

    def w_voffs(self):
        e = self.e; T = self.vT; vL = self.vL
        e(f"s_mul_i32 s{sA}, s{sW}, 320")
        for i in range(5):
            p, k, c, d = T+4, T+5, T+6, self.vWOFF + i
            e(f"""v_add_u32 v{p}, s{sA}, v{vL}
            s_add_u32 s{sA}, s{sA}, 64
            v_mul_u32_u24 v{k}, 3277, v{p}
            v_lshrrev_b32 v{k}, 16, v{k}
            v_mul_u32_u24 v{c}, 20, v{k}
            v_sub_u32 v{c}, v{p}, v{c}
            v_bfe_u32 v{p}, v{k}, 3, 1
            v_lshlrev_b32 v{p}, 1, v{p}
            v_xor_b32 v{c}, v{c}, v{p}
            v_mul_u32_u24 v{d}, 3456, v{k}
            v_lshl_add_u32 v{d}, v{c}, 4, v{d}""")
            if 1 <= i <= 3: e(f"v_subrev_u32 v{d}, {1024*i}, v{d}")

    def gemm_prologue(self):
        e = self.e; T = self.vT; XR = self.XR; vL = self.vL
        sXS = sROFF
        e(f"""v_and_b32 v{vL}, 63, v0
        s_and_b32 s{sCB}, s2, 1
        s_mul_i32 s{sCB}, s{sCB}, 3
        s_lshr_b32 s{sC}, s2, 6
        s_add_u32 s{sCB}, s{sCB}, s{sC}
        s_and_b32 s{sW}, s{sWAVE}, 3""")
        e(f"""s_and_b32 s{sA}, s{sRB}, 7
        s_mul_i32 s{sWSOFF}, s{sA}, {64*3456}
        s_lshl_b32 s{sXOFF}, s{sA}, 13
        s_mul_i32 s{sWSL}, s{sCB}, 288
        s_and_b32 s{sWSL}, s{sWSL}, 0xffffffc0
        s_add_u32 s{sWSL}, s{sWSL}, 1728
        s_add_u32 s{sWSOFF}, s{sWSOFF}, s{sWSL}
        s_mul_i32 s{sW0}, s{sW}, 5120
        s_add_u32 s{sW0}, s{sW0}, {RING1}
        s_mov_b32 s{sWSLOT}, s{sW0}""")
        for i in range(5): e(f"v_mov_b32 v{self.vWOFF+i}, 0")
        e(f"s_waitcnt lgkmcnt(0)")
        self.mk_srd(SRD_WIN, 52, 640*1728*2)
        e(f"s_cmp_lt_u32 s{sWAVE}, 4\ns_cbranch_scc1 L_xfirst")
        self.w_voffs()
        for _ in range(int(self.o.get("nst0", 0))): self.issue_w()
        self.a.lab("L_xfirst")
        e(f"""
        s_lshr_b32 s{sA}, s2, 6
        s_mul_i32 s{sA}, s{sA}, 3
        s_add_u32 s{sA}, s{sA}, s{sWAVE}
        s_and_b32 s{sA}, s{sA}, 7
        s_lshl_b32 s{sA}, s{sA}, 3
        v_lshrrev_b32 v{T}, 3, v{vL}
        v_add_u32 v{T}, s{sA}, v{T}
        v_and_b32 v{T+1}, 7, v0
        v_mul_u32_u24 v{T+2}, 1280, v{T}
        v_lshl_add_u32 v{T+2}, v{T+1}, 4, v{T+2}
        s_mul_i32 s{sA}, s{sRB}, {64*1280}
        s_and_b32 s{sXS}, s{sRB}, 7
        s_lshl_b32 s{sB}, s{sXS}, 7
        s_waitcnt lgkmcnt(0)""")
        self.mk_srd(SRD_X, 36, 2048*640*2)
        self.stamp_s(0)
        for j in range(10):
            e(f"""s_add_u32 s{sC}, s{sA}, s{sB}
            buffer_load_dwordx4 v[{XR+4*j}:{XR+4*j+3}], v{T+2}, {srd(SRD_X)}, s{sC} offen
            s_add_u32 s{sB}, s{sB}, 128
            s_cmp_ge_u32 s{sB}, 1280
            s_cselect_b32 s{sB}, 0, s{sB}""")
        if self.o.get("yprio"):
            e(f"s_cmp_lt_u32 s{sWAVE}, 4\ns_cbranch_scc1 Lnyp\ns_setprio 2\nLnyp:")
        self.entry2()
        g, c15 = T+4, T+5
        e(f"""v_bfe_u32 v{T+3}, v{T}, 1, 3
        v_xor_b32 v{T+3}, v{T+3}, v{T+1}
        v_lshlrev_b32 v{T+3}, 4, v{T+3}
        v_lshl_add_u32 v{T+3}, v{T}, 7, v{T+3}
        v_lshrrev_b32 v{g}, 4, v{vL}
        v_and_b32 v{c15}, 15, v{vL}
        v_lshrrev_b32 v{T+6}, 1, v{c15}
        v_xor_b32 v{T+6}, v{T+6}, v{g}
        v_lshlrev_b32 v{T+6}, 4, v{T+6}
        v_lshl_add_u32 v{self.vX0}, v{c15}, 7, v{T+6}
        s_lshl_b32 s{sA}, s{sMH}, 12
        v_add_u32 v{self.vX0}, s{sA}, v{self.vX0}
        v_xor_b32 v{self.vX1}, 64, v{self.vX0}
        v_mul_u32_u24 v{self.vWB4}, 2560, v{g}
        v_bfe_u32 v{T+6}, v{vL}, 2, 2
        v_mul_u32_u24 v{T+6}, 320, v{T+6}
        v_add_u32 v{self.vWB4}, v{self.vWB4}, v{T+6}
        v_and_b32 v{T+6}, 3, v{vL}
        v_lshl_add_u32 v{self.vWB4}, v{T+6}, 3, v{self.vWB4}
        v_and_b32 v{T+6}, 1, v{g}
        v_lshlrev_b32 v{T+6}, 5, v{T+6}
        s_and_b32 s{sC}, s{sCB}, 1
        s_mul_i32 s{sA}, s{sNH}, 5
        s_add_u32 s{sA}, s{sA}, s{sC}
        s_lshl_b32 s{sA}, s{sA}, 5
        v_xor_b32 v{T+7}, s{sA}, v{T+6}
        v_add_u32 v{self.vWB}, v{T+7}, v{self.vWB4}
        s_add_u32 s{sA}, s{sA}, 32
        v_xor_b32 v{T+7}, s{sA}, v{T+6}
        v_add_u32 v{self.vWB1}, v{T+7}, v{self.vWB4}
        s_lshl_b32 s{sC}, s{sC}, 5
        s_add_u32 s{sC}, s{sC}, 128
        v_xor_b32 v{T+7}, s{sC}, v{T+6}
        v_add_u32 v{self.vWB4}, v{T+7}, v{self.vWB4}
        s_mov_b32 s{sK1}, {hx(f2u(-2.302208198*0.044715))}
        s_mov_b32 s{sK1+1}, {hx(f2u(-2.302208198*0.044715))}
        v_mov_b32 v{self.vK0}, {hx(f2u(-2.302208198))}
        v_mov_b32 v{self.vK0+1}, {hx(f2u(-2.302208198))}""")
        self.entry3()
        def ydma(grp):
            L = self.a.newlab("Lyd")
            e(f"s_cmp_lt_u32 s{sWAVE}, 4\ns_cbranch_scc1 {L}")
            e(grp)
            self.a.lab(L)
        n0 = int(self.o.get("nst0", 0))
        if n0 < 2: ydma("\n".join(sum([self.w_ops() for _ in range(2 - n0)], [])))
        S, Q = T+8, T+9
        e(f"""v_mov_b32 v{S}, 0
        v_mov_b32 v{Q}, 0
        s_mov_b32 s{sA}, 0x3f803f80
        s_cmp_lt_u32 s{sWAVE}, 4""")
        for j in range(10):
            if n0 < 2: e(f"s_cbranch_scc1 Lxw{j}\ns_waitcnt vmcnt({9-j+5*(2-n0)})\ns_branch Lxv{j}\nLxw{j}:\ns_waitcnt vmcnt({9-j})\nLxv{j}:")
            else: e(f"s_waitcnt vmcnt({9-j})")
            if j == 9: self.stamp_s(3)
            for i in range(4*j, 4*j+4):
                e(f"v_dot2c_f32_bf16 v{S}, s{sA}, v{XR+i}\nv_dot2c_f32_bf16 v{Q}, v{XR+i}, v{XR+i}")
        for m in ("quad_perm:[1,0,3,2]", "quad_perm:[2,3,0,1]", "row_half_mirror"):
            e(f"v_add_f32_dpp v{S}, v{S}, v{S} {m} row_mask:0xf bank_mask:0xf\nv_add_f32_dpp v{Q}, v{Q}, v{Q} {m} row_mask:0xf bank_mask:0xf")
        self.ln_params(S, Q, 640, T+10, T+12, T+14)
        NM, RS = T+10, T+12
        e(f"""s_mov_b32 s{sA}, 0x00003f80
        s_mov_b32 s{sC}, 0x3f800000
        s_lshl_b32 s{sB}, s{sXS}, 13
        v_lshlrev_b32 v{T+7}, 2, v{T}
        ds_write_b32 v{T+7}, v{RS} offset:{RSTAB - 98304}""".replace(f"v_lshlrev_b32 v{T+7}, 2, v{T}", f"v_lshlrev_b32 v{T+7}, 2, v{T}\n        v_add_u32 v{T+7}, 98304, v{T+7}"))
        TP = 80
        for j in range(10):
            ls = []
            for k in range(4):
                r = XR + 4*j + k; a = TP + 2*k; b = a + 1
                ls.append([f"v_dot2_f32_bf16 v{a}, v{r}, s{sA}, v{NM}", f"v_dot2_f32_bf16 v{b}, v{r}, s{sC}, v{NM}",
                           f"v_cvt_pk_bf16_f32 v{r}, v{a}, v{b}"])
            self.rr(ls)
            e(f"""v_add_u32 v{T+6}, s{sB}, v{T+3}
            ds_write_b128 v{T+6}, v[{XR+4*j}:{XR+4*j+3}]
            s_add_u32 s{sB}, s{sB}, 8192
            s_cmp_ge_u32 s{sB}, 81920
            s_cselect_b32 s{sB}, 0, s{sB}""")
        self.stamp_flush()
        e(f"""s_waitcnt lgkmcnt(0)
        s_mul_i32 s{sTAG}, s{sTAG}, 0x9E3779B1
        s_add_u32 s{sTAG}, s{sTAG}, 0x7F4A7C15
        s_cmp_ge_u32 s{sWAVE}, 4
        s_cbranch_scc1 L_Y""")

    def ln_params(self, S, Q, n, NM, RS, t):
        self.e(f"""v_mul_f32 v{S}, {hx(f2u(1.0/n))}, v{S}
        v_mul_f32 v{Q}, {hx(f2u(1.0/n))}, v{Q}
        v_fma_f32 v{Q}, -v{S}, v{S}, v{Q}
        v_max_f32 v{Q}, 0, v{Q}
        v_cvt_pk_bf16_f32 v{t}, v{S}, v{Q}
        v_lshlrev_b32 v{NM}, 16, v{t}
        v_xor_b32 v{NM}, 0x80000000, v{NM}
        v_mov_b32 v{NM+1}, v{NM}
        v_and_b32 v{Q}, 0xffff0000, v{t}
        v_add_f32 v{Q}, {hx(f2u(1e-5))}, v{Q}
        v_cvt_pk_bf16_f32 v{t}, v{Q}, v{Q}
        v_lshlrev_b32 v{Q}, 16, v{t}
        v_sqrt_f32 v{Q}, v{Q}
        v_cvt_pk_bf16_f32 v{t}, v{Q}, v{Q}
        v_lshlrev_b32 v{Q}, 16, v{t}
        v_rcp_f32 v{RS}, v{Q}
        v_mov_b32 v{RS+1}, v{RS}""")


    def p1_reads(self, F):
        out = []
        for ks in range(2):
            Fk = F + 28*ks
            vx = self.vA0 if ks == 0 else self.vA1
            for a in range(2):
                out.append(f"ds_read_b128 v[{Fk+4*a}:{Fk+4*a+3}], v{vx} offset:{2048*a}")
            for j in range(5):
                base = self.vB4 if j == 4 else (self.vB0, self.vB1)[j & 1]
                off = ks*10240 + (64*(j >> 1) if j < 4 else 0)
                for h in range(2):
                    r = Fk + 8 + 4*j + 2*h
                    out.append(f"ds_read_b64_tr_b16 v[{r}:{r+1}], v{base} offset:{off + h*1280}")
        return out
    def p2_reads(self, F):
        out = []
        for ks in range(2):
            Fk = F + 28*ks
            vx = self.vA0 if ks == 0 else self.vA1
            out += [f"ds_read_b128 v[{Fk+4*a}:{Fk+4*a+3}], v{vx} offset:{2048*a}" for a in range(2)]
            for j in range(5):
                base = self.vB0 if j < 4 else self.vB4
                off = ks*9216 + (1024*j if j < 4 else 0)
                out.append(f"ds_read_b128 v[{Fk+8+4*j}:{Fk+8+4*j+3}], v{base} offset:{off}")
        return out
    def mfmas(self, F, swap, first=False):
        out = []
        for ks in range(2):
            Fk = F + 28*ks
            for j in range(5):
                for a in range(2):
                    c = self.ACC + 4*(2*j + a)
                    X = f"v[{Fk+4*a}:{Fk+4*a+3}]"; W = f"v[{Fk+8+4*j}:{Fk+8+4*j+3}]"
                    A, B = (W, X) if swap else (X, W)
                    C = "0" if (first and ks == 0) else f"v[{c}:{c+3}]"
                    out.append(f"v_mfma_f32_16x16x32_bf16 v[{c}:{c+3}], {A}, {B}, {C}")
        return out
    def interleave(self, reads, mf, per=2):
        out = []; ri = 0
        for m in mf:
            out.append(m)
            for _ in range(per):
                if ri < len(reads): out.append(reads[ri]); ri += 1
        out += reads[ri:]
        return out

    def compute_loop(self, n, swap, reads_fn, addr_fn, tagname, vmwait=False, first=None, mid=None, peel=None, top=None):
        e = self.e
        endw = f"s_waitcnt {'vmcnt(0) ' if vmwait else ''}lgkmcnt(0)"
        def stage(rd, mf, extra=(), per2=2):
            e("s_barrier")
            per = 2 if len(rd) > 16 else 1
            if self.o.get("noread"): rd = []
            if self.o.get("nomfma"): mf = []
            fill = list(rd) + addr_fn() + list(extra)
            out = []; ri = 0
            for k, m in enumerate(mf):
                out.append(m)
                for _ in range(per if ri < len(rd) else per2):
                    if ri < len(fill): out.append(fill[ri]); ri += 1
            out += fill[ri:]
            for s in out: e(s)
        F0, F1 = self.FS
        for s in addr_fn(): e(s)
        stage(reads_fn(F0), [], first[0] if first else ())
        e(endw)
        stage(reads_fn(F1), self.mfmas(F0, swap, True), [f"s_mov_b32 s{sCNT}, {(n-2)//2}"] + (first[1] if first else []), 5 if first else 2); e(endw)
        if peel: e(peel)
        L = self.a.newlab("Lc" + tagname)
        self.a.lab(L)
        if top: top()
        stage(reads_fn(F0), self.mfmas(F1, swap))
        if mid: mid()
        e(endw)
        stage(reads_fn(F1), self.mfmas(F0, swap), [f"s_sub_u32 s{sCNT}, s{sCNT}, 1", f"s_cmp_lg_u32 s{sCNT}, 0"])
        e(f"{endw}\ns_cbranch_scc1 {L}")
        return self.mfmas(F1, swap)

    def ring_addr(self, asz_total, bbase, bsz, nb):
        return [f"v_add_u32 v{self.vA0}, s{sXOFF}, v{self.vX0}", f"v_add_u32 v{self.vA1}, s{sXOFF}, v{self.vX1}",
        f"v_add_u32 v{self.vB0}, s{sROFF}, v{self.vWB}", f"v_add_u32 v{self.vB4}, s{sROFF}, v{self.vWB4}",
        f"s_add_u32 s{sXOFF}, s{sXOFF}, 8192", f"s_cmp_ge_u32 s{sXOFF}, {asz_total}", f"s_cselect_b32 s{sXOFF}, 0, s{sXOFF}",
        f"s_add_u32 s{sROFF}, s{sROFF}, {bsz}", f"s_cmp_ge_u32 s{sROFF}, {bbase + nb*bsz}", f"s_cselect_b32 s{sROFF}, {bbase}, s{sROFF}"]
    def p1_addr(self): return [f"v_add_u32 v{self.vB1}, s{sROFF}, v{self.vWB1}"] + self.ring_addr(81920, RING1, S1SZ, 4)
    def p2_addr(self): return self.ring_addr(NA*8192, BRING, BSZ, NB)

    def gelu_pair(self, r, t, dst=None, packed=None):
        d = r if dst is None else dst
        self.e(f"""v_pk_mul_f32 v[{t}:{t+1}], v[{r}:{r+1}], v[{r}:{r+1}]
        v_pk_fma_f32 v[{t}:{t+1}], v[{t}:{t+1}], s[{sK1}:{sK1+1}], v[{self.vK0}:{self.vK0+1}]
        v_pk_mul_f32 v[{t}:{t+1}], v[{t}:{t+1}], v[{r}:{r+1}]
        v_exp_f32 v{t}, v{t}
        v_exp_f32 v{t+1}, v{t+1}
        v_pk_add_f32 v[{t}:{t+1}], v[{t}:{t+1}], 1.0 op_sel_hi:[1,0]
        v_rcp_f32 v{t}, v{t}
        v_rcp_f32 v{t+1}, v{t+1}
        v_pk_mul_f32 v[{t}:{t+1}], v[{t}:{t+1}], v[{r}:{r+1}]
        v_cvt_pk_bf16_f32 v{t if packed is None else packed}, v{t}, v{t+1}""")
        if packed is None:
            self.e(f"v_lshlrev_b32 v{d}, 16, v{t}\nv_and_b32 v{d+1}, s{sB}, v{t}")

    def gelu_list(self, r, t, sc, packed=None, stats=None):
        L = [f"v_pk_mul_f32 v[{r}:{r+1}], v[{r}:{r+1}], v[{sc}:{sc+1}]",
             f"v_pk_mul_f32 v[{t}:{t+1}], v[{r}:{r+1}], v[{r}:{r+1}]",
             f"v_pk_fma_f32 v[{t}:{t+1}], v[{t}:{t+1}], s[{sK1}:{sK1+1}], v[{self.vK0}:{self.vK0+1}]",
             f"v_pk_mul_f32 v[{t}:{t+1}], v[{t}:{t+1}], v[{r}:{r+1}]",
             f"v_exp_f32 v{t}, v{t}", f"v_exp_f32 v{t+1}, v{t+1}",
             f"v_pk_add_f32 v[{t}:{t+1}], v[{t}:{t+1}], 1.0 op_sel_hi:[1,0]",
             f"v_rcp_f32 v{t}, v{t}", f"v_rcp_f32 v{t+1}, v{t+1}"]
        d = r if packed is None else packed
        L += [f"v_pk_mul_f32 v[{d}:{d+1}], v[{t}:{t+1}], v[{r}:{r+1}]"]
        if stats:
            s_, q_ = stats
            L += [f"v_pk_add_f32 v[{s_}:{s_+1}], v[{s_}:{s_+1}], v[{r}:{r+1}]",
                  f"v_pk_fma_f32 v[{q_}:{q_+1}], v[{r}:{r+1}], v[{r}:{r+1}], v[{q_}:{q_+1}]"]
        return L
    def rr(self, lists):
        n = max(len(l) for l in lists)
        for i in range(n):
            for l in lists:
                if i < len(l): self.e(l[i])

    def dump_regs(self, r0, n, slot, vt):
        self.e(f"""s_lshl_b32 s{sA}, s2, 3
        s_add_u32 s{sA}, s{sA}, s{sWAVE}
        s_mul_i32 s{sA}, s{sA}, {n*256}
        s_add_u32 s{sA}, s{sA}, {WS_DBG + 0x100000 + slot*0x600000}
        v_lshlrev_b32 v{vt}, 2, v{self.vL}""")
        for i in range(n):
            self.e(f"buffer_store_dword v{r0+i}, v{vt}, {srd(SRD_WS)}, s{sA} offen\ns_add_u32 s{sA}, s{sA}, 256")


    NWS = 21
    A3 = 224
    sBO = 44
    def wreg(self, pos, ee): return 40 + ((pos % self.NWS)*2 + ee)*4
    def wload(self, pos):
        out = []
        for ee in range(2):
            r = self.wreg(pos, ee)
            off = f"s{self.sBO + (pos >> 2)}" if pos < 24 else str(6*4096)
            out.append(f"s_add_u32 s{sT}, s{93+ee}, {off}\nbuffer_load_dwordx4 v[{r}:{r+3}], v7, {srd(SRD_WS)}, s{sT} offen offset:{(pos%4)*1024} sc1")
        return out
    def blk_offsets(self, mul):
        self.e(f"s_mul_i32 s{self.sBO}, s{sCB}, {mul}\ns_lshr_b32 s{sT}, s2, 6\ns_mov_b32 s50, 0")
        for j in range(1, 6):
            self.e(f"""s_add_u32 s{sT2}, s{sT}, s{sCB}
            s_add_u32 s{sT2}, s{sT2}, 1
            s_cmp_ge_u32 s{sT2}, 6
            s_cselect_b32 s51, 6, 0
            s_sub_u32 s{sT2}, s{sT2}, s51
            s_mul_i32 s{self.sBO+j}, s{sT2}, {mul}
            s_lshl_b32 s{sT2}, s{sT2}, 2
            s_lshl_b32 s{sT2}, {j}, s{sT2}
            s_or_b32 s50, s50, s{sT2}
            s_add_u32 s{sT}, s{sT}, 1
            s_cmp_ge_u32 s{sT}, 5
            s_cselect_b32 s{sT}, 0, s{sT}""")

    def x_path(self):
        e = self.e; T = self.vT; ACC = self.ACC; vL = self.vL
        self.stamp(0)
        g = T
        e(f"""v_lshrrev_b32 v{g}, 4, v{vL}
        v_lshlrev_b32 v{T+10}, 4, v{g}
        s_lshl_b32 s{sB}, s{sMH}, 7
        s_add_u32 s{sB}, s{sB}, {RSTAB}
        v_add_u32 v{T+10}, s{sB}, v{T+10}""")
        pub_rd = [f"ds_read_b128 v[232:235], v{T+10}", f"ds_read_b128 v[236:239], v{T+10} offset:64"]
        sv = "\n".join(self.capture(self.w_voffs)).replace(f"s{sA},", f"s{sC},").replace(f"s{sA}\n", f"s{sC}\n").replace(f"v{T+4}", f"v{T+11}").replace(f"v{T+5}", f"v{T+12}").replace(f"v{T+6}", f"v{T+13}")
        e(sv)
        prd, pwork = self.pub_parts()
        def xnflag():
            Lf = self.a.newlab("Lfx")
            xnf = int(self.o.get('xnf', 3))
            e(f"s_cmp_lg_u32 s{sCNT}, {xnf}\ns_cbranch_scc1 {Lf}\ns_cmp_lg_u32 s{sW}, 0\ns_cbranch_scc1 {Lf}")
            self.flag_store(sD, T)
            self.a.lab(Lf)
        def xnwait():
            Lf = self.a.newlab("Lfw")
            e(f"s_cmp_lg_u32 s{sCNT}, {int(self.o.get('xnf', 3))}\ns_cbranch_scc1 {Lf}\ns_waitcnt vmcnt(0)")
            self.a.lab(Lf)
        e(f"s_mov_b32 s{sROFF}, {RING1}")
        tail = self.compute_loop(10, False, self.p1_reads, self.p1_addr, "p1a", first=(pub_rd + prd, pwork), mid=xnflag, top=xnwait)
        e(f"""s_and_b32 s{sA}, s{sRB}, 7
        s_add_u32 s{sA}, s{sA}, 3
        s_cmp_ge_u32 s{sA}, 10
        s_cselect_b32 s{sA}, 0, s{sA}
        s_mul_i32 s{sWSOFF}, s{sA}, {64*3456}
        s_sub_u32 s{sWSL}, s{sWSL}, 1728
        s_add_u32 s{sWSOFF}, s{sWSOFF}, s{sWSL}
        s_add_u32 s{sWSLOT}, s{sW0}, {S1SZ}
        s_mov_b32 s{sB}, 0xffff0000""")
        hold = int(self.o.get("hold", 3))
        if hold < 3: e("s_barrier")
        for m in tail: e(m)
        e("s_waitcnt lgkmcnt(0)")
        self.stamp(1)
        SS = 192
        for i in range(16): e(f"v_mov_b32 v{SS+i}, 0")
        vmw = lambda n: f"s_waitcnt vmcnt({n})"
        def do_frag(j):
            self.rr([self.gelu_list(ACC + 4*(2*j + a) + 2*h, T + 2*(2*a + h), 232 + 4*a + 2*h, stats=(SS + 4*a + 2*h, SS + 8 + 4*a + 2*h))
                     for a in range(2) for h in range(2)])
        if hold < 2: e("s_barrier")
        do_frag(0); do_frag(1)
        if hold < 1: e("s_barrier")
        do_frag(2); do_frag(3)
        Ls = self.a.newlab("Lz4")
        e(f"s_cmp_eq_u32 s{sNH}, 1\ns_cbranch_scc1 {Ls}")
        do_frag(4)
        self.a.lab(Ls)
        for i in range(8):
            e(f"v_add_f32_dpp v{SS+i}, v{SS+i}, v{SS+i} row_mirror row_mask:0xf bank_mask:0x3")
        for i in range(8):
            e(f"v_add_f32_dpp v{SS+i}, v{SS+8+i}, v{SS+8+i} row_mirror row_mask:0xf bank_mask:0xc")
        for i in range(4):
            e(f"v_add_f32_dpp v{SS+i}, v{SS+i}, v{SS+i} row_half_mirror row_mask:0xf bank_mask:0x5")
        for i in range(4):
            e(f"v_add_f32_dpp v{SS+i}, v{SS+4+i}, v{SS+4+i} row_half_mirror row_mask:0xf bank_mask:0xa")
        for i in range(4):
            e(f"v_add_f32_dpp v{SS+i}, v{SS+i}, v{SS+i} quad_perm:[2,3,0,1] row_mask:0xf bank_mask:0xf")
        for i in range(4):
            e(f"v_add_f32_dpp v{SS+i}, v{SS+i}, v{SS+i} quad_perm:[1,0,3,2] row_mask:0xf bank_mask:0xf")
        e(f"""s_mov_b32 vcc_lo, 0xaaaaaaaa
        s_mov_b32 vcc_hi, 0xaaaaaaaa
        s_mov_b32 s{sE0}, 0xcccccccc
        s_mov_b32 s{sE0+1}, 0xcccccccc
        v_cndmask_b32 v{SS}, v{SS}, v{SS+1}, vcc
        v_cndmask_b32 v{SS+2}, v{SS+2}, v{SS+3}, vcc
        v_mov_b32 v{SS+1}, s{sTAG}
        v_cndmask_b32 v{SS}, v{SS}, v{SS+2}, s[{sE0}:{sE0+1}]
        v_lshlrev_b32 v{T}, 3, v{vL}
        s_lshl_b32 s{sC}, s{sRB}, 1
        s_add_u32 s{sC}, s{sC}, s{sMH}
        s_mul_i32 s{sC}, s{sC}, {12*512}
        s_add_u32 s{sC}, s{sC}, {WS_STATS}
        s_lshl_b32 s{sA}, s{sCB}, 1
        s_add_u32 s{sA}, s{sA}, s{sNH}
        s_lshl_b32 s{sA}, s{sA}, 9
        s_add_u32 s{sA}, s{sA}, s{sC}
        buffer_store_dwordx2 v[{SS}:{SS+1}], v{T}, {srd(SRD_WS)}, s{sA} offen sc1""")
        self.stamp(2)
        if hold >= 3: e("s_barrier")
        self.issue_w()
        if hold >= 2: e("s_barrier")
        self.issue_w()
        if hold >= 1: e("s_barrier")
        e(vmw(5))
        e("s_barrier")
        self.issue_w(); self.issue_w()
        e(vmw(10))
        e("s_barrier")
        self.issue_w()
        e(vmw(10))
        e("s_barrier")
        self.issue_w()
        e(vmw(10))
        e("s_barrier")
        PR = 128
        L = self.a.newlab("Lst"); D = self.a.newlab("Lstd")
        e(f"s_mov_b32 s{sSPIN}, {SPIN_MAX}\ns_add_u32 s{sA}, s{sC}, 4096")
        def stat_loads():
            for p in range(12):
                e(f"buffer_load_dwordx2 v[{PR+2*p}:{PR+2*p+1}], v{T}, {srd(SRD_WS)}, s{sC if p < 8 else sA} offen offset:{512*(p%8)} sc1")
        stat_loads()
        self.issue_w()
        self.stamp(3)
        e("s_waitcnt vmcnt(22)\ns_barrier")
        Lchk = self.a.newlab("Lchk")
        e(f"s_branch {Lchk}")
        self.a.lab(L)
        stat_loads()
        self.a.lab(Lchk)
        e("s_waitcnt vmcnt(0)")
        e(f"v_xor_b32 v{T+1}, s{sTAG}, v{PR+1}")
        for p in range(1, 12):
            e(f"v_xor_b32 v{T+2}, s{sTAG}, v{PR+2*p+1}\nv_or_b32 v{T+1}, v{T+1}, v{T+2}")
        e(f"""v_cmp_ne_u32 vcc, 0, v{T+1}
        s_cbranch_vccz {D}
        s_sleep 2
        s_sub_u32 s{sSPIN}, s{sSPIN}, 1
        s_cmp_lg_u32 s{sSPIN}, 0
        s_cbranch_scc1 {L}""")
        self.a.lab(D)
        self.stamp(4)
        for p in range(1, 12):
            e(f"v_add_f32 v{PR}, v{PR}, v{PR+2*p}")
        e(f"v_mov_b32_dpp v{PR+1}, v{PR} row_ror:8 row_mask:0xf bank_mask:0xf")
        self.ln_params(PR, PR+1, 864, T+10, T+12, T+14)
        e(f"v_mul_f32 v{T+10}, v{T+10}, v{T+12}")
        for i in range(8):
            e(f"v_mov_b32_dpp v{SS+i}, v{T+10} row_newbcast:{i} row_mask:0xf bank_mask:0xf")
            e(f"v_mov_b32_dpp v{SS+8+i}, v{T+12} row_newbcast:{i} row_mask:0xf bank_mask:0xf")
        e(f"""v_lshrrev_b32 v{T}, 4, v{vL}
        v_and_b32 v{T+1}, 1, v{T}
        v_lshrrev_b32 v{T}, 1, v{T}
        v_lshl_add_u32 v{T}, v{T+1}, 1, v{T}
        v_lshlrev_b32 v{T}, 8, v{T}
        v_and_b32 v{T+1}, 15, v{vL}
        v_lshl_add_u32 v{T}, v{T+1}, 4, v{T}
        s_lshl_b32 s{sA}, s{sCB}, 5
        s_add_u32 s{sA}, s{sA}, s{sRB}
        s_mul_i32 s{sA}, s{sA}, 18432
        s_mul_i32 s{sC}, s{sMH}, 9216
        s_add_u32 s{sA}, s{sA}, s{sC}
        s_add_u32 s{sA}, s{sA}, {WS_Z2}
        s_mul_i32 s{sC}, s{sNH}, 5120
        s_add_u32 s{sC}, s{sC}, s{sA}
        s_add_u32 s{sA}, s{sA}, 4096""")
        Q4 = PR
        Ls = self.a.newlab("Lz4b")
        for j in range(5):
            if j == 4: e(f"s_cmp_eq_u32 s{sNH}, 1\ns_cbranch_scc1 {Ls}")
            q = Q4 + 4*j
            ls = []
            for a in range(2):
                for h in range(2):
                    r = ACC + 4*(2*j + a) + 2*h
                    nm, rs = SS + 4*a + 2*h, SS + 8 + 4*a + 2*h
                    d = q + 2*a + h
                    ls.append([f"v_pk_fma_f32 v[{r}:{r+1}], v[{r}:{r+1}], v[{rs}:{rs+1}], v[{nm}:{nm+1}]",
                    f"v_cvt_pk_bf16_f32 v{d}, v{r}, v{r+1}"])
            self.rr(ls)
            e(f"v_permlane16_swap_b32 v{q}, v{q+2}\nv_permlane16_swap_b32 v{q+1}, v{q+3}")
            if j < 4:
                e(f"buffer_store_dwordx4 v[{q}:{q+3}], v{T}, {srd(SRD_WS)}, s{sC} offen offset:{1024*j} sc1")
            else:
                e(f"buffer_store_dwordx4 v[{q}:{q+3}], v{T}, {srd(SRD_WS)}, s{sA} offen sc1")
        self.a.lab(Ls)
        e("s_barrier")
        e(f"""s_lshl_b32 s{sD}, s{sCB}, 2
        s_add_u32 s{sD}, s{sD}, s{sW}
        s_lshl_b32 s{sD}, s{sD}, {5+FS}
        s_add_u32 s{sD}, s{sD}, {WS_FZ2}
        v_lshlrev_b32 v7, 4, v{vL}
        v_and_b32 v{T+3}, 31, v{vL}
        v_min_u32 v{T+3}, 26, v{T+3}
        v_lshlrev_b32 v{T+3}, {FS}, v{T+3}
        s_min_u32 s{sA}, s{sCB}, 4
        s_lshl_b32 s91, s{sA}, 1
        s_add_u32 s91, s91, s{sMH}
        s_lshl_b32 s91, s91, {5+FS}
        s_add_u32 s91, s91, {WS_FWO}
        s_lshl_b32 s{sA}, s{sA}, 2
        s_add_u32 s{sA}, s{sA}, s{sW}
        s_mul_i32 s93, s{sA}, {2*27*1024}
        s_add_u32 s93, s93, {WS_WOT}
        s_add_u32 s94, s93, {27*1024}""")
        self.x_p2_setup()
        e(f"s_add_u32 s{sWSOFF}, s{sWSOFF}, {NA*128}")
        e("s_barrier")
        self.blk_offsets(4096)
        e("s_barrier")
        e(f"""s_lshl_b32 s{sA}, s{sRB}, {FS}
        s_add_u32 s{sA}, s{sA}, s{sD}
        s_waitcnt vmcnt(0)""")
        self.flag_store(sA, T+8)
        self.stamp(5)
        if self.o.get("selft", "1") == "1":
            e(f"""s_lshl_b32 s{sT}, s{sNH}, 3
            s_sub_u32 s{sT}, 39, s{sT}
            v_min_u32 v{T+4}, s{sT}, v{vL}
            v_lshlrev_b32 v{T+4}, 7, v{T+4}
            buffer_load_dword v{T+5}, v{T+4}, {srd(SRD_WS)}, s{sC} offen sc1""")
        self.poll(T+3, "s91", T)
        self.x_p2_loader()
        self.x_p3()

    def x_p2_setup(self):
        e = self.e; T = self.vT + 4; vL = self.vL
        e(f"s_lshl_b32 s{sT2}, s{sW}, 4")
        for i in range(2):
            e(f"""v_lshrrev_b32 v{T}, 3, v{vL}
            v_add_u32 v{T}, s{sT2}, v{T}
            v_add_u32 v{T}, {8*i}, v{T}
            v_bfe_u32 v{T+1}, v{T}, 1, 3
            v_and_b32 v{T+2}, 7, v{vL}
            v_xor_b32 v{T+1}, v{T+1}, v{T+2}
            v_lshlrev_b32 v{T+1}, 4, v{T+1}
            v_lshl_add_u32 v{2+i}, v{T}, 12, v{T+1}""")
        e(f"""v_subrev_u32 v3, 1024, v3
        v_and_b32 v5, 31, v{vL}
        v_lshlrev_b32 v5, {FS}, v5
        s_lshl_b32 s{sWSOFF}, s{sRB}, 18
        s_lshl_b32 s{sWSLOT}, s{sW}, 11
        s_mul_i32 s{sROFF}, s{sMH}, 9216
        s_mul_i32 s{sT}, s{sNH}, 5120
        s_add_u32 s{sROFF}, s{sROFF}, s{sT}
        s_mul_i32 s{sXOFF}, s{sCB}, {32*18432}
        s_add_u32 s{sXOFF}, s{sXOFF}, s{sROFF}
        s_add_u32 s{sXOFF}, s{sXOFF}, {WS_Z2}
        s_add_u32 s95, s{sXOFF}, 4096
        s_add_u32 s{sROFF}, s{sROFF}, {BRING}""")
    def issue_a(self, i):
        self.e(f"""s_add_u32 m0, s{sWSLOT}, {8192*i}
        s_nop 0
        buffer_load_dwordx4 v2, {srd(SRD_WSP)}, s{sWSOFF} offen lds
        buffer_load_dwordx4 v3, {srd(SRD_WSP)}, s{sWSOFF} offen offset:1024 lds
        s_add_u32 s{sWSOFF}, s{sWSOFF}, 128""")
    def issue_b(self, slot, five):
        e = self.e
        e(f"s_add_u32 m0, s{sROFF}, {BSZ*slot}\ns_nop 0")
        for i in range(4):
            e(f"buffer_load_dwordx4 v7, {srd(SRD_WS)}, s{sXOFF} offen offset:{1024*i} sc1 lds")
        if five:
            e(f"""s_add_u32 m0, s{sROFF}, {BSZ*slot + 4096}
            s_add_u32 s{sXOFF}, s{sXOFF}, 18432
            buffer_load_dwordx4 v7, {srd(SRD_WS)}, s95 offen sc1 lds
            s_add_u32 s95, s95, 18432""")
        else:
            e(f"s_add_u32 s{sXOFF}, s{sXOFF}, 18432")
    def loop(self, n, fn, name):
        L = self.a.newlab(name)
        self.e(f"s_mov_b32 s{sCNT}, {n}")
        self.a.lab(L)
        fn()
        self.e(f"s_sub_u32 s{sCNT}, s{sCNT}, 1\ns_cmp_lg_u32 s{sCNT}, 0\ns_cbranch_scc1 {L}")

    def x_p2_loader(self):
        e = self.e; T = self.vT
        self.poll(5, f"s{sD}", T)
        self.stamp(6)
        Lfour = self.a.newlab("Lp2four"); Ldone = self.a.newlab("Lp2done")
        e(f"""v_min_u32 v4, 53, v{self.vL}
        v_lshlrev_b32 v4, 7, v4
        s_and_b32 s{sT2}, s{sRB}, 7
        s_mul_i32 s{sT2}, s{sT2}, {54*128}
        s_add_u32 s{sT2}, s{sT2}, s93
        s_cmp_eq_u32 s{sNH}, 1
        s_cbranch_scc1 {Lfour}""")
        for five in (True, False):
            nb = 5 if five else 4
            self.issue_b(0, five); self.issue_b(1, five)
            e(f"s_waitcnt vmcnt({nb})\ns_barrier")
            self.issue_b(2, five); self.issue_b(3, five)
            e(f"s_waitcnt vmcnt({2*nb})")
            def grp(withA):
                for i in range(4):
                    e("s_barrier")
                    if i == 0: self.stampd(12)
                    self.issue_b(i, five)
                    if withA: self.issue_a(i)
                    e(f"s_waitcnt vmcnt({2*nb + 2 if withA else 2*nb})")
                if withA: e(f"s_xor_b32 s{sWSLOT}, s{sWSLOT}, 32768")
            def grp_t():
                grp(True)
                if self.o.get("wtouch", "0") == "1":
                    Lt = self.a.newlab("Lwt")
                    e(f"s_cmp_lg_u32 s{sCNT}, 2\ns_cbranch_scc1 {Lt}\nbuffer_load_dword v6, v4, {srd(SRD_WS)}, s{sT2} offen sc1")
                    self.a.lab(Lt)
            self.loop(6, grp_t, "Lp2f")
            grp(False)
            if five:
                e(f"s_branch {Ldone}")
                self.a.lab(Lfour)
        self.a.lab(Ldone)
        wl = [s_ for pos in range(self.NWS) for s_ in self.wload(pos)]
        e("s_barrier")
        for s_ in wl[:5]: e(s_)
        e("s_waitcnt vmcnt(9)\ns_barrier")
        for s_ in wl[5:10]: e(s_)
        e("s_waitcnt vmcnt(10)\ns_barrier")
        for s_ in wl[10:16]: e(s_)
        self.wl_rest = wl[16:]
        self.stamp(7)

    def x_p3(self):
        e = self.e; T = self.vT; vL = self.vL; A3 = self.A3
        e("s_barrier")
        Lidle = self.a.newlab("Lp3idle")
        e(f"s_cmp_eq_u32 s{sCB}, 5\ns_cbranch_scc1 {Lidle}")
        if self.o.get("e1", "1") == "1": e("s_barrier")
        for s_ in self.wl_rest: e(s_)
        e(f"""v_and_b32 v2, 15, v{vL}
        v_mul_u32_u24 v2, 1280, v2
        v_lshrrev_b32 v3, 4, v{vL}
        s_mul_i32 s{sA}, s{sRB}, {64*1280}
        s_lshl_b32 s{sC}, s{sCB}, 8
        s_add_u32 s{sA}, s{sA}, s{sC}
        s_lshl_b32 s{sC}, s{sW}, 6
        s_add_u32 s{sA}, s{sA}, s{sC}
        v_and_b32 v6, 1, v3
        v_lshlrev_b32 v6, 5, v6
        v_lshrrev_b32 v3, 1, v3
        v_lshl_add_u32 v6, v3, 4, v6
        v_add_u32 v6, v6, v2
        s_mov_b32 s{sB}, 0xffff0000
        v_add_u32 v2, {HB}, v7
        v_add_u32 v3, 0x10000, v2
        v_lshlrev_b32 v4, 3, v{vL}""")
        self.stamp(8)
        def hreads(pos, F):
            out = []
            if pos < 24:
                j, p = divmod(pos, 4)
                for b in range(4):
                    mh, a = b >> 1, b & 1
                    off = j*18432 + (9*mh + 5*(p >> 1) + 2*(p & 1) + a)*1024
                    out.append(f"ds_read_b128 v[{F+4*b}:{F+4*b+3}], v{2 + (off >> 16)} offset:{off & 0xffff}")
            else:
                for hf in range(2):
                    cbp = 2*(pos - 24) + hf
                    pre = f"""s_bfe_u32 s{sT}, s50, {(4 << 16) | (4*cbp)}
                    s_mul_i32 s{sT}, s{sT}, 18432
                    s_add_u32 s{sT}, s{sT}, {HB + 4096}
                    v_add_u32 v{2+hf}, s{sT}, v4
                    """
                    for b in range(4):
                        mh, a = b >> 1, b & 1
                        out.append(pre + f"ds_read_b64 v[{F+4*b+2*hf}:{F+4*b+2*hf+1}], v{2+hf} offset:{9216*mh + a*512}")
                        pre = ""
            return out
        FB = (8, 24, 208)
        e("s_barrier")
        self.stamp(9)
        for s_ in hreads(0, FB[0]) + hreads(1, FB[1]): e(s_)
        issued = 2*self.NWS
        NL = 27 - self.NWS
        XV = self.wreg(NL, 0)
        YV = self.wreg(NL + 2, 0)
        XA = self.wreg(NL + 4, 0)
        e(f"""v_lshrrev_b32 v5, 2, v{vL}
        v_lshlrev_b32 v5, 7, v5
        v_and_b32 v{A3}, 3, v{vL}
        v_lshl_add_u32 v5, v{A3}, 3, v5
        s_lshl_b32 s{sC}, s{sW}, 12
        s_add_u32 s{sC}, s{sC}, {YAB}
        v_add_u32 v5, s{sC}, v5""")
        prev = 4
        for pos in range(27):
            if pos == NL + 6:
                e(f"""v_and_b32 v{XA+2}, 15, v{vL}
                v_lshrrev_b32 v{XA+3}, 5, v{vL}
                s_lshl_b32 s{sC}, s{sW}, 2
                v_add_u32 v{XA+3}, s{sC}, v{XA+3}
                v_xor_b32 v{XA+3}, v{XA+3}, v{XA+2}
                v_lshlrev_b32 v{XA+3}, 4, v{XA+3}
                v_lshl_add_u32 v{XA}, v{XA+2}, 8, v{XA+3}
                v_bfe_u32 v{XA+3}, v{vL}, 4, 1
                v_lshl_add_u32 v{XA}, v{XA+3}, 3, v{XA}
                v_add_u32 v{XA}, {XB}, v{XA}
                v_xor_b32 v{XA+1}, 32, v{XA}""")
            F = FB[pos % 3]
            nxt = []
            def fbar(j):
                if self.o.get("fine"): self.stamp(28 + j)
                e("s_barrier")
                if self.o.get("fine"): self.stamp(22 + j)
            if pos == 4:
                fbar(1)
                for s_ in hreads(4, FB[1]) + hreads(5, FB[2]): e(s_)
                prev = 4
            if pos < 25 and pos not in (2, 3):
                if (pos + 2) % 4 == 0 and pos + 2 < 24: fbar((pos + 2)//4)
                nxt = hreads(pos + 2, FB[(pos + 2) % 3])
            mf = []
            for b in range(4):
                for ee in range(2):
                    c = A3 + 4*(2*b + ee); w = self.wreg(pos, ee)
                    C = "0" if pos == 0 else f"v[{c}:{c+3}]"
                    mf.append(f"v_mfma_f32_16x16x32_bf16 v[{c}:{c+3}], v[{w}:{w+3}], v[{F+4*b}:{F+4*b+3}], {C}")
            e(f"s_waitcnt lgkmcnt({prev}) vmcnt({issued - 2*(pos + 1)})")
            for s_ in self.interleave(nxt, mf, 1): e(s_)
            prev = len(nxt)
            if pos < NL:
                for s_ in self.wload(self.NWS + pos): e(s_)
                issued += 2
            if pos == 24:
                for b in range(4):
                    for ee in range(2):
                        r = 2*(2*b + ee)
                        e(f"ds_read_b64_tr_b16 v[{YV+r}:{YV+r+1}], v5 offset:{ee*2048 + b*32}")
                prev += 7
            if pos == 25:
                for b in range(4):
                    for ee in range(2):
                        r = 2*(2*b + ee)
                        e(f"ds_read_b64 v[{XV+r}:{XV+r+1}], v{XA+ee} offset:{4096*b}")
                prev = 15
        self.stamp(10)
        e("s_waitcnt lgkmcnt(0)")
        for i in range(16):
            t = 8 + 4*(i & 3)
            e(f"""v_lshlrev_b32 v{t}, 16, v{XV+i}
            v_and_b32 v{t+1}, s{sB}, v{XV+i}
            v_lshlrev_b32 v{t+2}, 16, v{YV+i}
            v_and_b32 v{t+3}, s{sB}, v{YV+i}
            v_pk_add_f32 v[{t}:{t+1}], v[{t}:{t+1}], v[{t+2}:{t+3}]
            v_pk_add_f32 v[{A3+2*i}:{A3+2*i+1}], v[{A3+2*i}:{A3+2*i+1}], v[{t}:{t+1}]""")
        OV = 40
        for b in range(4):
            q = OV + 4*b
            for k in range(4):
                c = A3 + 8*b + 2*k; i = 4*b + k; t = 8 + 2*k
                e(f"v_cvt_pk_bf16_f32 v{q+k}, v{c}, v{c+1}")
            e(f"""v_permlane16_swap_b32 v{q}, v{q+2}
            v_permlane16_swap_b32 v{q+1}, v{q+3}
            s_add_u32 s{sT}, s{sA}, {b*16*1280}
            buffer_store_dwordx4 v[{q}:{q+3}], v6, {srd(SRD_OUT)}, s{sT} offen {self.o.get("ost", "")}""")
        self.stamp(11)
        e(f"""s_cmp_lg_u32 s2, 0
        s_cbranch_scc1 L_end
        s_cmp_lg_u32 s{sW}, 0
        s_cbranch_scc1 L_end
        v_lshlrev_b32 v8, {FS}, v{vL}
        s_mov_b32 s{sD}, {WS_FY}
        s_mov_b32 s{sA}, {WS_EPOCH}""")
        self.poll(8, f"s{sD}", 9)
        self.flag_store(sA, 8)
        if self.o.get("dbgt"):
            e(f"""s_load_dwordx2 s[40:41], s[0:1], 104
            s_waitcnt vmcnt(0)
            s_memtime s[{sTM}:{sTM+1}]
            s_memrealtime s[98:99]
            s_waitcnt lgkmcnt(0)
            s_sub_u32 s{sTM}, s{sTM}, s{sTM0}
            s_sub_u32 s98, s98, s100
            v_mov_b32 v8, s{sTM}
            v_mov_b32 v9, s98
            v_mov_b32 v10, 0
            global_store_dwordx2 v10, v[8:9], s[40:41]""")
        self.a.lab(Lidle)
        e("s_branch L_end")

    def pub_parts(self):
        e = self.e; T = 240; vL = self.vL
        g, r, c4 = T, T+1, T+2
        XQ = 192; XAD = 208; RSV = 216
        e(f"""v_lshrrev_b32 v{g}, 4, v{vL}
        v_bfe_u32 v{r}, v{vL}, 2, 2
        v_and_b32 v{c4}, 3, v{vL}""")
        for rd in range(2):
            t, sw, ad = T+3, T+4, T+6+rd
            e(f"""v_lshl_add_u32 v{t}, v{g}, 3, v{r}
            v_add_u32 v{t}, {4*rd}, v{t}
            v_bfe_u32 v{sw}, v{t}, 1, 3
            v_lshrrev_b32 v{ad}, 1, v{c4}
            v_xor_b32 v{sw}, v{sw}, v{ad}
            v_lshlrev_b32 v{sw}, 4, v{sw}
            v_lshl_add_u32 v{ad}, v{t}, 7, v{sw}
            v_and_b32 v{sw}, 1, v{c4}
            v_lshl_add_u32 v{ad}, v{sw}, 3, v{ad}""")
        e(f"""v_and_b32 v{T+8}, 7, v{vL}
        v_lshlrev_b32 v{T+8}, 12, v{T+8}
        v_lshl_add_u32 v{T+8}, v{g}, 4, v{T+8}
        v_bfe_u32 v{T+3}, v{vL}, 3, 1
        v_lshl_add_u32 v{T+8}, v{T+3}, 6, v{T+8}
        v_lshlrev_b32 v{T+9}, 5, v{g}
        v_add_u32 v{T+9}, {RSTAB}, v{T+9}
        s_mul_i32 s{sA}, s{sCB}, 7
        s_sub_u32 s{sB}, s{sCB}, 2
        s_max_i32 s{sB}, s{sB}, 0
        s_sub_u32 s{sA}, s{sA}, s{sB}
        s_lshl_b32 s{sB}, s{sW}, 1
        s_add_u32 s{sA}, s{sA}, s{sB}""")
        for i in range(2):
            e(f"""s_add_u32 s{sB}, s{sA}, {i}
            s_and_b32 s{sC}, s{sB}, 3
            s_lshl_b32 s{sC}, s{sC}, 5
            s_lshr_b32 s{sD}, s{sB}, 2
            s_lshl_b32 s{sD}, s{sD}, 13""")
            for rd in range(2):
                e(f"v_xor_b32 v{XAD+2*i+rd}, s{sC}, v{T+6+rd}\nv_add_u32 v{XAD+2*i+rd}, s{sD}, v{XAD+2*i+rd}")
        e(f"""s_lshl_b32 s{sB}, s{sRB}, 7
        s_add_u32 s{sB}, s{sB}, {WS_XNT}
        s_lshl_b32 s{sA}, s{sA}, 16
        s_add_u32 s{sA}, s{sA}, s{sB}
        s_lshl_b32 s{sD}, s{sCB}, 5
        s_add_u32 s{sD}, s{sD}, s{sRB}
        s_lshl_b32 s{sD}, s{sD}, 7
        s_add_u32 s{sD}, s{sD}, {WS_FXN}
        s_mov_b32 s{sB}, 0xffff0000""")
        rds = [f"ds_read_b128 v[{RSV+4*k}:{RSV+4*k+3}], v{T+9} offset:{128*(k>>1) + 16*(k&1)}" for k in range(4)]
        for i in range(2):
            for h in range(2):
                for rd in range(2):
                    q = XQ + 8*i + 4*h + 2*rd
                    rds.append(f"ds_read_b64_tr_b16 v[{q}:{q+1}], v{XAD+2*i+rd} offset:{4096*h}")
        work = []
        for i in range(2):
            for h in range(2):
                for k in range(4):
                    q = XQ + 8*i + 4*h + k; a = T + 2*(k & 1); rs = RSV + 8*h + 2*k
                    work += [f"v_lshlrev_b32 v{a}, 16, v{q}", f"v_and_b32 v{a+1}, s{sB}, v{q}",
                             f"v_pk_mul_f32 v[{a}:{a+1}], v[{a}:{a+1}], v[{rs}:{rs+1}]", f"v_cvt_pk_bf16_f32 v{q}, v{a}, v{a+1}"]
            for k in range(4):
                r0 = XQ + 8*i + k; r1 = r0 + 4; t = T + 4 + (k & 1)
                work += [f"v_mov_b32 v{t}, v{r0}",
                         f"v_mov_b32_dpp v{r0}, v{r1} row_ror:8 row_mask:0xf bank_mask:0xc",
                         f"v_mov_b32_dpp v{r1}, v{t} row_ror:8 row_mask:0xf bank_mask:0x3"]
            for h in range(2):
                q = XQ + 8*i + 4*h
                work.append(f"buffer_store_dwordx4 v[{q}:{q+3}], v{T+8}, {srd(SRD_WS)}, s{sA} offen sc1\ns_add_u32 s{sA}, s{sA}, 32768")
        return rds, work

    def y_p3_setup(self):
        e = self.e; T = self.vT; vL = self.vL
        e(f"""s_lshl_b32 s{sD}, s{sRB}, 2
        s_add_u32 s{sD}, s{sD}, s{sW}
        s_lshl_b32 s{sD}, s{sD}, {3+FS}
        s_add_u32 s{sD}, s{sD}, {WS_FH}
        s_lshl_b32 s85, s{sCB}, {FS}
        s_add_u32 s85, s85, s{sD}
        v_min_u32 v6, 5, v{vL}
        v_lshlrev_b32 v6, {FS}, v6
        v_add_u32 v6, s{sD}, v6
        s_min_u32 s{sC}, s{sCB}, 4
        s_mul_i32 s{sA}, s{sC}, 51
        s_lshr_b32 s{sA}, s{sA}, 2
        v_and_b32 v{T+3}, 15, v{vL}
        v_add_u32 v{T+3}, s{sA}, v{T+3}
        v_min_u32 v{T+3}, 63, v{T+3}
        v_lshlrev_b32 v{T+3}, {FS}, v{T+3}
        v_add_u32 v{T+3}, {WS_FY}, v{T+3}
        v_cmp_lt_u32 vcc, 15, v{vL}
        v_cndmask_b32 v6, v6, v{T+3}, vcc
        s_mul_i32 s93, s{sMH}, 9216
        s_mul_i32 s{sA}, s{sNH}, 5120
        s_add_u32 s93, s93, s{sA}
        s_mul_i32 s94, s{sRB}, {6*18432}
        s_add_u32 s94, s94, s93
        s_add_u32 s94, s94, {WS_H}
        s_add_u32 s93, s93, {HB}
        s_mul_i32 s91, s{sRB}, {64*1280}
        s_lshl_b32 s{sA}, s{sC}, 8
        s_add_u32 s91, s91, s{sA}
        s_mul_i32 s{sA}, s{sW}, {16*1280}
        s_add_u32 s91, s91, s{sA}
        s_mul_i32 s{sMASK}, s{sRB}, {640*128}
        s_lshl_b32 s{sA}, s{sC}, 14
        s_add_u32 s{sMASK}, s{sMASK}, s{sA}
        s_lshl_b32 s{sA}, s{sW}, 12
        s_add_u32 s{sMASK}, s{sMASK}, s{sA}
        s_add_u32 s{sMASK}, s{sMASK}, {WS_YA}""")
        for i in range(4):
            e(f"""v_lshrrev_b32 v{T+4}, 4, v{vL}
            v_add_u32 v{T+4}, {4*i}, v{T+4}
            v_and_b32 v{T+5}, 15, v{vL}
            v_xor_b32 v{T+5}, v{T+5}, v{T+4}
            v_mul_u32_u24 v{T+4}, 1280, v{T+4}
            v_lshl_add_u32 v{T+12+i}, v{T+5}, 4, v{T+4}""")
            if i: e(f"v_subrev_u32 v{T+12+i}, {1024*i}, v{T+12+i}")

    def y_path(self):
        e = self.e; T = self.vT; ACC = self.ACC; vL = self.vL; Z1 = self.Z1
        self.a.lab("L_Y")
        if self.o.get("yprio"): e("s_setprio 0")
        self.stamp(0)
        vmw = lambda n: f"s_waitcnt vmcnt({n})"
        e(f"""v_and_b32 v{T}, 15, v{vL}
        v_lshlrev_b32 v{T}, 2, v{T}
        s_lshl_b32 s{sA}, s{sMH}, 7
        s_add_u32 s{sA}, s{sA}, {RSTAB}
        v_add_u32 v{T}, s{sA}, v{T}
        v_lshrrev_b32 v{T+1}, 4, v{vL}
        v_lshlrev_b32 v{T+1}, 5, v{T+1}
        s_lshl_b32 s{sA}, s{sNH}, 7
        s_add_u32 s{sA}, s{sA}, {RSTAB}
        v_add_u32 v{T+1}, s{sA}, v{T+1}""")
        e(vmw(5))
        e("s_barrier")
        self.stamp(12)
        e(f"ds_read_b32 v{T+8}, v{T}\nds_read_b32 v{T+10}, v{T} offset:64")
        self.issue_w()
        e("s_waitcnt vmcnt(5) lgkmcnt(0)\ns_barrier")
        self.issue_w(); self.issue_w()
        e(vmw(10))
        L = self.a.newlab("Ly1")
        e(f"s_mov_b32 s{sCNT}, 2")
        self.a.lab(L)
        e("s_barrier")
        self.stampd(12)
        Lc = self.a.newlab("Lcol")
        e(f"""s_cmp_lg_u32 s{sCNT}, 7
        s_cbranch_scc1 {Lc}
        s_sub_u32 s{sWSOFF}, s{sWSOFF}, 1728
        s_sub_u32 s{sWSL}, s{sWSL}, 1728""")
        self.a.lab(Lc)
        self.issue_w()
        e(vmw(10))
        e(f"""s_add_u32 s{sCNT}, s{sCNT}, 1
        s_cmp_lt_u32 s{sCNT}, 10
        s_cbranch_scc1 {L}""")
        self.stamp(1)
        ysetup = self.capture(lambda: (self.blk_offsets(18432), self.y_p3_setup()))
        yflag = []
        e(f"""s_mov_b32 s{sROFF}, {RING1 + 2*S1SZ}
        v_and_b32 v{T}, 15, v{vL}
        v_lshlrev_b32 v{T}, 1, v{T}
        s_lshl_b32 s{sA}, s{sRB}, 7
        s_lshl_b32 s{sB}, s{sMH}, 6
        s_add_u32 s{sA}, s{sA}, s{sB}
        buffer_load_ushort v34, v{T}, {srd(SRD_BSP)}, s{sA} offen
        buffer_load_ushort v36, v{T}, {srd(SRD_BSP)}, s{sA} offen offset:32""")
        tail = self.compute_loop(10, True, self.p1_reads, self.p1_addr, "p1b", vmwait=True, first=(ysetup, yflag))
        e("s_barrier")
        for m in tail: e(m)
        self.stamp(2)
        self.x_p2_setup()
        for i in range(NA): self.issue_a(i)
        e(f"s_mov_b32 s{sB}, 0xffff0000")
        e(f"v_mov_b32 v{T+9}, v{T+8}\nv_mov_b32 v{T+11}, v{T+10}")
        for i in range(0, 20, 4):
            self.rr([self.gelu_list(ACC + 2*(i+k), T + 2*k, T + 8 + 2*(k >> 1), packed=Z1 + 2*(i + k)) for k in range(4)])
        e(f"""v_lshlrev_b32 v34, 16, v34
        v_lshlrev_b32 v36, 16, v36
        v_mov_b32 v35, v34
        v_mov_b32 v37, v36
        v_lshlrev_b32 v{self.vWB4}, 4, v{vL}
        s_mul_i32 s{sA}, s{sNH}, 5120
        v_add_u32 v{self.vWB}, s{sA}, v{self.vWB4}
        v_add_u32 v{self.vWB4}, 4096, v{self.vWB4}
        s_mov_b32 s{sROFF}, {BRING}
        s_mov_b32 s{sXOFF}, 0""")
        e("s_waitcnt vmcnt(12)")
        self.stamp(3)
        ZD = int(self.o.get("zd", 0))
        e(f"""v_min_u32 v4, 8, v{vL}
        v_lshlrev_b32 v4, 7, v4
        s_and_b32 s{sA}, s{sRB}, 7
        s_lshl_b32 s{sA}, s{sA}, 2
        s_add_u32 s{sA}, s{sA}, s{sW}
        s_mul_i32 s{sWSL}, s{sA}, {9*128}
        s_mul_i32 s{sC}, s{sCB}, {32*18432}
        s_add_u32 s{sWSL}, s{sWSL}, s{sC}
        s_add_u32 s{sWSL}, s{sWSL}, {WS_Z2 + ZD*18432}
        s_min_u32 s{sC}, s{sCB}, 4
        s_mul_i32 s{sC}, s{sC}, {8*27*1024}
        s_mul_i32 s{sA}, s{sA}, {54*128}
        s_add_u32 s{sW0}, s{sC}, s{sA}
        s_add_u32 s{sW0}, s{sW0}, {WS_WOT}
        v_min_u32 v7, 53, v{vL}
        v_lshlrev_b32 v7, 7, v7""")
        def ztouch():
            if ZD:
                Lz = self.a.newlab("Lzt")
                e(f"""s_cmp_le_u32 s{sCNT}, {(ZD-2)//2}
                s_cbranch_scc1 {Lz}
                buffer_load_dword v5, v4, {srd(SRD_WS)}, s{sWSL} offen sc1
                s_add_u32 s{sWSL}, s{sWSL}, {2*18432}""")
                self.a.lab(Lz)
            if self.o.get("ywt"):
                Lw = self.a.newlab("Lwt")
                e(f"s_cmp_lg_u32 s{sCNT}, 6\ns_cbranch_scc1 {Lw}\nbuffer_load_dword v5, v7, {srd(SRD_WS)}, s{sW0} offen sc1")
                self.a.lab(Lw)
        e(f"""v_lshlrev_b32 v{T+8}, 4, v{vL}
        v_lshlrev_b32 v{T+9}, 3, v{vL}
        s_mul_i32 s{sA}, s{sRB}, 6
        s_add_u32 s{sA}, s{sA}, s{sCB}
        s_mul_i32 s{sA}, s{sA}, 18432
        s_mul_i32 s{sC}, s{sMH}, 9216
        s_mul_i32 s{sD}, s{sNH}, 5120
        s_add_u32 s{sC}, s{sC}, s{sD}
        s_add_u32 s{sA}, s{sA}, s{sC}
        s_add_u32 s{sA}, s{sA}, {WS_H}
        s_add_u32 s{sC}, s{sC}, {HB}
        v_add_u32 v{T+10}, s{sC}, v{T+8}
        v_add_u32 v{T+11}, s{sC}, v{T+9}
        s_add_u32 s{sC}, s{sA}, 4096""")
        tail = self.compute_loop(32, True, self.p2_reads, self.p2_addr, "p2", mid=ztouch, peel="s_waitcnt vmcnt(0)")
        e("s_barrier")
        tl = {}
        for k, m in enumerate(tail): tl.setdefault((k % 10) // 2, []).append(m)
        HQ = 40
        Ls = self.a.newlab("Lh4")
        tc = [0]
        def hval(j, a, h, d):
            r = ACC + 4*(2*j + a) + 2*h; z = Z1 + 4*(2*j + a) + 2*h; b = 34 + 2*a
            return [f"v_pk_add_f32 v[{r}:{r+1}], v[{r}:{r+1}], v[{b}:{b+1}]",
            f"v_pk_mul_f32 v[{r}:{r+1}], v[{r}:{r+1}], v[{z}:{z+1}]",
            f"v_cvt_pk_bf16_f32 v{d}, v{r}, v{r+1}"]
        for m in tl[0] + tl[1] + tl[2][:2]: e(m)
        rest = tl[2][2:] + tl[3] + tl[4]
        for p in range(2):
            for a in range(2):
                q = HQ + 4*(2*p + a)
                ops = []
                hv = [hval(2*p + jj, a, h, q + 2*jj + h) for jj in range(2) for h in range(2)]
                for i in range(3): ops += [l[i] for l in hv]
                if p == 0:
                    ms = rest[5*a:5*a+5]
                    for i, o in enumerate(ops):
                        if i % 2 == 0 and ms: e(ms.pop(0))
                        e(o)
                else:
                    for o in ops: e(o)
                e(f"buffer_store_dwordx4 v[{q}:{q+3}], v{T+8}, {srd(SRD_WS)}, s{sA} offen offset:{1024*(2*p+a)} sc1")
                e(f"ds_write_b128 v{T+10}, v[{q}:{q+3}] offset:{1024*(2*p+a)}")
        self.stamp(4)
        e(f"s_cmp_eq_u32 s{sNH}, 1\ns_cbranch_scc1 {Ls}")
        self.rr([hval(4, a, h, HQ + 16 + 2*a + h) for a in range(2) for h in range(2)])
        for a in range(2):
            q = HQ + 16 + 2*a
            e(f"buffer_store_dwordx2 v[{q}:{q+1}], v{T+9}, {srd(SRD_WS)}, s{sC} offen offset:{512*a} sc1")
            e(f"ds_write_b64 v{T+11}, v[{q}:{q+1}] offset:{4096 + 512*a}")
        self.a.lab(Ls)
        if self.o.get("e1", "1") == "1": e("s_barrier")
        e(f"s_lshl_b32 s{sB}, s{sW}, 12\ns_mov_b32 s{sD}, s{sMASK}\ns_waitcnt vmcnt(0)")
        self.flag_store(85, T)
        if self.o.get("selft", "1") == "1":
            e(f"""s_lshl_b32 s{sT}, s{sNH}, 3
            s_sub_u32 s{sT}, 39, s{sT}
            v_min_u32 v{T+4}, s{sT}, v{vL}
            v_lshlrev_b32 v{T+4}, 7, v{T+4}
            buffer_load_dword v{T+5}, v{T+4}, {srd(SRD_WS)}, s{sA} offen sc1""")
        if not self.o.get("f0late"): e("s_waitcnt lgkmcnt(0)\ns_barrier")
        self.stamp(5)
        e(f"s_add_u32 m0, s{sB}, {XB}\ns_nop 0")
        for i in range(4):
            e(f"buffer_load_dwordx4 v{T+12+i}, {srd(SRD_X)}, s91 offen offset:{1024*i} lds")
        self.poll(6, "0", T+3)
        self.stamp(6)
        def hblk(j):
            Lk = self.a.newlab("Lhk")
            e(f"s_add_u32 m0, s93, {18432*j}\ns_add_u32 s{sT}, s94, s{self.sBO+j}")
            for i in range(4):
                e(f"buffer_load_dwordx4 v{T+8}, {srd(SRD_WS)}, s{sT} offen offset:{1024*i} sc1 lds")
            e(f"""s_cmp_eq_u32 s{sNH}, 1
            s_cbranch_scc1 {Lk}
            s_add_u32 m0, m0, 4096
            s_add_u32 s{sT}, s{sT}, 4096
            buffer_load_dwordx4 v{T+8}, {srd(SRD_WS)}, s{sT} offen sc1 lds""")
            self.a.lab(Lk)
        hblk(1); hblk(2)
        e(f"s_cmp_eq_u32 s{sCB}, 5\ns_cbranch_scc1 L_end")
        if self.o.get("f0late"): e("s_waitcnt lgkmcnt(0)\ns_barrier")
        hblk(3)
        e("s_waitcnt vmcnt(8)\ns_barrier")
        hblk(4); hblk(5)
        e(f"s_add_u32 m0, s{sB}, {YAB}\ns_nop 0")
        for i in range(4):
            e(f"buffer_load_dwordx4 v{T+8}, {srd(SRD_WS)}, s{sD} offen offset:{1024*i} sc1 lds")
        for n in (16, 12, 8, 0):
            e(f"s_waitcnt vmcnt({n})\ns_barrier")
        self.stamp(7)
        e("s_branch L_end")

    def build(self):
        from ssm import ssm_path
        self.entry()
        self.inpro = True
        self.gemm_prologue()
        self.inpro = False
        self.x_path()
        self.y_path()
        self.a.lab("L_ssm")
        if self.o.get("nossm"):
            self.e("s_branch L_end")
        else:
            ssm_path(self)
        self.a.lab("L_end")
        if self.o.get("stamps"):
            self.e(f"""s_mov_b64 exec, -1
            s_waitcnt vmcnt(0)
            s_memrealtime s[{sTM}:{sTM+1}]
            s_waitcnt lgkmcnt(0)
            v_writelane_b32 v0, s100, 62
            v_writelane_b32 v0, s{sTM}, 63
            s_lshl_b32 s{sTM}, s2, 3
            s_add_u32 s{sTM}, s{sTM}, s{sWAVE}
            s_lshl_b32 s{sTM}, s{sTM}, 8
            s_add_u32 s{sTM}, s{sTM}, {WS_DBG}
            v_lshlrev_b32 v2, 2, v1
            buffer_store_dword v0, v2, {srd(SRD_WS)}, s{sTM} offen""")
        self.e("s_endpgm")
        self.a.lab("L_exit")
        self.e("s_endpgm")
        body = self.a.finalize()
        if self.o.get("align", "1") == "1":
            from asmlib import align_pass
            body = align_pass(body, KNAME, extra="L_gtab:\nL_tabend:\n")
        hdr = open("parallel_sum__ssm_conv_s4d__mixer_gmlp__prompt.s.ref").read().split("; Override launch")[0]
        s = hdr + "; @launch grid=(256,1,1) block=(512,1,1) lds=163840\n"
        s += f'.amdgcn_target "amdgcn-amd-amdhsa--gfx950"\n.text\n.globl {KNAME}\n.p2align 8\n.type {KNAME},@function\n{KNAME}:\n'
        s += body
        from ssm import gtab
        t = gtab()
        s += ".p2align 8\n.type L_gtab,@object\nL_gtab:\n"
        for i in range(0, len(t), 16): s += ".long " + ", ".join(str(v) for v in t[i:i+16]) + "\n"
        s += "L_tabend:\n"
        s += f""".section .rodata,"a"
.p2align 6
.amdhsa_kernel {KNAME}
  .amdhsa_next_free_vgpr 256
  .amdhsa_next_free_sgpr 102
  .amdhsa_accum_offset 256
  .amdhsa_group_segment_fixed_size 0
  .amdhsa_kernarg_size 120
  .amdhsa_user_sgpr_count 2
  .amdhsa_user_sgpr_kernarg_segment_ptr 1
  .amdhsa_system_sgpr_workgroup_id_x 1
.end_amdhsa_kernel
"""
        return s

if __name__ == "__main__":
    opts = {}
    out = "parallel_sum__ssm_conv_s4d__mixer_gmlp__prompt.s"
    for a in sys.argv[1:]:
        if a.startswith("-o"): out = a[2:]
        elif "=" in a:
            k, v = a.split("="); opts[k] = v
        else: opts[a] = True
    open(out, "w").write(G(opts).build())
```

```python
import math
from gen import *

SLOT = 17600; KCP = 4576; UOFF = 9152; UCP = 4224
TB = 8*SLOT; TSZ = 1568; ZI = 768
SRD_LAR, SRD_AIM, SRD_CR, SRD_CI, SRD_LDT, SRD_DSK = 8, 12, 16, 20, 24, 32
sCH, sSLOT, sTBL, sRND, sD0 = 66, 67, 68, 69, 70
sWJ, sKS, sLN = 71, 72, 73
sNIT, sMO, sPF, sPK, sPN, sWP = 75, 76, 77, 83, 84, 85
sC2, sUF, sF1, sF2 = 91, 93, 94, 95
SRD_WO, SRD_PF, SRD_WI = 36, 52, 40
LOG2E = 1.4426950408889634

def ssm_path(g):
    e = g.e; a = g.a
    vL = 1
    T = 12; vZ = 10
    GA = 220
    e(f"""s_load_dwordx16 s[36:51], s[0:1], 0
    s_load_dwordx8 s[52:59], s[0:1], 64
    s_getpc_b64 s[62:63]
    L_pc0:
    s_sub_u32 s62, s62, L_pc0-{KNAME}
    s_subb_u32 s63, s63, 0
    v_and_b32 v{vL}, 63, v0
    s_sub_u32 s{sB}, s{sB}, 24
    s_lshl_b32 s{sB}, s{sB}, 3
    s_add_u32 s{sRB}, s{sB}, s{sA}
    s_mul_i32 s{sD0}, s{sRB}, 10
    s_add_u32 s{sCH}, s{sD0}, s{sWAVE}
    v_mov_b32 v{vZ}, 0""")
    if g.o.get("pfc", "1") == "1":
        e(f"""v_min_u32 v2, 5, v{vL}
        s_add_u32 s{sC}, s{sB}, s{sWAVE}
        s_mul_i32 s{sC}, s{sC}, 6
        v_add_u32 v2, s{sC}, v2
        v_lshlrev_b32 v2, 7, v2
        v_min_u32 v2, L_tabend-4-{KNAME}, v2
        global_load_dword v219, v2, s[62:63]""")
    e("s_waitcnt lgkmcnt(0)")
    g.mk_srd(SRD_LAR, 38, 640*128*2); g.mk_srd(SRD_AIM, 40, 640*128*2)
    g.mk_srd(SRD_CR, 42, 640*128*2); g.mk_srd(SRD_CI, 44, 640*128*2)
    g.mk_srd(SRD_LDT, 46, 640*2)
    def param_loads():
        e(f"""v_lshlrev_b32 v{T}, 2, v{vL}
        s_lshl_b32 s{sA}, s{sCH}, 8
        s_lshl_b32 s{sB}, s{sCH}, 1
        buffer_load_dword v{T+4}, v{T}, {srd(SRD_LAR)}, s{sA} offen
        buffer_load_dword v{T+5}, v{T}, {srd(SRD_AIM)}, s{sA} offen
        buffer_load_dword v{T+6}, v{T}, {srd(SRD_CR)}, s{sA} offen
        buffer_load_dword v{T+7}, v{T}, {srd(SRD_CI)}, s{sA} offen
        buffer_load_ushort v{T+8}, v{vZ}, {srd(SRD_LDT)}, s{sB} offen""")
    param_loads()
    g.mk_srd(SRD_WI, 52, 640*1728*2)
    e(f"s_load_dword s{sTAG}, s[64:65], {WS_EPOCH}")
    g.mk_srd(SRD_WS, 64, WS_SIZE)
    g.mk_srd(SRD_DSK, 48, 640*2)
    e(f"""s_mul_i32 s{sSLOT}, s{sWAVE}, {SLOT}
    s_mov_b32 s{sRND}, 0""")
    if g.o.get("kprio", "1") == "1":
        e(f"s_cmp_lt_u32 s{sWAVE}, 6\ns_cbranch_scc1 L_noprio\ns_setprio 3\nL_noprio:")
    vG, vJ = 2, 3
    vSW, vSR = 4, 5
    vT0, vT1a, vT1b, vT2 = 6, 7, 8, 9
    e(f"""v_lshrrev_b32 v{vG}, 4, v{vL}
    v_and_b32 v{vJ}, 15, v{vL}
    v_lshlrev_b32 v{vSW}, 3, v{vL}
    v_add_u32 v{vSW}, s{sSLOT}, v{vSW}
    v_mul_u32_u24 v{vSR}, 528, v{vJ}
    v_lshl_add_u32 v{vSR}, v{vG}, 4, v{vSR}
    v_add_u32 v{vSR}, s{sSLOT}, v{vSR}
    v_lshrrev_b32 v{T}, 1, v{vG}
    v_lshlrev_b32 v{T}, 7, v{T}
    v_lshl_add_u32 v{T}, v{vJ}, 3, v{T}
    v_and_b32 v{T+1}, 1, v{vG}
    v_lshl_add_u32 v{T}, v{T+1}, 2, v{T}
    v_lshlrev_b32 v{vT0}, 1, v{T}
    v_lshlrev_b32 v{T}, 6, v{vG}
    v_lshl_add_u32 v{T+1}, v{vJ}, 2, v{T}
    v_add_u32 v{T+1}, 256, v{T+1}
    v_lshl_add_u32 v{T+2}, v{vJ}, 1, v{T}
    v_add_u32 v{T+2}, 256, v{T+2}
    v_cmp_gt_u32 vcc, 2, v{vG}
    v_cndmask_b32 v{vT1a}, v{T+2}, v{T+1}, vcc
    v_mov_b32 v{T+3}, 32
    v_cndmask_b32 v{T+3}, v{T+3}, 2, vcc
    v_add_u32 v{vT1b}, v{vT1a}, v{T+3}
    v_lshlrev_b32 v{vT1a}, 1, v{vT1a}
    v_lshlrev_b32 v{vT1b}, 1, v{vT1b}
    v_add_u32 v{T}, v{T}, v{vJ}
    v_add_u32 v{T}, 512, v{T}
    v_lshlrev_b32 v{vT2}, 1, v{T}""")
    g.mk_srd(SRD_WO, 58, 864*640*2)
    g.mk_srd(SRD_PF, 54, 2048*2048*2)
    e(f"""s_mov_b32 s{sWJ}, 0
    s_cmp_ge_u32 s{sRB}, 54
    s_cbranch_scc1 L_wj_skip
    s_cmp_ge_u32 s{sWAVE}, 5
    s_cbranch_scc1 L_wj_skip
    s_mov_b32 s{sWJ}, 1
    s_lshr_b32 s{sKS}, s{sRB}, 1
    s_and_b32 s{sLN}, s{sRB}, 1
    s_mul_i32 s{sLN}, s{sLN}, 5
    s_add_u32 s{sLN}, s{sLN}, s{sWAVE}
    s_lshr_b32 s{sA}, s{sKS}, 2
    s_and_b32 s{sB}, s{sKS}, 3
    s_mul_i32 s{sA}, s{sA}, 9
    s_lshl_b32 s{sC}, s{sB}, 1
    s_add_u32 s{sA}, s{sA}, s{sC}
    s_lshr_b32 s{sC}, s{sB}, 1
    s_add_u32 s{sA}, s{sA}, s{sC}
    s_add_u32 s{sB}, s{sA}, 1
    s_sub_u32 s{sC}, s{sKS}, 24
    s_mul_i32 s{sC}, s{sC}, 18
    s_add_u32 s{sC}, s{sC}, 4
    s_add_u32 s{sD}, s{sC}, 9
    s_cmp_ge_u32 s{sKS}, 24
    s_cselect_b32 s{sA}, s{sC}, s{sA}
    s_cselect_b32 s{sB}, s{sD}, s{sB}
    s_mul_i32 s{sA}, s{sA}, {16*1280}
    s_mul_i32 s{sB}, s{sB}, {16*1280}
    s_lshl_b32 s{sC}, s{sLN}, 7
    s_add_u32 s{sA}, s{sA}, s{sC}
    s_add_u32 s{sB}, s{sB}, s{sC}
    v_lshrrev_b32 v{T}, 3, v{vL}
    v_mul_u32_u24 v{T}, 1280, v{T}
    v_and_b32 v{T+1}, 7, v{vL}
    v_lshl_add_u32 v{T}, v{T+1}, 4, v{T}
    s_add_u32 m0, s{sSLOT}, {UOFF + 128}
    s_add_u32 s{sC}, s{sA}, {8*1280}
    buffer_load_dwordx4 v{T}, {srd(SRD_WO)}, s{sA} offen lds
    s_add_u32 m0, m0, 1024
    s_add_u32 s{sD}, s{sB}, {8*1280}
    buffer_load_dwordx4 v{T}, {srd(SRD_WO)}, s{sC} offen lds
    s_add_u32 m0, m0, 1024
    s_nop 0
    buffer_load_dwordx4 v{T}, {srd(SRD_WO)}, s{sB} offen lds
    s_add_u32 m0, m0, 1024
    s_nop 0
    buffer_load_dwordx4 v{T}, {srd(SRD_WO)}, s{sD} offen lds""")
    a.lab("L_wj_skip")
    e(f"v_lshlrev_b32 v{T}, 4, v{vL}\nv_add_u32 v{T}, L_gtab-{KNAME}, v{T}")
    for i in range(9):
        if i == 4: e(f"v_add_u32 v{T}, 4096, v{T}")
        if i == 8: e(f"v_add_u32 v{T}, 4096, v{T}")
        e(f"global_load_dwordx4 v[{GA+4*i}:{GA+4*i+3}], v{T}, s[62:63] offset:{1024*(i%4)}")
    PFM = g.o.get("pfw", "1")
    npf = 0
    TLB = int(g.o.get("tlb", 0))
    if TLB:
        e(f"""s_load_dwordx2 s[60:61], s[0:1], 96
        v_lshlrev_b32 v214, {TLB}, v{vL}
        s_lshr_b32 s{sA}, s{sRB}, 3
        s_lshl_b32 s{sA}, s{sA}, {TLB + 6}
        s_waitcnt lgkmcnt(0)""")
        g.mk_srd(56, 60, 2048*640*2)
        e(f"""s_cmp_eq_u32 s{sWAVE}, 5
        s_cbranch_scc0 L_tl1
        buffer_load_dword v219, v214, {srd(SRD_WS)}, s{sA} offen offset:2048
        L_tl1:
        s_cmp_eq_u32 s{sWAVE}, 6
        s_cbranch_scc0 L_tl2
        buffer_load_dword v219, v214, {srd(SRD_PF)}, s{sA} offen
        L_tl2:
        s_cmp_eq_u32 s{sWAVE}, 7
        s_cbranch_scc0 L_tl3
        buffer_load_dword v219, v214, s[56:59], s{sA} offen
        L_tl3:""")
    if PFM == "1":
        npf = 1
        e(f"""v_min_u32 v218, 33, v{vL}
        v_lshlrev_b32 v218, 7, v218
        s_lshl_b32 s{sA}, s{sRB}, 3
        s_add_u32 s{sA}, s{sA}, s{sWAVE}
        s_mul_i32 s{sA}, s{sA}, {34*128}
        buffer_load_dword v219, v218, {srd(SRD_WI)}, s{sA} offen""")
    if PFM == "2":
        npf = 1
        e(f"""v_lshrrev_b32 v218, 3, v{vL}
        v_mul_u32_u24 v218, 3456, v218
        v_and_b32 v219, 7, v{vL}
        v_lshl_add_u32 v218, v219, 7, v218
        s_lshr_b32 s{sA}, s{sRB}, 3
        s_lshl_b32 s{sA}, s{sA}, 3
        s_add_u32 s{sA}, s{sA}, s{sWAVE}
        s_and_b32 s{sC}, s2, 1
        s_mul_i32 s{sWP}, s{sA}, {8*3456}
        s_mul_i32 s{sD}, s{sC}, 896
        s_add_u32 s{sD}, s{sD}, 1664
        s_add_u32 s{sD}, s{sD}, s{sWP}
        buffer_load_dword v219, v218, {srd(SRD_WI)}, s{sD} offen
        s_add_u32 s{sPK}, s{sD}, {64*8*3456}
        s_mul_i32 s{sC}, s{sC}, 768
        s_add_u32 s{sWP}, s{sWP}, s{sC}""")
    g.stamp(0)
    PFW = False
    e(f"""v_and_b32 v216, 3, v{vL}
    v_lshlrev_b32 v216, 7, v216
    v_bfe_u32 v217, v{vL}, 2, 2
    v_lshl_add_u32 v216, v217, 12, v216
    s_and_b32 s{sA}, s2, 7
    s_lshl_b32 s{sA}, s{sA}, 3
    s_lshr_b32 s{sC}, s{sRB}, 3
    s_add_u32 s{sA}, s{sA}, s{sC}
    s_lshl_b32 s{sA}, s{sA}, 3
    s_add_u32 s{sA}, s{sA}, s{sWAVE}
    s_lshl_b32 s{sPF}, s{sA}, 14
    s_mov_b32 s{sPN}, 8""")
    def pf_touch():
        if g.o.get("nopf"): return
        L = a.newlab("Lpf")
        e(f"""s_cmp_eq_u32 s{sPN}, 0
        s_cbranch_scc1 {L}
        buffer_load_dword v217, v216, {srd(SRD_PF)}, s{sPF} offen
        s_add_u32 s{sPF}, s{sPF}, 512
        s_sub_u32 s{sPN}, s{sPN}, 1""")
        a.lab(L)
    NK = int(g.o.get("pfk", 0))
    kc = [0]
    def pf_k():
        kc[0] += 1
        if PFM == "2" and kc[0] <= 3:
            L = a.newlab("Lpw")
            e(f"s_cmp_lg_u32 s{sRND}, 0\ns_cbranch_scc1 {L}")
            if kc[0] == 1: e(f"buffer_load_dword v219, v215, {srd(SRD_WI)}, s{sPK} offen")
            if kc[0] == 2: e(f"buffer_load_dword v219, v215, {srd(SRD_WI)}, s{sWP} offen\ns_add_u32 s{sWP}, s{sWP}, {64*8*3456}")
            if kc[0] == 3: e(f"buffer_load_dword v219, v215, {srd(SRD_WI)}, s{sWP} offen")
            a.lab(L)
        if kc[0] > 6 - NK: pf_touch()
    vL16 = 11; vFL = 218; vDS = 22
    def xn_addr(sch, sdst):
        e(f"s_lshr_b32 s{sA}, s{sch}, 4\ns_mov_b32 s{sdst}, {WS_FXN}")
        for th in (7, 14, 20, 26, 32):
            e(f"s_cmp_ge_u32 s{sA}, {th}\ns_cselect_b32 s{sT}, 4096, 0\ns_add_u32 s{sdst}, s{sdst}, s{sT}")
    XF = 24
    def xn_load(): e(f"buffer_load_dwordx4 v[{XF}:{XF+3}], v{vFL}, {srd(SRD_WS)}, s{sF1} offen sc1")
    def xn_check():
        e(f"""v_xor_b32 v{XF}, s{sTAG}, v{XF}
        v_xor_b32 v{XF+1}, s{sTAG}, v{XF+1}
        v_xor_b32 v{XF+2}, s{sTAG}, v{XF+2}
        v_xor_b32 v{XF+3}, s{sTAG}, v{XF+3}
        v_or3_b32 v{XF}, v{XF}, v{XF+1}, v{XF+2}
        v_or_b32 v{XF}, v{XF}, v{XF+3}
        v_cmp_ne_u32 vcc, 0, v{XF}""")
    def u_dma(sch):
        e(f"""s_lshl_b32 s{sA}, s{sch}, 12
        s_add_u32 s{sA}, s{sA}, {WS_XNT}
        s_sub_u32 s{sC}, s{sA}, 4
        s_add_u32 m0, s{sSLOT}, {UOFF + UCP + 64}
        s_lshl_b32 s{sD}, s{sch}, 1""")
        for i in range(4): e(f"buffer_load_dwordx4 v{vL16}, {srd(SRD_WS)}, s{sA} offen offset:{1024*i} sc1 lds")
        e(f"s_add_u32 m0, s{sSLOT}, {UOFF + 64}\ns_nop 0")
        for i in range(4): e(f"buffer_load_dwordx4 v{vL16}, {srd(SRD_WS)}, s{sC} offen offset:{1024*i} sc1 lds")
        e(f"buffer_load_ushort v{vDS}, v{vZ}, {srd(SRD_DSK)}, s{sD} offen")
    e(f"""v_lshlrev_b32 v{vL16}, 4, v{vL}
    s_and_b32 s{sC2}, s{sWAVE}, 1
    s_add_u32 s{sC2}, s{sC2}, s{sD0}
    s_add_u32 s{sC2}, s{sC2}, 8
    s_mov_b32 s{sUF}, 0""")
    xn_addr(sCH, sF1); xn_addr(sC2, sF2)
    AR, PH, CRp, CIp = 24, 26, 28, 30
    W = 32
    def C(i): return W + 4*i
    def re(c): return f"v[{c}:{c+1}]"
    def im(c): return f"v[{c+2}:{c+3}]"
    tp = T
    TMP = 176
    def cexp_l(c, p, k):
        lit = hx(f2u(float(p))); tp = TMP + 4*k
        return [f"v_mul_f32 v{tp}, {lit}, v{AR}", f"v_mul_f32 v{tp+1}, {lit}, v{AR+1}",
        f"v_mul_f32 v{tp+2}, {lit}, v{PH}", f"v_mul_f32 v{tp+3}, {lit}, v{PH+1}",
        f"v_exp_f32 v{tp}, v{tp}", f"v_exp_f32 v{tp+1}, v{tp+1}",
        f"v_fract_f32 v{tp+2}, v{tp+2}", f"v_fract_f32 v{tp+3}, v{tp+3}",
        f"v_cos_f32 v{c}, v{tp+2}", f"v_cos_f32 v{c+1}, v{tp+3}",
        f"v_sin_f32 v{c+2}, v{tp+2}", f"v_sin_f32 v{c+3}, v{tp+3}",
        f"v_pk_mul_f32 {re(c)}, {re(c)}, v[{tp}:{tp+1}]", f"v_pk_mul_f32 {im(c)}, {im(c)}, v[{tp}:{tp+1}]"]
    def cmul_l(z, x, y, k):
        tp = TMP + 4*k
        assert z not in (x, y)
        return [f"v_pk_mul_f32 v[{tp}:{tp+1}], {im(x)}, {im(y)}",
        f"v_pk_mul_f32 v[{tp+2}:{tp+3}], {im(x)}, {re(y)}",
        f"v_pk_fma_f32 {re(z)}, {re(x)}, {re(y)}, v[{tp}:{tp+1}] neg_lo:[0,0,1] neg_hi:[0,0,1]",
        f"v_pk_fma_f32 {im(z)}, {re(x)}, {im(y)}, v[{tp+2}:{tp+3}]"]
    def put_l(c, row, neg, k):
        d = 192 + 2*k
        n = "-" if neg else ""
        return [f"v_cvt_pk_f16_f32 v{d}, v{c}, {n}v{c+2}", f"v_cvt_pk_f16_f32 v{d+1}, v{c+1}, {n}v{c+3}",
                f"ds_write_b64 v{vSW}, v[{d}:{d+1}] offset:{528*row}"]
    def batch(jobs):
        for i in range(0, len(jobs), 4):
            g.rr([j(k) for k, j in enumerate(jobs[i:i+4])])
    def J_mul(z, x, y, row=None, neg=False):
        return lambda k: cmul_l(z, x, y, k) + (put_l(z, row, neg, k) if row is not None else [])
    def J_put(c, row, neg): return lambda k: put_l(c, row, neg, k)
    E2F = 112
    E1F = 144
    DD = 12
    vSC = 23
    e(f"s_mul_i32 s{sTBL}, s{sWAVE}, {TSZ}\ns_add_u32 s{sTBL}, s{sTBL}, {TB}")
    e(f"s_waitcnt vmcnt({9+npf}) lgkmcnt(0)")
    if PFW:
        e(f"""v_lshrrev_b32 v218, 3, v{vL}
        v_mul_u32_u24 v218, 3456, v218
        v_and_b32 v219, 7, v{vL}
        v_lshl_add_u32 v218, v219, 7, v218
        s_lshr_b32 s{sA}, s{sRB}, 3
        s_lshl_b32 s{sA}, s{sA}, 3
        s_add_u32 s{sA}, s{sA}, s{sWAVE}
        s_and_b32 s{sC}, s2, 1
        s_mul_i32 s{sC}, s{sC}, 768
        s_mul_i32 s{sWP}, s{sA}, {8*3456}
        s_add_u32 s{sWP}, s{sWP}, s{sC}""")
    a.lab("L_kgen")
    g.stamp(8)
    e(f"s_mov_b32 s{sB}, 0xffff0000")
    e(f"""s_cmp_lg_u32 s{sRND}, 0
    s_cbranch_scc1 L_r0_skip
    s_mul_i32 s{sTAG}, s{sTAG}, 0x9E3779B1
    s_add_u32 s{sTAG}, s{sTAG}, 0x7F4A7C15
    s_cmp_eq_u32 s{sWJ}, 0
    s_cbranch_scc1 L_wj2_skip
    v_lshrrev_b32 v{E1F+16}, 2, v{vL}
    v_lshlrev_b32 v{E1F+16}, 7, v{E1F+16}
    v_and_b32 v{E1F+17}, 3, v{vL}
    v_lshl_add_u32 v{E1F+16}, v{E1F+17}, 3, v{E1F+16}
    v_add_u32 v{E1F+16}, s{sSLOT}, v{E1F+16}
    v_lshlrev_b32 v{E1F+17}, 4, v{vL}""")
    for df in range(4):
        for hf in range(2):
            e(f"ds_read_b64_tr_b16 v[{E1F+4*df+2*hf}:{E1F+4*df+2*hf+1}], v{E1F+16} offset:{UOFF + 128 + hf*2048 + df*32}")
    e(f"""s_lshl_b32 s{sA}, s{sLN}, 2
    s_mul_i32 s{sA}, s{sA}, {27*1024}
    s_lshl_b32 s{sC}, s{sKS}, 10
    s_add_u32 s{sA}, s{sA}, s{sC}
    s_add_u32 s{sA}, s{sA}, {WS_WOT}
    s_waitcnt lgkmcnt(0)""")
    for df in range(4):
        e(f"buffer_store_dwordx4 v[{E1F+4*df}:{E1F+4*df+3}], v{E1F+17}, {srd(SRD_WS)}, s{sA} offen sc1\ns_add_u32 s{sA}, s{sA}, {27*1024}")
    a.lab("L_wj2_skip")
    if PFW:
        e(f"""buffer_load_dword v219, v218, {srd(SRD_WI)}, s{sWP} offen
        s_add_u32 s{sWP}, s{sWP}, {64*8*3456}
        buffer_load_dword v219, v218, {srd(SRD_WI)}, s{sWP} offen""")
    a.lab("L_r0_skip")
    e(f"""v_mov_b32 v215, v218
    s_sub_u32 s{sA}, s{sF2}, s{sF1}
    v_lshrrev_b32 v{vFL}, 5, v{vL}
    v_mul_lo_u32 v{vFL}, v{vFL}, s{sA}
    v_and_b32 v214, 31, v{vL}
    v_lshl_add_u32 v{vFL}, v214, 7, v{vFL}""")
    g.stamp(9)
    e(f"""v_lshlrev_b32 v{T+8}, 16, v{T+8}
    v_mul_f32 v{T+8}, {hx(f2u(LOG2E))}, v{T+8}
    v_exp_f32 v{T+8}, v{T+8}
    v_lshlrev_b32 v{AR}, 16, v{T+4}
    v_and_b32 v{AR+1}, s{sB}, v{T+4}
    v_cvt_pk_bf16_f32 v{T+8}, v{T+8}, v{T+8}
    v_mul_f32 v{AR}, {hx(f2u(LOG2E))}, v{AR}
    v_mul_f32 v{AR+1}, {hx(f2u(LOG2E))}, v{AR+1}
    v_lshlrev_b32 v{T+8}, 16, v{T+8}
    v_exp_f32 v{AR}, v{AR}
    v_exp_f32 v{AR+1}, v{AR+1}
    v_lshlrev_b32 v{PH}, 16, v{T+5}
    v_and_b32 v{PH+1}, s{sB}, v{T+5}
    v_cvt_pk_bf16_f32 v{T+4}, v{AR}, v{AR+1}
    v_lshlrev_b32 v{AR}, 16, v{T+4}
    v_and_b32 v{AR+1}, s{sB}, v{T+4}
    v_mul_f32 v{AR}, v{AR}, v{T+8}
    v_mul_f32 v{AR+1}, v{AR+1}, v{T+8}
    v_mul_f32 v{AR}, {hx(f2u(-LOG2E))}, v{AR}
    v_mul_f32 v{AR+1}, {hx(f2u(-LOG2E))}, v{AR+1}
    v_mul_f32 v{PH}, v{PH}, v{T+8}
    v_mul_f32 v{PH+1}, v{PH+1}, v{T+8}
    v_mul_f32 v{PH}, {hx(f2u(1/(2*math.pi)))}, v{PH}
    v_mul_f32 v{PH+1}, {hx(f2u(1/(2*math.pi)))}, v{PH+1}
    v_lshlrev_b32 v{CRp}, 16, v{T+6}
    v_and_b32 v{CRp+1}, s{sB}, v{T+6}
    v_lshlrev_b32 v{CIp}, 16, v{T+7}
    v_and_b32 v{CIp+1}, s{sB}, v{T+7}
    v_max3_f32 v{T}, abs(v{CRp}), abs(v{CRp+1}), abs(v{CIp})
    v_max_f32 v{T}, abs(v{CIp+1}), v{T}""")
    for m in ("row_ror:8", "row_ror:4", "row_ror:2", "row_ror:1"):
        e(f"v_max_f32_dpp v{T}, v{T}, v{T} {m} row_mask:0xf bank_mask:0xf")
    e(f"""v_readlane_b32 s{sA}, v{T}, 0
    v_readlane_b32 s{sC}, v{T}, 16
    v_readlane_b32 s{sD}, v{T}, 32
    v_readlane_b32 s{sT}, v{T}, 48
    s_max_u32 s{sA}, s{sA}, s{sC}
    s_max_u32 s{sD}, s{sD}, s{sT}
    s_max_u32 s{sA}, s{sA}, s{sD}
    v_frexp_exp_i32_f32 v{T}, s{sA}
    v_sub_u32 v{T+1}, 0, v{T}
    v_ldexp_f32 v{C(0)}, v{CRp}, v{T+1}
    v_ldexp_f32 v{C(0)+1}, v{CRp+1}, v{T+1}
    v_ldexp_f32 v{C(0)+2}, v{CIp}, v{T+1}
    v_ldexp_f32 v{C(0)+3}, v{CIp+1}, v{T+1}
    v_add_f32 v{vSC}, v{T+8}, v{T+8}
    v_ldexp_f32 v{vSC}, v{vSC}, v{T}""")
    e(f"""s_cmp_lg_u32 s{sRND}, 0
    s_cbranch_scc1 L_np2
    s_cmp_lt_u32 s{sWAVE}, 6
    s_cbranch_scc1 L_np2
    s_add_u32 s{sCH}, s{sCH}, 2""")
    param_loads()
    e(f"s_mov_b32 s{sB}, 0xffff0000")
    a.lab("L_np2")
    Tq = lambda q: C(q)
    P = lambda j: C(8 + j - 1)
    V = {1: C(16), 2: C(17), 4: C(18), 8: C(19)}
    SO = lambda k: E1F + 4*k
    pf_k()
    g.rr([cexp_l(P(1), 8, 0), cexp_l(V[1], 128, 1)])
    e(f"v_mov_b32 v{SO(0)}, 1.0\nv_mov_b32 v{SO(0)+1}, 1.0\nv_mov_b32 v{SO(0)+2}, 0\nv_mov_b32 v{SO(0)+3}, 0")
    batch([J_mul(P(2), P(1), P(1), 2, True), J_mul(V[2], V[1], V[1]), J_mul(Tq(1), Tq(0), V[1]), J_put(SO(0), 0, True)])
    batch([J_mul(P(4), P(2), P(2), 4, True), J_mul(P(3), P(2), P(1), 3, True), J_mul(V[4], V[2], V[2]), J_put(P(1), 1, True)])
    pf_k()
    batch([J_mul(P(8), P(4), P(4), 8, True), J_mul(P(5), P(4), P(1), 5, True), J_mul(P(6), P(4), P(2), 6, True), J_mul(P(7), P(4), P(3), 7, True)])
    batch([J_mul(SO(k % 4), P(8), P(k + 1), 9 + k, True) for k in range(7)] + [J_mul(V[8], V[4], V[4])])
    for ks in range(8):
        e(f"ds_read_b128 v[{E2F+4*ks}:{E2F+4*ks+3}], v{vSR} offset:{64*ks}")
    pf_k()
    g.stamp(10)
    R = P
    g.rr([cexp_l(R(1), 1, 0), cmul_l(Tq(2), Tq(0), V[2], 1) + cmul_l(Tq(4), Tq(0), V[4], 1) + cmul_l(Tq(5), Tq(1), V[4], 1),
          cmul_l(Tq(3), Tq(1), V[2], 2) + put_l(Tq(0), 0, False, 2) + put_l(Tq(1), 8, False, 2)])
    batch([J_mul(R(2), R(1), R(1)), J_mul(Tq(6), Tq(2), V[4]), J_mul(Tq(7), Tq(3), V[4]), J_mul(SO(0), Tq(0), R(1), 1)])
    batch([J_mul(R(4), R(2), R(2)), J_mul(R(3), R(2), R(1)), J_mul(SO(1), Tq(1), R(1), 9), J_mul(SO(2), Tq(0), R(2), 2)])
    pf_k()
    batch([J_mul(R(5), R(4), R(1)), J_mul(R(6), R(4), R(2)), J_mul(R(7), R(4), R(3)), J_mul(SO(3), Tq(1), R(2), 10)])
    batch([J_mul(SO(k % 4), Tq(k & 1), R(3 + (k >> 1)), 8*(k & 1) + 3 + (k >> 1)) for k in range(10)])
    def tile_rd():
        for ks in range(8):
            e(f"ds_read_b128 v[{E1F+4*ks}:{E1F+4*ks+3}], v{vSR} offset:{64*ks}")
    def tile_mma(nafter):
        for ks in range(8):
            e(f"s_waitcnt lgkmcnt({7-ks})")
            e(f"v_mfma_f32_16x16x32_f16 v[{DD}:{DD+3}], v[{E1F+4*ks}:{E1F+4*ks+3}], v[{E2F+4*ks}:{E2F+4*ks+3}], {'0' if ks == 0 else f'v[{DD}:{DD+3}]'}")
    def tile_fin():
        for r in range(4): e(f"v_mul_f32 v{DD+r}, v{DD+r}, v{vSC}")
        e(f"v_cvt_pk_bf16_f32 v{DD}, v{DD}, v{DD+1}\nv_cvt_pk_bf16_f32 v{DD+1}, v{DD+2}, v{DD+3}")
    def taddr(v, d): e(f"v_add_u32 v{d}, s{sTBL}, v{v}")
    SO2 = lambda k: 200 + 4*k
    tile_rd(); tile_mma(0); pf_k()
    g.stamp(11)
    jobs = []
    for q in range(2):
        jobs.append(J_put(Tq(2 + q), 4*q, False))
        for r in range(1, 4): jobs.append(J_mul(SO2(len(jobs) % 4), Tq(2 + q), R(2*r), 4*q + r))
    for q in range(4):
        jobs.append(J_put(Tq(4 + q), 8 + 2*q, False))
        jobs.append(J_mul(SO2(len(jobs) % 4), Tq(4 + q), R(4), 8 + 2*q + 1))
    batch(jobs[:4])
    tile_fin(); taddr(vT0, DD+2)
    e(f"ds_write_b64 v{DD+2}, v[{DD}:{DD+1}]")
    pf_k()
    batch(jobs[4:])
    tile_rd(); tile_mma(0)
    xn_load()
    jobs = [J_mul(R(1), Tq(0), V[8], 0)] + [J_mul(SO2(q % 4), Tq(q), V[8], q) for q in range(1, 8)]
    batch(jobs[:4])
    tile_fin(); taddr(vT1a, DD+2); taddr(vT1b, DD+3)
    e(f"ds_write_b32 v{DD+2}, v{DD}\nds_write_b32 v{DD+3}, v{DD+1}")
    batch(jobs[4:])
    batch([J_mul(SO2(0), R(1), V[8], 8)])
    tile_rd(); tile_mma(0)
    g.stamp(12)
    e(f"""s_waitcnt vmcnt(0)
    s_cmp_lg_u32 s{sUF}, 0
    s_cbranch_scc1 L_uf_skip""")
    xn_check()
    e(f"""s_cbranch_vccnz L_uf_skip
    s_mov_b32 s{sUF}, 1
    s_add_u32 s{sT2}, s{sD0}, s{sWAVE}""")
    u_dma(sT2)
    a.lab("L_uf_skip")
    e(f"""s_cmp_lg_u32 s{sRND}, 0
    s_cbranch_scc1 L_wj3_skip
    s_cmp_eq_u32 s{sWJ}, 0
    s_cbranch_scc1 L_wj3_skip
    s_lshl_b32 s{sA}, s{sLN}, 5
    s_add_u32 s{sA}, s{sA}, s{sKS}
    s_lshl_b32 s{sA}, s{sA}, {FS}
    s_add_u32 s{sA}, s{sA}, {WS_FWO}""")
    g.flag_store(sA, 28)
    a.lab("L_wj3_skip")
    tile_fin(); taddr(vT2, DD+2)
    e(f"""ds_write_b16 v{DD+2}, v{DD}
    ds_write_b16_d16_hi v{DD+2}, v{DD} offset:32
    ds_write_b16 v{DD+2}, v{DD+1} offset:64
    ds_write_b16_d16_hi v{DD+2}, v{DD+1} offset:96
    v_mov_b32 v{DD+3}, s{sTBL}
    ds_write_b32 v{DD+3}, v{vZ} offset:{2*ZI}""")
    e(f"""s_cmp_lg_u32 s{sRND}, 0
    s_cbranch_scc1 L_kgen_done
    s_cmp_lt_u32 s{sWAVE}, 6
    s_cbranch_scc1 L_kgen_done
    s_mov_b32 s{sRND}, 1
    s_add_u32 s{sTBL}, s{sTBL}, {2*TSZ}
    s_branch L_kgen""")
    a.lab("L_kgen_done")
    g.stamp(1)
    vKA, vUB, vKW, vZW, vEU, vES, vYO = 60, 61, 62, 63, 65, 66, 67
    vKAc, vUBc = 69, 70
    vDP = 172
    e(f"s_add_u32 s{sCH}, s{sD0}, s{sWAVE}")
    e(f"""v_and_b32 v{T}, 1, v{vJ}
    v_mul_u32_u24 v{vKA}, {KCP}, v{T}
    v_lshrrev_b32 v{T+1}, 1, v{vJ}
    v_lshlrev_b32 v{T+1}, 6, v{T+1}
    v_lshl_add_u32 v{T+1}, v{vG}, 4, v{T+1}
    v_sub_u32 v{vKA}, v{vKA}, v{T+1}
    v_add_u32 v{vKA}, {4528 - 3584}, v{vKA}
    v_add_u32 v{vKA}, s{sSLOT}, v{vKA}
    v_mul_u32_u24 v{vUB}, {UCP}, v{T}
    v_or_b32 v{T+1}, 1, v{vJ}
    v_lshl_add_u32 v{vUB}, v{T+1}, 2, v{vUB}
    v_lshlrev_b32 v{T+1}, 4, v{vG}
    v_sub_u32 v{vUB}, v{vUB}, v{T+1}
    v_add_u32 v{vUB}, {UOFF + 52 + 448}, v{vUB}
    v_add_u32 v{vUB}, s{sSLOT}, v{vUB}
    v_add_u32 v{vKW}, s{sSLOT}, v{vL16}
    v_and_b32 v{T}, 31, v{vL}
    v_min_u32 v{T}, 29, v{T}
    v_lshlrev_b32 v{T}, 4, v{T}
    v_lshrrev_b32 v{T+1}, 5, v{vL}
    v_mul_u32_u24 v{T+1}, {KCP}, v{T+1}
    v_add3_u32 v{vZW}, v{T}, v{T+1}, s{sSLOT}
    v_lshlrev_b32 v{vES}, 7, v{vG}
    v_lshl_add_u32 v{vES}, v{vJ}, 2, v{vES}
    v_add_u32 v{vES}, s{sSLOT}, v{vES}
    v_add_u32 v{vEU}, {UOFF + UCP + 64}, v{vES}
    v_lshrrev_b32 v{T}, 3, v{vL}
    s_mov_b32 s{sA}, {640*128}
    v_mul_lo_u32 v{vYO}, v{T}, s{sA}
    v_and_b32 v{T}, 7, v{vL}
    v_lshl_add_u32 v{vYO}, v{T}, 4, v{vYO}""")
    ZQ = 72
    for i in range(4): e(f"v_mov_b32 v{ZQ+i}, 0")
    e(f"""v_and_b32 v{T}, 3, v{vL}
    v_lshlrev_b32 v{T}, 4, v{T}
    v_bfe_u32 v{T+1}, v{vL}, 2, 1
    v_mul_u32_u24 v{T+1}, {UCP}, v{T+1}
    v_add3_u32 v{T}, v{T}, v{T+1}, s{sSLOT}
    ds_write_b128 v{T}, v[{ZQ}:{ZQ+3}] offset:{UOFF}
    s_mov_b32 s{sRND}, 0
    s_mov_b32 s{sNIT}, 8
    s_mov_b32 s{sMO}, 0
    s_add_u32 s{sCH}, s{sD0}, s{sWAVE}
    s_mul_i32 s{sTBL}, s{sWAVE}, {TSZ}
    s_add_u32 s{sTBL}, s{sTBL}, {TB}""")
    for i in range(36): e(f"v_add_u32 v{GA+i}, s{sTBL}, v{GA+i}")
    e("s_setprio 0")
    g.stamp(2)
    AF = 76
    BF = 108
    AC = 140
    GV = 76
    OQ = 112
    a.lab("L_conv")
    for m in range(4):
        for ee in range(9):
            e(f"ds_read_u16 v{GV+9*m+ee}, v{GA+9*m+ee}")
        if m % 2 == 1 or True:
            e("s_waitcnt lgkmcnt(0)")
            q = OQ + 8*(m & 1)
            b = GV + 9*m
            for i in range(4):
                e(f"v_lshl_or_b32 v{q+i}, v{b+2*i+2}, 16, v{b+2*i+1}")
                e(f"v_lshl_or_b32 v{q+4+i}, v{b+2*i+1}, 16, v{b+2*i}")
            e(f"ds_write_b128 v{vKW}, v[{q}:{q+3}] offset:{1024*m}\nds_write_b128 v{vKW}, v[{q+4}:{q+7}] offset:{KCP + 1024*m}")
    e(f"ds_write_b128 v{vZW}, v[{ZQ}:{ZQ+3}] offset:4096")
    e(f"""v_mov_b32 v{vKAc}, v{vKA}
    v_mov_b32 v{vUBc}, v{vUB}
    v_mov_b32 v{T}, s{sSLOT}""")
    g.stamp(13)
    e(f"s_cmp_lg_u32 s{sUF}, 0\ns_cbranch_scc1 L_nofetch")
    e(f"s_mov_b32 s{sSPIN}, {SPIN_MAX}")
    a.lab("L_xpoll")
    xn_load()
    e("s_waitcnt vmcnt(0)")
    xn_check()
    e(f"""s_cbranch_vccz L_xpolld
    s_mov_b64 exec, vcc
    s_sleep {g.o.get("xslp", 12)}
    s_sub_u32 s{sSPIN}, s{sSPIN}, 1
    s_cmp_lg_u32 s{sSPIN}, 0
    s_cbranch_scc1 L_xpoll""")
    a.lab("L_xpolld")
    e("s_mov_b64 exec, -1")
    g.stamp(3)
    u_dma(sCH)
    e(f"s_mov_b32 s{sUF}, 1")
    a.lab("L_nofetch")
    for i in range(32): e(f"v_mov_b32 v{AC+i}, 0")
    e(f"""s_mov_b32 s{sCNT}, s{sNIT}
    v_subrev_u32 v{vKAc}, s{sMO}, v{vKAc}
    v_subrev_u32 v{vUBc}, s{sMO}, v{vUBc}
    s_waitcnt vmcnt(0)
    ds_write_b32 v{T}, v{vZ} offset:{UOFF + 64}
    v_lshlrev_b32 v{vDP}, 16, v{vDS}
    v_mov_b32 v{vDP+1}, v{vDP}""")
    if g.o.get("pfq", "1") == "1":
        e(f"""s_cmp_lg_u32 s{sRND}, 0
        s_cbranch_scc1 L_pfq
        v_lshrrev_b32 v214, 3, v{vL}
        v_lshlrev_b32 v214, 12, v214
        v_and_b32 v215, 7, v{vL}
        v_lshl_add_u32 v214, v215, 7, v214
        s_and_b32 s{sA}, s2, 6
        s_lshl_b32 s{sA}, s{sA}, 2
        s_lshr_b32 s{sC}, s{sRB}, 3
        s_add_u32 s{sA}, s{sA}, s{sC}
        s_lshl_b32 s{sA}, s{sA}, 3
        s_add_u32 s{sA}, s{sA}, s{sWAVE}
        s_lshl_b32 s{sA}, s{sA}, 15
        buffer_load_dword v217, v214, {srd(SRD_PF)}, s{sA} offen
        s_add_u32 s{sPF}, s{sPF}, 1024
        s_mov_b32 s{sPN}, 6""")
        a.lab("L_pfq")
    else:
        for _ in range(2): pf_touch()
    g.stamp(4)
    a.lab("L_mu0")
    def rd(m):
        return [f"ds_read_b128 v[{AF+4*m}:{AF+4*m+3}], v{vKAc} offset:{512*(7-m)}",
                f"ds_read_b64 v[{BF+4*m}:{BF+4*m+1}], v{vUBc} offset:{512*m}",
                f"ds_read_b64 v[{BF+4*m+2}:{BF+4*m+3}], v{vUBc} offset:{512*m+8}"]
    for m in range(5):
        for s in rd(m): e(s)
    issued = 5
    for m in range(8):
        e(f"s_waitcnt lgkmcnt({3*(issued-1-m)})")
        pairs = [(m, b) for b in range(m+1) if m + b <= 7] + [(u, m) for u in range(m) if u + m <= 7]
        for k, (u, b) in enumerate(pairs):
            c = AC + 4*(u + b)
            e(f"v_mfma_f32_16x16x32_bf16 v[{c}:{c+3}], v[{AF+4*u}:{AF+4*u+3}], v[{BF+4*b}:{BF+4*b+3}], v[{c}:{c+3}]")
        if issued < 8:
            for s in rd(issued): e(s)
            issued += 1
    pf_touch()
    e(f"""v_subrev_u32 v{vKAc}, 64, v{vKAc}
    v_subrev_u32 v{vUBc}, 64, v{vUBc}
    s_sub_u32 s{sCNT}, s{sCNT}, 1
    s_cmp_lg_u32 s{sCNT}, 0
    s_cbranch_scc1 L_mu0""")
    g.stamp(5)
    e(f"""s_cmp_eq_u32 s{sRND}, 0
    s_cbranch_scc1 L_epi
    s_cmp_lt_u32 s{sWAVE}, 2
    s_cbranch_scc1 L_red_rd""")
    for c in range(8): e(f"ds_write_b128 v{vKW}, v[{AC+4*c}:{AC+4*c+3}] offset:{1024*c}")
    e("s_waitcnt lgkmcnt(0)\ns_barrier\ns_branch L_conv_done")
    a.lab("L_red_rd")
    e("s_barrier")
    for c in range(8): e(f"ds_read_b128 v[{BF+4*c}:{BF+4*c+3}], v{vKW} offset:{2*SLOT + 1024*c}")
    for c in range(8):
        e(f"s_waitcnt lgkmcnt({7-c})")
        e(f"v_pk_add_f32 v[{AC+4*c}:{AC+4*c+1}], v[{AC+4*c}:{AC+4*c+1}], v[{BF+4*c}:{BF+4*c+1}]\nv_pk_add_f32 v[{AC+4*c+2}:{AC+4*c+3}], v[{AC+4*c+2}:{AC+4*c+3}], v[{BF+4*c+2}:{BF+4*c+3}]")
    a.lab("L_epi")
    UV = AF
    for c in range(8):
        e(f"ds_read2_b32 v[{UV+2*c}:{UV+2*c+1}], v{vEU} offset0:{128*c % 256} offset1:{(128*c + 16) % 256}" if c < 2 else "")
    for c in range(2, 8):
        e(f"ds_read_b32 v{UV+2*c}, v{vEU} offset:{512*c}\nds_read_b32 v{UV+2*c+1}, v{vEU} offset:{512*c+64}")
    e(f"""s_mov_b32 s{sB}, 0xffff0000
    s_waitcnt lgkmcnt(0)
    s_cmp_lg_u32 s{sRND}, 0
    s_cbranch_scc1 L_nou2
    s_cmp_ge_u32 s{sWAVE}, 4
    s_cbranch_scc1 L_nou2""")
    u_dma(sC2)
    a.lab("L_nou2")
    for c in range(8):
        for h in range(2):
            y = AC + 4*c + 2*h; u = UV + 2*c + h
            p0, p1 = T, T+2
            p0 = T + 2*h
            e(f"""v_lshlrev_b32 v{p0}, 16, v{u}
            v_and_b32 v{p0+1}, s{sB}, v{u}
            v_pk_fma_f32 v[{y}:{y+1}], v[{p0}:{p0+1}], v[{vDP}:{vDP+1}], v[{y}:{y+1}]
            v_cvt_pk_bf16_f32 v{y}, v{y}, v{y+1}
            ds_write_b32 v{vES}, v{y} offset:{512*c + 64*h}""")
    for i in range(4):
        e(f"ds_read_b128 v[{BF+4*i}:{BF+4*i+3}], v{vKW} offset:{1024*i}")
    e(f"""s_lshl_b32 s{sA}, s{sCH}, 7
    s_add_u32 s{sA}, s{sA}, {WS_YA}""")
    for i in range(4):
        e(f"""s_waitcnt lgkmcnt({3-i})
        buffer_store_dwordx4 v[{BF+4*i}:{BF+4*i+3}], v{vYO}, {srd(SRD_WS)}, s{sA} offen sc1
        s_add_u32 s{sA}, s{sA}, {8*640*128}""")
    pf_touch(); pf_touch()
    g.stamp(6)
    e(f"""s_cmp_lg_u32 s{sRND}, 0
    s_cbranch_scc1 L_conv_done
    s_barrier
    s_cmp_ge_u32 s{sWAVE}, 4
    s_cbranch_scc1 L_conv_idle
    s_mov_b32 s{sRND}, 1
    s_mov_b32 s{sNIT}, 4
    s_lshr_b32 s{sMO}, s{sWAVE}, 1
    s_lshl_b32 s{sMO}, s{sMO}, 8
    s_and_b32 s{sA}, s{sWAVE}, 1
    s_add_u32 s{sCH}, s{sD0}, 8
    s_add_u32 s{sCH}, s{sCH}, s{sA}
    s_add_u32 s{sA}, s{sA}, 8
    s_sub_u32 s{sA}, s{sA}, s{sWAVE}
    s_mul_i32 s{sA}, s{sA}, {TSZ}""")
    for i in range(36): e(f"v_add_u32 v{GA+i}, s{sA}, v{GA+i}")
    e("s_branch L_conv")
    a.lab("L_conv_idle")
    if g.o.get("hwarm"):
        e(f"""s_lshl_b32 s{sA}, s{sRB}, 2
        s_add_u32 s{sA}, s{sA}, s{sWAVE}
        s_sub_u32 s{sA}, s{sA}, 4
        s_mul_i32 s{sA}, s{sA}, {108*128}
        s_add_u32 s{sA}, s{sA}, {WS_H}
        v_min_u32 v216, 53, v{vL}
        v_lshlrev_b32 v216, 7, v216
        buffer_load_dword v217, v216, {srd(SRD_WS)}, s{sA} offen sc1
        s_add_u32 s{sA}, s{sA}, {54*128}
        buffer_load_dword v217, v216, {srd(SRD_WS)}, s{sA} offen sc1""")
    if g.o.get("swt", "1") == "1":
        e(f"""s_lshr_b32 s{sA}, s{sRB}, 3
        s_lshl_b32 s{sA}, s{sA}, 2
        s_add_u32 s{sA}, s{sA}, s{sWAVE}
        s_sub_u32 s{sA}, s{sA}, 4
        s_and_b32 s{sC}, s2, 1
        s_mul_i32 s{sD}, s{sC}, {24*27*1024}
        s_mul_i32 s{sC}, s{sC}, 54
        s_sub_u32 s{sC}, 162, s{sC}
        s_mul_i32 s{sA}, s{sA}, s{sC}
        s_lshl_b32 s{sA}, s{sA}, 7
        s_add_u32 s{sA}, s{sA}, s{sD}
        s_add_u32 s{sA}, s{sA}, {WS_WOT}
        v_min_u32 v216, 53, v{vL}
        v_lshlrev_b32 v216, 7, v216
        buffer_load_dword v217, v216, {srd(SRD_WS)}, s{sA} offen sc1
        s_add_u32 s{sA}, s{sA}, {54*128}
        buffer_load_dword v217, v216, {srd(SRD_WS)}, s{sA} offen sc1
        s_add_u32 s{sA}, s{sA}, {54*128}
        buffer_load_dword v217, v216, {srd(SRD_WS)}, s{sA} offen sc1""")
    e("s_barrier")
    a.lab("L_conv_done")
    e(f"""s_waitcnt vmcnt(0)
    s_barrier
    s_cmp_lg_u32 s{sWAVE}, 0
    s_cbranch_scc1 L_end
    s_lshl_b32 s{sA}, s{sRB}, {FS}
    s_add_u32 s{sA}, s{sA}, {WS_FY}""")
    g.flag_store(sA, T)
    g.stamp(7)
    e("s_branch L_end")


def gtab():
    import numpy as np
    def bf16r(l):
        u = int(np.float32(l).view(np.uint32))
        u = (u + 0x7FFF + ((u >> 16) & 1)) >> 16
        return u
    out = []
    for q in range(9):
        for lane in range(64):
            for k in range(4):
                m, ee = divmod(4*q + k, 9)
                l = 2047 - 8*(lane + 64*m) - ee
                idx = ZI if l < 0 else (l if l < 128 else bf16r(l) - 0x4300 + 128)
                out.append(2*idx)
    return out
```

```python
import math
from gen import *

SLOT = 17600; KCP = 4576; UOFF = 9152; UCP = 4224
TB = 8*SLOT; TSZ = 1568; ZI = 768
SRD_LAR, SRD_AIM, SRD_CR, SRD_CI, SRD_LDT, SRD_DSK = 8, 12, 16, 20, 24, 32
sCH, sSLOT, sTBL, sRND, sD0 = 66, 67, 68, 69, 70
sWJ, sKS, sLN = 71, 72, 73
sNIT, sMO, sPF, sPK, sPN, sWP = 75, 76, 77, 83, 84, 85
sC2, sUF, sF1, sF2 = 91, 93, 94, 95
SRD_WO, SRD_PF, SRD_WI = 36, 52, 40
LOG2E = 1.4426950408889634

def ssm_path(g):
    e = g.e; a = g.a
    vL = 1
    T = 12; vZ = 10
    GA = 220
    e(f"""s_load_dwordx16 s[36:51], s[0:1], 0
    s_load_dwordx8 s[52:59], s[0:1], 64
    s_getpc_b64 s[62:63]
    L_pc0:
    s_sub_u32 s62, s62, L_pc0-{KNAME}
    s_subb_u32 s63, s63, 0
    v_and_b32 v{vL}, 63, v0
    s_sub_u32 s{sB}, s{sB}, 24
    s_lshl_b32 s{sB}, s{sB}, 3
    s_add_u32 s{sRB}, s{sB}, s{sA}
    s_mul_i32 s{sD0}, s{sRB}, 10
    s_add_u32 s{sCH}, s{sD0}, s{sWAVE}
    v_mov_b32 v{vZ}, 0""")
    if g.o.get("pfc", "1") == "1":
        e(f"""v_min_u32 v2, 5, v{vL}
        s_add_u32 s{sC}, s{sB}, s{sWAVE}
        s_mul_i32 s{sC}, s{sC}, 6
        v_add_u32 v2, s{sC}, v2
        v_lshlrev_b32 v2, 7, v2
        v_min_u32 v2, L_tabend-4-{KNAME}, v2
        global_load_dword v219, v2, s[62:63]""")
    e("s_waitcnt lgkmcnt(0)")
    g.mk_srd(SRD_LAR, 38, 640*128*2); g.mk_srd(SRD_AIM, 40, 640*128*2)
    g.mk_srd(SRD_CR, 42, 640*128*2); g.mk_srd(SRD_CI, 44, 640*128*2)
    g.mk_srd(SRD_LDT, 46, 640*2)
    def param_loads():
        e(f"""v_lshlrev_b32 v{T}, 2, v{vL}
        s_lshl_b32 s{sA}, s{sCH}, 8
        s_lshl_b32 s{sB}, s{sCH}, 1
        buffer_load_dword v{T+4}, v{T}, {srd(SRD_LAR)}, s{sA} offen
        buffer_load_dword v{T+5}, v{T}, {srd(SRD_AIM)}, s{sA} offen
        buffer_load_dword v{T+6}, v{T}, {srd(SRD_CR)}, s{sA} offen
        buffer_load_dword v{T+7}, v{T}, {srd(SRD_CI)}, s{sA} offen
        buffer_load_ushort v{T+8}, v{vZ}, {srd(SRD_LDT)}, s{sB} offen""")
    param_loads()
    g.mk_srd(SRD_WI, 52, 640*1728*2)
    e(f"s_load_dword s{sTAG}, s[64:65], {WS_EPOCH}")
    g.mk_srd(SRD_WS, 64, WS_SIZE)
    g.mk_srd(SRD_DSK, 48, 640*2)
    e(f"""s_mul_i32 s{sSLOT}, s{sWAVE}, {SLOT}
    s_mov_b32 s{sRND}, 0""")
    if g.o.get("kprio", "1") == "1":
        e(f"s_cmp_lt_u32 s{sWAVE}, 6\ns_cbranch_scc1 L_noprio\ns_setprio 3\nL_noprio:")
    vG, vJ = 2, 3
    vSW, vSR = 4, 5
    vT0, vT1a, vT1b, vT2 = 6, 7, 8, 9
    e(f"""v_lshrrev_b32 v{vG}, 4, v{vL}
    v_and_b32 v{vJ}, 15, v{vL}
    v_lshlrev_b32 v{vSW}, 3, v{vL}
    v_add_u32 v{vSW}, s{sSLOT}, v{vSW}
    v_mul_u32_u24 v{vSR}, 528, v{vJ}
    v_lshl_add_u32 v{vSR}, v{vG}, 4, v{vSR}
    v_add_u32 v{vSR}, s{sSLOT}, v{vSR}
    v_lshrrev_b32 v{T}, 1, v{vG}
    v_lshlrev_b32 v{T}, 7, v{T}
    v_lshl_add_u32 v{T}, v{vJ}, 3, v{T}
    v_and_b32 v{T+1}, 1, v{vG}
    v_lshl_add_u32 v{T}, v{T+1}, 2, v{T}
    v_lshlrev_b32 v{vT0}, 1, v{T}
    v_lshlrev_b32 v{T}, 6, v{vG}
    v_lshl_add_u32 v{T+1}, v{vJ}, 2, v{T}
    v_add_u32 v{T+1}, 256, v{T+1}
    v_lshl_add_u32 v{T+2}, v{vJ}, 1, v{T}
    v_add_u32 v{T+2}, 256, v{T+2}
    v_cmp_gt_u32 vcc, 2, v{vG}
    v_cndmask_b32 v{vT1a}, v{T+2}, v{T+1}, vcc
    v_mov_b32 v{T+3}, 32
    v_cndmask_b32 v{T+3}, v{T+3}, 2, vcc
    v_add_u32 v{vT1b}, v{vT1a}, v{T+3}
    v_lshlrev_b32 v{vT1a}, 1, v{vT1a}
    v_lshlrev_b32 v{vT1b}, 1, v{vT1b}
    v_add_u32 v{T}, v{T}, v{vJ}
    v_add_u32 v{T}, 512, v{T}
    v_lshlrev_b32 v{vT2}, 1, v{T}""")
    g.mk_srd(SRD_WO, 58, 864*640*2)
    g.mk_srd(SRD_PF, 54, 2048*2048*2)
    e(f"""s_mov_b32 s{sWJ}, 0
    s_cmp_ge_u32 s{sRB}, 54
    s_cbranch_scc1 L_wj_skip
    s_cmp_ge_u32 s{sWAVE}, 5
    s_cbranch_scc1 L_wj_skip
    s_mov_b32 s{sWJ}, 1
    s_lshr_b32 s{sKS}, s{sRB}, 1
    s_and_b32 s{sLN}, s{sRB}, 1
    s_mul_i32 s{sLN}, s{sLN}, 5
    s_add_u32 s{sLN}, s{sLN}, s{sWAVE}
    s_lshr_b32 s{sA}, s{sKS}, 2
    s_and_b32 s{sB}, s{sKS}, 3
    s_mul_i32 s{sA}, s{sA}, 9
    s_lshl_b32 s{sC}, s{sB}, 1
    s_add_u32 s{sA}, s{sA}, s{sC}
    s_lshr_b32 s{sC}, s{sB}, 1
    s_add_u32 s{sA}, s{sA}, s{sC}
    s_add_u32 s{sB}, s{sA}, 1
    s_sub_u32 s{sC}, s{sKS}, 24
    s_mul_i32 s{sC}, s{sC}, 18
    s_add_u32 s{sC}, s{sC}, 4
    s_add_u32 s{sD}, s{sC}, 9
    s_cmp_ge_u32 s{sKS}, 24
    s_cselect_b32 s{sA}, s{sC}, s{sA}
    s_cselect_b32 s{sB}, s{sD}, s{sB}
    s_mul_i32 s{sA}, s{sA}, {16*1280}
    s_mul_i32 s{sB}, s{sB}, {16*1280}
    s_lshl_b32 s{sC}, s{sLN}, 7
    s_add_u32 s{sA}, s{sA}, s{sC}
    s_add_u32 s{sB}, s{sB}, s{sC}
    v_lshrrev_b32 v{T}, 3, v{vL}
    v_mul_u32_u24 v{T}, 1280, v{T}
    v_and_b32 v{T+1}, 7, v{vL}
    v_lshl_add_u32 v{T}, v{T+1}, 4, v{T}
    s_add_u32 m0, s{sSLOT}, {UOFF + 128}
    s_add_u32 s{sC}, s{sA}, {8*1280}
    buffer_load_dwordx4 v{T}, {srd(SRD_WO)}, s{sA} offen lds
    s_add_u32 m0, m0, 1024
    s_add_u32 s{sD}, s{sB}, {8*1280}
    buffer_load_dwordx4 v{T}, {srd(SRD_WO)}, s{sC} offen lds
    s_add_u32 m0, m0, 1024
    s_nop 0
    buffer_load_dwordx4 v{T}, {srd(SRD_WO)}, s{sB} offen lds
    s_add_u32 m0, m0, 1024
    s_nop 0
    buffer_load_dwordx4 v{T}, {srd(SRD_WO)}, s{sD} offen lds""")
    a.lab("L_wj_skip")
    e(f"v_lshlrev_b32 v{T}, 4, v{vL}\nv_add_u32 v{T}, L_gtab-{KNAME}, v{T}")
    for i in range(9):
        if i == 4: e(f"v_add_u32 v{T}, 4096, v{T}")
        if i == 8: e(f"v_add_u32 v{T}, 4096, v{T}")
        e(f"global_load_dwordx4 v[{GA+4*i}:{GA+4*i+3}], v{T}, s[62:63] offset:{1024*(i%4)}")
    PFM = g.o.get("pfw", "1")
    npf = 0
    TLB = int(g.o.get("tlb", 0))
    if TLB:
        e(f"""s_load_dwordx2 s[60:61], s[0:1], 96
        v_lshlrev_b32 v214, {TLB}, v{vL}
        s_lshr_b32 s{sA}, s{sRB}, 3
        s_lshl_b32 s{sA}, s{sA}, {TLB + 6}
        s_waitcnt lgkmcnt(0)""")
        g.mk_srd(56, 60, 2048*640*2)
        e(f"""s_cmp_eq_u32 s{sWAVE}, 5
        s_cbranch_scc0 L_tl1
        buffer_load_dword v219, v214, {srd(SRD_WS)}, s{sA} offen offset:2048
        L_tl1:
        s_cmp_eq_u32 s{sWAVE}, 6
        s_cbranch_scc0 L_tl2
        buffer_load_dword v219, v214, {srd(SRD_PF)}, s{sA} offen
        L_tl2:
        s_cmp_eq_u32 s{sWAVE}, 7
        s_cbranch_scc0 L_tl3
        buffer_load_dword v219, v214, s[56:59], s{sA} offen
        L_tl3:""")
    if PFM == "1":
        npf = 1
        e(f"""v_min_u32 v218, 33, v{vL}
        v_lshlrev_b32 v218, 7, v218
        s_lshl_b32 s{sA}, s{sRB}, 3
        s_add_u32 s{sA}, s{sA}, s{sWAVE}
        s_mul_i32 s{sA}, s{sA}, {34*128}
        buffer_load_dword v219, v218, {srd(SRD_WI)}, s{sA} offen""")
    if PFM == "2":
        npf = 1
        e(f"""v_lshrrev_b32 v218, 3, v{vL}
        v_mul_u32_u24 v218, 3456, v218
        v_and_b32 v219, 7, v{vL}
        v_lshl_add_u32 v218, v219, 7, v218
        s_lshr_b32 s{sA}, s{sRB}, 3
        s_lshl_b32 s{sA}, s{sA}, 3
        s_add_u32 s{sA}, s{sA}, s{sWAVE}
        s_and_b32 s{sC}, s2, 1
        s_mul_i32 s{sWP}, s{sA}, {8*3456}
        s_mul_i32 s{sD}, s{sC}, 896
        s_add_u32 s{sD}, s{sD}, 1664
        s_add_u32 s{sD}, s{sD}, s{sWP}
        buffer_load_dword v219, v218, {srd(SRD_WI)}, s{sD} offen
        s_add_u32 s{sPK}, s{sD}, {64*8*3456}
        s_mul_i32 s{sC}, s{sC}, 768
        s_add_u32 s{sWP}, s{sWP}, s{sC}""")
    g.stamp(0)
    PFW = False
    e(f"""v_and_b32 v216, 3, v{vL}
    v_lshlrev_b32 v216, 7, v216
    v_bfe_u32 v217, v{vL}, 2, 2
    v_lshl_add_u32 v216, v217, 12, v216
    s_and_b32 s{sA}, s2, 7
    s_lshl_b32 s{sA}, s{sA}, 3
    s_lshr_b32 s{sC}, s{sRB}, 3
    s_add_u32 s{sA}, s{sA}, s{sC}
    s_lshl_b32 s{sA}, s{sA}, 3
    s_add_u32 s{sA}, s{sA}, s{sWAVE}
    s_lshl_b32 s{sPF}, s{sA}, 14
    s_and_b32 s{sPK}, s2, 6
    s_lshl_b32 s{sPK}, s{sPK}, 9
    s_mov_b32 s{sPN}, 8""")
    def pf_touch():
        if g.o.get("nopf"): return
        L = a.newlab("Lpf")
        e(f"""s_cmp_eq_u32 s{sPN}, 0
        s_cbranch_scc1 {L}
        s_add_u32 s{sT2}, s{sPF}, s{sPK}
        buffer_load_dword v217, v216, {srd(SRD_PF)}, s{sT2} offen
        s_add_u32 s{sPK}, s{sPK}, 512
        s_and_b32 s{sPK}, s{sPK}, 4095
        s_sub_u32 s{sPN}, s{sPN}, 1""")
        a.lab(L)
    def pfq():
        if g.o.get("pfq", "1") == "1":
            e(f"""s_cmp_lg_u32 s{sRND}, 0
            s_cbranch_scc1 L_pfq
            v_lshrrev_b32 v30, 3, v{vL}
            v_lshlrev_b32 v30, 12, v30
            v_and_b32 v31, 7, v{vL}
            v_lshl_add_u32 v30, v31, 7, v30
            s_and_b32 s{sA}, s2, 6
            s_lshl_b32 s{sA}, s{sA}, 2
            s_lshr_b32 s{sC}, s{sRB}, 3
            s_add_u32 s{sA}, s{sA}, s{sC}
            s_lshl_b32 s{sA}, s{sA}, 3
            s_add_u32 s{sA}, s{sA}, s{sWAVE}
            s_lshl_b32 s{sA}, s{sA}, 15
            s_add_u32 s{sA}, s{sA}, s{sPK}
            buffer_load_dword v217, v30, {srd(SRD_PF)}, s{sA} offen
            s_add_u32 s{sPK}, s{sPK}, 1024
            s_and_b32 s{sPK}, s{sPK}, 4095
            s_mov_b32 s{sPN}, 6""")
            a.lab("L_pfq")
        else:
            for _ in range(2): pf_touch()
    NK = int(g.o.get("pfk", 0))
    kc = [0]
    def pf_k():
        kc[0] += 1
        if PFM == "2" and kc[0] <= 3:
            L = a.newlab("Lpw")
            e(f"s_cmp_lg_u32 s{sRND}, 0\ns_cbranch_scc1 {L}")
            if kc[0] == 1: e(f"buffer_load_dword v219, v215, {srd(SRD_WI)}, s{sPK} offen")
            if kc[0] == 2: e(f"buffer_load_dword v219, v215, {srd(SRD_WI)}, s{sWP} offen\ns_add_u32 s{sWP}, s{sWP}, {64*8*3456}")
            if kc[0] == 3: e(f"buffer_load_dword v219, v215, {srd(SRD_WI)}, s{sWP} offen")
            a.lab(L)
        if kc[0] > 6 - NK: pf_touch()
    vL16 = 11; vFL = 218; vDS = 22
    def xn_addr(sch, sdst):
        e(f"s_lshr_b32 s{sA}, s{sch}, 4\ns_mov_b32 s{sdst}, {WS_FXN}")
        for th in (7, 14, 20, 26, 32):
            e(f"s_cmp_ge_u32 s{sA}, {th}\ns_cselect_b32 s{sT}, 4096, 0\ns_add_u32 s{sdst}, s{sdst}, s{sT}")
    XF = 24
    def xn_load(): e(f"buffer_load_dwordx4 v[{XF}:{XF+3}], v{vFL}, {srd(SRD_WS)}, s{sF1} offen sc1")
    def xn_check():
        e(f"""v_xor_b32 v{XF}, s{sTAG}, v{XF}
        v_xor_b32 v{XF+1}, s{sTAG}, v{XF+1}
        v_xor_b32 v{XF+2}, s{sTAG}, v{XF+2}
        v_xor_b32 v{XF+3}, s{sTAG}, v{XF+3}
        v_or3_b32 v{XF}, v{XF}, v{XF+1}, v{XF+2}
        v_or_b32 v{XF}, v{XF}, v{XF+3}
        v_cmp_ne_u32 vcc, 0, v{XF}""")
    def u_dma(sch):
        e(f"""s_lshl_b32 s{sA}, s{sch}, 12
        s_add_u32 s{sA}, s{sA}, {WS_XNT}
        s_sub_u32 s{sC}, s{sA}, 4
        s_add_u32 m0, s{sSLOT}, {UOFF + UCP + 64}
        s_lshl_b32 s{sD}, s{sch}, 1""")
        for i in range(4): e(f"buffer_load_dwordx4 v{vL16}, {srd(SRD_WS)}, s{sA} offen offset:{1024*i} sc1 lds")
        e(f"s_add_u32 m0, s{sSLOT}, {UOFF + 64}\ns_nop 0")
        for i in range(4): e(f"buffer_load_dwordx4 v{vL16}, {srd(SRD_WS)}, s{sC} offen offset:{1024*i} sc1 lds")
        e(f"buffer_load_ushort v{vDS}, v{vZ}, {srd(SRD_DSK)}, s{sD} offen")
    e(f"""v_lshlrev_b32 v{vL16}, 4, v{vL}
    s_and_b32 s{sC2}, s{sWAVE}, 1
    s_add_u32 s{sC2}, s{sC2}, s{sD0}
    s_add_u32 s{sC2}, s{sC2}, 8
    s_mov_b32 s{sUF}, 0""")
    xn_addr(sCH, sF1); xn_addr(sC2, sF2)
    AR, PH, CRp, CIp = 24, 26, 28, 30
    W = 32
    def C(i): return W + 4*i
    def re(c): return f"v[{c}:{c+1}]"
    def im(c): return f"v[{c+2}:{c+3}]"
    tp = T
    TMP = 176
    def cexp_l(c, p, k):
        lit = hx(f2u(float(p))); tp = TMP + 4*k
        return [f"v_mul_f32 v{tp}, {lit}, v{AR}", f"v_mul_f32 v{tp+1}, {lit}, v{AR+1}",
        f"v_mul_f32 v{tp+2}, {lit}, v{PH}", f"v_mul_f32 v{tp+3}, {lit}, v{PH+1}",
        f"v_exp_f32 v{tp}, v{tp}", f"v_exp_f32 v{tp+1}, v{tp+1}",
        f"v_fract_f32 v{tp+2}, v{tp+2}", f"v_fract_f32 v{tp+3}, v{tp+3}",
        f"v_cos_f32 v{c}, v{tp+2}", f"v_cos_f32 v{c+1}, v{tp+3}",
        f"v_sin_f32 v{c+2}, v{tp+2}", f"v_sin_f32 v{c+3}, v{tp+3}",
        f"v_pk_mul_f32 {re(c)}, {re(c)}, v[{tp}:{tp+1}]", f"v_pk_mul_f32 {im(c)}, {im(c)}, v[{tp}:{tp+1}]"]
    def cmul_l(z, x, y, k):
        tp = TMP + 4*k
        assert z not in (x, y)
        return [f"v_pk_mul_f32 v[{tp}:{tp+1}], {im(x)}, {im(y)}",
        f"v_pk_mul_f32 v[{tp+2}:{tp+3}], {im(x)}, {re(y)}",
        f"v_pk_fma_f32 {re(z)}, {re(x)}, {re(y)}, v[{tp}:{tp+1}] neg_lo:[0,0,1] neg_hi:[0,0,1]",
        f"v_pk_fma_f32 {im(z)}, {re(x)}, {im(y)}, v[{tp+2}:{tp+3}]"]
    def put_l(c, row, neg, k):
        d = 192 + 2*k
        n = "-" if neg else ""
        return [f"v_cvt_pk_f16_f32 v{d}, v{c}, {n}v{c+2}", f"v_cvt_pk_f16_f32 v{d+1}, v{c+1}, {n}v{c+3}",
                f"ds_write_b64 v{vSW}, v[{d}:{d+1}] offset:{528*row}"]
    def batch(jobs):
        for i in range(0, len(jobs), 4):
            g.rr([j(k) for k, j in enumerate(jobs[i:i+4])])
    def J_mul(z, x, y, row=None, neg=False):
        return lambda k: cmul_l(z, x, y, k) + (put_l(z, row, neg, k) if row is not None else [])
    def J_put(c, row, neg): return lambda k: put_l(c, row, neg, k)
    E2F = 112
    E1F = 144
    DD = 12
    vSC = 23
    e(f"s_mul_i32 s{sTBL}, s{sWAVE}, {TSZ}\ns_add_u32 s{sTBL}, s{sTBL}, {TB}")
    e(f"s_waitcnt vmcnt({9+npf}) lgkmcnt(0)")
    if PFW:
        e(f"""v_lshrrev_b32 v218, 3, v{vL}
        v_mul_u32_u24 v218, 3456, v218
        v_and_b32 v219, 7, v{vL}
        v_lshl_add_u32 v218, v219, 7, v218
        s_lshr_b32 s{sA}, s{sRB}, 3
        s_lshl_b32 s{sA}, s{sA}, 3
        s_add_u32 s{sA}, s{sA}, s{sWAVE}
        s_and_b32 s{sC}, s2, 1
        s_mul_i32 s{sC}, s{sC}, 768
        s_mul_i32 s{sWP}, s{sA}, {8*3456}
        s_add_u32 s{sWP}, s{sWP}, s{sC}""")
    a.lab("L_kgen")
    g.stamp(8)
    e(f"s_mov_b32 s{sB}, 0xffff0000")
    e(f"""s_cmp_lg_u32 s{sRND}, 0
    s_cbranch_scc1 L_r0_skip
    s_mul_i32 s{sTAG}, s{sTAG}, 0x9E3779B1
    s_add_u32 s{sTAG}, s{sTAG}, 0x7F4A7C15
    s_cmp_eq_u32 s{sWJ}, 0
    s_cbranch_scc1 L_wj2_skip
    v_lshrrev_b32 v{E1F+16}, 2, v{vL}
    v_lshlrev_b32 v{E1F+16}, 7, v{E1F+16}
    v_and_b32 v{E1F+17}, 3, v{vL}
    v_lshl_add_u32 v{E1F+16}, v{E1F+17}, 3, v{E1F+16}
    v_add_u32 v{E1F+16}, s{sSLOT}, v{E1F+16}
    v_lshlrev_b32 v{E1F+17}, 4, v{vL}""")
    for df in range(4):
        for hf in range(2):
            e(f"ds_read_b64_tr_b16 v[{E1F+4*df+2*hf}:{E1F+4*df+2*hf+1}], v{E1F+16} offset:{UOFF + 128 + hf*2048 + df*32}")
    e(f"""s_lshl_b32 s{sA}, s{sLN}, 2
    s_mul_i32 s{sA}, s{sA}, {27*1024}
    s_lshl_b32 s{sC}, s{sKS}, 10
    s_add_u32 s{sA}, s{sA}, s{sC}
    s_add_u32 s{sA}, s{sA}, {WS_WOT}
    s_waitcnt lgkmcnt(0)""")
    for df in range(4):
        e(f"buffer_store_dwordx4 v[{E1F+4*df}:{E1F+4*df+3}], v{E1F+17}, {srd(SRD_WS)}, s{sA} offen sc1\ns_add_u32 s{sA}, s{sA}, {27*1024}")
    a.lab("L_wj2_skip")
    if PFW:
        e(f"""buffer_load_dword v219, v218, {srd(SRD_WI)}, s{sWP} offen
        s_add_u32 s{sWP}, s{sWP}, {64*8*3456}
        buffer_load_dword v219, v218, {srd(SRD_WI)}, s{sWP} offen""")
    a.lab("L_r0_skip")
    e(f"""v_mov_b32 v215, v218
    s_sub_u32 s{sA}, s{sF2}, s{sF1}
    v_lshrrev_b32 v{vFL}, 5, v{vL}
    v_mul_lo_u32 v{vFL}, v{vFL}, s{sA}
    v_and_b32 v214, 31, v{vL}
    v_lshl_add_u32 v{vFL}, v214, 7, v{vFL}""")
    g.stamp(9)
    e(f"""v_lshlrev_b32 v{T+8}, 16, v{T+8}
    v_mul_f32 v{T+8}, {hx(f2u(LOG2E))}, v{T+8}
    v_exp_f32 v{T+8}, v{T+8}
    v_lshlrev_b32 v{AR}, 16, v{T+4}
    v_and_b32 v{AR+1}, s{sB}, v{T+4}
    v_cvt_pk_bf16_f32 v{T+8}, v{T+8}, v{T+8}
    v_mul_f32 v{AR}, {hx(f2u(LOG2E))}, v{AR}
    v_mul_f32 v{AR+1}, {hx(f2u(LOG2E))}, v{AR+1}
    v_lshlrev_b32 v{T+8}, 16, v{T+8}
    v_exp_f32 v{AR}, v{AR}
    v_exp_f32 v{AR+1}, v{AR+1}
    v_lshlrev_b32 v{PH}, 16, v{T+5}
    v_and_b32 v{PH+1}, s{sB}, v{T+5}
    v_cvt_pk_bf16_f32 v{T+4}, v{AR}, v{AR+1}
    v_lshlrev_b32 v{AR}, 16, v{T+4}
    v_and_b32 v{AR+1}, s{sB}, v{T+4}
    v_mul_f32 v{AR}, v{AR}, v{T+8}
    v_mul_f32 v{AR+1}, v{AR+1}, v{T+8}
    v_mul_f32 v{AR}, {hx(f2u(-LOG2E))}, v{AR}
    v_mul_f32 v{AR+1}, {hx(f2u(-LOG2E))}, v{AR+1}
    v_mul_f32 v{PH}, v{PH}, v{T+8}
    v_mul_f32 v{PH+1}, v{PH+1}, v{T+8}
    v_mul_f32 v{PH}, {hx(f2u(1/(2*math.pi)))}, v{PH}
    v_mul_f32 v{PH+1}, {hx(f2u(1/(2*math.pi)))}, v{PH+1}
    v_lshlrev_b32 v{CRp}, 16, v{T+6}
    v_and_b32 v{CRp+1}, s{sB}, v{T+6}
    v_lshlrev_b32 v{CIp}, 16, v{T+7}
    v_and_b32 v{CIp+1}, s{sB}, v{T+7}
    v_max3_f32 v{T}, abs(v{CRp}), abs(v{CRp+1}), abs(v{CIp})
    v_max_f32 v{T}, abs(v{CIp+1}), v{T}""")
    for m in ("row_ror:8", "row_ror:4", "row_ror:2", "row_ror:1"):
        e(f"v_max_f32_dpp v{T}, v{T}, v{T} {m} row_mask:0xf bank_mask:0xf")
    e(f"""v_readlane_b32 s{sA}, v{T}, 0
    v_readlane_b32 s{sC}, v{T}, 16
    v_readlane_b32 s{sD}, v{T}, 32
    v_readlane_b32 s{sT}, v{T}, 48
    s_max_u32 s{sA}, s{sA}, s{sC}
    s_max_u32 s{sD}, s{sD}, s{sT}
    s_max_u32 s{sA}, s{sA}, s{sD}
    v_frexp_exp_i32_f32 v{T}, s{sA}
    v_sub_u32 v{T+1}, 0, v{T}
    v_ldexp_f32 v{C(0)}, v{CRp}, v{T+1}
    v_ldexp_f32 v{C(0)+1}, v{CRp+1}, v{T+1}
    v_ldexp_f32 v{C(0)+2}, v{CIp}, v{T+1}
    v_ldexp_f32 v{C(0)+3}, v{CIp+1}, v{T+1}
    v_add_f32 v{vSC}, v{T+8}, v{T+8}
    v_ldexp_f32 v{vSC}, v{vSC}, v{T}""")
    e(f"""s_cmp_lg_u32 s{sRND}, 0
    s_cbranch_scc1 L_np2
    s_cmp_lt_u32 s{sWAVE}, 6
    s_cbranch_scc1 L_np2
    s_add_u32 s{sCH}, s{sCH}, 2""")
    param_loads()
    e(f"s_mov_b32 s{sB}, 0xffff0000")
    a.lab("L_np2")
    Tq = lambda q: C(q)
    P = lambda j: C(8 + j - 1)
    V = {1: C(16), 2: C(17), 4: C(18), 8: C(19)}
    SO = lambda k: E1F + 4*k
    pf_k()
    g.rr([cexp_l(P(1), 8, 0), cexp_l(V[1], 128, 1)])
    e(f"v_mov_b32 v{SO(0)}, 1.0\nv_mov_b32 v{SO(0)+1}, 1.0\nv_mov_b32 v{SO(0)+2}, 0\nv_mov_b32 v{SO(0)+3}, 0")
    batch([J_mul(P(2), P(1), P(1), 2, True), J_mul(V[2], V[1], V[1]), J_mul(Tq(1), Tq(0), V[1]), J_put(SO(0), 0, True)])
    batch([J_mul(P(4), P(2), P(2), 4, True), J_mul(P(3), P(2), P(1), 3, True), J_mul(V[4], V[2], V[2]), J_put(P(1), 1, True)])
    pf_k()
    batch([J_mul(P(8), P(4), P(4), 8, True), J_mul(P(5), P(4), P(1), 5, True), J_mul(P(6), P(4), P(2), 6, True), J_mul(P(7), P(4), P(3), 7, True)])
    batch([J_mul(SO(k % 4), P(8), P(k + 1), 9 + k, True) for k in range(7)] + [J_mul(V[8], V[4], V[4])])
    for ks in range(8):
        e(f"ds_read_b128 v[{E2F+4*ks}:{E2F+4*ks+3}], v{vSR} offset:{64*ks}")
    pf_k()
    g.stamp(10)
    R = P
    g.rr([cexp_l(R(1), 1, 0), cmul_l(Tq(2), Tq(0), V[2], 1) + cmul_l(Tq(4), Tq(0), V[4], 1) + cmul_l(Tq(5), Tq(1), V[4], 1),
          cmul_l(Tq(3), Tq(1), V[2], 2) + put_l(Tq(0), 0, False, 2) + put_l(Tq(1), 8, False, 2)])
    batch([J_mul(R(2), R(1), R(1)), J_mul(Tq(6), Tq(2), V[4]), J_mul(Tq(7), Tq(3), V[4]), J_mul(SO(0), Tq(0), R(1), 1)])
    batch([J_mul(R(4), R(2), R(2)), J_mul(R(3), R(2), R(1)), J_mul(SO(1), Tq(1), R(1), 9), J_mul(SO(2), Tq(0), R(2), 2)])
    pf_k()
    batch([J_mul(R(5), R(4), R(1)), J_mul(R(6), R(4), R(2)), J_mul(R(7), R(4), R(3)), J_mul(SO(3), Tq(1), R(2), 10)])
    batch([J_mul(SO(k % 4), Tq(k & 1), R(3 + (k >> 1)), 8*(k & 1) + 3 + (k >> 1)) for k in range(10)])
    def tile_rd():
        for ks in range(8):
            e(f"ds_read_b128 v[{E1F+4*ks}:{E1F+4*ks+3}], v{vSR} offset:{64*ks}")
    def tile_mma(nafter):
        for ks in range(8):
            e(f"s_waitcnt lgkmcnt({7-ks})")
            e(f"v_mfma_f32_16x16x32_f16 v[{DD}:{DD+3}], v[{E1F+4*ks}:{E1F+4*ks+3}], v[{E2F+4*ks}:{E2F+4*ks+3}], {'0' if ks == 0 else f'v[{DD}:{DD+3}]'}")
    def tile_fin():
        for r in range(4): e(f"v_mul_f32 v{DD+r}, v{DD+r}, v{vSC}")
        e(f"v_cvt_pk_bf16_f32 v{DD}, v{DD}, v{DD+1}\nv_cvt_pk_bf16_f32 v{DD+1}, v{DD+2}, v{DD+3}")
    def taddr(v, d): e(f"v_add_u32 v{d}, s{sTBL}, v{v}")
    SO2 = lambda k: 200 + 4*k
    tile_rd(); tile_mma(0); pf_k()
    g.stamp(11)
    jobs = []
    for q in range(2):
        jobs.append(J_put(Tq(2 + q), 4*q, False))
        for r in range(1, 4): jobs.append(J_mul(SO2(len(jobs) % 4), Tq(2 + q), R(2*r), 4*q + r))
    for q in range(4):
        jobs.append(J_put(Tq(4 + q), 8 + 2*q, False))
        jobs.append(J_mul(SO2(len(jobs) % 4), Tq(4 + q), R(4), 8 + 2*q + 1))
    batch(jobs[:4])
    tile_fin(); taddr(vT0, DD+2)
    e(f"ds_write_b64 v{DD+2}, v[{DD}:{DD+1}]")
    pf_k()
    batch(jobs[4:])
    tile_rd(); tile_mma(0)
    xn_load()
    jobs = [J_mul(R(1), Tq(0), V[8], 0)] + [J_mul(SO2(q % 4), Tq(q), V[8], q) for q in range(1, 8)]
    batch(jobs[:4])
    tile_fin(); taddr(vT1a, DD+2); taddr(vT1b, DD+3)
    e(f"ds_write_b32 v{DD+2}, v{DD}\nds_write_b32 v{DD+3}, v{DD+1}")
    batch(jobs[4:])
    batch([J_mul(SO2(0), R(1), V[8], 8)])
    tile_rd(); tile_mma(0)
    g.stamp(12)
    e(f"""s_waitcnt vmcnt(0)
    s_cmp_lg_u32 s{sUF}, 0
    s_cbranch_scc1 L_uf_skip""")
    xn_check()
    e(f"""s_cbranch_vccnz L_uf_skip
    s_mov_b32 s{sUF}, 1
    s_add_u32 s{sT2}, s{sD0}, s{sWAVE}""")
    u_dma(sT2)
    a.lab("L_uf_skip")
    e(f"""s_cmp_lg_u32 s{sRND}, 0
    s_cbranch_scc1 L_wj3_skip
    s_cmp_eq_u32 s{sWJ}, 0
    s_cbranch_scc1 L_wj3_skip
    s_lshl_b32 s{sA}, s{sLN}, 5
    s_add_u32 s{sA}, s{sA}, s{sKS}
    s_lshl_b32 s{sA}, s{sA}, {FS}
    s_add_u32 s{sA}, s{sA}, {WS_FWO}""")
    g.flag_store(sA, 28)
    a.lab("L_wj3_skip")
    if g.o.get("pfqe", "0") == "1": pfq()
    tile_fin(); taddr(vT2, DD+2)
    e(f"""ds_write_b16 v{DD+2}, v{DD}
    ds_write_b16_d16_hi v{DD+2}, v{DD} offset:32
    ds_write_b16 v{DD+2}, v{DD+1} offset:64
    ds_write_b16_d16_hi v{DD+2}, v{DD+1} offset:96
    v_mov_b32 v{DD+3}, s{sTBL}
    ds_write_b32 v{DD+3}, v{vZ} offset:{2*ZI}""")
    e(f"""s_cmp_lg_u32 s{sRND}, 0
    s_cbranch_scc1 L_kgen_done
    s_cmp_lt_u32 s{sWAVE}, 6
    s_cbranch_scc1 L_kgen_done
    s_mov_b32 s{sRND}, 1
    s_add_u32 s{sTBL}, s{sTBL}, {2*TSZ}
    s_branch L_kgen""")
    a.lab("L_kgen_done")
    g.stamp(1)
    vKA, vUB, vKW, vZW, vEU, vES, vYO = 60, 61, 62, 63, 65, 66, 67
    vKAc, vUBc = 69, 70
    vDP = 172
    e(f"s_add_u32 s{sCH}, s{sD0}, s{sWAVE}")
    e(f"""v_and_b32 v{T}, 1, v{vJ}
    v_mul_u32_u24 v{vKA}, {KCP}, v{T}
    v_lshrrev_b32 v{T+1}, 1, v{vJ}
    v_lshlrev_b32 v{T+1}, 6, v{T+1}
    v_lshl_add_u32 v{T+1}, v{vG}, 4, v{T+1}
    v_sub_u32 v{vKA}, v{vKA}, v{T+1}
    v_add_u32 v{vKA}, {4528 - 3584}, v{vKA}
    v_add_u32 v{vKA}, s{sSLOT}, v{vKA}
    v_mul_u32_u24 v{vUB}, {UCP}, v{T}
    v_or_b32 v{T+1}, 1, v{vJ}
    v_lshl_add_u32 v{vUB}, v{T+1}, 2, v{vUB}
    v_lshlrev_b32 v{T+1}, 4, v{vG}
    v_sub_u32 v{vUB}, v{vUB}, v{T+1}
    v_add_u32 v{vUB}, {UOFF + 52 + 448}, v{vUB}
    v_add_u32 v{vUB}, s{sSLOT}, v{vUB}
    v_add_u32 v{vKW}, s{sSLOT}, v{vL16}
    v_and_b32 v{T}, 31, v{vL}
    v_min_u32 v{T}, 29, v{T}
    v_lshlrev_b32 v{T}, 4, v{T}
    v_lshrrev_b32 v{T+1}, 5, v{vL}
    v_mul_u32_u24 v{T+1}, {KCP}, v{T+1}
    v_add3_u32 v{vZW}, v{T}, v{T+1}, s{sSLOT}
    v_lshlrev_b32 v{vES}, 7, v{vG}
    v_lshl_add_u32 v{vES}, v{vJ}, 2, v{vES}
    v_add_u32 v{vES}, s{sSLOT}, v{vES}
    v_add_u32 v{vEU}, {UOFF + UCP + 64}, v{vES}
    v_lshrrev_b32 v{T}, 3, v{vL}
    s_mov_b32 s{sA}, {640*128}
    v_mul_lo_u32 v{vYO}, v{T}, s{sA}
    v_and_b32 v{T}, 7, v{vL}
    v_lshl_add_u32 v{vYO}, v{T}, 4, v{vYO}""")
    ZQ = 72
    for i in range(4): e(f"v_mov_b32 v{ZQ+i}, 0")
    e(f"""v_and_b32 v{T}, 3, v{vL}
    v_lshlrev_b32 v{T}, 4, v{T}
    v_bfe_u32 v{T+1}, v{vL}, 2, 1
    v_mul_u32_u24 v{T+1}, {UCP}, v{T+1}
    v_add3_u32 v{T}, v{T}, v{T+1}, s{sSLOT}
    ds_write_b128 v{T}, v[{ZQ}:{ZQ+3}] offset:{UOFF}
    s_mov_b32 s{sRND}, 0
    s_mov_b32 s{sNIT}, 8
    s_mov_b32 s{sMO}, 0
    s_add_u32 s{sCH}, s{sD0}, s{sWAVE}
    s_mul_i32 s{sTBL}, s{sWAVE}, {TSZ}
    s_add_u32 s{sTBL}, s{sTBL}, {TB}""")
    for i in range(36): e(f"v_add_u32 v{GA+i}, s{sTBL}, v{GA+i}")
    e("s_setprio 0")
    g.stamp(2)
    AF = 76
    BF = 108
    AC = 140
    GV = 76
    OQ = 112
    a.lab("L_conv")
    for m in range(4):
        for ee in range(9):
            e(f"ds_read_u16 v{GV+9*m+ee}, v{GA+9*m+ee}")
        if m % 2 == 1 or True:
            e("s_waitcnt lgkmcnt(0)")
            q = OQ + 8*(m & 1)
            b = GV + 9*m
            for i in range(4):
                e(f"v_lshl_or_b32 v{q+i}, v{b+2*i+2}, 16, v{b+2*i+1}")
                e(f"v_lshl_or_b32 v{q+4+i}, v{b+2*i+1}, 16, v{b+2*i}")
            e(f"ds_write_b128 v{vKW}, v[{q}:{q+3}] offset:{1024*m}\nds_write_b128 v{vKW}, v[{q+4}:{q+7}] offset:{KCP + 1024*m}")
    e(f"ds_write_b128 v{vZW}, v[{ZQ}:{ZQ+3}] offset:4096")
    e(f"""v_mov_b32 v{vKAc}, v{vKA}
    v_mov_b32 v{vUBc}, v{vUB}
    v_mov_b32 v{T}, s{sSLOT}""")
    g.stamp(13)
    e(f"s_cmp_lg_u32 s{sUF}, 0\ns_cbranch_scc1 L_nofetch")
    e(f"s_mov_b32 s{sSPIN}, {SPIN_MAX}")
    a.lab("L_xpoll")
    xn_load()
    e("s_waitcnt vmcnt(0)")
    xn_check()
    e(f"""s_cbranch_vccz L_xpolld
    s_mov_b64 exec, vcc
    s_sleep {g.o.get("xslp", 12)}
    s_sub_u32 s{sSPIN}, s{sSPIN}, 1
    s_cmp_lg_u32 s{sSPIN}, 0
    s_cbranch_scc1 L_xpoll""")
    a.lab("L_xpolld")
    e("s_mov_b64 exec, -1")
    g.stamp(3)
    u_dma(sCH)
    e(f"s_mov_b32 s{sUF}, 1")
    a.lab("L_nofetch")
    for i in range(32): e(f"v_mov_b32 v{AC+i}, 0")
    e(f"""s_mov_b32 s{sCNT}, s{sNIT}
    v_subrev_u32 v{vKAc}, s{sMO}, v{vKAc}
    v_subrev_u32 v{vUBc}, s{sMO}, v{vUBc}
    s_waitcnt vmcnt(0)
    ds_write_b32 v{T}, v{vZ} offset:{UOFF + 64}
    v_lshlrev_b32 v{vDP}, 16, v{vDS}
    v_mov_b32 v{vDP+1}, v{vDP}""")
    if g.o.get("pfqe", "0") != "1": pfq()
    g.stamp(4)
    a.lab("L_mu0")
    def rd(m):
        return [f"ds_read_b128 v[{AF+4*m}:{AF+4*m+3}], v{vKAc} offset:{512*(7-m)}",
                f"ds_read_b64 v[{BF+4*m}:{BF+4*m+1}], v{vUBc} offset:{512*m}",
                f"ds_read_b64 v[{BF+4*m+2}:{BF+4*m+3}], v{vUBc} offset:{512*m+8}"]
    for m in range(5):
        for s in rd(m): e(s)
    issued = 5
    for m in range(8):
        e(f"s_waitcnt lgkmcnt({3*(issued-1-m)})")
        pairs = [(m, b) for b in range(m+1) if m + b <= 7] + [(u, m) for u in range(m) if u + m <= 7]
        for k, (u, b) in enumerate(pairs):
            c = AC + 4*(u + b)
            e(f"v_mfma_f32_16x16x32_bf16 v[{c}:{c+3}], v[{AF+4*u}:{AF+4*u+3}], v[{BF+4*b}:{BF+4*b+3}], v[{c}:{c+3}]")
        if issued < 8:
            for s in rd(issued): e(s)
            issued += 1
    pf_touch()
    e(f"""v_subrev_u32 v{vKAc}, 64, v{vKAc}
    v_subrev_u32 v{vUBc}, 64, v{vUBc}
    s_sub_u32 s{sCNT}, s{sCNT}, 1
    s_cmp_lg_u32 s{sCNT}, 0
    s_cbranch_scc1 L_mu0""")
    g.stamp(5)
    e(f"""s_cmp_eq_u32 s{sRND}, 0
    s_cbranch_scc1 L_epi
    s_cmp_lt_u32 s{sWAVE}, 2
    s_cbranch_scc1 L_red_rd""")
    for c in range(8): e(f"ds_write_b128 v{vKW}, v[{AC+4*c}:{AC+4*c+3}] offset:{1024*c}")
    e("s_waitcnt lgkmcnt(0)\ns_barrier\ns_branch L_conv_done")
    a.lab("L_red_rd")
    e("s_barrier")
    for c in range(8): e(f"ds_read_b128 v[{BF+4*c}:{BF+4*c+3}], v{vKW} offset:{2*SLOT + 1024*c}")
    for c in range(8):
        e(f"s_waitcnt lgkmcnt({7-c})")
        e(f"v_pk_add_f32 v[{AC+4*c}:{AC+4*c+1}], v[{AC+4*c}:{AC+4*c+1}], v[{BF+4*c}:{BF+4*c+1}]\nv_pk_add_f32 v[{AC+4*c+2}:{AC+4*c+3}], v[{AC+4*c+2}:{AC+4*c+3}], v[{BF+4*c+2}:{BF+4*c+3}]")
    a.lab("L_epi")
    UV = AF
    for c in range(8):
        e(f"ds_read2_b32 v[{UV+2*c}:{UV+2*c+1}], v{vEU} offset0:{128*c % 256} offset1:{(128*c + 16) % 256}" if c < 2 else "")
    for c in range(2, 8):
        e(f"ds_read_b32 v{UV+2*c}, v{vEU} offset:{512*c}\nds_read_b32 v{UV+2*c+1}, v{vEU} offset:{512*c+64}")
    e(f"""s_mov_b32 s{sB}, 0xffff0000
    s_waitcnt lgkmcnt(0)
    s_cmp_lg_u32 s{sRND}, 0
    s_cbranch_scc1 L_nou2
    s_cmp_ge_u32 s{sWAVE}, 4
    s_cbranch_scc1 L_nou2""")
    u_dma(sC2)
    a.lab("L_nou2")
    for c in range(8):
        for h in range(2):
            y = AC + 4*c + 2*h; u = UV + 2*c + h
            p0, p1 = T, T+2
            p0 = T + 2*h
            e(f"""v_lshlrev_b32 v{p0}, 16, v{u}
            v_and_b32 v{p0+1}, s{sB}, v{u}
            v_pk_fma_f32 v[{y}:{y+1}], v[{p0}:{p0+1}], v[{vDP}:{vDP+1}], v[{y}:{y+1}]
            v_cvt_pk_bf16_f32 v{y}, v{y}, v{y+1}
            ds_write_b32 v{vES}, v{y} offset:{512*c + 64*h}""")
    for i in range(4):
        e(f"ds_read_b128 v[{BF+4*i}:{BF+4*i+3}], v{vKW} offset:{1024*i}")
    e(f"""s_lshl_b32 s{sA}, s{sCH}, 7
    s_add_u32 s{sA}, s{sA}, {WS_YA}""")
    for i in range(4):
        e(f"""s_waitcnt lgkmcnt({3-i})
        buffer_store_dwordx4 v[{BF+4*i}:{BF+4*i+3}], v{vYO}, {srd(SRD_WS)}, s{sA} offen sc1
        s_add_u32 s{sA}, s{sA}, {8*640*128}""")
    pf_touch(); pf_touch()
    g.stamp(6)
    e(f"""s_cmp_lg_u32 s{sRND}, 0
    s_cbranch_scc1 L_conv_done
    s_barrier
    s_cmp_ge_u32 s{sWAVE}, 4
    s_cbranch_scc1 L_conv_idle
    s_mov_b32 s{sRND}, 1
    s_mov_b32 s{sNIT}, 4
    s_lshr_b32 s{sMO}, s{sWAVE}, 1
    s_lshl_b32 s{sMO}, s{sMO}, 8
    s_and_b32 s{sA}, s{sWAVE}, 1
    s_add_u32 s{sCH}, s{sD0}, 8
    s_add_u32 s{sCH}, s{sCH}, s{sA}
    s_add_u32 s{sA}, s{sA}, 8
    s_sub_u32 s{sA}, s{sA}, s{sWAVE}
    s_mul_i32 s{sA}, s{sA}, {TSZ}""")
    for i in range(36): e(f"v_add_u32 v{GA+i}, s{sA}, v{GA+i}")
    e("s_branch L_conv")
    a.lab("L_conv_idle")
    if g.o.get("hwarm"):
        e(f"""s_lshl_b32 s{sA}, s{sRB}, 2
        s_add_u32 s{sA}, s{sA}, s{sWAVE}
        s_sub_u32 s{sA}, s{sA}, 4
        s_mul_i32 s{sA}, s{sA}, {108*128}
        s_add_u32 s{sA}, s{sA}, {WS_H}
        v_min_u32 v216, 53, v{vL}
        v_lshlrev_b32 v216, 7, v216
        buffer_load_dword v217, v216, {srd(SRD_WS)}, s{sA} offen sc1
        s_add_u32 s{sA}, s{sA}, {54*128}
        buffer_load_dword v217, v216, {srd(SRD_WS)}, s{sA} offen sc1""")
    if g.o.get("swt", "1") == "1":
        e(f"""s_lshr_b32 s{sA}, s{sRB}, 3
        s_lshl_b32 s{sA}, s{sA}, 2
        s_add_u32 s{sA}, s{sA}, s{sWAVE}
        s_sub_u32 s{sA}, s{sA}, 4
        s_and_b32 s{sC}, s2, 1
        s_mul_i32 s{sD}, s{sC}, {24*27*1024}
        s_mul_i32 s{sC}, s{sC}, 54
        s_sub_u32 s{sC}, 162, s{sC}
        s_mul_i32 s{sA}, s{sA}, s{sC}
        s_lshl_b32 s{sA}, s{sA}, 7
        s_add_u32 s{sA}, s{sA}, s{sD}
        s_add_u32 s{sA}, s{sA}, {WS_WOT}
        v_min_u32 v216, 53, v{vL}
        v_lshlrev_b32 v216, 7, v216
        buffer_load_dword v217, v216, {srd(SRD_WS)}, s{sA} offen sc1
        s_add_u32 s{sA}, s{sA}, {54*128}
        buffer_load_dword v217, v216, {srd(SRD_WS)}, s{sA} offen sc1
        s_add_u32 s{sA}, s{sA}, {54*128}
        buffer_load_dword v217, v216, {srd(SRD_WS)}, s{sA} offen sc1""")
    e("s_barrier")
    a.lab("L_conv_done")
    e(f"""s_waitcnt vmcnt(0)
    s_barrier
    s_cmp_lg_u32 s{sWAVE}, 0
    s_cbranch_scc1 L_end
    s_lshl_b32 s{sA}, s{sRB}, {FS}
    s_add_u32 s{sA}, s{sA}, {WS_FY}""")
    g.flag_store(sA, T)
    g.stamp(7)
    e("s_branch L_end")


def gtab():
    import numpy as np
    def bf16r(l):
        u = int(np.float32(l).view(np.uint32))
        u = (u + 0x7FFF + ((u >> 16) & 1)) >> 16
        return u
    out = []
    for q in range(9):
        for lane in range(64):
            for k in range(4):
                m, ee = divmod(4*q + k, 9)
                l = 2047 - 8*(lane + 64*m) - ee
                idx = ZI if l < 0 else (l if l < 128 else bf16r(l) - 0x4300 + 128)
                out.append(2*idx)
    return out
```

```python
import sys, math, struct
from asmlib import Asm

KNAME = "parallel_sum__ssm_conv_s4d__mixer_gmlp__prompt_kernel"
def f2u(x): return struct.unpack("<I", struct.pack("<f", x))[0]
def hx(x): return f"0x{x:08x}"

WS_EPOCH = 0
WS_FXN   = 0xE0000
WS_FZ2   = 0x20000
WS_FH    = 0x40000
WS_FY    = 0x60000
WS_FWO   = 0x70000
WS_WOT   = 0xF00000 - 0x20000
WS_STATS = 0x80000
WS_XNT   = 0x100000
WS_Z2    = 0x400000
WS_H     = 0x800000
WS_YA    = 0xC00000
WS_DBG   = 0x1000000
WS_SIZE  = 0x2000000

FS = 7
XT = 0; RING1 = 81920; S1SZ = 20480; RSTAB = RING1 + 3*S1SZ
NA = 8; BRING = 65536; NB = 4; BSZ = 18432
HB = 49152; YAB = 16384; XB = 32768

sWAVE, sRB, sCB, sTAG, sT = 3, 4, 5, 6, 7
SRD_X, SRD_WIN, SRD_WSP, SRD_WOUT, SRD_OUT, SRD_WS, SRD_BSP = 8, 12, 16, 20, 24, 28, 32
def srd(n): return f"s[{n}:{n+3}]"
sW, sMH, sNH = 66, 67, 68
sWSLOT, sWSOFF, sWSL = 69, 70, 71
sXOFF, sROFF, sCNT = 72, 73, 74
sK1 = 76
sA, sB, sC, sD = 78, 79, 80, 81
sSPIN = 82
sMASK = 84
sE0 = 86
sTM = 88
sTM0 = 90
sT2 = 92
sW0 = 83
SPIN_MAX = 200000

class G:
    def __init__(self, opts):
        self.a = Asm(); self.o = opts; self.nstamp = 0
    def e(self, s):
        if self.o.get("nodma"):
            s = "\n".join(l for l in s.split("\n") if not l.strip().endswith(" lds"))
        if self.o.get("ntx"):
            s = s.replace(f"{srd(SRD_X)}, s{sC} offen", f"{srd(SRD_X)}, s{sC} offen nt")
        if self.o.get("novalu") and getattr(self, "inpro", False):
            s = "\n".join(l for l in s.split("\n") if not (l.strip().startswith("v_dot2") or l.strip().startswith("v_cvt_pk_bf16_f32 v4") or l.strip().startswith("v_cvt_pk_bf16_f32 v5") or l.strip().startswith("v_cvt_pk_bf16_f32 v6") or l.strip().startswith("v_cvt_pk_bf16_f32 v7")))
        if self.o.get("nosc1"):
            s = s.replace(" sc1 lds", " lds")
        self.a.e(s)

    def capture(self, fn):
        old = self.a; self.a = Asm(); self.a.uid = old.uid + 1000
        fn()
        out = [i.text for i in self.a.L]
        self.a = old
        return out
    def mk_srd(self, d, p, nbytes):
        self.e(f"""s_mov_b32 s{d}, s{p}
        s_mov_b32 s{d+1}, s{p+1}
        s_mov_b32 s{d+2}, {nbytes}
        s_mov_b32 s{d+3}, 0x20000""")

    def stamp(self, idx, vt=None):
        if not self.o.get("stamps"): return
        self.e(f"""s_memtime s[{sTM}:{sTM+1}]
        s_waitcnt lgkmcnt(0)
        s_sub_u32 s{sTM}, s{sTM}, s{sTM0}
        v_writelane_b32 v0, s{sTM}, {idx}""")

    def stamp_s(self, k):
        if not self.o.get("stamps"): return
        self.e(f"""s_memtime s[{sTM}:{sTM+1}]
        s_waitcnt lgkmcnt(0)
        s_sub_u32 s{96+k}, s{sTM}, s{sTM0}""")
    def stamp_flush(self):
        if not self.o.get("stamps"): return
        for k in range(4): self.e(f"v_writelane_b32 v0, s{96+k}, {40+k}")

    def stampd(self, base):
        if not self.o.get("fine"): return
        self.e(f"""s_memtime s[{sTM}:{sTM+1}]
        s_waitcnt lgkmcnt(0)
        s_sub_u32 s{sTM}, s{sTM}, s{sTM0}
        s_add_u32 m0, s{sCNT}, {base}
        s_nop 1
        v_writelane_b32 v0, s{sTM}, m0""")

    def poll(self, voff, soff, vtmp, sleep=None):
        L = self.a.newlab("Lpoll"); D = self.a.newlab("Lpolld")
        sl = sleep if sleep is not None else int(self.o.get("slp", 8))
        self.e(f"s_mov_b32 s{sSPIN}, {SPIN_MAX}")
        self.a.lab(L)
        self.e(f"""buffer_load_dword v{vtmp}, v{voff}, {srd(SRD_WS)}, {soff} offen sc1
        s_waitcnt vmcnt(0)
        v_cmp_ne_u32 vcc, s{sTAG}, v{vtmp}
        s_cbranch_vccz {D}
        s_mov_b64 exec, vcc
        s_sleep {sl}
        s_sub_u32 s{sSPIN}, s{sSPIN}, 1
        s_cmp_lg_u32 s{sSPIN}, 0
        s_cbranch_scc1 {L}""")
        self.a.lab(D)
        self.e("s_mov_b64 exec, -1")

    def flag_store(self, soff_sreg, vt):
        self.e(f"""v_mov_b32 v{vt}, s{sTAG}
        v_lshlrev_b32 v{vt+1}, 2, v1
        s_mov_b32 exec_hi, 0
        buffer_store_dword v{vt}, v{vt+1}, {srd(SRD_WS)}, s{soff_sreg} offen sc1
        s_mov_b64 exec, -1""")

    def entry(self):
        e = self.e
        e(f"""s_cmp_ge_u32 s2, 256
        s_cbranch_scc1 L_exit
        s_load_dwordx2 s[36:37], s[0:1], 0
        s_load_dwordx2 s[52:53], s[0:1], 64
        s_load_dwordx2 s[64:65], s[0:1], 112
        v_lshrrev_b32 v1, 6, v0
        s_and_b32 s{sA}, s2, 7
        s_lshr_b32 s{sB}, s2, 3""")
        if self.o.get("stamps") or self.o.get("dbgt"):
            e(f"s_memtime s[{sTM0}:{sTM0+1}]\ns_memrealtime s[100:101]")
        e(f"""v_readfirstlane_b32 s{sWAVE}, v1
        s_cmp_ge_u32 s{sB}, 24
        s_cbranch_scc1 L_ssm
        s_lshr_b32 s{sRB}, s{sA}, 1
        s_lshl_b32 s{sRB}, s{sRB}, 3
        s_and_b32 s{sC}, s{sB}, 7
        s_add_u32 s{sRB}, s{sRB}, s{sC}""")

    def entry2(self):
        e = self.e
        e(f"""s_load_dwordx4 s[56:59], s[0:1], 72
        s_load_dwordx2 s[60:61], s[0:1], 96
        s_load_dword s{sTAG}, s[64:65], {WS_EPOCH}
        s_lshr_b32 s{sMH}, s{sW}, 1
        s_and_b32 s{sNH}, s{sW}, 1""")
        self.mk_srd(SRD_WS, 64, WS_SIZE)
    def entry3(self):
        self.e("s_waitcnt lgkmcnt(0)")
        self.mk_srd(SRD_WSP, 56, 2048*2048*2)
        self.mk_srd(SRD_BSP, 58, 2048*2)
        self.mk_srd(SRD_OUT, 60, 2048*640*2)

    vL = 1
    vWOFF = 2
    vX0, vX1 = 8, 9
    vWB, vWB4 = 10, 11
    vA0, vA1, vB0, vB4 = 12, 13, 14, 15
    vWB1, vB1 = 38, 39
    vT = 16
    vK0 = 32
    FS = (40, 96)
    ACC = 152
    Z1 = 192
    XR = 40

    def w_ops(self):
        g = [f"""s_mov_b32 m0, s{sWSLOT}
        s_add_u32 s{sWSLOT}, s{sWSLOT}, {S1SZ}
        buffer_load_dwordx4 v{self.vWOFF}, {srd(SRD_WIN)}, s{sWSOFF} offen lds"""]
        for i in range(1, 4):
            g.append(f"buffer_load_dwordx4 v{self.vWOFF+i}, {srd(SRD_WIN)}, s{sWSOFF} offen offset:{1024*i} lds")
        g.append(f"""s_add_u32 m0, m0, 4096
        s_cmp_ge_u32 s{sWSLOT}, {RING1 + 4*S1SZ}
        buffer_load_dwordx4 v{self.vWOFF+4}, {srd(SRD_WIN)}, s{sWSOFF} offen lds
        s_cselect_b32 s{sWSLOT}, s{sW0}, s{sWSLOT}
        s_add_u32 s{sWSOFF}, s{sWSOFF}, {64*3456}
        s_cmp_ge_u32 s{sWSOFF}, {640*3456}
        s_cselect_b32 s{sWSOFF}, s{sWSL}, s{sWSOFF}""")
        return g
    def issue_w(self):
        for g in self.w_ops(): self.e(g)

    def w_voffs(self):
        e = self.e; T = self.vT; vL = self.vL
        e(f"s_mul_i32 s{sA}, s{sW}, 320")
        for i in range(5):
            p, k, c, d = T+4, T+5, T+6, self.vWOFF + i
            e(f"""v_add_u32 v{p}, s{sA}, v{vL}
            s_add_u32 s{sA}, s{sA}, 64
            v_mul_u32_u24 v{k}, 3277, v{p}
            v_lshrrev_b32 v{k}, 16, v{k}
            v_mul_u32_u24 v{c}, 20, v{k}
            v_sub_u32 v{c}, v{p}, v{c}
            v_bfe_u32 v{p}, v{k}, 3, 1
            v_lshlrev_b32 v{p}, 1, v{p}
            v_xor_b32 v{c}, v{c}, v{p}
            v_mul_u32_u24 v{d}, 3456, v{k}
            v_lshl_add_u32 v{d}, v{c}, 4, v{d}""")
            if 1 <= i <= 3: e(f"v_subrev_u32 v{d}, {1024*i}, v{d}")

    def gemm_prologue(self):
        e = self.e; T = self.vT; XR = self.XR; vL = self.vL
        sXS = sROFF
        e(f"""v_and_b32 v{vL}, 63, v0
        s_and_b32 s{sCB}, s2, 1
        s_mul_i32 s{sCB}, s{sCB}, 3
        s_lshr_b32 s{sC}, s2, 6
        s_add_u32 s{sCB}, s{sCB}, s{sC}
        s_and_b32 s{sW}, s{sWAVE}, 3""")
        e(f"""s_and_b32 s{sA}, s{sRB}, 7
        s_mul_i32 s{sWSOFF}, s{sA}, {64*3456}
        s_lshl_b32 s{sXOFF}, s{sA}, 13
        s_mul_i32 s{sWSL}, s{sCB}, 288
        s_and_b32 s{sWSL}, s{sWSL}, 0xffffffc0
        s_add_u32 s{sWSL}, s{sWSL}, 1728
        s_add_u32 s{sWSOFF}, s{sWSOFF}, s{sWSL}
        s_mul_i32 s{sW0}, s{sW}, 5120
        s_add_u32 s{sW0}, s{sW0}, {RING1}
        s_mov_b32 s{sWSLOT}, s{sW0}""")
        for i in range(5): e(f"v_mov_b32 v{self.vWOFF+i}, 0")
        e(f"s_waitcnt lgkmcnt(0)")
        self.mk_srd(SRD_WIN, 52, 640*1728*2)
        e(f"s_cmp_lt_u32 s{sWAVE}, 4\ns_cbranch_scc1 L_xfirst")
        self.w_voffs()
        for _ in range(int(self.o.get("nst0", 0))): self.issue_w()
        self.a.lab("L_xfirst")
        e(f"""
        s_lshr_b32 s{sA}, s2, 6
        s_mul_i32 s{sA}, s{sA}, 3
        s_add_u32 s{sA}, s{sA}, s{sWAVE}
        s_and_b32 s{sA}, s{sA}, 7
        s_lshl_b32 s{sA}, s{sA}, 3
        v_lshrrev_b32 v{T}, 3, v{vL}
        v_add_u32 v{T}, s{sA}, v{T}
        v_and_b32 v{T+1}, 7, v0
        v_mul_u32_u24 v{T+2}, 1280, v{T}
        v_lshl_add_u32 v{T+2}, v{T+1}, 4, v{T+2}
        s_mul_i32 s{sA}, s{sRB}, {64*1280}
        s_and_b32 s{sXS}, s{sRB}, 7
        s_lshl_b32 s{sB}, s{sXS}, 7
        s_waitcnt lgkmcnt(0)""")
        self.mk_srd(SRD_X, 36, 2048*640*2)
        self.stamp_s(0)
        for j in range(10):
            e(f"""s_add_u32 s{sC}, s{sA}, s{sB}
            buffer_load_dwordx4 v[{XR+4*j}:{XR+4*j+3}], v{T+2}, {srd(SRD_X)}, s{sC} offen
            s_add_u32 s{sB}, s{sB}, 128
            s_cmp_ge_u32 s{sB}, 1280
            s_cselect_b32 s{sB}, 0, s{sB}""")
        if self.o.get("yprio"):
            e(f"s_cmp_lt_u32 s{sWAVE}, 4\ns_cbranch_scc1 Lnyp\ns_setprio 2\nLnyp:")
        self.entry2()
        g, c15 = T+4, T+5
        e(f"""v_bfe_u32 v{T+3}, v{T}, 1, 3
        v_xor_b32 v{T+3}, v{T+3}, v{T+1}
        v_lshlrev_b32 v{T+3}, 4, v{T+3}
        v_lshl_add_u32 v{T+3}, v{T}, 7, v{T+3}
        v_lshrrev_b32 v{g}, 4, v{vL}
        v_and_b32 v{c15}, 15, v{vL}
        v_lshrrev_b32 v{T+6}, 1, v{c15}
        v_xor_b32 v{T+6}, v{T+6}, v{g}
        v_lshlrev_b32 v{T+6}, 4, v{T+6}
        v_lshl_add_u32 v{self.vX0}, v{c15}, 7, v{T+6}
        s_lshl_b32 s{sA}, s{sMH}, 12
        v_add_u32 v{self.vX0}, s{sA}, v{self.vX0}
        v_xor_b32 v{self.vX1}, 64, v{self.vX0}
        v_mul_u32_u24 v{self.vWB4}, 2560, v{g}
        v_bfe_u32 v{T+6}, v{vL}, 2, 2
        v_mul_u32_u24 v{T+6}, 320, v{T+6}
        v_add_u32 v{self.vWB4}, v{self.vWB4}, v{T+6}
        v_and_b32 v{T+6}, 3, v{vL}
        v_lshl_add_u32 v{self.vWB4}, v{T+6}, 3, v{self.vWB4}
        v_and_b32 v{T+6}, 1, v{g}
        v_lshlrev_b32 v{T+6}, 5, v{T+6}
        s_and_b32 s{sC}, s{sCB}, 1
        s_mul_i32 s{sA}, s{sNH}, 5
        s_add_u32 s{sA}, s{sA}, s{sC}
        s_lshl_b32 s{sA}, s{sA}, 5
        v_xor_b32 v{T+7}, s{sA}, v{T+6}
        v_add_u32 v{self.vWB}, v{T+7}, v{self.vWB4}
        s_add_u32 s{sA}, s{sA}, 32
        v_xor_b32 v{T+7}, s{sA}, v{T+6}
        v_add_u32 v{self.vWB1}, v{T+7}, v{self.vWB4}
        s_lshl_b32 s{sC}, s{sC}, 5
        s_add_u32 s{sC}, s{sC}, 128
        v_xor_b32 v{T+7}, s{sC}, v{T+6}
        v_add_u32 v{self.vWB4}, v{T+7}, v{self.vWB4}
        s_mov_b32 s{sK1}, {hx(f2u(-2.302208198*0.044715))}
        s_mov_b32 s{sK1+1}, {hx(f2u(-2.302208198*0.044715))}
        v_mov_b32 v{self.vK0}, {hx(f2u(-2.302208198))}
        v_mov_b32 v{self.vK0+1}, {hx(f2u(-2.302208198))}""")
        self.entry3()
        def ydma(grp):
            L = self.a.newlab("Lyd")
            e(f"s_cmp_lt_u32 s{sWAVE}, 4\ns_cbranch_scc1 {L}")
            e(grp)
            self.a.lab(L)
        n0 = int(self.o.get("nst0", 0))
        if n0 < 2: ydma("\n".join(sum([self.w_ops() for _ in range(2 - n0)], [])))
        S, Q = T+8, T+9
        e(f"""v_mov_b32 v{S}, 0
        v_mov_b32 v{Q}, 0
        s_mov_b32 s{sA}, 0x3f803f80
        s_cmp_lt_u32 s{sWAVE}, 4""")
        for j in range(10):
            if n0 < 2: e(f"s_cbranch_scc1 Lxw{j}\ns_waitcnt vmcnt({9-j+5*(2-n0)})\ns_branch Lxv{j}\nLxw{j}:\ns_waitcnt vmcnt({9-j})\nLxv{j}:")
            else: e(f"s_waitcnt vmcnt({9-j})")
            if j == 9: self.stamp_s(3)
            for i in range(4*j, 4*j+4):
                e(f"v_dot2c_f32_bf16 v{S}, s{sA}, v{XR+i}\nv_dot2c_f32_bf16 v{Q}, v{XR+i}, v{XR+i}")
        for m in ("quad_perm:[1,0,3,2]", "quad_perm:[2,3,0,1]", "row_half_mirror"):
            e(f"v_add_f32_dpp v{S}, v{S}, v{S} {m} row_mask:0xf bank_mask:0xf\nv_add_f32_dpp v{Q}, v{Q}, v{Q} {m} row_mask:0xf bank_mask:0xf")
        self.ln_params(S, Q, 640, T+10, T+12, T+14)
        NM, RS = T+10, T+12
        e(f"""s_mov_b32 s{sA}, 0x00003f80
        s_mov_b32 s{sC}, 0x3f800000
        s_lshl_b32 s{sB}, s{sXS}, 13
        v_lshlrev_b32 v{T+7}, 2, v{T}
        ds_write_b32 v{T+7}, v{RS} offset:{RSTAB - 98304}""".replace(f"v_lshlrev_b32 v{T+7}, 2, v{T}", f"v_lshlrev_b32 v{T+7}, 2, v{T}\n        v_add_u32 v{T+7}, 98304, v{T+7}"))
        TP = 80
        for j in range(10):
            ls = []
            for k in range(4):
                r = XR + 4*j + k; a = TP + 2*k; b = a + 1
                ls.append([f"v_dot2_f32_bf16 v{a}, v{r}, s{sA}, v{NM}", f"v_dot2_f32_bf16 v{b}, v{r}, s{sC}, v{NM}",
                           f"v_cvt_pk_bf16_f32 v{r}, v{a}, v{b}"])
            self.rr(ls)
            e(f"""v_add_u32 v{T+6}, s{sB}, v{T+3}
            ds_write_b128 v{T+6}, v[{XR+4*j}:{XR+4*j+3}]
            s_add_u32 s{sB}, s{sB}, 8192
            s_cmp_ge_u32 s{sB}, 81920
            s_cselect_b32 s{sB}, 0, s{sB}""")
        self.stamp_flush()
        e(f"""s_waitcnt lgkmcnt(0)
        s_mul_i32 s{sTAG}, s{sTAG}, 0x9E3779B1
        s_add_u32 s{sTAG}, s{sTAG}, 0x7F4A7C15
        s_cmp_ge_u32 s{sWAVE}, 4
        s_cbranch_scc1 L_Y""")

    def ln_params(self, S, Q, n, NM, RS, t):
        self.e(f"""v_mul_f32 v{S}, {hx(f2u(1.0/n))}, v{S}
        v_mul_f32 v{Q}, {hx(f2u(1.0/n))}, v{Q}
        v_fma_f32 v{Q}, -v{S}, v{S}, v{Q}
        v_max_f32 v{Q}, 0, v{Q}
        v_cvt_pk_bf16_f32 v{t}, v{S}, v{Q}
        v_lshlrev_b32 v{NM}, 16, v{t}
        v_xor_b32 v{NM}, 0x80000000, v{NM}
        v_mov_b32 v{NM+1}, v{NM}
        v_and_b32 v{Q}, 0xffff0000, v{t}
        v_add_f32 v{Q}, {hx(f2u(1e-5))}, v{Q}
        v_cvt_pk_bf16_f32 v{t}, v{Q}, v{Q}
        v_lshlrev_b32 v{Q}, 16, v{t}
        v_sqrt_f32 v{Q}, v{Q}
        v_cvt_pk_bf16_f32 v{t}, v{Q}, v{Q}
        v_lshlrev_b32 v{Q}, 16, v{t}
        v_rcp_f32 v{RS}, v{Q}
        v_mov_b32 v{RS+1}, v{RS}""")


    def p1_reads(self, F):
        out = []
        for ks in range(2):
            Fk = F + 28*ks
            vx = self.vA0 if ks == 0 else self.vA1
            for a in range(2):
                out.append(f"ds_read_b128 v[{Fk+4*a}:{Fk+4*a+3}], v{vx} offset:{2048*a}")
            for j in range(5):
                base = self.vB4 if j == 4 else (self.vB0, self.vB1)[j & 1]
                off = ks*10240 + (64*(j >> 1) if j < 4 else 0)
                for h in range(2):
                    r = Fk + 8 + 4*j + 2*h
                    out.append(f"ds_read_b64_tr_b16 v[{r}:{r+1}], v{base} offset:{off + h*1280}")
        return out
    def p2_reads(self, F):
        out = []
        for ks in range(2):
            Fk = F + 28*ks
            vx = self.vA0 if ks == 0 else self.vA1
            out += [f"ds_read_b128 v[{Fk+4*a}:{Fk+4*a+3}], v{vx} offset:{2048*a}" for a in range(2)]
            for j in range(5):
                base = self.vB0 if j < 4 else self.vB4
                off = ks*9216 + (1024*j if j < 4 else 0)
                out.append(f"ds_read_b128 v[{Fk+8+4*j}:{Fk+8+4*j+3}], v{base} offset:{off}")
        return out
    def mfmas(self, F, swap, first=False):
        out = []
        for ks in range(2):
            Fk = F + 28*ks
            for j in range(5):
                for a in range(2):
                    c = self.ACC + 4*(2*j + a)
                    X = f"v[{Fk+4*a}:{Fk+4*a+3}]"; W = f"v[{Fk+8+4*j}:{Fk+8+4*j+3}]"
                    A, B = (W, X) if swap else (X, W)
                    C = "0" if (first and ks == 0) else f"v[{c}:{c+3}]"
                    out.append(f"v_mfma_f32_16x16x32_bf16 v[{c}:{c+3}], {A}, {B}, {C}")
        return out
    def interleave(self, reads, mf, per=2):
        out = []; ri = 0
        for m in mf:
            out.append(m)
            for _ in range(per):
                if ri < len(reads): out.append(reads[ri]); ri += 1
        out += reads[ri:]
        return out

    def compute_loop(self, n, swap, reads_fn, addr_fn, tagname, vmwait=False, first=None, mid=None, peel=None, top=None):
        e = self.e
        endw = f"s_waitcnt {'vmcnt(0) ' if vmwait else ''}lgkmcnt(0)"
        def stage(rd, mf, extra=(), per2=2):
            e("s_barrier")
            per = 2 if len(rd) > 16 else 1
            if self.o.get("noread"): rd = []
            if self.o.get("nomfma"): mf = []
            fill = list(rd) + addr_fn() + list(extra)
            out = []; ri = 0
            for k, m in enumerate(mf):
                out.append(m)
                for _ in range(per if ri < len(rd) else per2):
                    if ri < len(fill): out.append(fill[ri]); ri += 1
            out += fill[ri:]
            for s in out: e(s)
        F0, F1 = self.FS
        for s in addr_fn(): e(s)
        stage(reads_fn(F0), [], first[0] if first else ())
        e(endw)
        stage(reads_fn(F1), self.mfmas(F0, swap, True), [f"s_mov_b32 s{sCNT}, {(n-2)//2}"] + (first[1] if first else []), 5 if first else 2); e(endw)
        if peel: e(peel)
        L = self.a.newlab("Lc" + tagname)
        self.a.lab(L)
        if top: top()
        stage(reads_fn(F0), self.mfmas(F1, swap))
        if mid: mid()
        e(endw)
        stage(reads_fn(F1), self.mfmas(F0, swap), [f"s_sub_u32 s{sCNT}, s{sCNT}, 1", f"s_cmp_lg_u32 s{sCNT}, 0"])
        e(f"{endw}\ns_cbranch_scc1 {L}")
        return self.mfmas(F1, swap)

    def ring_addr(self, asz_total, bbase, bsz, nb):
        return [f"v_add_u32 v{self.vA0}, s{sXOFF}, v{self.vX0}", f"v_add_u32 v{self.vA1}, s{sXOFF}, v{self.vX1}",
        f"v_add_u32 v{self.vB0}, s{sROFF}, v{self.vWB}", f"v_add_u32 v{self.vB4}, s{sROFF}, v{self.vWB4}",
        f"s_add_u32 s{sXOFF}, s{sXOFF}, 8192", f"s_cmp_ge_u32 s{sXOFF}, {asz_total}", f"s_cselect_b32 s{sXOFF}, 0, s{sXOFF}",
        f"s_add_u32 s{sROFF}, s{sROFF}, {bsz}", f"s_cmp_ge_u32 s{sROFF}, {bbase + nb*bsz}", f"s_cselect_b32 s{sROFF}, {bbase}, s{sROFF}"]
    def p1_addr(self): return [f"v_add_u32 v{self.vB1}, s{sROFF}, v{self.vWB1}"] + self.ring_addr(81920, RING1, S1SZ, 4)
    def p2_addr(self): return self.ring_addr(NA*8192, BRING, BSZ, NB)

    def gelu_pair(self, r, t, dst=None, packed=None):
        d = r if dst is None else dst
        self.e(f"""v_pk_mul_f32 v[{t}:{t+1}], v[{r}:{r+1}], v[{r}:{r+1}]
        v_pk_fma_f32 v[{t}:{t+1}], v[{t}:{t+1}], s[{sK1}:{sK1+1}], v[{self.vK0}:{self.vK0+1}]
        v_pk_mul_f32 v[{t}:{t+1}], v[{t}:{t+1}], v[{r}:{r+1}]
        v_exp_f32 v{t}, v{t}
        v_exp_f32 v{t+1}, v{t+1}
        v_pk_add_f32 v[{t}:{t+1}], v[{t}:{t+1}], 1.0 op_sel_hi:[1,0]
        v_rcp_f32 v{t}, v{t}
        v_rcp_f32 v{t+1}, v{t+1}
        v_pk_mul_f32 v[{t}:{t+1}], v[{t}:{t+1}], v[{r}:{r+1}]
        v_cvt_pk_bf16_f32 v{t if packed is None else packed}, v{t}, v{t+1}""")
        if packed is None:
            self.e(f"v_lshlrev_b32 v{d}, 16, v{t}\nv_and_b32 v{d+1}, s{sB}, v{t}")

    def gelu_list(self, r, t, sc, packed=None, stats=None):
        L = [f"v_pk_mul_f32 v[{r}:{r+1}], v[{r}:{r+1}], v[{sc}:{sc+1}]",
             f"v_pk_mul_f32 v[{t}:{t+1}], v[{r}:{r+1}], v[{r}:{r+1}]",
             f"v_pk_fma_f32 v[{t}:{t+1}], v[{t}:{t+1}], s[{sK1}:{sK1+1}], v[{self.vK0}:{self.vK0+1}]",
             f"v_pk_mul_f32 v[{t}:{t+1}], v[{t}:{t+1}], v[{r}:{r+1}]",
             f"v_exp_f32 v{t}, v{t}", f"v_exp_f32 v{t+1}, v{t+1}",
             f"v_pk_add_f32 v[{t}:{t+1}], v[{t}:{t+1}], 1.0 op_sel_hi:[1,0]",
             f"v_rcp_f32 v{t}, v{t}", f"v_rcp_f32 v{t+1}, v{t+1}"]
        d = r if packed is None else packed
        L += [f"v_pk_mul_f32 v[{d}:{d+1}], v[{t}:{t+1}], v[{r}:{r+1}]"]
        if stats:
            s_, q_ = stats
            L += [f"v_pk_add_f32 v[{s_}:{s_+1}], v[{s_}:{s_+1}], v[{r}:{r+1}]",
                  f"v_pk_fma_f32 v[{q_}:{q_+1}], v[{r}:{r+1}], v[{r}:{r+1}], v[{q_}:{q_+1}]"]
        return L
    def rr(self, lists):
        n = max(len(l) for l in lists)
        for i in range(n):
            for l in lists:
                if i < len(l): self.e(l[i])

    def dump_regs(self, r0, n, slot, vt):
        self.e(f"""s_lshl_b32 s{sA}, s2, 3
        s_add_u32 s{sA}, s{sA}, s{sWAVE}
        s_mul_i32 s{sA}, s{sA}, {n*256}
        s_add_u32 s{sA}, s{sA}, {WS_DBG + 0x100000 + slot*0x600000}
        v_lshlrev_b32 v{vt}, 2, v{self.vL}""")
        for i in range(n):
            self.e(f"buffer_store_dword v{r0+i}, v{vt}, {srd(SRD_WS)}, s{sA} offen\ns_add_u32 s{sA}, s{sA}, 256")


    NWS = 21
    A3 = 224
    sBO = 44
    def wreg(self, pos, ee): return 40 + ((pos % self.NWS)*2 + ee)*4
    def wload(self, pos):
        out = []
        for ee in range(2):
            r = self.wreg(pos, ee)
            off = f"s{self.sBO + (pos >> 2)}" if pos < 24 else str(6*4096)
            out.append(f"s_add_u32 s{sT}, s{93+ee}, {off}\nbuffer_load_dwordx4 v[{r}:{r+3}], v7, {srd(SRD_WS)}, s{sT} offen offset:{(pos%4)*1024} sc1")
        return out
    def blk_offsets(self, mul):
        self.e(f"""s_mul_i32 s{self.sBO}, s{sCB}, {mul}
        s_lshr_b32 s{sT}, s2, 6
        s_sub_u32 s51, s{sCB}, s{sT}
        s_mov_b32 s50, 0""")
        for j in range(1, 6):
            if j == 3: self.e("s_sub_u32 s51, 3, s51")
            self.e(f"""s_add_u32 s{sT}, s{sT}, 1
            s_cmp_ge_u32 s{sT}, 3
            s_cselect_b32 s{sT}, 0, s{sT}
            s_add_u32 s{sT2}, s{sT}, s51
            s_mul_i32 s{self.sBO+j}, s{sT2}, {mul}
            s_lshl_b32 s{sT2}, s{sT2}, 2
            s_lshl_b32 s{sT2}, {j}, s{sT2}
            s_or_b32 s50, s50, s{sT2}""")

    def x_path(self):
        e = self.e; T = self.vT; ACC = self.ACC; vL = self.vL
        self.stamp(0)
        g = T
        e(f"""v_lshrrev_b32 v{g}, 4, v{vL}
        v_lshlrev_b32 v{T+10}, 4, v{g}
        s_lshl_b32 s{sB}, s{sMH}, 7
        s_add_u32 s{sB}, s{sB}, {RSTAB}
        v_add_u32 v{T+10}, s{sB}, v{T+10}""")
        pub_rd = [f"ds_read_b128 v[232:235], v{T+10}", f"ds_read_b128 v[236:239], v{T+10} offset:64"]
        sv = "\n".join(self.capture(self.w_voffs)).replace(f"s{sA},", f"s{sC},").replace(f"s{sA}\n", f"s{sC}\n").replace(f"v{T+4}", f"v{T+11}").replace(f"v{T+5}", f"v{T+12}").replace(f"v{T+6}", f"v{T+13}")
        e(sv)
        prd, pwork = self.pub_parts()
        def xnflag():
            Lf = self.a.newlab("Lfx")
            xnf = int(self.o.get('xnf', 3))
            e(f"s_cmp_lg_u32 s{sCNT}, {xnf}\ns_cbranch_scc1 {Lf}\ns_cmp_lg_u32 s{sW}, 0\ns_cbranch_scc1 {Lf}")
            self.flag_store(sD, T)
            self.a.lab(Lf)
        def xnwait():
            Lf = self.a.newlab("Lfw")
            e(f"s_cmp_lg_u32 s{sCNT}, {int(self.o.get('xnf', 3))}\ns_cbranch_scc1 {Lf}\ns_waitcnt vmcnt(0)")
            self.a.lab(Lf)
        e(f"s_mov_b32 s{sROFF}, {RING1}")
        tail = self.compute_loop(10, False, self.p1_reads, self.p1_addr, "p1a", first=(pub_rd + prd, pwork), mid=xnflag, top=xnwait)
        e(f"""s_and_b32 s{sA}, s{sRB}, 7
        s_add_u32 s{sA}, s{sA}, 3
        s_cmp_ge_u32 s{sA}, 10
        s_cselect_b32 s{sA}, 0, s{sA}
        s_mul_i32 s{sWSOFF}, s{sA}, {64*3456}
        s_sub_u32 s{sWSL}, s{sWSL}, 1728
        s_add_u32 s{sWSOFF}, s{sWSOFF}, s{sWSL}
        s_add_u32 s{sWSLOT}, s{sW0}, {S1SZ}
        s_mov_b32 s{sB}, 0xffff0000""")
        hold = int(self.o.get("hold", 3))
        if hold < 3: e("s_barrier")
        for m in tail: e(m)
        e("s_waitcnt lgkmcnt(0)")
        self.stamp(1)
        SS = 192
        for i in range(16): e(f"v_mov_b32 v{SS+i}, 0")
        vmw = lambda n: f"s_waitcnt vmcnt({n})"
        def do_frag(j):
            self.rr([self.gelu_list(ACC + 4*(2*j + a) + 2*h, T + 2*(2*a + h), 232 + 4*a + 2*h, stats=(SS + 4*a + 2*h, SS + 8 + 4*a + 2*h))
                     for a in range(2) for h in range(2)])
        if hold < 2: e("s_barrier")
        do_frag(0); do_frag(1)
        if hold < 1: e("s_barrier")
        do_frag(2); do_frag(3)
        Ls = self.a.newlab("Lz4")
        e(f"s_cmp_eq_u32 s{sNH}, 1\ns_cbranch_scc1 {Ls}")
        do_frag(4)
        self.a.lab(Ls)
        for i in range(8):
            e(f"v_add_f32_dpp v{SS+i}, v{SS+i}, v{SS+i} row_mirror row_mask:0xf bank_mask:0x3")
        for i in range(8):
            e(f"v_add_f32_dpp v{SS+i}, v{SS+8+i}, v{SS+8+i} row_mirror row_mask:0xf bank_mask:0xc")
        for i in range(4):
            e(f"v_add_f32_dpp v{SS+i}, v{SS+i}, v{SS+i} row_half_mirror row_mask:0xf bank_mask:0x5")
        for i in range(4):
            e(f"v_add_f32_dpp v{SS+i}, v{SS+4+i}, v{SS+4+i} row_half_mirror row_mask:0xf bank_mask:0xa")
        for i in range(4):
            e(f"v_add_f32_dpp v{SS+i}, v{SS+i}, v{SS+i} quad_perm:[2,3,0,1] row_mask:0xf bank_mask:0xf")
        for i in range(4):
            e(f"v_add_f32_dpp v{SS+i}, v{SS+i}, v{SS+i} quad_perm:[1,0,3,2] row_mask:0xf bank_mask:0xf")
        e(f"""s_mov_b32 vcc_lo, 0xaaaaaaaa
        s_mov_b32 vcc_hi, 0xaaaaaaaa
        s_mov_b32 s{sE0}, 0xcccccccc
        s_mov_b32 s{sE0+1}, 0xcccccccc
        v_cndmask_b32 v{SS}, v{SS}, v{SS+1}, vcc
        v_cndmask_b32 v{SS+2}, v{SS+2}, v{SS+3}, vcc
        v_mov_b32 v{SS+1}, s{sTAG}
        v_cndmask_b32 v{SS}, v{SS}, v{SS+2}, s[{sE0}:{sE0+1}]
        v_lshlrev_b32 v{T}, 3, v{vL}
        s_lshl_b32 s{sC}, s{sRB}, 1
        s_add_u32 s{sC}, s{sC}, s{sMH}
        s_mul_i32 s{sC}, s{sC}, {12*512}
        s_add_u32 s{sC}, s{sC}, {WS_STATS}
        s_lshl_b32 s{sA}, s{sCB}, 1
        s_add_u32 s{sA}, s{sA}, s{sNH}
        s_lshl_b32 s{sA}, s{sA}, 9
        s_add_u32 s{sA}, s{sA}, s{sC}
        buffer_store_dwordx2 v[{SS}:{SS+1}], v{T}, {srd(SRD_WS)}, s{sA} offen sc1""")
        self.stamp(2)
        if hold >= 3: e("s_barrier")
        self.issue_w()
        if hold >= 2: e("s_barrier")
        self.issue_w()
        if hold >= 1: e("s_barrier")
        e(vmw(5))
        e("s_barrier")
        self.issue_w(); self.issue_w()
        e(vmw(10))
        e("s_barrier")
        self.issue_w()
        e(vmw(10))
        e("s_barrier")
        self.issue_w()
        e(vmw(10))
        e("s_barrier")
        PR = 128
        L = self.a.newlab("Lst"); D = self.a.newlab("Lstd")
        e(f"s_mov_b32 s{sSPIN}, {SPIN_MAX}\ns_add_u32 s{sA}, s{sC}, 4096")
        def stat_loads():
            for p in range(12):
                e(f"buffer_load_dwordx2 v[{PR+2*p}:{PR+2*p+1}], v{T}, {srd(SRD_WS)}, s{sC if p < 8 else sA} offen offset:{512*(p%8)} sc1")
        stat_loads()
        self.issue_w()
        self.stamp(3)
        e("s_waitcnt vmcnt(22)\ns_barrier")
        Lchk = self.a.newlab("Lchk")
        e(f"s_branch {Lchk}")
        self.a.lab(L)
        stat_loads()
        self.a.lab(Lchk)
        e("s_waitcnt vmcnt(0)")
        e(f"v_xor_b32 v{T+1}, s{sTAG}, v{PR+1}")
        for p in range(1, 12):
            e(f"v_xor_b32 v{T+2}, s{sTAG}, v{PR+2*p+1}\nv_or_b32 v{T+1}, v{T+1}, v{T+2}")
        e(f"""v_cmp_ne_u32 vcc, 0, v{T+1}
        s_cbranch_vccz {D}
        s_sleep 2
        s_sub_u32 s{sSPIN}, s{sSPIN}, 1
        s_cmp_lg_u32 s{sSPIN}, 0
        s_cbranch_scc1 {L}""")
        self.a.lab(D)
        self.stamp(4)
        for p in range(1, 12):
            e(f"v_add_f32 v{PR}, v{PR}, v{PR+2*p}")
        e(f"v_mov_b32_dpp v{PR+1}, v{PR} row_ror:8 row_mask:0xf bank_mask:0xf")
        self.ln_params(PR, PR+1, 864, T+10, T+12, T+14)
        e(f"v_mul_f32 v{T+10}, v{T+10}, v{T+12}")
        for i in range(8):
            e(f"v_mov_b32_dpp v{SS+i}, v{T+10} row_newbcast:{i} row_mask:0xf bank_mask:0xf")
            e(f"v_mov_b32_dpp v{SS+8+i}, v{T+12} row_newbcast:{i} row_mask:0xf bank_mask:0xf")
        e(f"""v_lshrrev_b32 v{T}, 4, v{vL}
        v_and_b32 v{T+1}, 1, v{T}
        v_lshrrev_b32 v{T}, 1, v{T}
        v_lshl_add_u32 v{T}, v{T+1}, 1, v{T}
        v_lshlrev_b32 v{T}, 8, v{T}
        v_and_b32 v{T+1}, 15, v{vL}
        v_lshl_add_u32 v{T}, v{T+1}, 4, v{T}
        s_lshl_b32 s{sA}, s{sCB}, 5
        s_add_u32 s{sA}, s{sA}, s{sRB}
        s_mul_i32 s{sA}, s{sA}, 18432
        s_mul_i32 s{sC}, s{sMH}, 9216
        s_add_u32 s{sA}, s{sA}, s{sC}
        s_add_u32 s{sA}, s{sA}, {WS_Z2}
        s_mul_i32 s{sC}, s{sNH}, 5120
        s_add_u32 s{sC}, s{sC}, s{sA}
        s_add_u32 s{sA}, s{sA}, 4096""")
        Q4 = PR
        Ls = self.a.newlab("Lz4b")
        for j in range(5):
            if j == 4: e(f"s_cmp_eq_u32 s{sNH}, 1\ns_cbranch_scc1 {Ls}")
            q = Q4 + 4*j
            ls = []
            for a in range(2):
                for h in range(2):
                    r = ACC + 4*(2*j + a) + 2*h
                    nm, rs = SS + 4*a + 2*h, SS + 8 + 4*a + 2*h
                    d = q + 2*a + h
                    ls.append([f"v_pk_fma_f32 v[{r}:{r+1}], v[{r}:{r+1}], v[{rs}:{rs+1}], v[{nm}:{nm+1}]",
                    f"v_cvt_pk_bf16_f32 v{d}, v{r}, v{r+1}"])
            self.rr(ls)
            e(f"v_permlane16_swap_b32 v{q}, v{q+2}\nv_permlane16_swap_b32 v{q+1}, v{q+3}")
            if j < 4:
                e(f"buffer_store_dwordx4 v[{q}:{q+3}], v{T}, {srd(SRD_WS)}, s{sC} offen offset:{1024*j} sc1")
            else:
                e(f"buffer_store_dwordx4 v[{q}:{q+3}], v{T}, {srd(SRD_WS)}, s{sA} offen sc1")
        self.a.lab(Ls)
        e("s_barrier")
        e(f"""s_lshl_b32 s{sD}, s{sCB}, 2
        s_add_u32 s{sD}, s{sD}, s{sW}
        s_lshl_b32 s{sD}, s{sD}, {5+FS}
        s_add_u32 s{sD}, s{sD}, {WS_FZ2}
        v_lshlrev_b32 v7, 4, v{vL}
        v_and_b32 v{T+3}, 31, v{vL}
        v_min_u32 v{T+3}, 26, v{T+3}
        v_lshlrev_b32 v{T+3}, {FS}, v{T+3}
        s_min_u32 s{sA}, s{sCB}, 4
        s_lshl_b32 s91, s{sA}, 1
        s_add_u32 s91, s91, s{sMH}
        s_lshl_b32 s91, s91, {5+FS}
        s_add_u32 s91, s91, {WS_FWO}
        s_lshl_b32 s{sA}, s{sA}, 2
        s_add_u32 s{sA}, s{sA}, s{sW}
        s_mul_i32 s93, s{sA}, {2*27*1024}
        s_add_u32 s93, s93, {WS_WOT}
        s_add_u32 s94, s93, {27*1024}""")
        self.x_p2_setup()
        e(f"s_add_u32 s{sWSOFF}, s{sWSOFF}, {NA*128}")
        e("s_barrier")
        self.blk_offsets(4096)
        e("s_barrier")
        e(f"""s_lshl_b32 s{sA}, s{sRB}, {FS}
        s_add_u32 s{sA}, s{sA}, s{sD}
        s_waitcnt vmcnt(0)""")
        self.flag_store(sA, T+8)
        self.stamp(5)
        if self.o.get("selft", "1") == "1":
            e(f"""s_lshl_b32 s{sT}, s{sNH}, 3
            s_sub_u32 s{sT}, 39, s{sT}
            v_min_u32 v{T+4}, s{sT}, v{vL}
            v_lshlrev_b32 v{T+4}, 7, v{T+4}
            buffer_load_dword v{T+5}, v{T+4}, {srd(SRD_WS)}, s{sC} offen sc1""")
        self.x_p2_loader()
        self.x_p3()

    def x_p2_setup(self):
        e = self.e; T = self.vT + 4; vL = self.vL
        e(f"s_lshl_b32 s{sT2}, s{sW}, 4")
        for i in range(2):
            e(f"""v_lshrrev_b32 v{T}, 3, v{vL}
            v_add_u32 v{T}, s{sT2}, v{T}
            v_add_u32 v{T}, {8*i}, v{T}
            v_bfe_u32 v{T+1}, v{T}, 1, 3
            v_and_b32 v{T+2}, 7, v{vL}
            v_xor_b32 v{T+1}, v{T+1}, v{T+2}
            v_lshlrev_b32 v{T+1}, 4, v{T+1}
            v_lshl_add_u32 v{2+i}, v{T}, 12, v{T+1}""")
        e(f"""v_subrev_u32 v3, 1024, v3
        v_and_b32 v5, 31, v{vL}
        v_lshlrev_b32 v5, {FS}, v5
        s_lshl_b32 s{sWSOFF}, s{sRB}, 18
        s_add_u32 s42, s{sWSOFF}, 4096
        s_and_b32 s{sT2}, s{sRB}, 24
        s_lshl_b32 s{sT}, s{sT2}, 7
        s_add_u32 s{sWSOFF}, s{sWSOFF}, s{sT}
        s_lshl_b32 s{sWSLOT}, s{sW}, 11
        s_mul_i32 s{sROFF}, s{sMH}, 9216
        s_mul_i32 s{sT}, s{sNH}, 5120
        s_add_u32 s{sROFF}, s{sROFF}, s{sT}
        s_mul_i32 s{sXOFF}, s{sCB}, {32*18432}
        s_add_u32 s{sXOFF}, s{sXOFF}, s{sROFF}
        s_add_u32 s{sXOFF}, s{sXOFF}, {WS_Z2}
        s_add_u32 s43, s{sXOFF}, {32*18432}
        s_mul_i32 s{sT}, s{sT2}, 18432
        s_add_u32 s{sXOFF}, s{sXOFF}, s{sT}
        s_add_u32 s95, s{sXOFF}, 4096
        s_add_u32 s{sROFF}, s{sROFF}, {BRING}""")
    def issue_a(self, i):
        self.e(f"""s_add_u32 m0, s{sWSLOT}, {8192*i}
        s_nop 0
        buffer_load_dwordx4 v2, {srd(SRD_WSP)}, s{sWSOFF} offen lds
        buffer_load_dwordx4 v3, {srd(SRD_WSP)}, s{sWSOFF} offen offset:1024 lds
        s_add_u32 s{sWSOFF}, s{sWSOFF}, 128""")
    def issue_b(self, slot, five):
        e = self.e
        e(f"s_add_u32 m0, s{sROFF}, {BSZ*slot}\ns_nop 0")
        for i in range(4):
            e(f"buffer_load_dwordx4 v7, {srd(SRD_WS)}, s{sXOFF} offen offset:{1024*i} sc1 lds")
        if five:
            e(f"""s_add_u32 m0, s{sROFF}, {BSZ*slot + 4096}
            s_add_u32 s{sXOFF}, s{sXOFF}, 18432
            buffer_load_dwordx4 v7, {srd(SRD_WS)}, s95 offen sc1 lds
            s_add_u32 s95, s95, 18432""")
        else:
            e(f"s_add_u32 s{sXOFF}, s{sXOFF}, 18432")
    def loop(self, n, fn, name):
        L = self.a.newlab(name)
        self.e(f"s_mov_b32 s{sCNT}, {n}")
        self.a.lab(L)
        fn()
        self.e(f"s_sub_u32 s{sCNT}, s{sCNT}, 1\ns_cmp_lg_u32 s{sCNT}, 0\ns_cbranch_scc1 {L}")

    def x_p2_loader(self):
        e = self.e; T = self.vT
        e(f"""s_waitcnt vmcnt(0)
        s_sleep {self.o.get("zdl", 4)}
        s_and_b32 s{sT}, s{sRB}, 24
        s_lshl_b32 exec_lo, 0xff, s{sT}
        s_mov_b32 exec_hi, 0""")
        self.poll(5, f"s{sD}", T)
        self.stamp(6)
        Lfour = self.a.newlab("Lp2four"); Ldone = self.a.newlab("Lp2done")
        e(f"""s_cmp_eq_u32 s{sNH}, 1
        s_cbranch_scc1 {Lfour}""")
        for five in (True, False):
            nb = 5 if five else 4
            self.issue_b(0, five); self.issue_b(1, five)
            e(f"s_waitcnt vmcnt({nb})\ns_barrier")
            self.issue_b(2, five); self.issue_b(3, five)
            e(f"s_waitcnt vmcnt({2*nb})")
            def grp(withA):
                e(f"""s_cmp_ge_u32 s{sWSOFF}, s42
                s_cselect_b32 s{sT}, 4096, 0
                s_sub_u32 s{sWSOFF}, s{sWSOFF}, s{sT}
                s_cmp_ge_u32 s{sXOFF}, s43
                s_cselect_b32 s{sT}, {32*18432}, 0
                s_sub_u32 s{sXOFF}, s{sXOFF}, s{sT}
                s_sub_u32 s95, s95, s{sT}""")
                if withA:
                    Lk = self.a.newlab("Lfk")
                    e(f"""s_cmp_lg_u32 s{sCNT}, 5
                    s_cbranch_scc1 {Lk}
                    v_cmp_ne_u32 vcc, s{sTAG}, v6
                    s_cbranch_vccz {Lk}""")
                    self.poll(5, f"s{sD}", T)
                    self.a.lab(Lk)
                for i in range(4):
                    if withA and i == 1:
                        Lq = self.a.newlab("Lfq")
                        e(f"s_cmp_lg_u32 s{sCNT}, 6\ns_cbranch_scc1 {Lq}\nbuffer_load_dword v6, v5, {srd(SRD_WS)}, s{sD} offen sc1\nbuffer_load_dword v4, v{T+3}, {srd(SRD_WS)}, s91 offen sc1")
                        self.a.lab(Lq)
                    e("s_barrier")
                    if i == 0: self.stampd(12)
                    self.issue_b(i, five)
                    if withA: self.issue_a(i)
                    e(f"s_waitcnt vmcnt({2*nb + 2 if withA else 2*nb})")
                if withA: e(f"s_xor_b32 s{sWSLOT}, s{sWSLOT}, 32768")
            def grp_t():
                grp(True)
                if self.o.get("wtouch", "0") == "1":
                    Lt = self.a.newlab("Lwt")
                    e(f"s_cmp_lg_u32 s{sCNT}, 2\ns_cbranch_scc1 {Lt}\nbuffer_load_dword v6, v4, {srd(SRD_WS)}, s{sT2} offen sc1")
                    self.a.lab(Lt)
            self.loop(6, grp_t, "Lp2f")
            grp(False)
            if five:
                e(f"s_branch {Ldone}")
                self.a.lab(Lfour)
        self.a.lab(Ldone)
        wl = [s_ for pos in range(self.NWS) for s_ in self.wload(pos)]
        Lw = self.a.newlab("Lwok")
        e(f"v_cmp_ne_u32 vcc, s{sTAG}, v4\ns_cbranch_vccz {Lw}")
        self.poll(T+3, "s91", T)
        self.a.lab(Lw)
        e("s_barrier")
        for s_ in wl[:5]: e(s_)
        e("s_waitcnt vmcnt(9)\ns_barrier")
        for s_ in wl[5:10]: e(s_)
        e("s_waitcnt vmcnt(10)\ns_barrier")
        for s_ in wl[10:16]: e(s_)
        self.wl_rest = wl[16:]
        self.stamp(7)

    def x_p3(self):
        e = self.e; T = self.vT; vL = self.vL; A3 = self.A3
        e("s_barrier")
        Lidle = self.a.newlab("Lp3idle")
        e(f"s_cmp_eq_u32 s{sCB}, 5\ns_cbranch_scc1 {Lidle}")
        if self.o.get("e1", "1") == "1": e("s_barrier")
        for s_ in self.wl_rest: e(s_)
        e(f"""v_and_b32 v2, 15, v{vL}
        v_mul_u32_u24 v2, 1280, v2
        v_lshrrev_b32 v3, 4, v{vL}
        s_mul_i32 s{sA}, s{sRB}, {64*1280}
        s_lshl_b32 s{sC}, s{sCB}, 8
        s_add_u32 s{sA}, s{sA}, s{sC}
        s_lshl_b32 s{sC}, s{sW}, 6
        s_add_u32 s{sA}, s{sA}, s{sC}
        v_and_b32 v6, 1, v3
        v_lshlrev_b32 v6, 5, v6
        v_lshrrev_b32 v3, 1, v3
        v_lshl_add_u32 v6, v3, 4, v6
        v_add_u32 v6, v6, v2
        s_mov_b32 s{sB}, 0xffff0000
        v_add_u32 v2, {HB}, v7
        v_add_u32 v3, 0x10000, v2
        v_lshlrev_b32 v4, 3, v{vL}""")
        self.stamp(8)
        def hreads(pos, F):
            out = []
            if pos < 24:
                j, p = divmod(pos, 4)
                for b in range(4):
                    mh, a = b >> 1, b & 1
                    off = j*18432 + (9*mh + 5*(p >> 1) + 2*(p & 1) + a)*1024
                    out.append(f"ds_read_b128 v[{F+4*b}:{F+4*b+3}], v{2 + (off >> 16)} offset:{off & 0xffff}")
            else:
                for hf in range(2):
                    cbp = 2*(pos - 24) + hf
                    pre = f"""s_bfe_u32 s{sT}, s50, {(4 << 16) | (4*cbp)}
                    s_mul_i32 s{sT}, s{sT}, 18432
                    s_add_u32 s{sT}, s{sT}, {HB + 4096}
                    v_add_u32 v{2+hf}, s{sT}, v4
                    """
                    for b in range(4):
                        mh, a = b >> 1, b & 1
                        out.append(pre + f"ds_read_b64 v[{F+4*b+2*hf}:{F+4*b+2*hf+1}], v{2+hf} offset:{9216*mh + a*512}")
                        pre = ""
            return out
        FB = (8, 24, 208)
        e("s_barrier")
        self.stamp(9)
        for s_ in hreads(0, FB[0]) + hreads(1, FB[1]): e(s_)
        issued = 2*self.NWS
        NL = 27 - self.NWS
        XV = self.wreg(NL, 0)
        YV = self.wreg(NL + 2, 0)
        XA = self.wreg(NL + 4, 0)
        e(f"""v_lshrrev_b32 v5, 2, v{vL}
        v_lshlrev_b32 v5, 7, v5
        v_and_b32 v{A3}, 3, v{vL}
        v_lshl_add_u32 v5, v{A3}, 3, v5
        s_lshl_b32 s{sC}, s{sW}, 12
        s_add_u32 s{sC}, s{sC}, {YAB}
        v_add_u32 v5, s{sC}, v5""")
        prev = 4
        for pos in range(27):
            if pos == NL + 6:
                e(f"""v_and_b32 v{XA+2}, 15, v{vL}
                v_lshrrev_b32 v{XA+3}, 5, v{vL}
                s_lshl_b32 s{sC}, s{sW}, 2
                v_add_u32 v{XA+3}, s{sC}, v{XA+3}
                v_xor_b32 v{XA+3}, v{XA+3}, v{XA+2}
                v_lshlrev_b32 v{XA+3}, 4, v{XA+3}
                v_lshl_add_u32 v{XA}, v{XA+2}, 8, v{XA+3}
                v_bfe_u32 v{XA+3}, v{vL}, 4, 1
                v_lshl_add_u32 v{XA}, v{XA+3}, 3, v{XA}
                v_add_u32 v{XA}, {XB}, v{XA}
                v_xor_b32 v{XA+1}, 32, v{XA}""")
            F = FB[pos % 3]
            nxt = []
            def fbar(j):
                if self.o.get("fine"): self.stamp(28 + j)
                e("s_barrier")
                if self.o.get("fine"): self.stamp(22 + j)
            if pos == 4:
                fbar(1)
                for s_ in hreads(4, FB[1]) + hreads(5, FB[2]): e(s_)
                prev = 4
            if pos < 25 and pos not in (2, 3):
                if (pos + 2) % 4 == 0 and 8 < pos + 2 < 24: fbar((pos + 2)//4)
                nxt = hreads(pos + 2, FB[(pos + 2) % 3])
            mf = []
            for b in range(4):
                for ee in range(2):
                    c = A3 + 4*(2*b + ee); w = self.wreg(pos, ee)
                    C = "0" if pos == 0 else f"v[{c}:{c+3}]"
                    mf.append(f"v_mfma_f32_16x16x32_bf16 v[{c}:{c+3}], v[{w}:{w+3}], v[{F+4*b}:{F+4*b+3}], {C}")
            e(f"s_waitcnt lgkmcnt({prev}) vmcnt({issued - 2*(pos + 1)})")
            for s_ in self.interleave(nxt, mf, 1): e(s_)
            prev = len(nxt)
            if pos < NL:
                for s_ in self.wload(self.NWS + pos): e(s_)
                issued += 2
            if pos == 24:
                for b in range(4):
                    for ee in range(2):
                        r = 2*(2*b + ee)
                        e(f"ds_read_b64_tr_b16 v[{YV+r}:{YV+r+1}], v5 offset:{ee*2048 + b*32}")
                prev += 7
            if pos == 25:
                for b in range(4):
                    for ee in range(2):
                        r = 2*(2*b + ee)
                        e(f"ds_read_b64 v[{XV+r}:{XV+r+1}], v{XA+ee} offset:{4096*b}")
                prev = 15
        self.stamp(10)
        e("s_waitcnt lgkmcnt(0)")
        for i in range(16):
            t = 8 + 4*(i & 3)
            e(f"""v_lshlrev_b32 v{t}, 16, v{XV+i}
            v_and_b32 v{t+1}, s{sB}, v{XV+i}
            v_lshlrev_b32 v{t+2}, 16, v{YV+i}
            v_and_b32 v{t+3}, s{sB}, v{YV+i}
            v_pk_add_f32 v[{t}:{t+1}], v[{t}:{t+1}], v[{t+2}:{t+3}]
            v_pk_add_f32 v[{A3+2*i}:{A3+2*i+1}], v[{A3+2*i}:{A3+2*i+1}], v[{t}:{t+1}]""")
        OV = 40
        for b in range(4):
            q = OV + 4*b
            for k in range(4):
                c = A3 + 8*b + 2*k; i = 4*b + k; t = 8 + 2*k
                e(f"v_cvt_pk_bf16_f32 v{q+k}, v{c}, v{c+1}")
            e(f"""v_permlane16_swap_b32 v{q}, v{q+2}
            v_permlane16_swap_b32 v{q+1}, v{q+3}
            s_add_u32 s{sT}, s{sA}, {b*16*1280}
            buffer_store_dwordx4 v[{q}:{q+3}], v6, {srd(SRD_OUT)}, s{sT} offen {self.o.get("ost", "")}""")
        self.stamp(11)
        e(f"""s_cmp_lg_u32 s2, 0
        s_cbranch_scc1 L_end
        s_cmp_lg_u32 s{sW}, 0
        s_cbranch_scc1 L_end
        v_lshlrev_b32 v8, {FS}, v{vL}
        s_mov_b32 s{sD}, {WS_FY}
        s_mov_b32 s{sA}, {WS_EPOCH}""")
        self.poll(8, f"s{sD}", 9)
        self.flag_store(sA, 8)
        if self.o.get("dbgt"):
            e(f"""s_load_dwordx2 s[40:41], s[0:1], 104
            s_waitcnt vmcnt(0)
            s_memtime s[{sTM}:{sTM+1}]
            s_memrealtime s[98:99]
            s_waitcnt lgkmcnt(0)
            s_sub_u32 s{sTM}, s{sTM}, s{sTM0}
            s_sub_u32 s98, s98, s100
            v_mov_b32 v8, s{sTM}
            v_mov_b32 v9, s98
            v_mov_b32 v10, 0
            global_store_dwordx2 v10, v[8:9], s[40:41]""")
        self.a.lab(Lidle)
        e("s_branch L_end")

    def pub_parts(self):
        e = self.e; T = 240; vL = self.vL
        g, r, c4 = T, T+1, T+2
        XQ = 192; XAD = 208; RSV = 216
        e(f"""v_lshrrev_b32 v{g}, 4, v{vL}
        v_bfe_u32 v{r}, v{vL}, 2, 2
        v_and_b32 v{c4}, 3, v{vL}""")
        for rd in range(2):
            t, sw, ad = T+3, T+4, T+6+rd
            e(f"""v_lshl_add_u32 v{t}, v{g}, 3, v{r}
            v_add_u32 v{t}, {4*rd}, v{t}
            v_bfe_u32 v{sw}, v{t}, 1, 3
            v_lshrrev_b32 v{ad}, 1, v{c4}
            v_xor_b32 v{sw}, v{sw}, v{ad}
            v_lshlrev_b32 v{sw}, 4, v{sw}
            v_lshl_add_u32 v{ad}, v{t}, 7, v{sw}
            v_and_b32 v{sw}, 1, v{c4}
            v_lshl_add_u32 v{ad}, v{sw}, 3, v{ad}""")
        e(f"""v_and_b32 v{T+8}, 7, v{vL}
        v_lshlrev_b32 v{T+8}, 12, v{T+8}
        v_lshl_add_u32 v{T+8}, v{g}, 4, v{T+8}
        v_bfe_u32 v{T+3}, v{vL}, 3, 1
        v_lshl_add_u32 v{T+8}, v{T+3}, 6, v{T+8}
        v_lshlrev_b32 v{T+9}, 5, v{g}
        v_add_u32 v{T+9}, {RSTAB}, v{T+9}
        s_mul_i32 s{sA}, s{sCB}, 7
        s_sub_u32 s{sB}, s{sCB}, 2
        s_max_i32 s{sB}, s{sB}, 0
        s_sub_u32 s{sA}, s{sA}, s{sB}
        s_lshl_b32 s{sB}, s{sW}, 1
        s_add_u32 s{sA}, s{sA}, s{sB}""")
        for i in range(2):
            e(f"""s_add_u32 s{sB}, s{sA}, {i}
            s_and_b32 s{sC}, s{sB}, 3
            s_lshl_b32 s{sC}, s{sC}, 5
            s_lshr_b32 s{sD}, s{sB}, 2
            s_lshl_b32 s{sD}, s{sD}, 13""")
            for rd in range(2):
                e(f"v_xor_b32 v{XAD+2*i+rd}, s{sC}, v{T+6+rd}\nv_add_u32 v{XAD+2*i+rd}, s{sD}, v{XAD+2*i+rd}")
        e(f"""s_lshl_b32 s{sB}, s{sRB}, 7
        s_add_u32 s{sB}, s{sB}, {WS_XNT}
        s_lshl_b32 s{sA}, s{sA}, 16
        s_add_u32 s{sA}, s{sA}, s{sB}
        s_lshl_b32 s{sD}, s{sCB}, 5
        s_add_u32 s{sD}, s{sD}, s{sRB}
        s_lshl_b32 s{sD}, s{sD}, 7
        s_add_u32 s{sD}, s{sD}, {WS_FXN}
        s_mov_b32 s{sB}, 0xffff0000""")
        rds = [f"ds_read_b128 v[{RSV+4*k}:{RSV+4*k+3}], v{T+9} offset:{128*(k>>1) + 16*(k&1)}" for k in range(4)]
        for i in range(2):
            for h in range(2):
                for rd in range(2):
                    q = XQ + 8*i + 4*h + 2*rd
                    rds.append(f"ds_read_b64_tr_b16 v[{q}:{q+1}], v{XAD+2*i+rd} offset:{4096*h}")
        work = []
        for i in range(2):
            for h in range(2):
                for k in range(4):
                    q = XQ + 8*i + 4*h + k; a = T + 2*(k & 1); rs = RSV + 8*h + 2*k
                    work += [f"v_lshlrev_b32 v{a}, 16, v{q}", f"v_and_b32 v{a+1}, s{sB}, v{q}",
                             f"v_pk_mul_f32 v[{a}:{a+1}], v[{a}:{a+1}], v[{rs}:{rs+1}]", f"v_cvt_pk_bf16_f32 v{q}, v{a}, v{a+1}"]
            for k in range(4):
                r0 = XQ + 8*i + k; r1 = r0 + 4; t = T + 4 + (k & 1)
                work += [f"v_mov_b32 v{t}, v{r0}",
                         f"v_mov_b32_dpp v{r0}, v{r1} row_ror:8 row_mask:0xf bank_mask:0xc",
                         f"v_mov_b32_dpp v{r1}, v{t} row_ror:8 row_mask:0xf bank_mask:0x3"]
            for h in range(2):
                q = XQ + 8*i + 4*h
                work.append(f"buffer_store_dwordx4 v[{q}:{q+3}], v{T+8}, {srd(SRD_WS)}, s{sA} offen sc1\ns_add_u32 s{sA}, s{sA}, 32768")
        return rds, work

    def y_p3_setup(self):
        e = self.e; T = self.vT; vL = self.vL
        e(f"""s_lshl_b32 s{sD}, s{sRB}, 2
        s_add_u32 s{sD}, s{sD}, s{sW}
        s_lshl_b32 s{sD}, s{sD}, {3+FS}
        s_add_u32 s{sD}, s{sD}, {WS_FH}
        s_lshl_b32 s85, s{sCB}, {FS}
        s_add_u32 s85, s85, s{sD}
        v_min_u32 v6, 5, v{vL}
        v_lshlrev_b32 v6, {FS}, v6
        v_add_u32 v6, s{sD}, v6
        s_min_u32 s{sC}, s{sCB}, 4
        s_mul_i32 s{sA}, s{sC}, 51
        s_lshr_b32 s{sA}, s{sA}, 2
        v_and_b32 v{T+3}, 15, v{vL}
        v_add_u32 v{T+3}, s{sA}, v{T+3}
        v_min_u32 v{T+3}, 63, v{T+3}
        v_lshlrev_b32 v{T+3}, {FS}, v{T+3}
        v_add_u32 v{T+3}, {WS_FY}, v{T+3}
        v_cmp_lt_u32 vcc, 15, v{vL}
        v_cndmask_b32 v6, v6, v{T+3}, vcc
        s_mul_i32 s93, s{sMH}, 9216
        s_mul_i32 s{sA}, s{sNH}, 5120
        s_add_u32 s93, s93, s{sA}
        s_mul_i32 s94, s{sRB}, {6*18432}
        s_add_u32 s94, s94, s93
        s_add_u32 s94, s94, {WS_H}
        s_add_u32 s93, s93, {HB}
        s_mul_i32 s91, s{sRB}, {64*1280}
        s_lshl_b32 s{sA}, s{sC}, 8
        s_add_u32 s91, s91, s{sA}
        s_mul_i32 s{sA}, s{sW}, {16*1280}
        s_add_u32 s91, s91, s{sA}
        s_mul_i32 s{sMASK}, s{sRB}, {640*128}
        s_lshl_b32 s{sA}, s{sC}, 14
        s_add_u32 s{sMASK}, s{sMASK}, s{sA}
        s_lshl_b32 s{sA}, s{sW}, 12
        s_add_u32 s{sMASK}, s{sMASK}, s{sA}
        s_add_u32 s{sMASK}, s{sMASK}, {WS_YA}""")
        for i in range(4):
            e(f"""v_lshrrev_b32 v{T+4}, 4, v{vL}
            v_add_u32 v{T+4}, {4*i}, v{T+4}
            v_and_b32 v{T+5}, 15, v{vL}
            v_xor_b32 v{T+5}, v{T+5}, v{T+4}
            v_mul_u32_u24 v{T+4}, 1280, v{T+4}
            v_lshl_add_u32 v{T+12+i}, v{T+5}, 4, v{T+4}""")
            if i: e(f"v_subrev_u32 v{T+12+i}, {1024*i}, v{T+12+i}")

    def y_path(self):
        e = self.e; T = self.vT; ACC = self.ACC; vL = self.vL; Z1 = self.Z1
        self.a.lab("L_Y")
        if self.o.get("yprio"): e("s_setprio 0")
        self.stamp(0)
        vmw = lambda n: f"s_waitcnt vmcnt({n})"
        e(f"""v_and_b32 v{T}, 15, v{vL}
        v_lshlrev_b32 v{T}, 2, v{T}
        s_lshl_b32 s{sA}, s{sMH}, 7
        s_add_u32 s{sA}, s{sA}, {RSTAB}
        v_add_u32 v{T}, s{sA}, v{T}
        v_lshrrev_b32 v{T+1}, 4, v{vL}
        v_lshlrev_b32 v{T+1}, 5, v{T+1}
        s_lshl_b32 s{sA}, s{sNH}, 7
        s_add_u32 s{sA}, s{sA}, {RSTAB}
        v_add_u32 v{T+1}, s{sA}, v{T+1}""")
        e(vmw(5))
        e("s_barrier")
        self.stamp(12)
        e(f"ds_read_b32 v{T+8}, v{T}\nds_read_b32 v{T+10}, v{T} offset:64")
        self.issue_w()
        e("s_waitcnt vmcnt(5) lgkmcnt(0)\ns_barrier")
        self.issue_w(); self.issue_w()
        e(vmw(10))
        L = self.a.newlab("Ly1")
        e(f"s_mov_b32 s{sCNT}, 2")
        self.a.lab(L)
        e("s_barrier")
        self.stampd(12)
        Lc = self.a.newlab("Lcol")
        e(f"""s_cmp_lg_u32 s{sCNT}, 7
        s_cbranch_scc1 {Lc}
        s_sub_u32 s{sWSOFF}, s{sWSOFF}, 1728
        s_sub_u32 s{sWSL}, s{sWSL}, 1728""")
        self.a.lab(Lc)
        self.issue_w()
        e(vmw(10))
        e(f"""s_add_u32 s{sCNT}, s{sCNT}, 1
        s_cmp_lt_u32 s{sCNT}, 10
        s_cbranch_scc1 {L}""")
        self.stamp(1)
        ysetup = self.capture(lambda: (self.blk_offsets(18432), self.y_p3_setup()))
        yflag = []
        e(f"""s_mov_b32 s{sROFF}, {RING1 + 2*S1SZ}
        v_and_b32 v{T}, 15, v{vL}
        v_lshlrev_b32 v{T}, 1, v{T}
        s_lshl_b32 s{sA}, s{sRB}, 7
        s_lshl_b32 s{sB}, s{sMH}, 6
        s_add_u32 s{sA}, s{sA}, s{sB}
        buffer_load_ushort v34, v{T}, {srd(SRD_BSP)}, s{sA} offen
        buffer_load_ushort v36, v{T}, {srd(SRD_BSP)}, s{sA} offen offset:32""")
        tail = self.compute_loop(10, True, self.p1_reads, self.p1_addr, "p1b", vmwait=True, first=(ysetup, yflag))
        e("s_barrier")
        for m in tail: e(m)
        self.stamp(2)
        self.x_p2_setup()
        e(f"v_mov_b32 v{T+9}, v{T+8}\nv_mov_b32 v{T+11}, v{T+10}")
        for i in range(NA): self.issue_a(i)
        for i in range(0, 20, 4):
            self.rr([self.gelu_list(ACC + 2*(i+k), T + 2*k, T + 8 + 2*(k >> 1), packed=Z1 + 2*(i + k)) for k in range(4)])
        e(f"""v_lshlrev_b32 v34, 16, v34
        v_lshlrev_b32 v36, 16, v36
        v_mov_b32 v35, v34
        v_mov_b32 v37, v36
        v_lshlrev_b32 v{self.vWB4}, 4, v{vL}
        s_mul_i32 s{sA}, s{sNH}, 5120
        v_add_u32 v{self.vWB}, s{sA}, v{self.vWB4}
        v_add_u32 v{self.vWB4}, 4096, v{self.vWB4}
        s_mov_b32 s{sROFF}, {BRING}
        s_mov_b32 s{sXOFF}, 0""")
        e("s_waitcnt vmcnt(12)")
        self.stamp(3)
        ZD = int(self.o.get("zd", 0))
        e(f"""v_min_u32 v4, 8, v{vL}
        v_lshlrev_b32 v4, 7, v4
        s_and_b32 s{sA}, s{sRB}, 7
        s_lshl_b32 s{sA}, s{sA}, 2
        s_add_u32 s{sA}, s{sA}, s{sW}
        s_mul_i32 s{sWSL}, s{sA}, {9*128}
        s_mul_i32 s{sC}, s{sCB}, {32*18432}
        s_add_u32 s{sWSL}, s{sWSL}, s{sC}
        s_add_u32 s{sWSL}, s{sWSL}, {WS_Z2 + ZD*18432}
        s_min_u32 s{sC}, s{sCB}, 4
        s_mul_i32 s{sC}, s{sC}, {8*27*1024}
        s_mul_i32 s{sA}, s{sA}, {54*128}
        s_add_u32 s{sW0}, s{sC}, s{sA}
        s_add_u32 s{sW0}, s{sW0}, {WS_WOT}
        v_min_u32 v7, 53, v{vL}
        v_lshlrev_b32 v7, 7, v7""")
        def ztouch():
            if ZD:
                Lz = self.a.newlab("Lzt")
                e(f"""s_cmp_le_u32 s{sCNT}, {(ZD-2)//2}
                s_cbranch_scc1 {Lz}
                buffer_load_dword v5, v4, {srd(SRD_WS)}, s{sWSL} offen sc1
                s_add_u32 s{sWSL}, s{sWSL}, {2*18432}""")
                self.a.lab(Lz)
            if self.o.get("ywt"):
                Lw = self.a.newlab("Lwt")
                e(f"s_cmp_lg_u32 s{sCNT}, 6\ns_cbranch_scc1 {Lw}\nbuffer_load_dword v5, v7, {srd(SRD_WS)}, s{sW0} offen sc1")
                self.a.lab(Lw)
        e(f"""v_lshlrev_b32 v{T+8}, 4, v{vL}
        v_lshlrev_b32 v{T+9}, 3, v{vL}
        s_mul_i32 s{sA}, s{sRB}, 6
        s_add_u32 s{sA}, s{sA}, s{sCB}
        s_mul_i32 s{sA}, s{sA}, 18432
        s_mul_i32 s{sC}, s{sMH}, 9216
        s_mul_i32 s{sD}, s{sNH}, 5120
        s_add_u32 s{sC}, s{sC}, s{sD}
        s_add_u32 s{sA}, s{sA}, s{sC}
        s_add_u32 s{sA}, s{sA}, {WS_H}
        s_add_u32 s{sC}, s{sC}, {HB}
        v_add_u32 v{T+10}, s{sC}, v{T+8}
        v_add_u32 v{T+11}, s{sC}, v{T+9}
        s_add_u32 s{sC}, s{sA}, 4096""")
        tail = self.compute_loop(32, True, self.p2_reads, self.p2_addr, "p2", mid=ztouch, peel="s_waitcnt vmcnt(0)")
        e("s_barrier")
        tl = {}
        for k, m in enumerate(tail): tl.setdefault((k % 10) // 2, []).append(m)
        HQ = 40
        Ls = self.a.newlab("Lh4")
        tc = [0]
        def hval(j, a, h, d):
            r = ACC + 4*(2*j + a) + 2*h; z = Z1 + 4*(2*j + a) + 2*h; b = 34 + 2*a
            return [f"v_pk_add_f32 v[{r}:{r+1}], v[{r}:{r+1}], v[{b}:{b+1}]",
            f"v_pk_mul_f32 v[{r}:{r+1}], v[{r}:{r+1}], v[{z}:{z+1}]",
            f"v_cvt_pk_bf16_f32 v{d}, v{r}, v{r+1}"]
        for m in tl[0] + tl[1] + tl[2][:2]: e(m)
        rest = tl[2][2:] + tl[3] + tl[4]
        for p in range(2):
            for a in range(2):
                q = HQ + 4*(2*p + a)
                ops = []
                hv = [hval(2*p + jj, a, h, q + 2*jj + h) for jj in range(2) for h in range(2)]
                for i in range(3): ops += [l[i] for l in hv]
                if p == 0:
                    ms = rest[5*a:5*a+5]
                    for i, o in enumerate(ops):
                        if i % 2 == 0 and ms: e(ms.pop(0))
                        e(o)
                else:
                    for o in ops: e(o)
                e(f"buffer_store_dwordx4 v[{q}:{q+3}], v{T+8}, {srd(SRD_WS)}, s{sA} offen offset:{1024*(2*p+a)} sc1")
                e(f"ds_write_b128 v{T+10}, v[{q}:{q+3}] offset:{1024*(2*p+a)}")
        self.stamp(4)
        e(f"s_cmp_eq_u32 s{sNH}, 1\ns_cbranch_scc1 {Ls}")
        self.rr([hval(4, a, h, HQ + 16 + 2*a + h) for a in range(2) for h in range(2)])
        for a in range(2):
            q = HQ + 16 + 2*a
            e(f"buffer_store_dwordx2 v[{q}:{q+1}], v{T+9}, {srd(SRD_WS)}, s{sC} offen offset:{512*a} sc1")
            e(f"ds_write_b64 v{T+11}, v[{q}:{q+1}] offset:{4096 + 512*a}")
        self.a.lab(Ls)
        if self.o.get("e1", "1") == "1": e("s_barrier")
        e(f"s_lshl_b32 s{sB}, s{sW}, 12\ns_mov_b32 s{sD}, s{sMASK}\ns_waitcnt vmcnt(0)")
        self.flag_store(85, T)
        if self.o.get("selft", "1") == "1":
            e(f"""s_lshl_b32 s{sT}, s{sNH}, 3
            s_sub_u32 s{sT}, 39, s{sT}
            v_min_u32 v{T+4}, s{sT}, v{vL}
            v_lshlrev_b32 v{T+4}, 7, v{T+4}
            buffer_load_dword v{T+5}, v{T+4}, {srd(SRD_WS)}, s{sA} offen sc1""")
        if not self.o.get("f0late"): e("s_waitcnt lgkmcnt(0)\ns_barrier")
        self.stamp(5)
        e(f"s_add_u32 m0, s{sB}, {XB}\ns_nop 0")
        for i in range(4):
            e(f"buffer_load_dwordx4 v{T+12+i}, {srd(SRD_X)}, s91 offen offset:{1024*i} lds")
        def hblk(j):
            Lk = self.a.newlab("Lhk")
            e(f"s_add_u32 m0, s93, {18432*j}\ns_add_u32 s{sT}, s94, s{self.sBO+j}")
            for i in range(4):
                e(f"buffer_load_dwordx4 v{T+8}, {srd(SRD_WS)}, s{sT} offen offset:{1024*i} sc1 lds")
            e(f"""s_cmp_eq_u32 s{sNH}, 1
            s_cbranch_scc1 {Lk}
            s_add_u32 m0, m0, 4096
            s_add_u32 s{sT}, s{sT}, 4096
            buffer_load_dwordx4 v{T+8}, {srd(SRD_WS)}, s{sT} offen sc1 lds""")
            self.a.lab(Lk)
        L5 = self.a.newlab("Lc5")
        e(f"""s_cmp_eq_u32 s{sCB}, 5
        s_cbranch_scc1 {L5}
        s_waitcnt vmcnt(0)
        s_sleep {self.o.get("hdl", 2)}
        s_and_b32 s{sT}, s2, 1
        s_mul_i32 s{sT}, s{sT}, 3
        s_lshl_b32 exec_lo, 7, s{sT}
        s_mov_b32 exec_hi, 0""")
        self.poll(6, "0", T+3)
        self.stamp(6)
        hblk(1); hblk(2)
        e("s_waitcnt vmcnt(0)\ns_barrier")
        self.a.lab(L5)
        self.poll(6, "0", T+3)
        self.stamp(8)
        hblk(3)
        e(f"s_cmp_eq_u32 s{sCB}, 5\ns_cbranch_scc1 L_end")
        hblk(4); hblk(5)
        e(f"s_add_u32 m0, s{sB}, {YAB}\ns_nop 0")
        for i in range(4):
            e(f"buffer_load_dwordx4 v{T+8}, {srd(SRD_WS)}, s{sD} offen offset:{1024*i} sc1 lds")
        for n in (12, 8, 0):
            e(f"s_waitcnt vmcnt({n})\ns_barrier")
        self.stamp(7)
        e("s_branch L_end")

    def build(self):
        from ssm import ssm_path
        self.entry()
        self.inpro = True
        self.gemm_prologue()
        self.inpro = False
        self.x_path()
        self.y_path()
        self.a.lab("L_ssm")
        if self.o.get("nossm"):
            self.e("s_branch L_end")
        else:
            ssm_path(self)
        self.a.lab("L_end")
        if self.o.get("stamps"):
            self.e(f"""s_mov_b64 exec, -1
            s_waitcnt vmcnt(0)
            s_memrealtime s[{sTM}:{sTM+1}]
            s_waitcnt lgkmcnt(0)
            v_writelane_b32 v0, s100, 62
            v_writelane_b32 v0, s{sTM}, 63
            s_lshl_b32 s{sTM}, s2, 3
            s_add_u32 s{sTM}, s{sTM}, s{sWAVE}
            s_lshl_b32 s{sTM}, s{sTM}, 8
            s_add_u32 s{sTM}, s{sTM}, {WS_DBG}
            v_lshlrev_b32 v2, 2, v1
            buffer_store_dword v0, v2, {srd(SRD_WS)}, s{sTM} offen""")
        self.e("s_endpgm")
        self.a.lab("L_exit")
        self.e("s_endpgm")
        body = self.a.finalize()
        if self.o.get("align", "1") == "1":
            from asmlib import align_pass
            body = align_pass(body, KNAME, extra="L_gtab:\nL_tabend:\n")
        hdr = open("parallel_sum__ssm_conv_s4d__mixer_gmlp__prompt.s.ref").read().split("; Override launch")[0]
        s = hdr + "; @launch grid=(256,1,1) block=(512,1,1) lds=163840\n"
        s += f'.amdgcn_target "amdgcn-amd-amdhsa--gfx950"\n.text\n.globl {KNAME}\n.p2align 8\n.type {KNAME},@function\n{KNAME}:\n'
        s += body
        from ssm import gtab
        t = gtab()
        s += ".p2align 8\n.type L_gtab,@object\nL_gtab:\n"
        for i in range(0, len(t), 16): s += ".long " + ", ".join(str(v) for v in t[i:i+16]) + "\n"
        s += "L_tabend:\n"
        s += f""".section .rodata,"a"
.p2align 6
.amdhsa_kernel {KNAME}
  .amdhsa_next_free_vgpr 256
  .amdhsa_next_free_sgpr 102
  .amdhsa_accum_offset 256
  .amdhsa_group_segment_fixed_size 0
  .amdhsa_kernarg_size 120
  .amdhsa_user_sgpr_count 2
  .amdhsa_user_sgpr_kernarg_segment_ptr 1
  .amdhsa_system_sgpr_workgroup_id_x 1
.end_amdhsa_kernel
"""
        return s

if __name__ == "__main__":
    opts = {}
    out = "parallel_sum__ssm_conv_s4d__mixer_gmlp__prompt.s"
    for a in sys.argv[1:]:
        if a.startswith("-o"): out = a[2:]
        elif "=" in a:
            k, v = a.split("="); opts[k] = v
        else: opts[a] = True
    open(out, "w").write(G(opts).build())
```

```python
import math
from gen import *

SLOT = 17600; KCP = 4576; UOFF = 9152; UCP = 4224
TB = 8*SLOT; TSZ = 1568; ZI = 768
SRD_LAR, SRD_AIM, SRD_CR, SRD_CI, SRD_LDT, SRD_DSK = 8, 12, 16, 20, 24, 32
sCH, sSLOT, sTBL, sRND, sD0 = 66, 67, 68, 69, 70
sWJ, sKS, sLN = 71, 72, 73
sNIT, sMO, sPF, sPK, sPN, sWP = 75, 76, 77, 83, 84, 85
sC2, sUF, sF1, sF2 = 91, 93, 94, 95
SRD_WO, SRD_PF, SRD_WI = 36, 52, 40
LOG2E = 1.4426950408889634

def ssm_path(g):
    e = g.e; a = g.a
    vL = 1
    T = 12; vZ = 10
    GA = 220
    e(f"""s_load_dwordx16 s[36:51], s[0:1], 0
    s_load_dwordx8 s[52:59], s[0:1], 64
    s_getpc_b64 s[62:63]
    L_pc0:
    s_sub_u32 s62, s62, L_pc0-{KNAME}
    s_subb_u32 s63, s63, 0
    v_and_b32 v{vL}, 63, v0
    s_sub_u32 s{sB}, s{sB}, 24
    s_lshl_b32 s{sB}, s{sB}, 3
    s_add_u32 s{sRB}, s{sB}, s{sA}
    s_mul_i32 s{sD0}, s{sRB}, 10
    s_add_u32 s{sCH}, s{sD0}, s{sWAVE}
    v_mov_b32 v{vZ}, 0""")
    if g.o.get("pfc", "1") == "1":
        e(f"""v_min_u32 v2, 5, v{vL}
        s_add_u32 s{sC}, s{sB}, s{sWAVE}
        s_mul_i32 s{sC}, s{sC}, 6
        v_add_u32 v2, s{sC}, v2
        v_lshlrev_b32 v2, 7, v2
        v_min_u32 v2, L_tabend-4-{KNAME}, v2
        global_load_dword v219, v2, s[62:63]""")
    e("s_waitcnt lgkmcnt(0)")
    g.mk_srd(SRD_LAR, 38, 640*128*2); g.mk_srd(SRD_AIM, 40, 640*128*2)
    g.mk_srd(SRD_CR, 42, 640*128*2); g.mk_srd(SRD_CI, 44, 640*128*2)
    g.mk_srd(SRD_LDT, 46, 640*2)
    def param_loads():
        e(f"""v_lshlrev_b32 v{T}, 2, v{vL}
        s_lshl_b32 s{sA}, s{sCH}, 8
        s_lshl_b32 s{sB}, s{sCH}, 1
        buffer_load_dword v{T+4}, v{T}, {srd(SRD_LAR)}, s{sA} offen
        buffer_load_dword v{T+5}, v{T}, {srd(SRD_AIM)}, s{sA} offen
        buffer_load_dword v{T+6}, v{T}, {srd(SRD_CR)}, s{sA} offen
        buffer_load_dword v{T+7}, v{T}, {srd(SRD_CI)}, s{sA} offen
        buffer_load_ushort v{T+8}, v{vZ}, {srd(SRD_LDT)}, s{sB} offen""")
    param_loads()
    g.mk_srd(SRD_WI, 52, 640*1728*2)
    e(f"s_load_dword s{sTAG}, s[64:65], {WS_EPOCH}")
    g.mk_srd(SRD_WS, 64, WS_SIZE)
    g.mk_srd(SRD_DSK, 48, 640*2)
    e(f"""s_mul_i32 s{sSLOT}, s{sWAVE}, {SLOT}
    s_mov_b32 s{sRND}, 0""")
    if g.o.get("kprio", "1") == "1":
        e(f"s_cmp_lt_u32 s{sWAVE}, 6\ns_cbranch_scc1 L_noprio\ns_setprio 3\nL_noprio:")
    vG, vJ = 2, 3
    vSW, vSR = 4, 5
    vT0, vT1a, vT1b, vT2 = 6, 7, 8, 9
    e(f"""v_lshrrev_b32 v{vG}, 4, v{vL}
    v_and_b32 v{vJ}, 15, v{vL}
    v_lshlrev_b32 v{vSW}, 3, v{vL}
    v_add_u32 v{vSW}, s{sSLOT}, v{vSW}
    v_mul_u32_u24 v{vSR}, 528, v{vJ}
    v_lshl_add_u32 v{vSR}, v{vG}, 4, v{vSR}
    v_add_u32 v{vSR}, s{sSLOT}, v{vSR}
    v_lshrrev_b32 v{T}, 1, v{vG}
    v_lshlrev_b32 v{T}, 7, v{T}
    v_lshl_add_u32 v{T}, v{vJ}, 3, v{T}
    v_and_b32 v{T+1}, 1, v{vG}
    v_lshl_add_u32 v{T}, v{T+1}, 2, v{T}
    v_lshlrev_b32 v{vT0}, 1, v{T}
    v_lshlrev_b32 v{T}, 6, v{vG}
    v_lshl_add_u32 v{T+1}, v{vJ}, 2, v{T}
    v_add_u32 v{T+1}, 256, v{T+1}
    v_lshl_add_u32 v{T+2}, v{vJ}, 1, v{T}
    v_add_u32 v{T+2}, 256, v{T+2}
    v_cmp_gt_u32 vcc, 2, v{vG}
    v_cndmask_b32 v{vT1a}, v{T+2}, v{T+1}, vcc
    v_mov_b32 v{T+3}, 32
    v_cndmask_b32 v{T+3}, v{T+3}, 2, vcc
    v_add_u32 v{vT1b}, v{vT1a}, v{T+3}
    v_lshlrev_b32 v{vT1a}, 1, v{vT1a}
    v_lshlrev_b32 v{vT1b}, 1, v{vT1b}
    v_add_u32 v{T}, v{T}, v{vJ}
    v_add_u32 v{T}, 512, v{T}
    v_lshlrev_b32 v{vT2}, 1, v{T}""")
    g.mk_srd(SRD_WO, 58, 864*640*2)
    g.mk_srd(SRD_PF, 54, 2048*2048*2)
    e(f"""s_mov_b32 s{sWJ}, 0
    s_cmp_ge_u32 s{sRB}, 54
    s_cbranch_scc1 L_wj_skip
    s_cmp_ge_u32 s{sWAVE}, 5
    s_cbranch_scc1 L_wj_skip
    s_mov_b32 s{sWJ}, 1
    s_lshr_b32 s{sKS}, s{sRB}, 1
    s_and_b32 s{sLN}, s{sRB}, 1
    s_mul_i32 s{sLN}, s{sLN}, 5
    s_add_u32 s{sLN}, s{sLN}, s{sWAVE}
    s_lshr_b32 s{sA}, s{sKS}, 2
    s_and_b32 s{sB}, s{sKS}, 3
    s_mul_i32 s{sA}, s{sA}, 9
    s_lshl_b32 s{sC}, s{sB}, 1
    s_add_u32 s{sA}, s{sA}, s{sC}
    s_lshr_b32 s{sC}, s{sB}, 1
    s_add_u32 s{sA}, s{sA}, s{sC}
    s_add_u32 s{sB}, s{sA}, 1
    s_sub_u32 s{sC}, s{sKS}, 24
    s_mul_i32 s{sC}, s{sC}, 18
    s_add_u32 s{sC}, s{sC}, 4
    s_add_u32 s{sD}, s{sC}, 9
    s_cmp_ge_u32 s{sKS}, 24
    s_cselect_b32 s{sA}, s{sC}, s{sA}
    s_cselect_b32 s{sB}, s{sD}, s{sB}
    s_mul_i32 s{sA}, s{sA}, {16*1280}
    s_mul_i32 s{sB}, s{sB}, {16*1280}
    s_lshl_b32 s{sC}, s{sLN}, 7
    s_add_u32 s{sA}, s{sA}, s{sC}
    s_add_u32 s{sB}, s{sB}, s{sC}
    v_lshrrev_b32 v{T}, 3, v{vL}
    v_mul_u32_u24 v{T}, 1280, v{T}
    v_and_b32 v{T+1}, 7, v{vL}
    v_lshl_add_u32 v{T}, v{T+1}, 4, v{T}
    s_add_u32 m0, s{sSLOT}, {UOFF + 128}
    s_add_u32 s{sC}, s{sA}, {8*1280}
    buffer_load_dwordx4 v{T}, {srd(SRD_WO)}, s{sA} offen lds
    s_add_u32 m0, m0, 1024
    s_add_u32 s{sD}, s{sB}, {8*1280}
    buffer_load_dwordx4 v{T}, {srd(SRD_WO)}, s{sC} offen lds
    s_add_u32 m0, m0, 1024
    s_nop 0
    buffer_load_dwordx4 v{T}, {srd(SRD_WO)}, s{sB} offen lds
    s_add_u32 m0, m0, 1024
    s_nop 0
    buffer_load_dwordx4 v{T}, {srd(SRD_WO)}, s{sD} offen lds""")
    a.lab("L_wj_skip")
    e(f"v_lshlrev_b32 v{T}, 4, v{vL}\nv_add_u32 v{T}, L_gtab-{KNAME}, v{T}")
    for i in range(9):
        if i == 4: e(f"v_add_u32 v{T}, 4096, v{T}")
        if i == 8: e(f"v_add_u32 v{T}, 4096, v{T}")
        e(f"global_load_dwordx4 v[{GA+4*i}:{GA+4*i+3}], v{T}, s[62:63] offset:{1024*(i%4)}")
    PFM = g.o.get("pfw", "1")
    npf = 0
    TLB = int(g.o.get("tlb", 0))
    if TLB:
        e(f"""s_load_dwordx2 s[60:61], s[0:1], 96
        v_lshlrev_b32 v214, {TLB}, v{vL}
        s_lshr_b32 s{sA}, s{sRB}, 3
        s_lshl_b32 s{sA}, s{sA}, {TLB + 6}
        s_waitcnt lgkmcnt(0)""")
        g.mk_srd(56, 60, 2048*640*2)
        e(f"""s_cmp_eq_u32 s{sWAVE}, 5
        s_cbranch_scc0 L_tl1
        buffer_load_dword v219, v214, {srd(SRD_WS)}, s{sA} offen offset:2048
        L_tl1:
        s_cmp_eq_u32 s{sWAVE}, 6
        s_cbranch_scc0 L_tl2
        buffer_load_dword v219, v214, {srd(SRD_PF)}, s{sA} offen
        L_tl2:
        s_cmp_eq_u32 s{sWAVE}, 7
        s_cbranch_scc0 L_tl3
        buffer_load_dword v219, v214, s[56:59], s{sA} offen
        L_tl3:""")
    if PFM == "1":
        npf = 1
        e(f"""v_min_u32 v218, 33, v{vL}
        v_lshlrev_b32 v218, 7, v218
        s_lshl_b32 s{sA}, s{sRB}, 3
        s_add_u32 s{sA}, s{sA}, s{sWAVE}
        s_mul_i32 s{sA}, s{sA}, {34*128}
        buffer_load_dword v219, v218, {srd(SRD_WI)}, s{sA} offen""")
    if PFM == "2":
        npf = 1
        e(f"""v_lshrrev_b32 v218, 3, v{vL}
        v_mul_u32_u24 v218, 3456, v218
        v_and_b32 v219, 7, v{vL}
        v_lshl_add_u32 v218, v219, 7, v218
        s_lshr_b32 s{sA}, s{sRB}, 3
        s_lshl_b32 s{sA}, s{sA}, 3
        s_add_u32 s{sA}, s{sA}, s{sWAVE}
        s_and_b32 s{sC}, s2, 1
        s_mul_i32 s{sWP}, s{sA}, {8*3456}
        s_mul_i32 s{sD}, s{sC}, 896
        s_add_u32 s{sD}, s{sD}, 1664
        s_add_u32 s{sD}, s{sD}, s{sWP}
        buffer_load_dword v219, v218, {srd(SRD_WI)}, s{sD} offen
        s_add_u32 s{sPK}, s{sD}, {64*8*3456}
        s_mul_i32 s{sC}, s{sC}, 768
        s_add_u32 s{sWP}, s{sWP}, s{sC}""")
    g.stamp(0)
    PFW = False
    e(f"""v_and_b32 v216, 3, v{vL}
    v_lshlrev_b32 v216, 7, v216
    v_bfe_u32 v217, v{vL}, 2, {3 if g.o.get("pfl2") else 2}
    v_lshl_add_u32 v216, v217, 12, v216
    s_and_b32 s{sA}, s2, {6 if g.o.get("pfl2") else 7}
    s_lshl_b32 s{sA}, s{sA}, {2 if g.o.get("pfl2") else 3}
    s_lshr_b32 s{sC}, s{sRB}, 3
    s_add_u32 s{sA}, s{sA}, s{sC}
    s_lshl_b32 s{sA}, s{sA}, 3
    s_add_u32 s{sA}, s{sA}, s{sWAVE}
    s_lshl_b32 s{sPF}, s{sA}, {15 if g.o.get("pfl2") else 14}
    s_and_b32 s{sPK}, s2, 6
    s_lshl_b32 s{sPK}, s{sPK}, 9
    s_mov_b32 s{sPN}, 8""")
    def pf_touch():
        if g.o.get("nopf"): return
        L = a.newlab("Lpf")
        e(f"""s_cmp_eq_u32 s{sPN}, 0
        s_cbranch_scc1 {L}
        s_add_u32 s{sT2}, s{sPF}, s{sPK}
        buffer_load_dword v217, v216, {srd(SRD_PF)}, s{sT2} offen
        s_add_u32 s{sPK}, s{sPK}, 512
        s_and_b32 s{sPK}, s{sPK}, 4095
        s_sub_u32 s{sPN}, s{sPN}, 1""")
        a.lab(L)
    def pfq():
        if g.o.get("pfq", "1") == "1":
            e(f"""s_cmp_lg_u32 s{sRND}, 0
            s_cbranch_scc1 L_pfq
            v_lshrrev_b32 v30, 3, v{vL}
            v_lshlrev_b32 v30, 12, v30
            v_and_b32 v31, 7, v{vL}
            v_lshl_add_u32 v30, v31, 7, v30
            s_and_b32 s{sA}, s2, 6
            s_lshl_b32 s{sA}, s{sA}, 2
            s_lshr_b32 s{sC}, s{sRB}, 3
            s_add_u32 s{sA}, s{sA}, s{sC}
            s_lshl_b32 s{sA}, s{sA}, 3
            s_add_u32 s{sA}, s{sA}, s{sWAVE}
            s_lshl_b32 s{sA}, s{sA}, 15
            s_add_u32 s{sA}, s{sA}, s{sPK}
            buffer_load_dword v217, v30, {srd(SRD_PF)}, s{sA} offen
            s_add_u32 s{sPK}, s{sPK}, 1024
            s_and_b32 s{sPK}, s{sPK}, 4095
            s_mov_b32 s{sPN}, 6""")
            a.lab("L_pfq")
        else:
            for _ in range(2): pf_touch()
    NK = int(g.o.get("pfk", 0))
    kc = [0]
    def pf_k():
        kc[0] += 1
        if PFM == "2" and kc[0] <= 3:
            L = a.newlab("Lpw")
            e(f"s_cmp_lg_u32 s{sRND}, 0\ns_cbranch_scc1 {L}")
            if kc[0] == 1: e(f"buffer_load_dword v219, v215, {srd(SRD_WI)}, s{sPK} offen")
            if kc[0] == 2: e(f"buffer_load_dword v219, v215, {srd(SRD_WI)}, s{sWP} offen\ns_add_u32 s{sWP}, s{sWP}, {64*8*3456}")
            if kc[0] == 3: e(f"buffer_load_dword v219, v215, {srd(SRD_WI)}, s{sWP} offen")
            a.lab(L)
        if kc[0] > 6 - NK: pf_touch()
    vL16 = 11; vFL = 218; vDS = 22
    def xn_addr(sch, sdst):
        e(f"s_lshr_b32 s{sA}, s{sch}, 4\ns_mov_b32 s{sdst}, {WS_FXN}")
        for th in (7, 14, 20, 26, 32):
            e(f"s_cmp_ge_u32 s{sA}, {th}\ns_cselect_b32 s{sT}, 4096, 0\ns_add_u32 s{sdst}, s{sdst}, s{sT}")
    XF = 24
    def xn_load(): e(f"buffer_load_dwordx4 v[{XF}:{XF+3}], v{vFL}, {srd(SRD_WS)}, s{sF1} offen sc1")
    def xn_check():
        e(f"""v_xor_b32 v{XF}, s{sTAG}, v{XF}
        v_xor_b32 v{XF+1}, s{sTAG}, v{XF+1}
        v_xor_b32 v{XF+2}, s{sTAG}, v{XF+2}
        v_xor_b32 v{XF+3}, s{sTAG}, v{XF+3}
        v_or3_b32 v{XF}, v{XF}, v{XF+1}, v{XF+2}
        v_or_b32 v{XF}, v{XF}, v{XF+3}
        v_cmp_ne_u32 vcc, 0, v{XF}""")
    def u_dma(sch):
        e(f"""s_lshl_b32 s{sA}, s{sch}, 12
        s_add_u32 s{sA}, s{sA}, {WS_XNT}
        s_sub_u32 s{sC}, s{sA}, 4
        s_add_u32 m0, s{sSLOT}, {UOFF + UCP + 64}
        s_lshl_b32 s{sD}, s{sch}, 1""")
        for i in range(4): e(f"buffer_load_dwordx4 v{vL16}, {srd(SRD_WS)}, s{sA} offen offset:{1024*i} sc1 lds")
        e(f"s_add_u32 m0, s{sSLOT}, {UOFF + 64}\ns_nop 0")
        for i in range(4): e(f"buffer_load_dwordx4 v{vL16}, {srd(SRD_WS)}, s{sC} offen offset:{1024*i} sc1 lds")
        e(f"buffer_load_ushort v{vDS}, v{vZ}, {srd(SRD_DSK)}, s{sD} offen")
    e(f"""v_lshlrev_b32 v{vL16}, 4, v{vL}
    s_and_b32 s{sC2}, s{sWAVE}, 1
    s_add_u32 s{sC2}, s{sC2}, s{sD0}
    s_add_u32 s{sC2}, s{sC2}, 8
    s_mov_b32 s{sUF}, 0""")
    xn_addr(sCH, sF1); xn_addr(sC2, sF2)
    AR, PH, CRp, CIp = 24, 26, 28, 30
    W = 32
    def C(i): return W + 4*i
    def re(c): return f"v[{c}:{c+1}]"
    def im(c): return f"v[{c+2}:{c+3}]"
    tp = T
    TMP = 176
    def cexp_l(c, p, k):
        lit = hx(f2u(float(p))); tp = TMP + 4*k
        return [f"v_mul_f32 v{tp}, {lit}, v{AR}", f"v_mul_f32 v{tp+1}, {lit}, v{AR+1}",
        f"v_mul_f32 v{tp+2}, {lit}, v{PH}", f"v_mul_f32 v{tp+3}, {lit}, v{PH+1}",
        f"v_exp_f32 v{tp}, v{tp}", f"v_exp_f32 v{tp+1}, v{tp+1}",
        f"v_fract_f32 v{tp+2}, v{tp+2}", f"v_fract_f32 v{tp+3}, v{tp+3}",
        f"v_cos_f32 v{c}, v{tp+2}", f"v_cos_f32 v{c+1}, v{tp+3}",
        f"v_sin_f32 v{c+2}, v{tp+2}", f"v_sin_f32 v{c+3}, v{tp+3}",
        f"v_pk_mul_f32 {re(c)}, {re(c)}, v[{tp}:{tp+1}]", f"v_pk_mul_f32 {im(c)}, {im(c)}, v[{tp}:{tp+1}]"]
    def cmul_l(z, x, y, k):
        tp = TMP + 4*k
        assert z not in (x, y)
        return [f"v_pk_mul_f32 v[{tp}:{tp+1}], {im(x)}, {im(y)}",
        f"v_pk_mul_f32 v[{tp+2}:{tp+3}], {im(x)}, {re(y)}",
        f"v_pk_fma_f32 {re(z)}, {re(x)}, {re(y)}, v[{tp}:{tp+1}] neg_lo:[0,0,1] neg_hi:[0,0,1]",
        f"v_pk_fma_f32 {im(z)}, {re(x)}, {im(y)}, v[{tp+2}:{tp+3}]"]
    def put_l(c, row, neg, k):
        d = 192 + 2*k
        n = "-" if neg else ""
        return [f"v_cvt_pk_f16_f32 v{d}, v{c}, {n}v{c+2}", f"v_cvt_pk_f16_f32 v{d+1}, v{c+1}, {n}v{c+3}",
                f"ds_write_b64 v{vSW}, v[{d}:{d+1}] offset:{528*row}"]
    def batch(jobs):
        for i in range(0, len(jobs), 4):
            g.rr([j(k) for k, j in enumerate(jobs[i:i+4])])
    def J_mul(z, x, y, row=None, neg=False):
        return lambda k: cmul_l(z, x, y, k) + (put_l(z, row, neg, k) if row is not None else [])
    def J_put(c, row, neg): return lambda k: put_l(c, row, neg, k)
    E2F = 112
    E1F = 144
    DD = 12
    vSC = 23
    e(f"s_mul_i32 s{sTBL}, s{sWAVE}, {TSZ}\ns_add_u32 s{sTBL}, s{sTBL}, {TB}")
    e(f"s_waitcnt vmcnt({9+npf}) lgkmcnt(0)")
    if PFW:
        e(f"""v_lshrrev_b32 v218, 3, v{vL}
        v_mul_u32_u24 v218, 3456, v218
        v_and_b32 v219, 7, v{vL}
        v_lshl_add_u32 v218, v219, 7, v218
        s_lshr_b32 s{sA}, s{sRB}, 3
        s_lshl_b32 s{sA}, s{sA}, 3
        s_add_u32 s{sA}, s{sA}, s{sWAVE}
        s_and_b32 s{sC}, s2, 1
        s_mul_i32 s{sC}, s{sC}, 768
        s_mul_i32 s{sWP}, s{sA}, {8*3456}
        s_add_u32 s{sWP}, s{sWP}, s{sC}""")
    a.lab("L_kgen")
    g.stamp(8)
    e(f"s_mov_b32 s{sB}, 0xffff0000")
    e(f"""s_cmp_lg_u32 s{sRND}, 0
    s_cbranch_scc1 L_r0_skip
    s_mul_i32 s{sTAG}, s{sTAG}, 0x9E3779B1
    s_add_u32 s{sTAG}, s{sTAG}, 0x7F4A7C15
    s_cmp_eq_u32 s{sWJ}, 0
    s_cbranch_scc1 L_wj2_skip
    v_lshrrev_b32 v{E1F+16}, 2, v{vL}
    v_lshlrev_b32 v{E1F+16}, 7, v{E1F+16}
    v_and_b32 v{E1F+17}, 3, v{vL}
    v_lshl_add_u32 v{E1F+16}, v{E1F+17}, 3, v{E1F+16}
    v_add_u32 v{E1F+16}, s{sSLOT}, v{E1F+16}
    v_lshlrev_b32 v{E1F+17}, 4, v{vL}""")
    for df in range(4):
        for hf in range(2):
            e(f"ds_read_b64_tr_b16 v[{E1F+4*df+2*hf}:{E1F+4*df+2*hf+1}], v{E1F+16} offset:{UOFF + 128 + hf*2048 + df*32}")
    e(f"""s_lshl_b32 s{sA}, s{sLN}, 2
    s_mul_i32 s{sA}, s{sA}, {27*1024}
    s_lshl_b32 s{sC}, s{sKS}, 10
    s_add_u32 s{sA}, s{sA}, s{sC}
    s_add_u32 s{sA}, s{sA}, {WS_WOT}
    s_waitcnt lgkmcnt(0)""")
    for df in range(4):
        e(f"buffer_store_dwordx4 v[{E1F+4*df}:{E1F+4*df+3}], v{E1F+17}, {srd(SRD_WS)}, s{sA} offen sc1\ns_add_u32 s{sA}, s{sA}, {27*1024}")
    a.lab("L_wj2_skip")
    if PFW:
        e(f"""buffer_load_dword v219, v218, {srd(SRD_WI)}, s{sWP} offen
        s_add_u32 s{sWP}, s{sWP}, {64*8*3456}
        buffer_load_dword v219, v218, {srd(SRD_WI)}, s{sWP} offen""")
    a.lab("L_r0_skip")
    e(f"""v_mov_b32 v215, v218
    s_sub_u32 s{sA}, s{sF2}, s{sF1}
    v_lshrrev_b32 v{vFL}, 5, v{vL}
    v_mul_lo_u32 v{vFL}, v{vFL}, s{sA}
    v_and_b32 v214, 31, v{vL}
    v_lshl_add_u32 v{vFL}, v214, 7, v{vFL}""")
    g.stamp(9)
    e(f"""v_lshlrev_b32 v{T+8}, 16, v{T+8}
    v_mul_f32 v{T+8}, {hx(f2u(LOG2E))}, v{T+8}
    v_exp_f32 v{T+8}, v{T+8}
    v_lshlrev_b32 v{AR}, 16, v{T+4}
    v_and_b32 v{AR+1}, s{sB}, v{T+4}
    v_cvt_pk_bf16_f32 v{T+8}, v{T+8}, v{T+8}
    v_mul_f32 v{AR}, {hx(f2u(LOG2E))}, v{AR}
    v_mul_f32 v{AR+1}, {hx(f2u(LOG2E))}, v{AR+1}
    v_lshlrev_b32 v{T+8}, 16, v{T+8}
    v_exp_f32 v{AR}, v{AR}
    v_exp_f32 v{AR+1}, v{AR+1}
    v_lshlrev_b32 v{PH}, 16, v{T+5}
    v_and_b32 v{PH+1}, s{sB}, v{T+5}
    v_cvt_pk_bf16_f32 v{T+4}, v{AR}, v{AR+1}
    v_lshlrev_b32 v{AR}, 16, v{T+4}
    v_and_b32 v{AR+1}, s{sB}, v{T+4}
    v_mul_f32 v{AR}, v{AR}, v{T+8}
    v_mul_f32 v{AR+1}, v{AR+1}, v{T+8}
    v_mul_f32 v{AR}, {hx(f2u(-LOG2E))}, v{AR}
    v_mul_f32 v{AR+1}, {hx(f2u(-LOG2E))}, v{AR+1}
    v_mul_f32 v{PH}, v{PH}, v{T+8}
    v_mul_f32 v{PH+1}, v{PH+1}, v{T+8}
    v_mul_f32 v{PH}, {hx(f2u(1/(2*math.pi)))}, v{PH}
    v_mul_f32 v{PH+1}, {hx(f2u(1/(2*math.pi)))}, v{PH+1}
    v_lshlrev_b32 v{CRp}, 16, v{T+6}
    v_and_b32 v{CRp+1}, s{sB}, v{T+6}
    v_lshlrev_b32 v{CIp}, 16, v{T+7}
    v_and_b32 v{CIp+1}, s{sB}, v{T+7}
    v_max3_f32 v{T}, abs(v{CRp}), abs(v{CRp+1}), abs(v{CIp})
    v_max_f32 v{T}, abs(v{CIp+1}), v{T}""")
    for m in ("row_ror:8", "row_ror:4", "row_ror:2", "row_ror:1"):
        e(f"v_max_f32_dpp v{T}, v{T}, v{T} {m} row_mask:0xf bank_mask:0xf")
    e(f"""v_readlane_b32 s{sA}, v{T}, 0
    v_readlane_b32 s{sC}, v{T}, 16
    v_readlane_b32 s{sD}, v{T}, 32
    v_readlane_b32 s{sT}, v{T}, 48
    s_max_u32 s{sA}, s{sA}, s{sC}
    s_max_u32 s{sD}, s{sD}, s{sT}
    s_max_u32 s{sA}, s{sA}, s{sD}
    v_frexp_exp_i32_f32 v{T}, s{sA}
    v_sub_u32 v{T+1}, 0, v{T}
    v_ldexp_f32 v{C(0)}, v{CRp}, v{T+1}
    v_ldexp_f32 v{C(0)+1}, v{CRp+1}, v{T+1}
    v_ldexp_f32 v{C(0)+2}, v{CIp}, v{T+1}
    v_ldexp_f32 v{C(0)+3}, v{CIp+1}, v{T+1}
    v_add_f32 v{vSC}, v{T+8}, v{T+8}
    v_ldexp_f32 v{vSC}, v{vSC}, v{T}""")
    e(f"""s_cmp_lg_u32 s{sRND}, 0
    s_cbranch_scc1 L_np2
    s_cmp_lt_u32 s{sWAVE}, 6
    s_cbranch_scc1 L_np2
    s_add_u32 s{sCH}, s{sCH}, 2""")
    param_loads()
    e(f"s_mov_b32 s{sB}, 0xffff0000")
    a.lab("L_np2")
    Tq = lambda q: C(q)
    P = lambda j: C(8 + j - 1)
    V = {1: C(16), 2: C(17), 4: C(18), 8: C(19)}
    SO = lambda k: E1F + 4*k
    pf_k()
    g.rr([cexp_l(P(1), 8, 0), cexp_l(V[1], 128, 1)])
    e(f"v_mov_b32 v{SO(0)}, 1.0\nv_mov_b32 v{SO(0)+1}, 1.0\nv_mov_b32 v{SO(0)+2}, 0\nv_mov_b32 v{SO(0)+3}, 0")
    batch([J_mul(P(2), P(1), P(1), 2, True), J_mul(V[2], V[1], V[1]), J_mul(Tq(1), Tq(0), V[1]), J_put(SO(0), 0, True)])
    batch([J_mul(P(4), P(2), P(2), 4, True), J_mul(P(3), P(2), P(1), 3, True), J_mul(V[4], V[2], V[2]), J_put(P(1), 1, True)])
    pf_k()
    batch([J_mul(P(8), P(4), P(4), 8, True), J_mul(P(5), P(4), P(1), 5, True), J_mul(P(6), P(4), P(2), 6, True), J_mul(P(7), P(4), P(3), 7, True)])
    batch([J_mul(SO(k % 4), P(8), P(k + 1), 9 + k, True) for k in range(7)] + [J_mul(V[8], V[4], V[4])])
    for ks in range(8):
        e(f"ds_read_b128 v[{E2F+4*ks}:{E2F+4*ks+3}], v{vSR} offset:{64*ks}")
    pf_k()
    g.stamp(10)
    R = P
    g.rr([cexp_l(R(1), 1, 0), cmul_l(Tq(2), Tq(0), V[2], 1) + cmul_l(Tq(4), Tq(0), V[4], 1) + cmul_l(Tq(5), Tq(1), V[4], 1),
          cmul_l(Tq(3), Tq(1), V[2], 2) + put_l(Tq(0), 0, False, 2) + put_l(Tq(1), 8, False, 2)])
    batch([J_mul(R(2), R(1), R(1)), J_mul(Tq(6), Tq(2), V[4]), J_mul(Tq(7), Tq(3), V[4]), J_mul(SO(0), Tq(0), R(1), 1)])
    batch([J_mul(R(4), R(2), R(2)), J_mul(R(3), R(2), R(1)), J_mul(SO(1), Tq(1), R(1), 9), J_mul(SO(2), Tq(0), R(2), 2)])
    pf_k()
    batch([J_mul(R(5), R(4), R(1)), J_mul(R(6), R(4), R(2)), J_mul(R(7), R(4), R(3)), J_mul(SO(3), Tq(1), R(2), 10)])
    batch([J_mul(SO(k % 4), Tq(k & 1), R(3 + (k >> 1)), 8*(k & 1) + 3 + (k >> 1)) for k in range(10)])
    def tile_rd():
        for ks in range(8):
            e(f"ds_read_b128 v[{E1F+4*ks}:{E1F+4*ks+3}], v{vSR} offset:{64*ks}")
    def tile_mma(nafter):
        for ks in range(8):
            e(f"s_waitcnt lgkmcnt({7-ks})")
            e(f"v_mfma_f32_16x16x32_f16 v[{DD}:{DD+3}], v[{E1F+4*ks}:{E1F+4*ks+3}], v[{E2F+4*ks}:{E2F+4*ks+3}], {'0' if ks == 0 else f'v[{DD}:{DD+3}]'}")
    def tile_fin():
        for r in range(4): e(f"v_mul_f32 v{DD+r}, v{DD+r}, v{vSC}")
        e(f"v_cvt_pk_bf16_f32 v{DD}, v{DD}, v{DD+1}\nv_cvt_pk_bf16_f32 v{DD+1}, v{DD+2}, v{DD+3}")
    def taddr(v, d): e(f"v_add_u32 v{d}, s{sTBL}, v{v}")
    SO2 = lambda k: 200 + 4*k
    tile_rd(); tile_mma(0); pf_k()
    g.stamp(11)
    jobs = []
    for q in range(2):
        jobs.append(J_put(Tq(2 + q), 4*q, False))
        for r in range(1, 4): jobs.append(J_mul(SO2(len(jobs) % 4), Tq(2 + q), R(2*r), 4*q + r))
    for q in range(4):
        jobs.append(J_put(Tq(4 + q), 8 + 2*q, False))
        jobs.append(J_mul(SO2(len(jobs) % 4), Tq(4 + q), R(4), 8 + 2*q + 1))
    batch(jobs[:4])
    tile_fin(); taddr(vT0, DD+2)
    e(f"ds_write_b64 v{DD+2}, v[{DD}:{DD+1}]")
    pf_k()
    batch(jobs[4:])
    tile_rd(); tile_mma(0)
    xn_load()
    jobs = [J_mul(R(1), Tq(0), V[8], 0)] + [J_mul(SO2(q % 4), Tq(q), V[8], q) for q in range(1, 8)]
    batch(jobs[:4])
    tile_fin(); taddr(vT1a, DD+2); taddr(vT1b, DD+3)
    e(f"ds_write_b32 v{DD+2}, v{DD}\nds_write_b32 v{DD+3}, v{DD+1}")
    batch(jobs[4:])
    batch([J_mul(SO2(0), R(1), V[8], 8)])
    tile_rd(); tile_mma(0)
    g.stamp(12)
    e(f"""s_waitcnt vmcnt(0)
    s_cmp_lg_u32 s{sUF}, 0
    s_cbranch_scc1 L_uf_skip""")
    xn_check()
    e(f"""s_cbranch_vccnz L_uf_skip
    s_mov_b32 s{sUF}, 1
    s_add_u32 s{sT2}, s{sD0}, s{sWAVE}""")
    u_dma(sT2)
    a.lab("L_uf_skip")
    e(f"""s_cmp_lg_u32 s{sRND}, 0
    s_cbranch_scc1 L_wj3_skip
    s_cmp_eq_u32 s{sWJ}, 0
    s_cbranch_scc1 L_wj3_skip
    s_lshl_b32 s{sA}, s{sLN}, 5
    s_add_u32 s{sA}, s{sA}, s{sKS}
    s_lshl_b32 s{sA}, s{sA}, {FS}
    s_add_u32 s{sA}, s{sA}, {WS_FWO}""")
    g.flag_store(sA, 28)
    a.lab("L_wj3_skip")
    if g.o.get("pfqe", "0") == "1": pfq()
    tile_fin(); taddr(vT2, DD+2)
    e(f"""ds_write_b16 v{DD+2}, v{DD}
    ds_write_b16_d16_hi v{DD+2}, v{DD} offset:32
    ds_write_b16 v{DD+2}, v{DD+1} offset:64
    ds_write_b16_d16_hi v{DD+2}, v{DD+1} offset:96
    v_mov_b32 v{DD+3}, s{sTBL}
    ds_write_b32 v{DD+3}, v{vZ} offset:{2*ZI}""")
    e(f"""s_cmp_lg_u32 s{sRND}, 0
    s_cbranch_scc1 L_kgen_done
    s_cmp_lt_u32 s{sWAVE}, 6
    s_cbranch_scc1 L_kgen_done
    s_mov_b32 s{sRND}, 1
    s_add_u32 s{sTBL}, s{sTBL}, {2*TSZ}
    s_branch L_kgen""")
    a.lab("L_kgen_done")
    g.stamp(1)
    vKA, vUB, vKW, vZW, vEU, vES, vYO = 60, 61, 62, 63, 65, 66, 67
    vKAc, vUBc = 69, 70
    vDP = 172
    e(f"s_add_u32 s{sCH}, s{sD0}, s{sWAVE}")
    e(f"""v_and_b32 v{T}, 1, v{vJ}
    v_mul_u32_u24 v{vKA}, {KCP}, v{T}
    v_lshrrev_b32 v{T+1}, 1, v{vJ}
    v_lshlrev_b32 v{T+1}, 6, v{T+1}
    v_lshl_add_u32 v{T+1}, v{vG}, 4, v{T+1}
    v_sub_u32 v{vKA}, v{vKA}, v{T+1}
    v_add_u32 v{vKA}, {4528 - 3584}, v{vKA}
    v_add_u32 v{vKA}, s{sSLOT}, v{vKA}
    v_mul_u32_u24 v{vUB}, {UCP}, v{T}
    v_or_b32 v{T+1}, 1, v{vJ}
    v_lshl_add_u32 v{vUB}, v{T+1}, 2, v{vUB}
    v_lshlrev_b32 v{T+1}, 4, v{vG}
    v_sub_u32 v{vUB}, v{vUB}, v{T+1}
    v_add_u32 v{vUB}, {UOFF + 52 + 448}, v{vUB}
    v_add_u32 v{vUB}, s{sSLOT}, v{vUB}
    v_add_u32 v{vKW}, s{sSLOT}, v{vL16}
    v_and_b32 v{T}, 31, v{vL}
    v_min_u32 v{T}, 29, v{T}
    v_lshlrev_b32 v{T}, 4, v{T}
    v_lshrrev_b32 v{T+1}, 5, v{vL}
    v_mul_u32_u24 v{T+1}, {KCP}, v{T+1}
    v_add3_u32 v{vZW}, v{T}, v{T+1}, s{sSLOT}
    v_lshlrev_b32 v{vES}, 7, v{vG}
    v_lshl_add_u32 v{vES}, v{vJ}, 2, v{vES}
    v_add_u32 v{vES}, s{sSLOT}, v{vES}
    v_add_u32 v{vEU}, {UOFF + UCP + 64}, v{vES}
    v_lshrrev_b32 v{T}, 3, v{vL}
    s_mov_b32 s{sA}, {640*128}
    v_mul_lo_u32 v{vYO}, v{T}, s{sA}
    v_and_b32 v{T}, 7, v{vL}
    v_lshl_add_u32 v{vYO}, v{T}, 4, v{vYO}""")
    ZQ = 72
    for i in range(4): e(f"v_mov_b32 v{ZQ+i}, 0")
    e(f"""v_and_b32 v{T}, 3, v{vL}
    v_lshlrev_b32 v{T}, 4, v{T}
    v_bfe_u32 v{T+1}, v{vL}, 2, 1
    v_mul_u32_u24 v{T+1}, {UCP}, v{T+1}
    v_add3_u32 v{T}, v{T}, v{T+1}, s{sSLOT}
    ds_write_b128 v{T}, v[{ZQ}:{ZQ+3}] offset:{UOFF}
    s_mov_b32 s{sRND}, 0
    s_mov_b32 s{sNIT}, 8
    s_mov_b32 s{sMO}, 0
    s_add_u32 s{sCH}, s{sD0}, s{sWAVE}
    s_mul_i32 s{sTBL}, s{sWAVE}, {TSZ}
    s_add_u32 s{sTBL}, s{sTBL}, {TB}""")
    for i in range(36): e(f"v_add_u32 v{GA+i}, s{sTBL}, v{GA+i}")
    e("s_setprio 0")
    g.stamp(2)
    AF = 76
    BF = 108
    AC = 140
    GV = 76
    OQ = 112
    a.lab("L_conv")
    for m in range(4):
        for ee in range(9):
            e(f"ds_read_u16 v{GV+9*m+ee}, v{GA+9*m+ee}")
        if m % 2 == 1 or True:
            e("s_waitcnt lgkmcnt(0)")
            q = OQ + 8*(m & 1)
            b = GV + 9*m
            for i in range(4):
                e(f"v_lshl_or_b32 v{q+i}, v{b+2*i+2}, 16, v{b+2*i+1}")
                e(f"v_lshl_or_b32 v{q+4+i}, v{b+2*i+1}, 16, v{b+2*i}")
            e(f"ds_write_b128 v{vKW}, v[{q}:{q+3}] offset:{1024*m}\nds_write_b128 v{vKW}, v[{q+4}:{q+7}] offset:{KCP + 1024*m}")
    e(f"ds_write_b128 v{vZW}, v[{ZQ}:{ZQ+3}] offset:4096")
    e(f"""v_mov_b32 v{vKAc}, v{vKA}
    v_mov_b32 v{vUBc}, v{vUB}
    v_mov_b32 v{T}, s{sSLOT}""")
    g.stamp(13)
    e(f"s_cmp_lg_u32 s{sUF}, 0\ns_cbranch_scc1 L_nofetch")
    e(f"s_mov_b32 s{sSPIN}, {SPIN_MAX}")
    a.lab("L_xpoll")
    xn_load()
    e("s_waitcnt vmcnt(0)")
    xn_check()
    e(f"""s_cbranch_vccz L_xpolld
    s_mov_b64 exec, vcc
    s_sleep {g.o.get("xslp", 12)}
    s_sub_u32 s{sSPIN}, s{sSPIN}, 1
    s_cmp_lg_u32 s{sSPIN}, 0
    s_cbranch_scc1 L_xpoll""")
    a.lab("L_xpolld")
    e("s_mov_b64 exec, -1")
    g.stamp(3)
    u_dma(sCH)
    e(f"s_mov_b32 s{sUF}, 1")
    a.lab("L_nofetch")
    for i in range(32): e(f"v_mov_b32 v{AC+i}, 0")
    e(f"""s_mov_b32 s{sCNT}, s{sNIT}
    v_subrev_u32 v{vKAc}, s{sMO}, v{vKAc}
    v_subrev_u32 v{vUBc}, s{sMO}, v{vUBc}
    s_waitcnt vmcnt(0)
    ds_write_b32 v{T}, v{vZ} offset:{UOFF + 64}
    v_lshlrev_b32 v{vDP}, 16, v{vDS}
    v_mov_b32 v{vDP+1}, v{vDP}""")
    if g.o.get("pfqe", "0") != "1": pfq()
    if g.o.get("swt", "0") == "1":
        e(f"""s_cmp_lg_u32 s{sRND}, 0
        s_cbranch_scc1 L_swt
        s_lshr_b32 s{sA}, s{sRB}, 3
        s_lshl_b32 s{sA}, s{sA}, 3
        s_add_u32 s{sA}, s{sA}, s{sWAVE}
        s_and_b32 s{sC}, s2, 1
        s_mul_i32 s{sD}, s{sC}, {24*27*1024}
        s_mul_i32 s{sC}, s{sC}, 27
        s_sub_u32 s{sC}, 81, s{sC}
        s_mul_i32 s{sA}, s{sA}, s{sC}
        s_lshl_b32 s{sA}, s{sA}, 7
        s_add_u32 s{sA}, s{sA}, s{sD}
        s_add_u32 s{sA}, s{sA}, {WS_WOT}
        v_min_u32 v30, 53, v{vL}
        v_lshlrev_b32 v30, 7, v30
        buffer_load_dword v217, v30, {srd(SRD_WS)}, s{sA} offen sc1
        v_min_u32 v31, 26, v{vL}
        v_lshlrev_b32 v31, 7, v31
        s_add_u32 s{sA}, s{sA}, {54*128}
        buffer_load_dword v217, v31, {srd(SRD_WS)}, s{sA} offen sc1""")
        a.lab("L_swt")
    g.stamp(4)
    a.lab("L_mu0")
    def rd(m):
        return [f"ds_read_b128 v[{AF+4*m}:{AF+4*m+3}], v{vKAc} offset:{512*(7-m)}",
                f"ds_read_b64 v[{BF+4*m}:{BF+4*m+1}], v{vUBc} offset:{512*m}",
                f"ds_read_b64 v[{BF+4*m+2}:{BF+4*m+3}], v{vUBc} offset:{512*m+8}"]
    for m in range(5):
        for s in rd(m): e(s)
    issued = 5
    for m in range(8):
        e(f"s_waitcnt lgkmcnt({3*(issued-1-m)})")
        pairs = [(m, b) for b in range(m+1) if m + b <= 7] + [(u, m) for u in range(m) if u + m <= 7]
        for k, (u, b) in enumerate(pairs):
            c = AC + 4*(u + b)
            e(f"v_mfma_f32_16x16x32_bf16 v[{c}:{c+3}], v[{AF+4*u}:{AF+4*u+3}], v[{BF+4*b}:{BF+4*b+3}], v[{c}:{c+3}]")
        if issued < 8:
            for s in rd(issued): e(s)
            issued += 1
    pf_touch()
    e(f"""v_subrev_u32 v{vKAc}, 64, v{vKAc}
    v_subrev_u32 v{vUBc}, 64, v{vUBc}
    s_sub_u32 s{sCNT}, s{sCNT}, 1
    s_cmp_lg_u32 s{sCNT}, 0
    s_cbranch_scc1 L_mu0""")
    g.stamp(5)
    e(f"""s_cmp_eq_u32 s{sRND}, 0
    s_cbranch_scc1 L_epi
    s_cmp_lt_u32 s{sWAVE}, 2
    s_cbranch_scc1 L_red_rd""")
    for c in range(8): e(f"ds_write_b128 v{vKW}, v[{AC+4*c}:{AC+4*c+3}] offset:{1024*c}")
    e("s_waitcnt lgkmcnt(0)\ns_barrier\ns_branch L_conv_done")
    a.lab("L_red_rd")
    e("s_barrier")
    for c in range(8): e(f"ds_read_b128 v[{BF+4*c}:{BF+4*c+3}], v{vKW} offset:{2*SLOT + 1024*c}")
    for c in range(8):
        e(f"s_waitcnt lgkmcnt({7-c})")
        e(f"v_pk_add_f32 v[{AC+4*c}:{AC+4*c+1}], v[{AC+4*c}:{AC+4*c+1}], v[{BF+4*c}:{BF+4*c+1}]\nv_pk_add_f32 v[{AC+4*c+2}:{AC+4*c+3}], v[{AC+4*c+2}:{AC+4*c+3}], v[{BF+4*c+2}:{BF+4*c+3}]")
    a.lab("L_epi")
    UV = AF
    for c in range(8):
        e(f"ds_read2_b32 v[{UV+2*c}:{UV+2*c+1}], v{vEU} offset0:{128*c % 256} offset1:{(128*c + 16) % 256}" if c < 2 else "")
    for c in range(2, 8):
        e(f"ds_read_b32 v{UV+2*c}, v{vEU} offset:{512*c}\nds_read_b32 v{UV+2*c+1}, v{vEU} offset:{512*c+64}")
    e(f"""s_mov_b32 s{sB}, 0xffff0000
    s_waitcnt lgkmcnt(0)
    s_cmp_lg_u32 s{sRND}, 0
    s_cbranch_scc1 L_nou2
    s_cmp_ge_u32 s{sWAVE}, 4
    s_cbranch_scc1 L_nou2""")
    u_dma(sC2)
    a.lab("L_nou2")
    for c in range(8):
        for h in range(2):
            y = AC + 4*c + 2*h; u = UV + 2*c + h
            p0, p1 = T, T+2
            p0 = T + 2*h
            e(f"""v_lshlrev_b32 v{p0}, 16, v{u}
            v_and_b32 v{p0+1}, s{sB}, v{u}
            v_pk_fma_f32 v[{y}:{y+1}], v[{p0}:{p0+1}], v[{vDP}:{vDP+1}], v[{y}:{y+1}]
            v_cvt_pk_bf16_f32 v{y}, v{y}, v{y+1}
            ds_write_b32 v{vES}, v{y} offset:{512*c + 64*h}""")
    for i in range(4):
        e(f"ds_read_b128 v[{BF+4*i}:{BF+4*i+3}], v{vKW} offset:{1024*i}")
    e(f"""s_lshl_b32 s{sA}, s{sCH}, 7
    s_add_u32 s{sA}, s{sA}, {WS_YA}""")
    for i in range(4):
        e(f"""s_waitcnt lgkmcnt({3-i})
        buffer_store_dwordx4 v[{BF+4*i}:{BF+4*i+3}], v{vYO}, {srd(SRD_WS)}, s{sA} offen sc1
        s_add_u32 s{sA}, s{sA}, {8*640*128}""")
    pf_touch(); pf_touch()
    g.stamp(6)
    e(f"""s_cmp_lg_u32 s{sRND}, 0
    s_cbranch_scc1 L_conv_done
    s_cmp_ge_u32 s{sWAVE}, 4
    s_cbranch_scc1 L_conv_idle
    s_barrier
    s_mov_b32 s{sRND}, 1
    s_mov_b32 s{sNIT}, 4
    s_lshr_b32 s{sMO}, s{sWAVE}, 1
    s_lshl_b32 s{sMO}, s{sMO}, 8
    s_and_b32 s{sA}, s{sWAVE}, 1
    s_add_u32 s{sCH}, s{sD0}, 8
    s_add_u32 s{sCH}, s{sCH}, s{sA}
    s_add_u32 s{sA}, s{sA}, 8
    s_sub_u32 s{sA}, s{sA}, s{sWAVE}
    s_mul_i32 s{sA}, s{sA}, {TSZ}""")
    for i in range(36): e(f"v_add_u32 v{GA+i}, s{sA}, v{GA+i}")
    e("s_branch L_conv")
    a.lab("L_conv_idle")
    if g.o.get("zpf", "1") == "1":
        e(f"""s_lshr_b32 s{sA}, s{sRB}, 3
        s_lshl_b32 s{sA}, s{sA}, 2
        s_add_u32 s{sA}, s{sA}, s{sWAVE}
        s_sub_u32 s{sA}, s{sA}, 4
        s_mul_i32 s{sA}, s{sA}, 54
        v_min_u32 v30, 53, v{vL}
        v_add_u32 v30, s{sA}, v30
        v_mul_u32_u24 v31, 1821, v30
        v_lshrrev_b32 v31, 20, v31
        v_mul_u32_u24 v29, 576, v31
        v_sub_u32 v30, v30, v29
        s_mov_b32 s{sA}, {32*18432}
        v_mul_lo_u32 v31, v31, s{sA}
        v_lshl_add_u32 v30, v30, 7, v31
        s_and_b32 s{sC}, s2, 1
        s_mul_i32 s{sC}, s{sC}, {3*32*18432}
        s_add_u32 s{sC}, s{sC}, {WS_Z2}
        s_and_b32 s{sD}, s2, 6
        s_lshl_b32 s{sD}, s{sD}, 2
        s_add_u32 s{sD}, s{sD}, {int(g.o.get("zp0", 8))}""")
        for i in range((32 - int(g.o.get("zp0", 8))) // 4):
            e(f"""s_and_b32 s{sD}, s{sD}, 31
            s_mul_i32 s{sA}, s{sD}, 18432
            s_add_u32 s{sA}, s{sA}, s{sC}
            buffer_load_dword v217, v30, {srd(SRD_WS)}, s{sA} offen sc1
            s_add_u32 s{sD}, s{sD}, 4""")
    if g.o.get("hwarm"):
        e(f"""s_lshl_b32 s{sA}, s{sRB}, 2
        s_add_u32 s{sA}, s{sA}, s{sWAVE}
        s_sub_u32 s{sA}, s{sA}, 4
        s_mul_i32 s{sA}, s{sA}, {108*128}
        s_add_u32 s{sA}, s{sA}, {WS_H}
        v_min_u32 v216, 53, v{vL}
        v_lshlrev_b32 v216, 7, v216
        buffer_load_dword v217, v216, {srd(SRD_WS)}, s{sA} offen sc1
        s_add_u32 s{sA}, s{sA}, {54*128}
        buffer_load_dword v217, v216, {srd(SRD_WS)}, s{sA} offen sc1""")
    e("s_barrier\ns_barrier")
    a.lab("L_conv_done")
    if g.o.get("dssm"): e(f"s_sleep {g.o['dssm']}")
    e(f"""s_waitcnt vmcnt(0)
    s_barrier
    s_cmp_lg_u32 s{sWAVE}, 0
    s_cbranch_scc1 L_end
    s_lshl_b32 s{sA}, s{sRB}, {FS}
    s_add_u32 s{sA}, s{sA}, {WS_FY}""")
    g.flag_store(sA, T)
    g.stamp(7)
    e("s_branch L_end")


def gtab():
    import numpy as np
    def bf16r(l):
        u = int(np.float32(l).view(np.uint32))
        u = (u + 0x7FFF + ((u >> 16) & 1)) >> 16
        return u
    out = []
    for q in range(9):
        for lane in range(64):
            for k in range(4):
                m, ee = divmod(4*q + k, 9)
                l = 2047 - 8*(lane + 64*m) - ee
                idx = ZI if l < 0 else (l if l < 128 else bf16r(l) - 0x4300 + 128)
                out.append(2*idx)
    return out
```

```python
import sys, math, struct
from asmlib import Asm

KNAME = "parallel_sum__ssm_conv_s4d__mixer_gmlp__prompt_kernel"
def f2u(x): return struct.unpack("<I", struct.pack("<f", x))[0]
def hx(x): return f"0x{x:08x}"

WS_EPOCH = 0
WS_FXN   = 0xE0000
WS_FZ2   = 0x20000
WS_FH    = 0x40000
WS_FY    = 0x60000
WS_FWO   = 0x70000
WS_WOT   = 0xF00000 - 0x20000
WS_STATS = 0x80000
WS_XNT   = 0x100000
WS_Z2    = 0x400000
WS_H     = 0x800000
WS_YA    = 0xC00000
WS_DBG   = 0x1000000
WS_SIZE  = 0x2000000

FS = 7
XT = 0; RING1 = 81920; S1SZ = 20480; RSTAB = RING1 + 3*S1SZ
NA = 8; BRING = 65536; NB = 4; BSZ = 18432
HB = 49152; YAB = 16384; XB = 32768

sWAVE, sRB, sCB, sTAG, sT = 3, 4, 5, 6, 7
SRD_X, SRD_WIN, SRD_WSP, SRD_WOUT, SRD_OUT, SRD_WS, SRD_BSP = 8, 12, 16, 20, 24, 28, 32
def srd(n): return f"s[{n}:{n+3}]"
sW, sMH, sNH = 66, 67, 68
sWSLOT, sWSOFF, sWSL = 69, 70, 71
sXOFF, sROFF, sCNT = 72, 73, 74
sK1 = 76
sA, sB, sC, sD = 78, 79, 80, 81
sSPIN = 82
sMASK = 84
sE0 = 86
sTM = 88
sTM0 = 90
sT2 = 92
sW0 = 83
SPIN_MAX = 200000

class G:
    def __init__(self, opts):
        self.a = Asm(); self.o = opts; self.nstamp = 0
    def e(self, s):
        if self.o.get("nodma"):
            s = "\n".join(l for l in s.split("\n") if not l.strip().endswith(" lds"))
        if self.o.get("ntx"):
            s = s.replace(f"{srd(SRD_X)}, s{sC} offen", f"{srd(SRD_X)}, s{sC} offen nt")
        if self.o.get("novalu") and getattr(self, "inpro", False):
            s = "\n".join(l for l in s.split("\n") if not (l.strip().startswith("v_dot2") or l.strip().startswith("v_cvt_pk_bf16_f32 v4") or l.strip().startswith("v_cvt_pk_bf16_f32 v5") or l.strip().startswith("v_cvt_pk_bf16_f32 v6") or l.strip().startswith("v_cvt_pk_bf16_f32 v7")))
        if getattr(self, "inssm", False):
            if self.o.get("s_nomfma"): s = "\n".join(l for l in s.split("\n") if "v_mfma_f32_16x16x32_bf16" not in l)
            if self.o.get("s_nopk"): s = "\n".join(l for l in s.split("\n") if not l.strip().startswith("v_pk_") and "cvt_pk_f16" not in l)
            if self.o.get("s_nolds"): s = "\n".join(l for l in s.split("\n") if not (l.strip().startswith("ds_read_b128 v[") and "v69" in l) and not (l.strip().startswith("ds_read_b64 v[") and "v70" in l))
        if self.o.get("nosc1"):
            s = s.replace(" sc1 lds", " lds")
        self.a.e(s)

    def capture(self, fn):
        old = self.a; self.a = Asm(); self.a.uid = old.uid + 1000
        fn()
        out = [i.text for i in self.a.L]
        self.a = old
        return out
    def mk_srd(self, d, p, nbytes):
        self.e(f"""s_mov_b32 s{d}, s{p}
        s_mov_b32 s{d+1}, s{p+1}
        s_mov_b32 s{d+2}, {nbytes}
        s_mov_b32 s{d+3}, 0x20000""")

    def stamp(self, idx, vt=None):
        if not self.o.get("stamps"): return
        self.e(f"""s_memtime s[{sTM}:{sTM+1}]
        s_waitcnt lgkmcnt(0)
        s_sub_u32 s{sTM}, s{sTM}, s{sTM0}
        v_writelane_b32 v0, s{sTM}, {idx}""")
        if self.o.get("rts") and idx < 12:
            self.e(f"""s_memrealtime s[{sTM}:{sTM+1}]
            s_waitcnt lgkmcnt(0)
            s_sub_u32 s{sTM}, s{sTM}, s100
            v_writelane_b32 v0, s{sTM}, {48+idx}""")

    def stamp_s(self, k):
        if not self.o.get("stamps"): return
        self.e(f"""s_memtime s[{sTM}:{sTM+1}]
        s_waitcnt lgkmcnt(0)
        s_sub_u32 s{96+k}, s{sTM}, s{sTM0}""")
    def stamp_flush(self):
        if not self.o.get("stamps"): return
        for k in range(4): self.e(f"v_writelane_b32 v0, s{96+k}, {40+k}")

    def stampd(self, base):
        if not self.o.get("fine"): return
        self.e(f"""s_memtime s[{sTM}:{sTM+1}]
        s_waitcnt lgkmcnt(0)
        s_sub_u32 s{sTM}, s{sTM}, s{sTM0}
        s_add_u32 m0, s{sCNT}, {base}
        s_nop 1
        v_writelane_b32 v0, s{sTM}, m0""")

    def poll(self, voff, soff, vtmp, sleep=None):
        L = self.a.newlab("Lpoll"); D = self.a.newlab("Lpolld")
        sl = sleep if sleep is not None else int(self.o.get("slp", 8))
        self.e(f"s_mov_b32 s{sSPIN}, {SPIN_MAX}")
        self.a.lab(L)
        self.e(f"""buffer_load_dword v{vtmp}, v{voff}, {srd(SRD_WS)}, {soff} offen sc1
        s_waitcnt vmcnt(0)
        v_cmp_ne_u32 vcc, s{sTAG}, v{vtmp}
        s_cbranch_vccz {D}
        s_mov_b64 exec, vcc
        s_sleep {sl}
        s_sub_u32 s{sSPIN}, s{sSPIN}, 1
        s_cmp_lg_u32 s{sSPIN}, 0
        s_cbranch_scc1 {L}""")
        self.a.lab(D)
        self.e("s_mov_b64 exec, -1")

    def flag_store(self, soff_sreg, vt):
        self.e(f"""v_mov_b32 v{vt}, s{sTAG}
        v_lshlrev_b32 v{vt+1}, 2, v1
        s_mov_b32 exec_hi, 0
        buffer_store_dword v{vt}, v{vt+1}, {srd(SRD_WS)}, s{soff_sreg} offen sc1
        s_mov_b64 exec, -1""")

    def entry(self):
        e = self.e
        e(f"""s_cmp_ge_u32 s2, 256
        s_cbranch_scc1 L_exit
        s_load_dwordx2 s[36:37], s[0:1], 0
        s_load_dwordx2 s[52:53], s[0:1], 64
        s_load_dwordx2 s[64:65], s[0:1], 112
        v_lshrrev_b32 v1, 6, v0
        s_and_b32 s{sA}, s2, 7
        s_lshr_b32 s{sB}, s2, 3""")
        if self.o.get("stamps") or self.o.get("dbgt"):
            e(f"s_memtime s[{sTM0}:{sTM0+1}]\ns_memrealtime s[100:101]")
        e(f"""v_readfirstlane_b32 s{sWAVE}, v1
        s_cmp_ge_u32 s{sB}, 24
        s_cbranch_scc1 L_ssm
        s_lshr_b32 s{sRB}, s{sA}, 1
        s_lshl_b32 s{sRB}, s{sRB}, 3
        s_and_b32 s{sC}, s{sB}, 7
        s_add_u32 s{sRB}, s{sRB}, s{sC}""")

    def entry2(self):
        e = self.e
        e(f"""s_load_dwordx4 s[56:59], s[0:1], 72
        s_load_dwordx2 s[60:61], s[0:1], 96
        s_load_dword s{sTAG}, s[64:65], {WS_EPOCH}
        s_lshr_b32 s{sMH}, s{sW}, 1
        s_and_b32 s{sNH}, s{sW}, 1""")
        self.mk_srd(SRD_WS, 64, WS_SIZE)
    def entry3(self):
        self.e("s_waitcnt lgkmcnt(0)")
        self.mk_srd(SRD_WSP, 56, 2048*2048*2)
        self.mk_srd(SRD_BSP, 58, 2048*2)
        self.mk_srd(SRD_OUT, 60, 2048*640*2)

    vL = 1
    vWOFF = 2
    vX0, vX1 = 8, 9
    vWB, vWB4 = 10, 11
    vA0, vA1, vB0, vB4 = 12, 13, 14, 15
    vWB1, vB1 = 38, 39
    vT = 16
    vK0 = 32
    FS = (40, 96)
    ACC = 152
    Z1 = 192
    XR = 40

    def w_ops(self):
        g = [f"""s_mov_b32 m0, s{sWSLOT}
        s_add_u32 s{sWSLOT}, s{sWSLOT}, {S1SZ}
        buffer_load_dwordx4 v{self.vWOFF}, {srd(SRD_WIN)}, s{sWSOFF} offen lds"""]
        for i in range(1, 4):
            g.append(f"buffer_load_dwordx4 v{self.vWOFF+i}, {srd(SRD_WIN)}, s{sWSOFF} offen offset:{1024*i} lds")
        g.append(f"""s_add_u32 m0, m0, 4096
        s_cmp_ge_u32 s{sWSLOT}, {RING1 + 4*S1SZ}
        buffer_load_dwordx4 v{self.vWOFF+4}, {srd(SRD_WIN)}, s{sWSOFF} offen lds
        s_cselect_b32 s{sWSLOT}, s{sW0}, s{sWSLOT}
        s_add_u32 s{sWSOFF}, s{sWSOFF}, {64*3456}
        s_cmp_ge_u32 s{sWSOFF}, {640*3456}
        s_cselect_b32 s{sWSOFF}, s{sWSL}, s{sWSOFF}""")
        return g
    def issue_w(self):
        for g in self.w_ops(): self.e(g)

    def w_voffs(self):
        e = self.e; T = self.vT; vL = self.vL
        e(f"s_mul_i32 s{sA}, s{sW}, 320")
        for i in range(5):
            p, k, c, d = T+4, T+5, T+6, self.vWOFF + i
            e(f"""v_add_u32 v{p}, s{sA}, v{vL}
            s_add_u32 s{sA}, s{sA}, 64
            v_mul_u32_u24 v{k}, 3277, v{p}
            v_lshrrev_b32 v{k}, 16, v{k}
            v_mul_u32_u24 v{c}, 20, v{k}
            v_sub_u32 v{c}, v{p}, v{c}
            v_bfe_u32 v{p}, v{k}, 3, 1
            v_lshlrev_b32 v{p}, 1, v{p}
            v_xor_b32 v{c}, v{c}, v{p}
            v_mul_u32_u24 v{d}, 3456, v{k}
            v_lshl_add_u32 v{d}, v{c}, 4, v{d}""")
            if 1 <= i <= 3: e(f"v_subrev_u32 v{d}, {1024*i}, v{d}")

    def x_setup(self):
        e = self.e; T = self.vT; vL = self.vL
        g = 36
        e(f"""v_lshrrev_b32 v{g}, 4, v{vL}
        v_lshlrev_b32 v36, 4, v{g}
        s_lshl_b32 s{sB}, s{sMH}, 7
        s_add_u32 s{sB}, s{sB}, {RSTAB}
        v_add_u32 v36, s{sB}, v36""")
        pub_rd = [f"ds_read_b128 v[232:235], v36", f"ds_read_b128 v[236:239], v36 offset:64"]
        sv = "\n".join(self.capture(self.w_voffs)).replace(f"s{sA},", f"s{sC},").replace(f"s{sA}\n", f"s{sC}\n").replace(f"v{T+4}", f"v{T+11}").replace(f"v{T+5}", f"v{T+12}").replace(f"v{T+6}", f"v{T+13}")
        if self.o.get("xst", "1") != "1": e(sv)
        e(f"""v_lshlrev_b32 v7, 4, v{vL}
        v_and_b32 v37, 31, v{vL}
        v_min_u32 v37, 26, v37
        v_lshlrev_b32 v37, {FS}, v37
        s_min_u32 s{sA}, s{sCB}, 4
        s_lshl_b32 s91, s{sA}, 1
        s_add_u32 s91, s91, s{sMH}
        s_lshl_b32 s91, s91, {5+FS}
        s_add_u32 s91, s91, {WS_FWO}
        s_lshl_b32 s{sA}, s{sA}, 2
        s_add_u32 s{sA}, s{sA}, s{sW}
        s_mul_i32 s93, s{sA}, {2*27*1024}
        s_add_u32 s93, s93, {WS_WOT}
        s_add_u32 s94, s93, {27*1024}""")
        self.blk_offsets(4096)
        SPEC = self.o.get("spec", "0") == "1"
        if SPEC:
            Lp = self.a.newlab("Lpf5")
            e(f"""s_mul_i32 s{sA}, s{sRB}, 6
            s_add_u32 s{sA}, s{sA}, s{sCB}
            s_mul_i32 s{sA}, s{sA}, 18432
            s_mul_i32 s{sC}, s{sMH}, 9216
            s_mul_i32 s{sD}, s{sNH}, 5120
            s_add_u32 s{sC}, s{sC}, s{sD}
            s_add_u32 s{sA}, s{sA}, s{sC}
            s_add_u32 s{sA}, s{sA}, {WS_H}
            v_mov_b32 v244, -1
            v_mov_b32 v245, -1
            v_mov_b32 v246, -1
            v_mov_b32 v247, -1""")
            for i in range(4):
                e(f"buffer_store_dwordx4 v[244:247], v7, {srd(SRD_WS)}, s{sA} offen offset:{1024*i} sc1")
            e(f"""s_cmp_eq_u32 s{sNH}, 1
            s_cbranch_scc1 {Lp}
            s_add_u32 s{sA}, s{sA}, 4096
            buffer_store_dwordx4 v[244:247], v7, {srd(SRD_WS)}, s{sA} offen sc1""")
            self.a.lab(Lp)
            e("s_nop 1")
        prd, pwork = self.pub_parts()
        self.xs_out = (pub_rd, prd, pwork)

    def gemm_prologue(self):
        e = self.e; T = self.vT; XR = self.XR; vL = self.vL
        sXS = sROFF
        e(f"""v_and_b32 v{vL}, 63, v0
        s_and_b32 s{sCB}, s2, 1
        s_mul_i32 s{sCB}, s{sCB}, 3
        s_lshr_b32 s{sC}, s2, 6
        s_add_u32 s{sCB}, s{sCB}, s{sC}
        s_and_b32 s{sW}, s{sWAVE}, 3""")
        e(f"""s_and_b32 s{sA}, s{sRB}, 7
        s_mul_i32 s{sWSOFF}, s{sA}, {64*3456}
        s_lshl_b32 s{sXOFF}, s{sA}, 13
        s_mul_i32 s{sWSL}, s{sCB}, 288
        s_and_b32 s{sWSL}, s{sWSL}, 0xffffffc0
        s_add_u32 s{sWSL}, s{sWSL}, 1728
        s_add_u32 s{sWSOFF}, s{sWSOFF}, s{sWSL}
        s_mul_i32 s{sW0}, s{sW}, 5120
        s_add_u32 s{sW0}, s{sW0}, {RING1}
        s_mov_b32 s{sWSLOT}, s{sW0}""")
        for i in range(5): e(f"v_mov_b32 v{self.vWOFF+i}, 0")
        e(f"s_waitcnt lgkmcnt(0)")
        self.mk_srd(SRD_WIN, 52, 640*1728*2)
        XST = self.o.get("xst", "1") == "1"
        if not XST:
            e(f"s_cmp_lt_u32 s{sWAVE}, 4\ns_cbranch_scc1 L_xfirst")
            self.w_voffs()
            for _ in range(int(self.o.get("nst0", 0))): self.issue_w()
            self.a.lab("L_xfirst")
        e(f"""
        s_lshr_b32 s{sA}, s2, 6
        s_mul_i32 s{sA}, s{sA}, 3
        s_add_u32 s{sA}, s{sA}, s{sWAVE}
        s_and_b32 s{sA}, s{sA}, 7
        s_lshl_b32 s{sA}, s{sA}, 3
        v_lshrrev_b32 v{T}, 3, v{vL}
        v_add_u32 v{T}, s{sA}, v{T}
        v_and_b32 v{T+1}, 7, v0
        v_mul_u32_u24 v{T+2}, 1280, v{T}
        v_lshl_add_u32 v{T+2}, v{T+1}, 4, v{T+2}
        s_mul_i32 s{sA}, s{sRB}, {64*1280}
        s_and_b32 s{sXS}, s{sRB}, 7
        s_lshl_b32 s{sB}, s{sXS}, 7
        s_waitcnt lgkmcnt(0)""")
        self.mk_srd(SRD_X, 36, 2048*640*2)
        self.stamp_s(0)
        for j in range(10):
            e(f"""s_add_u32 s{sC}, s{sA}, s{sB}
            buffer_load_dwordx4 v[{XR+4*j}:{XR+4*j+3}], v{T+2}, {srd(SRD_X)}, s{sC} offen
            s_add_u32 s{sB}, s{sB}, 128
            s_cmp_ge_u32 s{sB}, 1280
            s_cselect_b32 s{sB}, 0, s{sB}""")
        if self.o.get("yprio", "1") == "1":
            e(f"s_cmp_lt_u32 s{sWAVE}, 4\ns_cbranch_scc1 Lnyp\ns_setprio 2\nLnyp:")
        self.entry2()
        g, c15 = T+4, T+5
        e(f"""v_bfe_u32 v{T+3}, v{T}, 1, 3
        v_xor_b32 v{T+3}, v{T+3}, v{T+1}
        v_lshlrev_b32 v{T+3}, 4, v{T+3}
        v_lshl_add_u32 v{T+3}, v{T}, 7, v{T+3}
        v_lshrrev_b32 v{g}, 4, v{vL}
        v_and_b32 v{c15}, 15, v{vL}
        v_lshrrev_b32 v{T+6}, 1, v{c15}
        v_xor_b32 v{T+6}, v{T+6}, v{g}
        v_lshlrev_b32 v{T+6}, 4, v{T+6}
        v_lshl_add_u32 v{self.vX0}, v{c15}, 7, v{T+6}
        s_lshl_b32 s{sA}, s{sMH}, 12
        v_add_u32 v{self.vX0}, s{sA}, v{self.vX0}
        v_xor_b32 v{self.vX1}, 64, v{self.vX0}
        v_mul_u32_u24 v{self.vWB4}, 2560, v{g}
        v_bfe_u32 v{T+6}, v{vL}, 2, 2
        v_mul_u32_u24 v{T+6}, 320, v{T+6}
        v_add_u32 v{self.vWB4}, v{self.vWB4}, v{T+6}
        v_and_b32 v{T+6}, 3, v{vL}
        v_lshl_add_u32 v{self.vWB4}, v{T+6}, 3, v{self.vWB4}
        v_and_b32 v{T+6}, 1, v{g}
        v_lshlrev_b32 v{T+6}, 5, v{T+6}
        s_and_b32 s{sC}, s{sCB}, 1
        s_mul_i32 s{sA}, s{sNH}, 5
        s_add_u32 s{sA}, s{sA}, s{sC}
        s_lshl_b32 s{sA}, s{sA}, 5
        v_xor_b32 v{T+7}, s{sA}, v{T+6}
        v_add_u32 v{self.vWB}, v{T+7}, v{self.vWB4}
        s_add_u32 s{sA}, s{sA}, 32
        v_xor_b32 v{T+7}, s{sA}, v{T+6}
        v_add_u32 v{self.vWB1}, v{T+7}, v{self.vWB4}
        s_lshl_b32 s{sC}, s{sC}, 5
        s_add_u32 s{sC}, s{sC}, 128
        v_xor_b32 v{T+7}, s{sC}, v{T+6}
        v_add_u32 v{self.vWB4}, v{T+7}, v{self.vWB4}
        s_mov_b32 s{sK1}, {hx(f2u(-2.302208198*0.044715))}
        s_mov_b32 s{sK1+1}, {hx(f2u(-2.302208198*0.044715))}
        v_mov_b32 v{self.vK0}, {hx(f2u(-2.302208198))}
        v_mov_b32 v{self.vK0+1}, {hx(f2u(-2.302208198))}""")
        self.entry3()
        def ydma(grp):
            L = self.a.newlab("Lyd")
            e(f"s_cmp_lt_u32 s{sWAVE}, 4\ns_cbranch_scc1 {L}")
            e(grp)
            self.a.lab(L)
        n0 = 2 if XST else int(self.o.get("nst0", 0))
        if XST: self.w_voffs()
        e(f"v_mov_b32 v7, 0\nv_mov_b32 v37, 0\nv_mov_b32 v248, 0\ns_cmp_ge_u32 s{sWAVE}, 4\ns_cbranch_scc1 L_xs")
        self.x_setup()
        self.a.lab("L_xs")
        if n0 < 2: ydma("\n".join(sum([self.w_ops() for _ in range(2 - n0)], [])))
        S, Q = T+8, T+9
        e(f"""v_mov_b32 v{S}, 0
        v_mov_b32 v{Q}, 0
        s_mov_b32 s{sA}, 0x3f803f80
        s_cmp_lt_u32 s{sWAVE}, 4""")
        for j in range(10):
            if n0 < 2: e(f"s_cbranch_scc1 Lxw{j}\ns_waitcnt vmcnt({9-j+5*(2-n0)})\ns_branch Lxv{j}\nLxw{j}:\ns_waitcnt vmcnt({9-j})\nLxv{j}:")
            else: e(f"s_waitcnt vmcnt({9-j})")
            if j == 9: self.stamp_s(3)
            for i in range(4*j, 4*j+4):
                e(f"v_dot2c_f32_bf16 v{S}, s{sA}, v{XR+i}\nv_dot2c_f32_bf16 v{Q}, v{XR+i}, v{XR+i}")
        if XST and self.o.get("xearly", "1") == "1":
            e(f"s_cmp_ge_u32 s{sWAVE}, 4\ns_cbranch_scc1 L_xe")
            self.issue_w(); self.issue_w()
            self.a.lab("L_xe")
        for m in ("quad_perm:[1,0,3,2]", "quad_perm:[2,3,0,1]", "row_half_mirror"):
            e(f"v_add_f32_dpp v{S}, v{S}, v{S} {m} row_mask:0xf bank_mask:0xf\nv_add_f32_dpp v{Q}, v{Q}, v{Q} {m} row_mask:0xf bank_mask:0xf")
        self.ln_params(S, Q, 640, T+10, T+12, T+14)
        NM, RS = T+10, T+12
        e(f"""s_mov_b32 s{sA}, 0x00003f80
        s_mov_b32 s{sC}, 0x3f800000
        s_lshl_b32 s{sB}, s{sXS}, 13
        v_lshlrev_b32 v{T+7}, 2, v{T}
        ds_write_b32 v{T+7}, v{RS} offset:{RSTAB - 98304}""".replace(f"v_lshlrev_b32 v{T+7}, 2, v{T}", f"v_lshlrev_b32 v{T+7}, 2, v{T}\n        v_add_u32 v{T+7}, 98304, v{T+7}"))
        TP = 80
        for j in range(10):
            ls = []
            for k in range(4):
                r = XR + 4*j + k; a = TP + 2*k; b = a + 1
                ls.append([f"v_dot2_f32_bf16 v{a}, v{r}, s{sA}, v{NM}", f"v_dot2_f32_bf16 v{b}, v{r}, s{sC}, v{NM}",
                           f"v_cvt_pk_bf16_f32 v{r}, v{a}, v{b}"])
            self.rr(ls)
            e(f"""v_add_u32 v{T+6}, s{sB}, v{T+3}
            ds_write_b128 v{T+6}, v[{XR+4*j}:{XR+4*j+3}]
            s_add_u32 s{sB}, s{sB}, 8192
            s_cmp_ge_u32 s{sB}, 81920
            s_cselect_b32 s{sB}, 0, s{sB}""")
        self.stamp_flush()
        e(f"""s_waitcnt lgkmcnt(0)
        s_mul_i32 s{sTAG}, s{sTAG}, 0x9E3779B1
        s_add_u32 s{sTAG}, s{sTAG}, 0x7F4A7C15
        s_cmp_ge_u32 s{sWAVE}, 4
        s_cbranch_scc1 L_Y""")

    def ln_params(self, S, Q, n, NM, RS, t):
        self.e(f"""v_mul_f32 v{S}, {hx(f2u(1.0/n))}, v{S}
        v_mul_f32 v{Q}, {hx(f2u(1.0/n))}, v{Q}
        v_fma_f32 v{Q}, -v{S}, v{S}, v{Q}
        v_max_f32 v{Q}, 0, v{Q}
        v_cvt_pk_bf16_f32 v{t}, v{S}, v{Q}
        v_lshlrev_b32 v{NM}, 16, v{t}
        v_xor_b32 v{NM}, 0x80000000, v{NM}
        v_mov_b32 v{NM+1}, v{NM}
        v_and_b32 v{Q}, 0xffff0000, v{t}
        v_add_f32 v{Q}, {hx(f2u(1e-5))}, v{Q}
        v_cvt_pk_bf16_f32 v{t}, v{Q}, v{Q}
        v_lshlrev_b32 v{Q}, 16, v{t}
        v_sqrt_f32 v{Q}, v{Q}
        v_cvt_pk_bf16_f32 v{t}, v{Q}, v{Q}
        v_lshlrev_b32 v{Q}, 16, v{t}
        v_rcp_f32 v{RS}, v{Q}
        v_mov_b32 v{RS+1}, v{RS}""")


    NJ = 5
    def p1_reads(self, F):
        out = []
        for ks in range(2):
            Fk = F + 28*ks
            vx = self.vA0 if ks == 0 else self.vA1
            for a in range(2):
                out.append(f"ds_read_b128 v[{Fk+4*a}:{Fk+4*a+3}], v{vx} offset:{2048*a}")
            for j in range(self.NJ):
                base = self.vB4 if j == 4 else (self.vB0, self.vB1)[j & 1]
                off = ks*10240 + (64*(j >> 1) if j < 4 else 0)
                for h in range(2):
                    r = Fk + 8 + 4*j + 2*h
                    out.append(f"ds_read_b64_tr_b16 v[{r}:{r+1}], v{base} offset:{off + h*1280}")
        return out
    def p2_reads(self, F):
        out = []
        for ks in range(2):
            Fk = F + 28*ks
            vx = self.vA0 if ks == 0 else self.vA1
            out += [f"ds_read_b128 v[{Fk+4*a}:{Fk+4*a+3}], v{vx} offset:{2048*a}" for a in range(2)]
            for j in range(self.NJ):
                base = self.vB0 if j < 4 else self.vB4
                off = ks*9216 + (1024*j if j < 4 else 0)
                out.append(f"ds_read_b128 v[{Fk+8+4*j}:{Fk+8+4*j+3}], v{base} offset:{off}")
        return out
    def mfmas(self, F, swap, first=False):
        out = []
        for ks in range(2):
            Fk = F + 28*ks
            for j in range(self.NJ):
                for a in range(2):
                    c = self.ACC + 4*(2*j + a)
                    X = f"v[{Fk+4*a}:{Fk+4*a+3}]"; W = f"v[{Fk+8+4*j}:{Fk+8+4*j+3}]"
                    A, B = (W, X) if swap else (X, W)
                    C = "0" if (first and ks == 0) else f"v[{c}:{c+3}]"
                    out.append(f"v_mfma_f32_16x16x32_bf16 v[{c}:{c+3}], {A}, {B}, {C}")
        return out
    def interleave(self, reads, mf, per=2):
        out = []; ri = 0
        for m in mf:
            out.append(m)
            for _ in range(per):
                if ri < len(reads): out.append(reads[ri]); ri += 1
        out += reads[ri:]
        return out

    def compute_loop(self, n, swap, reads_fn, addr_fn, tagname, vmwait=False, first=None, mid=None, peel=None, top=None):
        e = self.e
        endw = f"s_waitcnt {'vmcnt(0) ' if vmwait else ''}lgkmcnt(0)"
        def stage(rd, mf, extra=(), per2=2):
            e("s_barrier")
            per = 2 if len(rd) > 16 else 1
            if self.o.get("noread"): rd = []
            if self.o.get("nomfma"): mf = []
            fill = list(rd) + addr_fn() + list(extra)
            out = []; ri = 0
            for k, m in enumerate(mf):
                out.append(m)
                for _ in range(per if ri < len(rd) else per2):
                    if ri < len(fill): out.append(fill[ri]); ri += 1
            out += fill[ri:]
            for s in out: e(s)
        F0, F1 = self.FS
        for s in addr_fn(): e(s)
        stage(reads_fn(F0), [], first[0] if first else ())
        e(endw)
        stage(reads_fn(F1), self.mfmas(F0, swap, True), [f"s_mov_b32 s{sCNT}, {(n-2)//2}"] + (first[1] if first else []), 5 if first else 2); e(endw)
        if peel: e(peel)
        L = self.a.newlab("Lc" + tagname)
        self.a.lab(L)
        if top: top()
        stage(reads_fn(F0), self.mfmas(F1, swap))
        if mid: mid()
        e(endw)
        stage(reads_fn(F1), self.mfmas(F0, swap), [f"s_sub_u32 s{sCNT}, s{sCNT}, 1", f"s_cmp_lg_u32 s{sCNT}, 0"])
        e(f"{endw}\ns_cbranch_scc1 {L}")
        return self.mfmas(F1, swap)

    def ring_addr(self, asz_total, bbase, bsz, nb):
        return [f"v_add_u32 v{self.vA0}, s{sXOFF}, v{self.vX0}", f"v_add_u32 v{self.vA1}, s{sXOFF}, v{self.vX1}",
        f"v_add_u32 v{self.vB0}, s{sROFF}, v{self.vWB}", f"v_add_u32 v{self.vB4}, s{sROFF}, v{self.vWB4}",
        f"s_add_u32 s{sXOFF}, s{sXOFF}, 8192", f"s_cmp_ge_u32 s{sXOFF}, {asz_total}", f"s_cselect_b32 s{sXOFF}, 0, s{sXOFF}",
        f"s_add_u32 s{sROFF}, s{sROFF}, {bsz}", f"s_cmp_ge_u32 s{sROFF}, {bbase + nb*bsz}", f"s_cselect_b32 s{sROFF}, {bbase}, s{sROFF}"]
    def p1_addr(self): return [f"v_add_u32 v{self.vB1}, s{sROFF}, v{self.vWB1}"] + self.ring_addr(81920, RING1, S1SZ, 4)
    def p2_addr(self): return self.ring_addr(NA*8192, BRING, BSZ, NB)

    def gelu_pair(self, r, t, dst=None, packed=None):
        d = r if dst is None else dst
        self.e(f"""v_pk_mul_f32 v[{t}:{t+1}], v[{r}:{r+1}], v[{r}:{r+1}]
        v_pk_fma_f32 v[{t}:{t+1}], v[{t}:{t+1}], s[{sK1}:{sK1+1}], v[{self.vK0}:{self.vK0+1}]
        v_pk_mul_f32 v[{t}:{t+1}], v[{t}:{t+1}], v[{r}:{r+1}]
        v_exp_f32 v{t}, v{t}
        v_exp_f32 v{t+1}, v{t+1}
        v_pk_add_f32 v[{t}:{t+1}], v[{t}:{t+1}], 1.0 op_sel_hi:[1,0]
        v_rcp_f32 v{t}, v{t}
        v_rcp_f32 v{t+1}, v{t+1}
        v_pk_mul_f32 v[{t}:{t+1}], v[{t}:{t+1}], v[{r}:{r+1}]
        v_cvt_pk_bf16_f32 v{t if packed is None else packed}, v{t}, v{t+1}""")
        if packed is None:
            self.e(f"v_lshlrev_b32 v{d}, 16, v{t}\nv_and_b32 v{d+1}, s{sB}, v{t}")

    def gelu_list(self, r, t, sc, packed=None, stats=None):
        L = [f"v_pk_mul_f32 v[{r}:{r+1}], v[{r}:{r+1}], v[{sc}:{sc+1}]",
             f"v_pk_mul_f32 v[{t}:{t+1}], v[{r}:{r+1}], v[{r}:{r+1}]",
             f"v_pk_fma_f32 v[{t}:{t+1}], v[{t}:{t+1}], s[{sK1}:{sK1+1}], v[{self.vK0}:{self.vK0+1}]",
             f"v_pk_mul_f32 v[{t}:{t+1}], v[{t}:{t+1}], v[{r}:{r+1}]",
             f"v_exp_f32 v{t}, v{t}", f"v_exp_f32 v{t+1}, v{t+1}",
             f"v_pk_add_f32 v[{t}:{t+1}], v[{t}:{t+1}], 1.0 op_sel_hi:[1,0]",
             f"v_rcp_f32 v{t}, v{t}", f"v_rcp_f32 v{t+1}, v{t+1}"]
        d = r if packed is None else packed
        L += [f"v_pk_mul_f32 v[{d}:{d+1}], v[{t}:{t+1}], v[{r}:{r+1}]"]
        if stats:
            s_, q_ = stats
            L += [f"v_pk_add_f32 v[{s_}:{s_+1}], v[{s_}:{s_+1}], v[{r}:{r+1}]",
                  f"v_pk_fma_f32 v[{q_}:{q_+1}], v[{r}:{r+1}], v[{r}:{r+1}], v[{q_}:{q_+1}]"]
        return L
    def rr(self, lists):
        n = max(len(l) for l in lists)
        for i in range(n):
            for l in lists:
                if i < len(l): self.e(l[i])

    def dump_regs(self, r0, n, slot, vt):
        self.e(f"""s_lshl_b32 s{sA}, s2, 3
        s_add_u32 s{sA}, s{sA}, s{sWAVE}
        s_mul_i32 s{sA}, s{sA}, {n*256}
        s_add_u32 s{sA}, s{sA}, {WS_DBG + 0x100000 + slot*0x600000}
        v_lshlrev_b32 v{vt}, 2, v{self.vL}""")
        for i in range(n):
            self.e(f"buffer_store_dword v{r0+i}, v{vt}, {srd(SRD_WS)}, s{sA} offen\ns_add_u32 s{sA}, s{sA}, 256")


    NWS = 21
    A3 = 224
    sBO = 44
    def wreg(self, pos, ee): return 40 + ((pos % self.NWS)*2 + ee)*4
    def wload(self, pos):
        out = []
        for ee in range(2):
            r = self.wreg(pos, ee)
            off = f"s{self.sBO + (pos >> 2)}" if pos < 24 else str(6*4096)
            out.append(f"s_add_u32 s{sT}, s{93+ee}, {off}\nbuffer_load_dwordx4 v[{r}:{r+3}], v7, {srd(SRD_WS)}, s{sT} offen offset:{(pos%4)*1024} sc1")
        return out
    def blk_offsets(self, mul):
        self.e(f"""s_mul_i32 s{self.sBO}, s{sCB}, {mul}
        s_lshr_b32 s{sT}, s2, 6
        s_sub_u32 s51, s{sCB}, s{sT}
        s_mov_b32 s50, 0""")
        for j in range(1, 6):
            if j == 3: self.e("s_sub_u32 s51, 3, s51")
            self.e(f"""s_add_u32 s{sT}, s{sT}, 1
            s_cmp_ge_u32 s{sT}, 3
            s_cselect_b32 s{sT}, 0, s{sT}
            s_add_u32 s{sT2}, s{sT}, s51
            s_mul_i32 s{self.sBO+j}, s{sT2}, {mul}
            s_lshl_b32 s{sT2}, s{sT2}, 2
            s_lshl_b32 s{sT2}, {j}, s{sT2}
            s_or_b32 s50, s50, s{sT2}""")

    def x_path(self):
        e = self.e; T = self.vT; ACC = self.ACC; vL = self.vL
        self.stamp(0)
        if self.o.get("xst", "1") == "1" and self.o.get("xearly", "1") != "1":
            self.issue_w(); self.issue_w()
        pub_rd, prd, pwork = self.xs_out
        def xnflag():
            Lf = self.a.newlab("Lfx")
            xnf = int(self.o.get('xnf', 3))
            e(f"s_cmp_lg_u32 s{sCNT}, {xnf}\ns_cbranch_scc1 {Lf}\ns_cmp_lg_u32 s{sW}, 0\ns_cbranch_scc1 {Lf}")
            self.flag_store(39, T)
            self.a.lab(Lf)
        def xnwait():
            Lf = self.a.newlab("Lfw")
            e(f"s_cmp_lg_u32 s{sCNT}, {int(self.o.get('xnf', 3))}\ns_cbranch_scc1 {Lf}\ns_waitcnt vmcnt(0)")
            self.a.lab(Lf)
        e(f"s_mov_b32 s{sROFF}, {RING1}")
        if self.o.get("xst", "1") == "1":
            e("s_waitcnt vmcnt(5)")
            prd = prd + ["s_waitcnt vmcnt(0)"]
        tail = self.compute_loop(10, False, self.p1_reads, self.p1_addr, "p1a", first=(pub_rd + prd, pwork), mid=xnflag, top=xnwait)
        e(f"""s_and_b32 s{sA}, s{sRB}, 7
        s_add_u32 s{sA}, s{sA}, 3
        s_cmp_ge_u32 s{sA}, 10
        s_cselect_b32 s{sA}, 0, s{sA}
        s_mul_i32 s{sWSOFF}, s{sA}, {64*3456}
        s_sub_u32 s{sWSL}, s{sWSL}, 1728
        s_add_u32 s{sWSOFF}, s{sWSOFF}, s{sWSL}
        s_add_u32 s{sWSLOT}, s{sW0}, {S1SZ}
        s_mov_b32 s{sB}, 0xffff0000""")
        hold = int(self.o.get("hold", 3))
        if hold < 3: e("s_barrier")
        for m in tail: e(m)
        e("s_waitcnt lgkmcnt(0)")
        self.stamp(1)
        SS = 192
        for i in range(16): e(f"v_mov_b32 v{SS+i}, 0")
        vmw = lambda n: f"s_waitcnt vmcnt({n})"
        def do_frag(j):
            self.rr([self.gelu_list(ACC + 4*(2*j + a) + 2*h, T + 2*(2*a + h), 232 + 4*a + 2*h, stats=(SS + 4*a + 2*h, SS + 8 + 4*a + 2*h))
                     for a in range(2) for h in range(2)])
        if hold < 2: e("s_barrier")
        do_frag(0); do_frag(1)
        if hold < 1: e("s_barrier")
        do_frag(2); do_frag(3)
        Ls = self.a.newlab("Lz4")
        e(f"s_cmp_eq_u32 s{sNH}, 1\ns_cbranch_scc1 {Ls}")
        do_frag(4)
        self.a.lab(Ls)
        for i in range(8):
            e(f"v_add_f32_dpp v{SS+i}, v{SS+i}, v{SS+i} row_mirror row_mask:0xf bank_mask:0x3")
        for i in range(8):
            e(f"v_add_f32_dpp v{SS+i}, v{SS+8+i}, v{SS+8+i} row_mirror row_mask:0xf bank_mask:0xc")
        for i in range(4):
            e(f"v_add_f32_dpp v{SS+i}, v{SS+i}, v{SS+i} row_half_mirror row_mask:0xf bank_mask:0x5")
        for i in range(4):
            e(f"v_add_f32_dpp v{SS+i}, v{SS+4+i}, v{SS+4+i} row_half_mirror row_mask:0xf bank_mask:0xa")
        for i in range(4):
            e(f"v_add_f32_dpp v{SS+i}, v{SS+i}, v{SS+i} quad_perm:[2,3,0,1] row_mask:0xf bank_mask:0xf")
        for i in range(4):
            e(f"v_add_f32_dpp v{SS+i}, v{SS+i}, v{SS+i} quad_perm:[1,0,3,2] row_mask:0xf bank_mask:0xf")
        e(f"""s_mov_b32 vcc_lo, 0xaaaaaaaa
        s_mov_b32 vcc_hi, 0xaaaaaaaa
        s_mov_b32 s{sE0}, 0xcccccccc
        s_mov_b32 s{sE0+1}, 0xcccccccc
        v_cndmask_b32 v{SS}, v{SS}, v{SS+1}, vcc
        v_cndmask_b32 v{SS+2}, v{SS+2}, v{SS+3}, vcc
        v_mov_b32 v{SS+1}, s{sTAG}
        v_cndmask_b32 v{SS}, v{SS}, v{SS+2}, s[{sE0}:{sE0+1}]
        v_lshlrev_b32 v{T}, 3, v{vL}
        s_lshl_b32 s{sC}, s{sRB}, 1
        s_add_u32 s{sC}, s{sC}, s{sMH}
        s_mul_i32 s{sC}, s{sC}, {12*512}
        s_add_u32 s{sC}, s{sC}, {WS_STATS}
        s_lshl_b32 s{sA}, s{sCB}, 1
        s_add_u32 s{sA}, s{sA}, s{sNH}
        s_lshl_b32 s{sA}, s{sA}, 9
        s_add_u32 s{sA}, s{sA}, s{sC}
        buffer_store_dwordx2 v[{SS}:{SS+1}], v{T}, {srd(SRD_WS)}, s{sA} offen sc1""")
        self.stamp(2)
        if hold >= 3: e("s_barrier")
        self.issue_w()
        if hold >= 2: e("s_barrier")
        self.issue_w()
        if hold >= 1: e("s_barrier")
        e(vmw(5))
        e("s_barrier")
        PR = 128
        L = self.a.newlab("Lst"); D = self.a.newlab("Lstd")
        e(f"s_mov_b32 s{sSPIN}, {SPIN_MAX}\ns_add_u32 s{sA}, s{sC}, 4096")
        def stat_loads():
            for p in range(12):
                e(f"buffer_load_dwordx2 v[{PR+2*p}:{PR+2*p+1}], v{T}, {srd(SRD_WS)}, s{sC if p < 8 else sA} offen offset:{512*(p%8)} sc1")
        self.issue_w(); self.issue_w()
        stat_loads()
        e("s_waitcnt vmcnt(22)\ns_barrier")
        self.issue_w()
        e("s_waitcnt vmcnt(22)\ns_barrier")
        self.issue_w()
        self.stamp(3)
        Lchk = self.a.newlab("Lchk")
        e(f"s_waitcnt vmcnt(10)\ns_branch {Lchk}")
        self.a.lab(L)
        stat_loads()
        e("s_waitcnt vmcnt(0)")
        self.a.lab(Lchk)
        e(f"v_xor_b32 v{T+1}, s{sTAG}, v{PR+1}")
        for p in range(1, 12):
            e(f"v_xor_b32 v{T+2}, s{sTAG}, v{PR+2*p+1}\nv_or_b32 v{T+1}, v{T+1}, v{T+2}")
        e(f"""v_cmp_ne_u32 vcc, 0, v{T+1}
        s_cbranch_vccz {D}
        s_sleep 2
        s_sub_u32 s{sSPIN}, s{sSPIN}, 1
        s_cmp_lg_u32 s{sSPIN}, 0
        s_cbranch_scc1 {L}""")
        self.a.lab(D)
        self.stamp(4)
        for p in range(1, 12):
            e(f"v_add_f32 v{PR}, v{PR}, v{PR+2*p}")
        e(f"v_mov_b32_dpp v{PR+1}, v{PR} row_ror:8 row_mask:0xf bank_mask:0xf")
        self.ln_params(PR, PR+1, 864, T+10, T+12, T+14)
        e(f"v_mul_f32 v{T+10}, v{T+10}, v{T+12}")
        for i in range(8):
            e(f"v_mov_b32_dpp v{SS+i}, v{T+10} row_newbcast:{i} row_mask:0xf bank_mask:0xf")
            e(f"v_mov_b32_dpp v{SS+8+i}, v{T+12} row_newbcast:{i} row_mask:0xf bank_mask:0xf")
        e(f"""v_lshrrev_b32 v{T}, 4, v{vL}
        v_and_b32 v{T+1}, 1, v{T}
        v_lshrrev_b32 v{T}, 1, v{T}
        v_lshl_add_u32 v{T}, v{T+1}, 1, v{T}
        v_lshlrev_b32 v{T}, 8, v{T}
        v_and_b32 v{T+1}, 15, v{vL}
        v_lshl_add_u32 v{T}, v{T+1}, 4, v{T}
        s_lshl_b32 s{sA}, s{sCB}, 5
        s_add_u32 s{sA}, s{sA}, s{sRB}
        s_mul_i32 s{sA}, s{sA}, 18432
        s_mul_i32 s{sC}, s{sMH}, 9216
        s_add_u32 s{sA}, s{sA}, s{sC}
        s_add_u32 s{sA}, s{sA}, {WS_Z2}
        s_mul_i32 s{sC}, s{sNH}, 5120
        s_add_u32 s{sC}, s{sC}, s{sA}
        s_add_u32 s{sA}, s{sA}, 4096""")
        Q4 = PR
        Ls = self.a.newlab("Lz4b")
        for j in range(5):
            if j == 4: e(f"s_cmp_eq_u32 s{sNH}, 1\ns_cbranch_scc1 {Ls}")
            q = Q4 + 4*j
            ls = []
            for a in range(2):
                for h in range(2):
                    r = ACC + 4*(2*j + a) + 2*h
                    nm, rs = SS + 4*a + 2*h, SS + 8 + 4*a + 2*h
                    d = q + 2*a + h
                    ls.append([f"v_pk_fma_f32 v[{r}:{r+1}], v[{r}:{r+1}], v[{rs}:{rs+1}], v[{nm}:{nm+1}]",
                    f"v_cvt_pk_bf16_f32 v{d}, v{r}, v{r+1}"])
            self.rr(ls)
            e(f"v_permlane16_swap_b32 v{q}, v{q+2}\nv_permlane16_swap_b32 v{q+1}, v{q+3}")
            if j < 4:
                e(f"buffer_store_dwordx4 v[{q}:{q+3}], v{T}, {srd(SRD_WS)}, s{sC} offen offset:{1024*j} sc1")
            else:
                e(f"buffer_store_dwordx4 v[{q}:{q+3}], v{T}, {srd(SRD_WS)}, s{sA} offen sc1")
        self.a.lab(Ls)
        e("s_barrier")
        self.issue_w()
        e("s_waitcnt vmcnt(14)\ns_barrier")
        e(f"""s_lshl_b32 s{sD}, s{sCB}, 2
        s_add_u32 s{sD}, s{sD}, s{sW}
        s_lshl_b32 s{sD}, s{sD}, {5+FS}
        s_add_u32 s{sD}, s{sD}, {WS_FZ2}""")
        self.x_p2_setup()
        e("s_waitcnt vmcnt(9)\ns_barrier")
        e(f"""s_lshl_b32 s{sA}, s{sRB}, {FS}
        s_add_u32 s{sA}, s{sA}, s{sD}
        s_waitcnt vmcnt(0)""")
        self.flag_store(sA, T+8)
        self.stamp(5)
        if self.o.get("selft", "1") == "1":
            e(f"""s_lshl_b32 s{sT}, s{sNH}, 3
            s_sub_u32 s{sT}, 39, s{sT}
            v_min_u32 v{T+4}, s{sT}, v{vL}
            v_lshlrev_b32 v{T+4}, 7, v{T+4}
            buffer_load_dword v{T+5}, v{T+4}, {srd(SRD_WS)}, s{sC} offen sc1""")
        e("s_barrier\ns_barrier")
        for i in range(NA): self.issue_a(i)
        e(f"buffer_load_dword v{T+15}, v37, {srd(SRD_WS)}, s91 offen sc1")
        self.WPRE = 0
        self.wl_all = [s_ for pos in range(self.NWS) for s_ in self.wload(pos)]
        self.x_p2_loader()
        self.x_p3()

    def x_p2_setup(self):
        e = self.e; T = self.vT + 4; vL = self.vL
        e(f"s_lshl_b32 s{sT2}, s{sW}, 4")
        for i in range(2):
            e(f"""v_lshrrev_b32 v{T}, 3, v{vL}
            v_add_u32 v{T}, s{sT2}, v{T}
            v_add_u32 v{T}, {8*i}, v{T}
            v_bfe_u32 v{T+1}, v{T}, 1, 3
            v_and_b32 v{T+2}, 7, v{vL}
            v_xor_b32 v{T+1}, v{T+1}, v{T+2}
            v_lshlrev_b32 v{T+1}, 4, v{T+1}
            v_lshl_add_u32 v{2+i}, v{T}, 12, v{T+1}""")
        e(f"""v_subrev_u32 v3, 1024, v3
        v_and_b32 v5, 31, v{vL}
        v_lshlrev_b32 v5, {FS}, v5
        s_lshl_b32 s{sWSOFF}, s{sRB}, 18
        s_add_u32 s42, s{sWSOFF}, 4096
        s_and_b32 s{sT2}, s{sRB}, 24
        s_lshl_b32 s{sT}, s{sT2}, 7
        s_add_u32 s{sWSOFF}, s{sWSOFF}, s{sT}
        s_lshl_b32 s{sWSLOT}, s{sW}, 11
        s_mul_i32 s{sROFF}, s{sMH}, 9216
        s_mul_i32 s{sT}, s{sNH}, 5120
        s_add_u32 s{sROFF}, s{sROFF}, s{sT}
        s_mul_i32 s{sXOFF}, s{sCB}, {32*18432}
        s_add_u32 s{sXOFF}, s{sXOFF}, s{sROFF}
        s_add_u32 s{sXOFF}, s{sXOFF}, {WS_Z2}
        s_add_u32 s43, s{sXOFF}, {32*18432}
        s_mul_i32 s{sT}, s{sT2}, 18432
        s_add_u32 s{sXOFF}, s{sXOFF}, s{sT}
        s_add_u32 s95, s{sXOFF}, 4096
        s_add_u32 s{sROFF}, s{sROFF}, {BRING}""")
    def issue_a(self, i):
        self.e(f"""s_add_u32 m0, s{sWSLOT}, {8192*i}
        s_nop 0
        buffer_load_dwordx4 v2, {srd(SRD_WSP)}, s{sWSOFF} offen lds
        buffer_load_dwordx4 v3, {srd(SRD_WSP)}, s{sWSOFF} offen offset:1024 lds
        s_add_u32 s{sWSOFF}, s{sWSOFF}, 128""")
    def issue_b(self, slot, five):
        e = self.e
        e(f"s_add_u32 m0, s{sROFF}, {BSZ*slot}\ns_nop 0")
        for i in range(4):
            e(f"buffer_load_dwordx4 v7, {srd(SRD_WS)}, s{sXOFF} offen offset:{1024*i} sc1 lds")
        if five:
            e(f"""s_add_u32 m0, s{sROFF}, {BSZ*slot + 4096}
            s_add_u32 s{sXOFF}, s{sXOFF}, 18432
            buffer_load_dwordx4 v7, {srd(SRD_WS)}, s95 offen sc1 lds
            s_add_u32 s95, s95, 18432""")
        else:
            e(f"s_add_u32 s{sXOFF}, s{sXOFF}, 18432")
    def loop(self, n, fn, name):
        L = self.a.newlab(name)
        self.e(f"s_mov_b32 s{sCNT}, {n}")
        self.a.lab(L)
        fn()
        self.e(f"s_sub_u32 s{sCNT}, s{sCNT}, 1\ns_cmp_lg_u32 s{sCNT}, 0\ns_cbranch_scc1 {L}")

    def x_p2_loader(self):
        e = self.e; T = self.vT
        e(f"""        s_and_b32 s{sT}, s{sRB}, 24
        s_lshl_b32 exec_lo, 0xff, s{sT}
        s_mov_b32 exec_hi, 0""")
        self.poll(5, f"s{sD}", T)
        self.stamp(6)
        Lfour = self.a.newlab("Lp2four"); Ldone = self.a.newlab("Lp2done")
        e(f"""s_cmp_eq_u32 s{sNH}, 1
        s_cbranch_scc1 {Lfour}""")
        for five in (True, False):
            nb = 5 if five else 4
            self.issue_b(0, five); self.issue_b(1, five)
            e(f"s_waitcnt vmcnt({nb})\ns_barrier")
            self.issue_b(2, five); self.issue_b(3, five)
            e(f"s_waitcnt vmcnt({2*nb})")
            def grp(withA):
                e(f"""s_cmp_ge_u32 s{sWSOFF}, s42
                s_cselect_b32 s{sT}, 4096, 0
                s_sub_u32 s{sWSOFF}, s{sWSOFF}, s{sT}
                s_cmp_ge_u32 s{sXOFF}, s43
                s_cselect_b32 s{sT}, {32*18432}, 0
                s_sub_u32 s{sXOFF}, s{sXOFF}, s{sT}
                s_sub_u32 s95, s95, s{sT}""")
                if withA:
                    Lk = self.a.newlab("Lfk")
                    e(f"""s_cmp_lg_u32 s{sCNT}, 5
                    s_cbranch_scc1 {Lk}
                    v_cmp_ne_u32 vcc, s{sTAG}, v6
                    s_cbranch_vccz {Lk}""")
                    self.poll(5, f"s{sD}", T)
                    self.a.lab(Lk)
                for i in range(4):
                    if withA and i == 1:
                        Lq = self.a.newlab("Lfq")
                        e(f"s_cmp_lg_u32 s{sCNT}, 6\ns_cbranch_scc1 {Lq}\nbuffer_load_dword v6, v5, {srd(SRD_WS)}, s{sD} offen sc1")
                        self.a.lab(Lq)
                    e("s_barrier")
                    if i == 0: self.stampd(12)
                    self.issue_b(i, five)
                    if withA: self.issue_a(i)
                    e(f"s_waitcnt vmcnt({2*nb + 2 if withA else 2*nb})")
                if withA: e(f"s_xor_b32 s{sWSLOT}, s{sWSLOT}, 32768")
            def grp_t():
                grp(True)
                if self.o.get("wtouch", "0") == "1":
                    Lt = self.a.newlab("Lwt")
                    e(f"s_cmp_lg_u32 s{sCNT}, 2\ns_cbranch_scc1 {Lt}\nbuffer_load_dword v6, v4, {srd(SRD_WS)}, s{sT2} offen sc1")
                    self.a.lab(Lt)
            self.loop(6, grp_t, "Lp2f")
            grp(False)
            if five:
                e(f"s_branch {Ldone}")
                self.a.lab(Lfour)
        self.a.lab(Ldone)
        wl = self.wl_all[self.WPRE:]
        Lw = self.a.newlab("Lwok")
        e(f"v_cmp_ne_u32 vcc, s{sTAG}, v{T+15}\ns_cbranch_vccz {Lw}")
        self.poll(37, "s91", T)
        self.a.lab(Lw)
        e("s_barrier")
        n1 = min(5, len(wl)); n2 = min(5, len(wl) - n1); n3 = min(8, len(wl) - n1 - n2)
        for s_ in wl[:n1]: e(s_)
        e(f"s_waitcnt vmcnt({4+n1})\ns_barrier")
        for s_ in wl[n1:n1+n2]: e(s_)
        e(f"s_waitcnt vmcnt({n1+n2})\ns_barrier")
        for s_ in wl[n1+n2:n1+n2+n3]: e(s_)
        self.wl_rest = wl[n1+n2+n3:]
        self.w_issued = self.WPRE + n1 + n2 + n3
        self.stamp(7)

    def x_p3(self):
        e = self.e; T = self.vT; vL = self.vL; A3 = self.A3
        e("s_barrier")
        Lidle = self.a.newlab("Lp3idle")
        e(f"s_cmp_eq_u32 s{sCB}, 5\ns_cbranch_scc1 {Lidle}")
        e("s_barrier")
        WTH = int(self.o.get("wthr", 5)); WN1 = int(self.o.get("wn1", 24)); WPP = int(self.o.get("wpp", 4))
        wq = list(self.wl_rest) + [s_ for p_ in range(self.NWS, 27) for s_ in self.wload(p_)]
        e(f"""v_and_b32 v2, 15, v{vL}
        v_mul_u32_u24 v2, 1280, v2
        v_lshrrev_b32 v3, 4, v{vL}
        s_mul_i32 s{sA}, s{sRB}, {64*1280}
        s_lshl_b32 s{sC}, s{sCB}, 8
        s_add_u32 s{sA}, s{sA}, s{sC}
        s_lshl_b32 s{sC}, s{sW}, 6
        s_add_u32 s{sA}, s{sA}, s{sC}
        v_and_b32 v6, 1, v3
        v_lshlrev_b32 v6, 5, v6
        v_lshrrev_b32 v3, 1, v3
        v_lshl_add_u32 v6, v3, 4, v6
        v_add_u32 v6, v6, v2
        s_mov_b32 s{sB}, 0xffff0000
        v_add_u32 v2, {HB}, v7
        v_add_u32 v3, 0x10000, v2
        v_lshlrev_b32 v4, 3, v{vL}""")
        self.stamp(8)
        def hreads(pos, F):
            out = []
            if pos < 24:
                j, p = divmod(pos, 4)
                for b in range(4):
                    mh, a = b >> 1, b & 1
                    off = j*18432 + (9*mh + 5*(p >> 1) + 2*(p & 1) + a)*1024
                    out.append(f"ds_read_b128 v[{F+4*b}:{F+4*b+3}], v{2 + (off >> 16)} offset:{off & 0xffff}")
            else:
                for hf in range(2):
                    cbp = 2*(pos - 24) + hf
                    pre = f"""s_bfe_u32 s{sT}, s50, {(4 << 16) | (4*cbp)}
                    s_mul_i32 s{sT}, s{sT}, 18432
                    s_add_u32 s{sT}, s{sT}, {HB + 4096}
                    v_add_u32 v{2+hf}, s{sT}, v4
                    """
                    for b in range(4):
                        mh, a = b >> 1, b & 1
                        out.append(pre + f"ds_read_b64 v[{F+4*b+2*hf}:{F+4*b+2*hf+1}], v{2+hf} offset:{9216*mh + a*512}")
                        pre = ""
            return out
        FB = (8, 24, 208)
        self.stamp(9)
        for s_ in hreads(0, FB[0]) + hreads(1, FB[1]): e(s_)
        issued = self.w_issued
        NL = 27 - self.NWS
        XV = self.wreg(NL, 0)
        YV = self.wreg(NL + 2, 0)
        XS = self.wreg(NL + 5, 0)
        XA = self.wreg(NL + 4, 0)
        e(f"""v_lshrrev_b32 v5, 2, v{vL}
        v_lshlrev_b32 v5, 7, v5
        v_and_b32 v{A3}, 3, v{vL}
        v_lshl_add_u32 v5, v{A3}, 3, v5
        s_lshl_b32 s{sC}, s{sW}, 12
        s_add_u32 s{sC}, s{sC}, {YAB}
        v_add_u32 v5, s{sC}, v5""")
        prev = 4
        for pos in range(27):
            if pos == NL + 6:
                e(f"""v_and_b32 v{XA+2}, 15, v{vL}
                v_lshrrev_b32 v{XA+3}, 5, v{vL}
                s_lshl_b32 s{sC}, s{sW}, 2
                v_add_u32 v{XA+3}, s{sC}, v{XA+3}
                v_xor_b32 v{XA+3}, v{XA+3}, v{XA+2}
                v_lshlrev_b32 v{XA+3}, 4, v{XA+3}
                v_lshl_add_u32 v{XA}, v{XA+2}, 8, v{XA+3}
                v_bfe_u32 v{XA+3}, v{vL}, 4, 1
                v_lshl_add_u32 v{XA}, v{XA+3}, 3, v{XA}
                v_add_u32 v{XA}, {XB}, v{XA}
                v_xor_b32 v{XA+1}, 32, v{XA}""")
            F = FB[pos % 3]
            nxt = []
            def fbar(j):
                if self.o.get("fine"): self.stamp(28 + j)
                e("s_barrier")
                if self.o.get("fine"): self.stamp(22 + j)
            if pos == 4:
                fbar(1)
                for s_ in hreads(4, FB[1]) + hreads(5, FB[2]): e(s_)
                prev = 4
            if pos < 25 and pos not in (2, 3):
                if (pos + 2) % 4 == 0 and 8 < pos + 2 < 24: fbar((pos + 2)//4)
                nxt = hreads(pos + 2, FB[(pos + 2) % 3])
            mf = []
            for b in range(4):
                for ee in range(2):
                    c = A3 + 4*(2*b + ee); w = self.wreg(pos, ee)
                    C = "0" if pos == 0 else f"v[{c}:{c+3}]"
                    mf.append(f"v_mfma_f32_16x16x32_bf16 v[{c}:{c+3}], v[{w}:{w+3}], v[{F+4*b}:{F+4*b+3}], {C}")
            e(f"s_waitcnt lgkmcnt({prev}) vmcnt({issued - 2*(pos + 1)})")
            prev = len(nxt)
            fill = list(nxt)
            if pos >= 23:
                for i in range(4*(pos-23), 4*(pos-23)+4):
                    t = XA + 4 + 2*(i & 1)
                    fill += [f"v_lshlrev_b32 v{XS+2*i}, 16, v{XV+i}\nv_and_b32 v{XS+2*i+1}, s{sB}, v{XV+i}",
                             f"v_lshlrev_b32 v{t}, 16, v{YV+i}\nv_and_b32 v{t+1}, s{sB}, v{YV+i}\nv_pk_add_f32 v[{XS+2*i}:{XS+2*i+1}], v[{XS+2*i}:{XS+2*i+1}], v[{t}:{t+1}]"]
            for s_ in self.interleave(fill, mf, 2 if len(fill) > 8 else 1): e(s_)
            nw = (WN1 + 3) // 4 if pos < 4 else WPP
            for _ in range(nw):
                if wq and (issued < 2*self.NWS or issued//2 - self.NWS <= pos):
                    e(wq.pop(0)); issued += 1
                    if pos < 4: e(f"s_waitcnt vmcnt({WTH})")
            assert issued >= min(54, 2*(pos + 2)), (pos, issued)
            if pos == 21:
                if self.o.get("spec", "0") == "1": e("s_barrier")
                for b in range(4):
                    for ee in range(2):
                        r = 2*(2*b + ee)
                        e(f"ds_read_b64_tr_b16 v[{YV+r}:{YV+r+1}], v5 offset:{ee*2048 + b*32}")
                prev += 8
            if pos == 20:
                for b in range(4):
                    for ee in range(2):
                        r = 2*(2*b + ee)
                        e(f"ds_read_b64 v[{XV+r}:{XV+r+1}], v{XA+ee} offset:{4096*b}")
                prev += 8
        self.stamp(10)
        for i in range(16):
            e(f"v_pk_add_f32 v[{A3+2*i}:{A3+2*i+1}], v[{A3+2*i}:{A3+2*i+1}], v[{XS+2*i}:{XS+2*i+1}]")
        OV = 40
        for b in range(4):
            q = OV + 4*b
            for k in range(4):
                c = A3 + 8*b + 2*k; i = 4*b + k; t = 8 + 2*k
                e(f"v_cvt_pk_bf16_f32 v{q+k}, v{c}, v{c+1}")
            e(f"""v_permlane16_swap_b32 v{q}, v{q+2}
            v_permlane16_swap_b32 v{q+1}, v{q+3}
            s_add_u32 s{sT}, s{sA}, {b*16*1280}
            buffer_store_dwordx4 v[{q}:{q+3}], v6, {srd(SRD_OUT)}, s{sT} offen {self.o.get("ost", "")}""")
        self.stamp(11)
        e(f"""s_cmp_lg_u32 s2, 0
        s_cbranch_scc1 L_end
        s_cmp_lg_u32 s{sW}, 0
        s_cbranch_scc1 L_end
        v_lshlrev_b32 v8, {FS}, v{vL}
        s_mov_b32 s{sD}, {WS_FY}
        s_mov_b32 s{sA}, {WS_EPOCH}""")
        self.poll(8, f"s{sD}", 9)
        self.flag_store(sA, 8)
        if self.o.get("dbgt"):
            e(f"""s_load_dwordx2 s[40:41], s[0:1], 104
            s_waitcnt vmcnt(0)
            s_memtime s[{sTM}:{sTM+1}]
            s_memrealtime s[98:99]
            s_waitcnt lgkmcnt(0)
            s_sub_u32 s{sTM}, s{sTM}, s{sTM0}
            s_sub_u32 s98, s98, s100
            v_mov_b32 v8, s{sTM}
            v_mov_b32 v9, s98
            v_mov_b32 v10, 0
            global_store_dwordx2 v10, v[8:9], s[40:41]""")
        self.a.lab(Lidle)
        e("s_branch L_end")

    def pub_parts(self):
        e = self.e; T = 240; vL = self.vL
        g, r, c4 = T, T+1, T+2
        XQ = 192; XAD = 208; RSV = 216
        e(f"""v_lshrrev_b32 v{g}, 4, v{vL}
        v_bfe_u32 v{r}, v{vL}, 2, 2
        v_and_b32 v{c4}, 3, v{vL}""")
        for rd in range(2):
            t, sw, ad = T+3, T+4, T+6+rd
            e(f"""v_lshl_add_u32 v{t}, v{g}, 3, v{r}
            v_add_u32 v{t}, {4*rd}, v{t}
            v_bfe_u32 v{sw}, v{t}, 1, 3
            v_lshrrev_b32 v{ad}, 1, v{c4}
            v_xor_b32 v{sw}, v{sw}, v{ad}
            v_lshlrev_b32 v{sw}, 4, v{sw}
            v_lshl_add_u32 v{ad}, v{t}, 7, v{sw}
            v_and_b32 v{sw}, 1, v{c4}
            v_lshl_add_u32 v{ad}, v{sw}, 3, v{ad}""")
        e(f"""v_and_b32 v{T+8}, 7, v{vL}
        v_lshlrev_b32 v{T+8}, 12, v{T+8}
        v_lshl_add_u32 v{T+8}, v{g}, 4, v{T+8}
        v_bfe_u32 v{T+3}, v{vL}, 3, 1
        v_lshl_add_u32 v{T+8}, v{T+3}, 6, v{T+8}
        v_lshlrev_b32 v{T+9}, 5, v{g}
        v_add_u32 v{T+9}, {RSTAB}, v{T+9}
        s_mul_i32 s{sA}, s{sCB}, 7
        s_sub_u32 s{sB}, s{sCB}, 2
        s_max_i32 s{sB}, s{sB}, 0
        s_sub_u32 s{sA}, s{sA}, s{sB}
        s_lshl_b32 s{sB}, s{sW}, 1
        s_add_u32 s{sA}, s{sA}, s{sB}""")
        for i in range(2):
            e(f"""s_add_u32 s{sB}, s{sA}, {i}
            s_and_b32 s{sC}, s{sB}, 3
            s_lshl_b32 s{sC}, s{sC}, 5
            s_lshr_b32 s{sD}, s{sB}, 2
            s_lshl_b32 s{sD}, s{sD}, 13""")
            for rd in range(2):
                e(f"v_xor_b32 v{XAD+2*i+rd}, s{sC}, v{T+6+rd}\nv_add_u32 v{XAD+2*i+rd}, s{sD}, v{XAD+2*i+rd}")
        e(f"""s_lshl_b32 s{sB}, s{sRB}, 7
        s_add_u32 s{sB}, s{sB}, {WS_XNT}
        s_lshl_b32 s{sA}, s{sA}, 16
        s_add_u32 s38, s{sA}, s{sB}
        s_lshl_b32 s{sD}, s{sCB}, 5
        s_add_u32 s{sD}, s{sD}, s{sRB}
        s_lshl_b32 s{sD}, s{sD}, 7
        s_add_u32 s39, s{sD}, {WS_FXN}
        s_mov_b32 s40, 0xffff0000""")
        rds = [f"ds_read_b128 v[{RSV+4*k}:{RSV+4*k+3}], v{T+9} offset:{128*(k>>1) + 16*(k&1)}" for k in range(4)]
        for i in range(2):
            for h in range(2):
                for rd in range(2):
                    q = XQ + 8*i + 4*h + 2*rd
                    rds.append(f"ds_read_b64_tr_b16 v[{q}:{q+1}], v{XAD+2*i+rd} offset:{4096*h}")
        work = []
        for i in range(2):
            for h in range(2):
                for k in range(4):
                    q = XQ + 8*i + 4*h + k; a = T + 2*(k & 1); rs = RSV + 8*h + 2*k
                    work += [f"v_lshlrev_b32 v{a}, 16, v{q}", f"v_and_b32 v{a+1}, s40, v{q}",
                             f"v_pk_mul_f32 v[{a}:{a+1}], v[{a}:{a+1}], v[{rs}:{rs+1}]", f"v_cvt_pk_bf16_f32 v{q}, v{a}, v{a+1}"]
            for k in range(4):
                r0 = XQ + 8*i + k; r1 = r0 + 4; t = T + 4 + (k & 1)
                work += [f"v_mov_b32 v{t}, v{r0}",
                         f"v_mov_b32_dpp v{r0}, v{r1} row_ror:8 row_mask:0xf bank_mask:0xc",
                         f"v_mov_b32_dpp v{r1}, v{t} row_ror:8 row_mask:0xf bank_mask:0x3"]
            for h in range(2):
                q = XQ + 8*i + 4*h
                work.append(f"buffer_store_dwordx4 v[{q}:{q+3}], v{T+8}, {srd(SRD_WS)}, s38 offen sc1\ns_add_u32 s38, s38, 32768")
        return rds, work

    def y_spec(self, hblk):
        e = self.e; T = self.vT; vL = self.vL
        V = 40
        L5 = self.a.newlab("Lc5")
        e(f"s_cmp_eq_u32 s{sCB}, 5\ns_cbranch_scc1 L_end")
        N1 = int(self.o.get("sn1", 2))
        for j in range(1, N1 + 1): hblk(j)
        self.stamp(6)
        e(f"v_add_u32 v{T+7}, 0x10000, v{T+10}")
        for j in range(1, 6):
            Lok = self.a.newlab("Lsv")
            if j == 3:
                e(f"buffer_load_dword v{T+6}, v6, {srd(SRD_WS)}, 0 offen sc1")
                for jj in range(N1 + 1, 6): hblk(jj)
            e(f"s_waitcnt vmcnt({4*((N1 if j < 3 else 5)-j) + (4 if j > 3 else 0)})")
            off = 18432*j
            for i in range(5):
                o = off + 1024*min(i, 4)
                if i < 4: e(f"ds_read_b128 v[{V+4*i}:{V+4*i+3}], v{(T+10, T+7)[o >> 16]} offset:{o & 0xffff}")
                else: e(f"ds_read_b128 v[{V+16}:{V+19}], v{(T+4, T+5)[off >> 16]} offset:{off & 0xffff}")
            e("s_waitcnt lgkmcnt(0)")
            e(f"v_max3_u32 v{V}, v{V}, v{V+1}, v{V+2}")
            for r in range(3, 19, 2): e(f"v_max3_u32 v{V}, v{V}, v{V+r}, v{V+r+1}")
            e(f"""v_max_u32 v{V}, v{V}, v{V+19}
            v_cmp_eq_u32 vcc, -1, v{V}
            s_cbranch_vccz {Lok}
            s_mul_hi_u32 s{sT}, s{self.sBO+j}, {(1 << 32)//18432 + 1}
            s_lshl_b32 exec_lo, 1, s{sT}
            s_mov_b32 exec_hi, 0""")
            self.poll(6, "0", T+3)
            hblk(j)
            e("s_waitcnt vmcnt(0)")
            self.a.lab(Lok)
            if j == 3:
                Ly = self.a.newlab("Lsy")
                e(f"""s_barrier
                s_waitcnt vmcnt(8)
                v_cmp_ne_u32 vcc, s{sTAG}, v{T+6}
                s_and_b32 s{sT}, vcc_lo, 0xffff0000
                s_cbranch_scc0 {Ly}
                s_mov_b32 exec_lo, 0xffff0000
                s_mov_b32 exec_hi, 0""")
                self.poll(6, "0", T+3)
                self.a.lab(Ly)
                e(f"s_add_u32 m0, s{sB}, {YAB}\ns_nop 0")
                for i in range(4):
                    e(f"buffer_load_dwordx4 v{T+8}, {srd(SRD_WS)}, s{sD} offen offset:{1024*i} sc1 lds")
            if j not in (1, 3): e("s_barrier")
        e("s_waitcnt vmcnt(0)\ns_barrier")
        self.stamp(7)
        e("s_branch L_end")

    def y_p3_setup(self):
        e = self.e; T = self.vT; vL = self.vL
        e(f"""s_lshl_b32 s{sD}, s{sRB}, 2
        s_add_u32 s{sD}, s{sD}, s{sW}
        s_lshl_b32 s{sD}, s{sD}, {3+FS}
        s_add_u32 s{sD}, s{sD}, {WS_FH}
        s_lshl_b32 s85, s{sCB}, {FS}
        s_add_u32 s85, s85, s{sD}
        v_min_u32 v6, 5, v{vL}
        v_lshlrev_b32 v6, {FS}, v6
        v_add_u32 v6, s{sD}, v6
        s_min_u32 s{sC}, s{sCB}, 4
        s_mul_i32 s{sA}, s{sC}, 51
        s_lshr_b32 s{sA}, s{sA}, 2
        v_and_b32 v{T+3}, 15, v{vL}
        v_add_u32 v{T+3}, s{sA}, v{T+3}
        v_min_u32 v{T+3}, 63, v{T+3}
        v_lshlrev_b32 v{T+3}, {FS}, v{T+3}
        v_add_u32 v{T+3}, {WS_FY}, v{T+3}
        v_cmp_lt_u32 vcc, 15, v{vL}
        v_cndmask_b32 v6, v6, v{T+3}, vcc
        s_mul_i32 s93, s{sMH}, 9216
        s_mul_i32 s{sA}, s{sNH}, 5120
        s_add_u32 s93, s93, s{sA}
        s_mul_i32 s94, s{sRB}, {6*18432}
        s_add_u32 s94, s94, s93
        s_add_u32 s94, s94, {WS_H}
        s_add_u32 s93, s93, {HB}
        s_mul_i32 s91, s{sRB}, {64*1280}
        s_lshl_b32 s{sA}, s{sC}, 8
        s_add_u32 s91, s91, s{sA}
        s_mul_i32 s{sA}, s{sW}, {16*1280}
        s_add_u32 s91, s91, s{sA}
        s_mul_i32 s{sMASK}, s{sRB}, {640*128}
        s_lshl_b32 s{sA}, s{sC}, 14
        s_add_u32 s{sMASK}, s{sMASK}, s{sA}
        s_lshl_b32 s{sA}, s{sW}, 12
        s_add_u32 s{sMASK}, s{sMASK}, s{sA}
        s_add_u32 s{sMASK}, s{sMASK}, {WS_YA}""")
        for i in range(4):
            e(f"""v_lshrrev_b32 v{T+4}, 4, v{vL}
            v_add_u32 v{T+4}, {4*i}, v{T+4}
            v_and_b32 v{T+5}, 15, v{vL}
            v_xor_b32 v{T+5}, v{T+5}, v{T+4}
            v_mul_u32_u24 v{T+4}, 1280, v{T+4}
            v_lshl_add_u32 v{T+12+i}, v{T+5}, 4, v{T+4}""")
            if i: e(f"v_subrev_u32 v{T+12+i}, {1024*i}, v{T+12+i}")

    def y_path(self):
        e = self.e; T = self.vT; ACC = self.ACC; vL = self.vL; Z1 = self.Z1
        self.a.lab("L_Y")
        if self.o.get("yprio", "1") == "1": e("s_setprio 0")
        self.stamp(0)
        vmw = lambda n: f"s_waitcnt vmcnt({n})"
        e(f"""v_and_b32 v{T}, 15, v{vL}
        v_lshlrev_b32 v{T}, 2, v{T}
        s_lshl_b32 s{sA}, s{sMH}, 7
        s_add_u32 s{sA}, s{sA}, {RSTAB}
        v_add_u32 v{T}, s{sA}, v{T}
        v_lshrrev_b32 v{T+1}, 4, v{vL}
        v_lshlrev_b32 v{T+1}, 5, v{T+1}
        s_lshl_b32 s{sA}, s{sNH}, 7
        s_add_u32 s{sA}, s{sA}, {RSTAB}
        v_add_u32 v{T+1}, s{sA}, v{T+1}""")
        if self.o.get("xst", "1") == "1":
            e(f"""s_add_u32 s{sWSLOT}, s{sWSLOT}, {2*S1SZ}
            s_add_u32 s{sWSOFF}, s{sWSOFF}, {2*64*3456}""")
        else:
            e(vmw(5))
        e("s_barrier")
        self.stamp(12)
        e(f"ds_read_b32 v{T+8}, v{T}\nds_read_b32 v{T+10}, v{T} offset:64")
        self.issue_w()
        e("s_waitcnt vmcnt(5) lgkmcnt(0)\ns_barrier")
        self.issue_w(); self.issue_w()
        e(vmw(10))
        L = self.a.newlab("Ly1")
        e(f"s_mov_b32 s{sCNT}, 2")
        self.a.lab(L)
        e("s_barrier")
        self.stampd(12)
        Lc = self.a.newlab("Lcol")
        e(f"""s_cmp_lg_u32 s{sCNT}, 7
        s_cbranch_scc1 {Lc}
        s_sub_u32 s{sWSOFF}, s{sWSOFF}, 1728
        s_sub_u32 s{sWSL}, s{sWSL}, 1728""")
        self.a.lab(Lc)
        self.issue_w()
        e(vmw(10))
        e(f"""s_add_u32 s{sCNT}, s{sCNT}, 1
        s_cmp_lt_u32 s{sCNT}, 10
        s_cbranch_scc1 {L}""")
        self.stamp(1)
        ysetup = self.capture(lambda: (self.blk_offsets(18432), self.y_p3_setup()))
        yflag = []
        if int(self.o.get("hold", 3)) >= 3:
            for l in ysetup: e(l)
            ysetup = []
        e(f"""s_mov_b32 s{sROFF}, {RING1 + 2*S1SZ}
        v_and_b32 v{T}, 15, v{vL}
        v_lshlrev_b32 v{T}, 1, v{T}
        s_lshl_b32 s{sA}, s{sRB}, 7
        s_lshl_b32 s{sB}, s{sMH}, 6
        s_add_u32 s{sA}, s{sA}, s{sB}
        buffer_load_ushort v34, v{T}, {srd(SRD_BSP)}, s{sA} offen
        buffer_load_ushort v36, v{T}, {srd(SRD_BSP)}, s{sA} offen offset:32""")
        tail = self.compute_loop(10, True, self.p1_reads, self.p1_addr, "p1b", vmwait=True, first=(ysetup, yflag))
        e("s_barrier")
        for m in tail: e(m)
        self.stamp(2)
        e(f"v_mov_b32 v{T+9}, v{T+8}\nv_mov_b32 v{T+11}, v{T+10}")
        for i in range(0, 20, 4):
            self.rr([self.gelu_list(ACC + 2*(i+k), T + 2*k, T + 8 + 2*(k >> 1), packed=Z1 + 2*(i + k)) for k in range(4)])
        e(f"""v_lshlrev_b32 v34, 16, v34
        v_lshlrev_b32 v36, 16, v36
        v_mov_b32 v35, v34
        v_mov_b32 v37, v36
        v_lshlrev_b32 v{self.vWB4}, 4, v{vL}
        s_mul_i32 s{sA}, s{sNH}, 5120
        v_add_u32 v{self.vWB}, s{sA}, v{self.vWB4}
        v_add_u32 v{self.vWB4}, 4096, v{self.vWB4}
        s_mov_b32 s{sROFF}, {BRING}
        s_mov_b32 s{sXOFF}, 0""")
        e("s_waitcnt vmcnt(12)")
        if self.o.get("dgem"): e(f"s_sleep {self.o['dgem']}")
        self.stamp(3)
        ZD = int(self.o.get("zd", 0))
        e(f"""v_min_u32 v4, 8, v{vL}
        v_lshlrev_b32 v4, 7, v4
        s_and_b32 s{sA}, s{sRB}, 7
        s_lshl_b32 s{sA}, s{sA}, 2
        s_add_u32 s{sA}, s{sA}, s{sW}
        s_mul_i32 s{sWSL}, s{sA}, {9*128}
        s_mul_i32 s{sC}, s{sCB}, {32*18432}
        s_add_u32 s{sWSL}, s{sWSL}, s{sC}
        s_add_u32 s{sWSL}, s{sWSL}, {WS_Z2 + ZD*18432}
        s_min_u32 s{sC}, s{sCB}, 4
        s_mul_i32 s{sC}, s{sC}, {8*27*1024}
        s_mul_i32 s{sA}, s{sA}, {54*128}
        s_add_u32 s{sW0}, s{sC}, s{sA}
        s_add_u32 s{sW0}, s{sW0}, {WS_WOT}
        v_min_u32 v7, 53, v{vL}
        v_lshlrev_b32 v7, 7, v7""")
        def ztouch():
            if ZD:
                Lz = self.a.newlab("Lzt")
                e(f"""s_cmp_le_u32 s{sCNT}, {(ZD-2)//2}
                s_cbranch_scc1 {Lz}
                buffer_load_dword v5, v4, {srd(SRD_WS)}, s{sWSL} offen sc1
                s_add_u32 s{sWSL}, s{sWSL}, {2*18432}""")
                self.a.lab(Lz)
            if self.o.get("ywt"):
                Lw = self.a.newlab("Lwt")
                e(f"s_cmp_lg_u32 s{sCNT}, 6\ns_cbranch_scc1 {Lw}\nbuffer_load_dword v5, v7, {srd(SRD_WS)}, s{sW0} offen sc1")
                self.a.lab(Lw)
        e(f"""v_lshlrev_b32 v{T+8}, 4, v{vL}
        v_lshlrev_b32 v{T+9}, 3, v{vL}
        s_mul_i32 s{sA}, s{sRB}, 6
        s_add_u32 s{sA}, s{sA}, s{sCB}
        s_mul_i32 s{sA}, s{sA}, 18432
        s_mul_i32 s{sC}, s{sMH}, 9216
        s_mul_i32 s{sD}, s{sNH}, 5120
        s_add_u32 s{sC}, s{sC}, s{sD}
        s_add_u32 s{sA}, s{sA}, s{sC}
        s_add_u32 s{sA}, s{sA}, {WS_H}
        s_add_u32 s{sC}, s{sC}, {HB}
        v_add_u32 v{T+10}, s{sC}, v{T+8}
        v_add_u32 v{T+11}, s{sC}, v{T+9}
        s_add_u32 s{sC}, s{sA}, 4096""")
        if self.o.get("nhs", "1") == "1":
            e(f"s_cmp_eq_u32 s{sNH}, 0\ns_cbranch_scc1 L_p2five")
            self.NJ = 4
            self.compute_loop(32, True, self.p2_reads, self.p2_addr, "p2", mid=ztouch, peel="s_waitcnt vmcnt(0)")
            self.NJ = 5
            e("s_branch L_p2join")
            self.a.lab("L_p2five")
        tail = self.compute_loop(32, True, self.p2_reads, self.p2_addr, "p2", mid=ztouch, peel="s_waitcnt vmcnt(0)")
        if self.o.get("nhs", "1") == "1": self.a.lab("L_p2join")
        e("s_barrier")
        tl = {}
        for k, m in enumerate(tail): tl.setdefault((k % 10) // 2, []).append(m)
        HQ = 40
        Ls = self.a.newlab("Lh4")
        tc = [0]
        def hval(j, a, h, d):
            r = ACC + 4*(2*j + a) + 2*h; z = Z1 + 4*(2*j + a) + 2*h; b = 34 + 2*a
            return [f"v_pk_add_f32 v[{r}:{r+1}], v[{r}:{r+1}], v[{b}:{b+1}]",
            f"v_pk_mul_f32 v[{r}:{r+1}], v[{r}:{r+1}], v[{z}:{z+1}]",
            f"v_cvt_pk_bf16_f32 v{d}, v{r}, v{r+1}"]
        for m in tl[0] + tl[1] + tl[2][:2]: e(m)
        rest = tl[2][2:] + tl[3] + tl[4]
        for p in range(2):
            for a in range(2):
                q = HQ + 4*(2*p + a)
                ops = []
                hv = [hval(2*p + jj, a, h, q + 2*jj + h) for jj in range(2) for h in range(2)]
                for i in range(3): ops += [l[i] for l in hv]
                if p == 0:
                    ms = rest[5*a:5*a+5]
                    for i, o in enumerate(ops):
                        if i % 2 == 0 and ms: e(ms.pop(0))
                        e(o)
                else:
                    for o in ops: e(o)
                e(f"buffer_store_dwordx4 v[{q}:{q+3}], v{T+8}, {srd(SRD_WS)}, s{sA} offen offset:{1024*(2*p+a)} sc1")
                e(f"ds_write_b128 v{T+10}, v[{q}:{q+3}] offset:{1024*(2*p+a)}")
        self.stamp(4)
        e(f"s_cmp_eq_u32 s{sNH}, 1\ns_cbranch_scc1 {Ls}")
        self.rr([hval(4, a, h, HQ + 16 + 2*a + h) for a in range(2) for h in range(2)])
        for a in range(2):
            q = HQ + 16 + 2*a
            e(f"buffer_store_dwordx2 v[{q}:{q+1}], v{T+9}, {srd(SRD_WS)}, s{sC} offen offset:{512*a} sc1")
            e(f"ds_write_b64 v{T+11}, v[{q}:{q+1}] offset:{4096 + 512*a}")
        self.a.lab(Ls)
        e("s_waitcnt lgkmcnt(0)\ns_barrier")
        e(f"s_lshl_b32 s{sB}, s{sW}, 12\ns_mov_b32 s{sD}, s{sMASK}")
        e(f"s_add_u32 m0, s{sB}, {XB}\ns_nop 0")
        for i in range(4):
            e(f"buffer_load_dwordx4 v{T+12+i}, {srd(SRD_X)}, s91 offen offset:{1024*i} lds")
        e("s_waitcnt vmcnt(4)")
        self.flag_store(85, T)
        if self.o.get("spec", "0") == "1":
            e(f"""s_lshl_b32 s{sT}, s{sNH}, 10
            s_sub_u32 s{sT}, 4096, s{sT}
            v_add_u32 v{T+4}, s{sT}, v{T+10}
            v_add_u32 v{T+5}, 0x10000, v{T+4}""")
        elif self.o.get("selft", "1") == "1":
            e(f"""s_lshl_b32 s{sT}, s{sNH}, 3
            s_sub_u32 s{sT}, 39, s{sT}
            v_min_u32 v{T+4}, s{sT}, v{vL}
            v_lshlrev_b32 v{T+4}, 7, v{T+4}
            buffer_load_dword v{T+5}, v{T+4}, {srd(SRD_WS)}, s{sA} offen sc1""")
        self.stamp(5)
        def hblk(j):
            Lk = self.a.newlab("Lhk")
            e(f"s_add_u32 m0, s93, {18432*j}\ns_add_u32 s{sT}, s94, s{self.sBO+j}")
            for i in range(4):
                e(f"buffer_load_dwordx4 v{T+8}, {srd(SRD_WS)}, s{sT} offen offset:{1024*i} sc1 lds")
            e(f"""s_cmp_eq_u32 s{sNH}, 1
            s_cbranch_scc1 {Lk}
            s_add_u32 m0, m0, 4096
            s_add_u32 s{sT}, s{sT}, 4096
            buffer_load_dwordx4 v{T+8}, {srd(SRD_WS)}, s{sT} offen sc1 lds""")
            self.a.lab(Lk)
        if self.o.get("spec", "0") == "1":
            self.y_spec(hblk); return
        L5 = self.a.newlab("Lc5"); Lall = self.a.newlab("Lhall"); Lok = self.a.newlab("Lhok"); Lj = self.a.newlab("Lhj")
        e(f"""s_waitcnt vmcnt(1)
        s_sleep {self.o.get("hdl", 1)}
        s_cmp_eq_u32 s{sCB}, 5
        s_cbranch_scc1 {L5}
        buffer_load_dword v{T+3}, v6, {srd(SRD_WS)}, 0 offen sc1
        s_and_b32 s{sT}, s2, 1
        s_mul_i32 s{sT}, s{sT}, 3
        s_lshl_b32 s{sT2}, 7, s{sT}
        s_waitcnt vmcnt(0)
        v_cmp_ne_u32 vcc, s{sTAG}, v{T+3}
        s_cbranch_vccz {Lall}
        s_and_b32 s{sT}, vcc_lo, s{sT2}
        s_cbranch_scc0 {Lj}
        s_mov_b32 exec_lo, s{sT2}
        s_mov_b32 exec_hi, 0""")
        self.poll(6, "0", T+3)
        self.a.lab(Lj)
        self.stamp(6)
        hblk(1); hblk(2)
        e(f"""buffer_load_dword v{T+3}, v6, {srd(SRD_WS)}, 0 offen sc1
        s_waitcnt vmcnt(0)
        s_barrier
        v_cmp_ne_u32 vcc, s{sTAG}, v{T+3}
        s_cbranch_vccz {Lok}""")
        self.a.lab(L5)
        self.poll(6, "0", T+3)
        self.a.lab(Lok)
        self.stamp(8)
        hblk(3)
        e(f"s_cmp_eq_u32 s{sCB}, 5\ns_cbranch_scc1 L_end")
        hblk(4); hblk(5)
        e(f"s_add_u32 m0, s{sB}, {YAB}\ns_nop 0")
        for i in range(4):
            e(f"buffer_load_dwordx4 v{T+8}, {srd(SRD_WS)}, s{sD} offen offset:{1024*i} sc1 lds")
        for n in (12, 8, 0):
            e(f"s_waitcnt vmcnt({n})\ns_barrier")
        self.stamp(7)
        e("s_branch L_end")
        self.a.lab(Lall)
        self.stamp(6)
        hblk(1); hblk(2); hblk(3)
        e("s_waitcnt vmcnt(4)\ns_barrier")
        hblk(4); hblk(5)
        e(f"s_add_u32 m0, s{sB}, {YAB}\ns_nop 0")
        for i in range(4):
            e(f"buffer_load_dwordx4 v{T+8}, {srd(SRD_WS)}, s{sD} offen offset:{1024*i} sc1 lds")
        for n in (12, 8, 0):
            e(f"s_waitcnt vmcnt({n})\ns_barrier")
        self.stamp(7)
        e("s_branch L_end")

    def build(self):
        from ssm import ssm_path
        self.entry()
        self.inpro = True
        self.gemm_prologue()
        self.inpro = False
        self.x_path()
        self.y_path()
        self.a.lab("L_ssm")
        if self.o.get("nossm"):
            self.e("s_branch L_end")
        else:
            self.inssm = True
            ssm_path(self)
            self.inssm = False
        self.a.lab("L_end")
        if self.o.get("stamps"):
            self.e(f"""s_mov_b64 exec, -1
            s_waitcnt vmcnt(0)
            s_memrealtime s[{sTM}:{sTM+1}]
            s_waitcnt lgkmcnt(0)
            v_writelane_b32 v0, s100, 62
            v_writelane_b32 v0, s{sTM}, 63
            s_lshl_b32 s{sTM}, s2, 3
            s_add_u32 s{sTM}, s{sTM}, s{sWAVE}
            s_lshl_b32 s{sTM}, s{sTM}, 8
            s_add_u32 s{sTM}, s{sTM}, {WS_DBG}
            v_lshlrev_b32 v2, 2, v1
            buffer_store_dword v0, v2, {srd(SRD_WS)}, s{sTM} offen""")
        self.e("s_endpgm")
        self.a.lab("L_exit")
        self.e("s_endpgm")
        body = self.a.finalize()
        if self.o.get("align", "1") == "1":
            from asmlib import align_pass
            body = align_pass(body, KNAME, extra="L_gtab:\nL_tabend:\n")
        hdr = open("parallel_sum__ssm_conv_s4d__mixer_gmlp__prompt.s.ref").read().split("; Override launch")[0]
        s = hdr + "; @launch grid=(256,1,1) block=(512,1,1) lds=163840\n"
        s += f'.amdgcn_target "amdgcn-amd-amdhsa--gfx950"\n.text\n.globl {KNAME}\n.p2align 8\n.type {KNAME},@function\n{KNAME}:\n'
        s += body
        from ssm import gtab
        t = gtab()
        s += ".p2align 8\n.type L_gtab,@object\nL_gtab:\n"
        for i in range(0, len(t), 16): s += ".long " + ", ".join(str(v) for v in t[i:i+16]) + "\n"
        s += "L_tabend:\n"
        s += f""".section .rodata,"a"
.p2align 6
.amdhsa_kernel {KNAME}
  .amdhsa_next_free_vgpr 256
  .amdhsa_next_free_sgpr 102
  .amdhsa_accum_offset 256
  .amdhsa_group_segment_fixed_size 0
  .amdhsa_kernarg_size 120
  .amdhsa_user_sgpr_count 2
  .amdhsa_user_sgpr_kernarg_segment_ptr 1
  .amdhsa_system_sgpr_workgroup_id_x 1
.end_amdhsa_kernel
"""
        return s

if __name__ == "__main__":
    opts = {}
    out = "parallel_sum__ssm_conv_s4d__mixer_gmlp__prompt.s"
    for a in sys.argv[1:]:
        if a.startswith("-o"): out = a[2:]
        elif "=" in a:
            k, v = a.split("="); opts[k] = v
        else: opts[a] = True
    open(out, "w").write(G(opts).build())
```

```python
import sys, math, struct
from asmlib import Asm

KNAME = "parallel_sum__ssm_conv_s4d__mixer_gmlp__prompt_kernel"
def f2u(x): return struct.unpack("<I", struct.pack("<f", x))[0]
def hx(x): return f"0x{x:08x}"

WS_EPOCH = 0
WS_FXN   = 0xE0000
WS_FZ2   = 0x20000
WS_FH    = 0x40000
WS_FY    = 0x60000
WS_FWO   = 0x70000
WS_WOT   = 0xF00000 - 0x20000
WS_STATS = 0x80000
WS_XNT   = 0x100000
WS_Z2    = 0x400000
WS_H     = 0x800000
WS_YA    = 0xC00000
WS_DBG   = 0x1000000
WS_SIZE  = 0x2000000

FS = 7
XT = 0; RING1 = 81920; S1SZ = 20480; RSTAB = RING1 + 3*S1SZ
NA = 8; BRING = 0; ABASE = 81920; NB = 4; BSZ = 18432
HB = 49152; YAB = 16384; XB = 32768

sWAVE, sRB, sCB, sTAG, sT = 3, 4, 5, 6, 7
SRD_X, SRD_WIN, SRD_WSP, SRD_WOUT, SRD_OUT, SRD_WS, SRD_BSP = 8, 12, 16, 20, 24, 28, 32
def srd(n): return f"s[{n}:{n+3}]"
sW, sMH, sNH = 66, 67, 68
sWSLOT, sWSOFF, sWSL = 69, 70, 71
sXOFF, sROFF, sCNT = 72, 73, 74
sK1 = 76
sA, sB, sC, sD = 78, 79, 80, 81
sSPIN = 82
sMASK = 84
sE0 = 86
sTM = 88
sTM0 = 90
sT2 = 92
sW0 = 83
SPIN_MAX = 200000

class G:
    def __init__(self, opts):
        self.a = Asm(); self.o = opts; self.nstamp = 0
    def e(self, s):
        if self.o.get("nodma"):
            s = "\n".join(l for l in s.split("\n") if not l.strip().endswith(" lds"))
        if self.o.get("ntx"):
            s = s.replace(f"{srd(SRD_X)}, s{sC} offen", f"{srd(SRD_X)}, s{sC} offen nt")
        if self.o.get("novalu") and getattr(self, "inpro", False):
            s = "\n".join(l for l in s.split("\n") if not (l.strip().startswith("v_dot2") or l.strip().startswith("v_cvt_pk_bf16_f32 v4") or l.strip().startswith("v_cvt_pk_bf16_f32 v5") or l.strip().startswith("v_cvt_pk_bf16_f32 v6") or l.strip().startswith("v_cvt_pk_bf16_f32 v7")))
        if getattr(self, "inssm", False):
            if self.o.get("s_nomfma"): s = "\n".join(l for l in s.split("\n") if "v_mfma_f32_16x16x32_bf16" not in l)
            if self.o.get("s_nopk"): s = "\n".join(l for l in s.split("\n") if not l.strip().startswith("v_pk_") and "cvt_pk_f16" not in l)
            if self.o.get("s_nolds"): s = "\n".join(l for l in s.split("\n") if not (l.strip().startswith("ds_read_b128 v[") and "v69" in l) and not (l.strip().startswith("ds_read_b64 v[") and "v70" in l))
        if self.o.get("nosc1"):
            s = s.replace(" sc1 lds", " lds")
        self.a.e(s)

    def capture(self, fn):
        old = self.a; self.a = Asm(); self.a.uid = old.uid + 1000
        fn()
        out = [i.text for i in self.a.L]
        self.a = old
        return out
    def mk_srd(self, d, p, nbytes):
        self.e(f"""s_mov_b32 s{d}, s{p}
        s_mov_b32 s{d+1}, s{p+1}
        s_mov_b32 s{d+2}, {nbytes}
        s_mov_b32 s{d+3}, 0x20000""")

    def stamp(self, idx, vt=None):
        if not self.o.get("stamps"): return
        self.e(f"""s_memtime s[{sTM}:{sTM+1}]
        s_waitcnt lgkmcnt(0)
        s_sub_u32 s{sTM}, s{sTM}, s{sTM0}
        v_writelane_b32 v0, s{sTM}, {idx}""")
        if self.o.get("rts") and idx < 12:
            self.e(f"""s_memrealtime s[{sTM}:{sTM+1}]
            s_waitcnt lgkmcnt(0)
            s_sub_u32 s{sTM}, s{sTM}, s100
            v_writelane_b32 v0, s{sTM}, {48+idx}""")

    def stamp_s(self, k):
        if not self.o.get("stamps"): return
        self.e(f"""s_memtime s[{sTM}:{sTM+1}]
        s_waitcnt lgkmcnt(0)
        s_sub_u32 s{96+k}, s{sTM}, s{sTM0}""")
    def stamp_flush(self):
        if not self.o.get("stamps"): return
        for k in range(4): self.e(f"v_writelane_b32 v0, s{96+k}, {40+k}")

    def stampd(self, base):
        if not self.o.get("fine"): return
        self.e(f"""s_memtime s[{sTM}:{sTM+1}]
        s_waitcnt lgkmcnt(0)
        s_sub_u32 s{sTM}, s{sTM}, s{sTM0}
        s_add_u32 m0, s{sCNT}, {base}
        s_nop 1
        v_writelane_b32 v0, s{sTM}, m0""")

    def poll(self, voff, soff, vtmp, sleep=None):
        L = self.a.newlab("Lpoll"); D = self.a.newlab("Lpolld")
        sl = sleep if sleep is not None else int(self.o.get("slp", 8))
        self.e(f"s_mov_b32 s{sSPIN}, {SPIN_MAX}")
        self.a.lab(L)
        self.e(f"""buffer_load_dword v{vtmp}, v{voff}, {srd(SRD_WS)}, {soff} offen sc1
        s_waitcnt vmcnt(0)
        v_cmp_ne_u32 vcc, s{sTAG}, v{vtmp}
        s_cbranch_vccz {D}
        s_mov_b64 exec, vcc
        s_sleep {sl}
        s_sub_u32 s{sSPIN}, s{sSPIN}, 1
        s_cmp_lg_u32 s{sSPIN}, 0
        s_cbranch_scc1 {L}""")
        self.a.lab(D)
        self.e("s_mov_b64 exec, -1")

    def flag_store(self, soff_sreg, vt):
        self.e(f"""v_mov_b32 v{vt}, s{sTAG}
        v_lshlrev_b32 v{vt+1}, 2, v1
        s_mov_b32 exec_hi, 0
        buffer_store_dword v{vt}, v{vt+1}, {srd(SRD_WS)}, s{soff_sreg} offen sc1
        s_mov_b64 exec, -1""")

    def entry(self):
        e = self.e
        e(f"""s_cmp_ge_u32 s2, 256
        s_cbranch_scc1 L_exit
        s_load_dwordx2 s[36:37], s[0:1], 0
        s_load_dwordx2 s[52:53], s[0:1], 64
        s_load_dwordx2 s[64:65], s[0:1], 112
        v_lshrrev_b32 v1, 6, v0
        s_and_b32 s{sA}, s2, 7
        s_lshr_b32 s{sB}, s2, 3""")
        if self.o.get("stamps") or self.o.get("dbgt"):
            e(f"s_memtime s[{sTM0}:{sTM0+1}]\ns_memrealtime s[100:101]")
        e(f"""v_readfirstlane_b32 s{sWAVE}, v1
        s_cmp_ge_u32 s{sB}, 24
        s_cbranch_scc1 L_ssm
        s_lshr_b32 s{sRB}, s{sA}, 1
        s_lshl_b32 s{sRB}, s{sRB}, 3
        s_and_b32 s{sC}, s{sB}, 7
        s_add_u32 s{sRB}, s{sRB}, s{sC}""")

    def entry2(self):
        e = self.e
        e(f"""s_load_dwordx4 s[56:59], s[0:1], 72
        s_load_dwordx2 s[60:61], s[0:1], 96
        s_load_dword s{sTAG}, s[64:65], {WS_EPOCH}
        s_lshr_b32 s{sMH}, s{sW}, 1
        s_and_b32 s{sNH}, s{sW}, 1""")
        self.mk_srd(SRD_WS, 64, WS_SIZE)
    def entry3(self):
        self.e("s_waitcnt lgkmcnt(0)")
        self.mk_srd(SRD_WSP, 56, 2048*2048*2)
        self.mk_srd(SRD_BSP, 58, 2048*2)
        self.mk_srd(SRD_OUT, 60, 2048*640*2)

    vL = 1
    vWOFF = 2
    vX0, vX1 = 8, 9
    vWB, vWB4 = 10, 11
    vA0, vA1, vB0, vB4 = 12, 13, 14, 15
    vWB1, vB1 = 38, 39
    vT = 16
    vK0 = 32
    FS = (40, 96)
    ACC = 152
    Z1 = 192
    XR = 40

    def w_ops(self):
        g = [f"""s_mov_b32 m0, s{sWSLOT}
        s_add_u32 s{sWSLOT}, s{sWSLOT}, {S1SZ}
        buffer_load_dwordx4 v{self.vWOFF}, {srd(SRD_WIN)}, s{sWSOFF} offen lds"""]
        for i in range(1, 4):
            g.append(f"buffer_load_dwordx4 v{self.vWOFF+i}, {srd(SRD_WIN)}, s{sWSOFF} offen offset:{1024*i} lds")
        g.append(f"""s_add_u32 m0, m0, 4096
        s_cmp_ge_u32 s{sWSLOT}, {RING1 + 4*S1SZ}
        buffer_load_dwordx4 v{self.vWOFF+4}, {srd(SRD_WIN)}, s{sWSOFF} offen lds
        s_cselect_b32 s{sWSLOT}, s{sW0}, s{sWSLOT}
        s_add_u32 s{sWSOFF}, s{sWSOFF}, {64*3456}
        s_cmp_ge_u32 s{sWSOFF}, {640*3456}
        s_cselect_b32 s{sWSOFF}, s{sWSL}, s{sWSOFF}""")
        return g
    def issue_w(self):
        for g in self.w_ops(): self.e(g)

    def w_voffs(self):
        e = self.e; T = self.vT; vL = self.vL
        e(f"s_mul_i32 s{sA}, s{sW}, 320")
        for i in range(5):
            p, k, c, d = T+4, T+5, T+6, self.vWOFF + i
            e(f"""v_add_u32 v{p}, s{sA}, v{vL}
            s_add_u32 s{sA}, s{sA}, 64
            v_mul_u32_u24 v{k}, 3277, v{p}
            v_lshrrev_b32 v{k}, 16, v{k}
            v_mul_u32_u24 v{c}, 20, v{k}
            v_sub_u32 v{c}, v{p}, v{c}
            v_bfe_u32 v{p}, v{k}, 3, 1
            v_lshlrev_b32 v{p}, 1, v{p}
            v_xor_b32 v{c}, v{c}, v{p}
            v_mul_u32_u24 v{d}, 3456, v{k}
            v_lshl_add_u32 v{d}, v{c}, 4, v{d}""")
            if 1 <= i <= 3: e(f"v_subrev_u32 v{d}, {1024*i}, v{d}")

    def x_setup(self):
        e = self.e; T = self.vT; vL = self.vL
        g = 36
        e(f"""v_lshrrev_b32 v{g}, 4, v{vL}
        v_lshlrev_b32 v36, 4, v{g}
        s_lshl_b32 s{sB}, s{sMH}, 7
        s_add_u32 s{sB}, s{sB}, {RSTAB}
        v_add_u32 v36, s{sB}, v36""")
        pub_rd = [f"ds_read_b128 v[232:235], v36", f"ds_read_b128 v[236:239], v36 offset:64"]
        sv = "\n".join(self.capture(self.w_voffs)).replace(f"s{sA},", f"s{sC},").replace(f"s{sA}\n", f"s{sC}\n").replace(f"v{T+4}", f"v{T+11}").replace(f"v{T+5}", f"v{T+12}").replace(f"v{T+6}", f"v{T+13}")
        if self.o.get("xst", "1") != "1": e(sv)
        e(f"""v_lshlrev_b32 v7, 4, v{vL}
        v_and_b32 v37, 31, v{vL}
        v_min_u32 v37, 26, v37
        v_lshlrev_b32 v37, {FS}, v37
        s_min_u32 s{sA}, s{sCB}, 4
        s_lshl_b32 s91, s{sA}, 1
        s_add_u32 s91, s91, s{sMH}
        s_lshl_b32 s91, s91, {5+FS}
        s_add_u32 s91, s91, {WS_FWO}
        s_lshl_b32 s{sA}, s{sA}, 2
        s_add_u32 s{sA}, s{sA}, s{sW}
        s_mul_i32 s93, s{sA}, {2*27*1024}
        s_add_u32 s93, s93, {WS_WOT}
        s_add_u32 s94, s93, {27*1024}""")
        self.blk_offsets(4096)
        SPEC = self.o.get("spec", "0") == "1"
        if SPEC:
            Lp = self.a.newlab("Lpf5")
            e(f"""s_mul_i32 s{sA}, s{sRB}, 6
            s_add_u32 s{sA}, s{sA}, s{sCB}
            s_mul_i32 s{sA}, s{sA}, 18432
            s_mul_i32 s{sC}, s{sMH}, 9216
            s_mul_i32 s{sD}, s{sNH}, 5120
            s_add_u32 s{sC}, s{sC}, s{sD}
            s_add_u32 s{sA}, s{sA}, s{sC}
            s_add_u32 s{sA}, s{sA}, {WS_H}
            v_mov_b32 v244, -1
            v_mov_b32 v245, -1
            v_mov_b32 v246, -1
            v_mov_b32 v247, -1""")
            for i in range(4):
                e(f"buffer_store_dwordx4 v[244:247], v7, {srd(SRD_WS)}, s{sA} offen offset:{1024*i} sc1")
            e(f"""s_cmp_eq_u32 s{sNH}, 1
            s_cbranch_scc1 {Lp}
            s_add_u32 s{sA}, s{sA}, 4096
            buffer_store_dwordx4 v[244:247], v7, {srd(SRD_WS)}, s{sA} offen sc1""")
            self.a.lab(Lp)
            e("s_nop 1")
        prd, pwork = self.pub_parts()
        self.xs_out = (pub_rd, prd, pwork)

    def gemm_prologue(self):
        e = self.e; T = self.vT; XR = self.XR; vL = self.vL
        sXS = sROFF
        e(f"""v_and_b32 v{vL}, 63, v0
        s_and_b32 s{sCB}, s2, 1
        s_mul_i32 s{sCB}, s{sCB}, 3
        s_lshr_b32 s{sC}, s2, 6
        s_add_u32 s{sCB}, s{sCB}, s{sC}
        s_and_b32 s{sW}, s{sWAVE}, 3""")
        e(f"""s_and_b32 s{sA}, s{sRB}, 7
        s_mul_i32 s{sWSOFF}, s{sA}, {64*3456}
        s_lshl_b32 s{sXOFF}, s{sA}, 13
        s_mul_i32 s{sWSL}, s{sCB}, 288
        s_and_b32 s{sWSL}, s{sWSL}, 0xffffffc0
        s_add_u32 s{sWSL}, s{sWSL}, 1728
        s_add_u32 s{sWSOFF}, s{sWSOFF}, s{sWSL}
        s_mul_i32 s{sW0}, s{sW}, 5120
        s_add_u32 s{sW0}, s{sW0}, {RING1}
        s_mov_b32 s{sWSLOT}, s{sW0}""")
        for i in range(5): e(f"v_mov_b32 v{self.vWOFF+i}, 0")
        e(f"s_waitcnt lgkmcnt(0)")
        self.mk_srd(SRD_WIN, 52, 640*1728*2)
        XST = self.o.get("xst", "1") == "1"
        if not XST:
            e(f"s_cmp_lt_u32 s{sWAVE}, 4\ns_cbranch_scc1 L_xfirst")
            self.w_voffs()
            for _ in range(int(self.o.get("nst0", 0))): self.issue_w()
            self.a.lab("L_xfirst")
        e(f"""
        s_lshr_b32 s{sA}, s2, 6
        s_mul_i32 s{sA}, s{sA}, 3
        s_add_u32 s{sA}, s{sA}, s{sWAVE}
        s_and_b32 s{sA}, s{sA}, 7
        s_lshl_b32 s{sA}, s{sA}, 3
        v_lshrrev_b32 v{T}, 3, v{vL}
        v_add_u32 v{T}, s{sA}, v{T}
        v_and_b32 v{T+1}, 7, v0
        v_mul_u32_u24 v{T+2}, 1280, v{T}
        v_lshl_add_u32 v{T+2}, v{T+1}, 4, v{T+2}
        s_mul_i32 s{sA}, s{sRB}, {64*1280}
        s_and_b32 s{sXS}, s{sRB}, 7
        s_lshl_b32 s{sB}, s{sXS}, 7
        s_waitcnt lgkmcnt(0)""")
        self.mk_srd(SRD_X, 36, 2048*640*2)
        self.stamp_s(0)
        for j in range(10):
            e(f"""s_add_u32 s{sC}, s{sA}, s{sB}
            buffer_load_dwordx4 v[{XR+4*j}:{XR+4*j+3}], v{T+2}, {srd(SRD_X)}, s{sC} offen
            s_add_u32 s{sB}, s{sB}, 128
            s_cmp_ge_u32 s{sB}, 1280
            s_cselect_b32 s{sB}, 0, s{sB}""")
        if self.o.get("yprio", "1") == "1":
            e(f"s_cmp_lt_u32 s{sWAVE}, 4\ns_cbranch_scc1 Lnyp\ns_setprio 2\nLnyp:")
        self.entry2()
        g, c15 = T+4, T+5
        e(f"""v_bfe_u32 v{T+3}, v{T}, 1, 3
        v_xor_b32 v{T+3}, v{T+3}, v{T+1}
        v_lshlrev_b32 v{T+3}, 4, v{T+3}
        v_lshl_add_u32 v{T+3}, v{T}, 7, v{T+3}
        v_lshrrev_b32 v{g}, 4, v{vL}
        v_and_b32 v{c15}, 15, v{vL}
        v_lshrrev_b32 v{T+6}, 1, v{c15}
        v_xor_b32 v{T+6}, v{T+6}, v{g}
        v_lshlrev_b32 v{T+6}, 4, v{T+6}
        v_lshl_add_u32 v{self.vX0}, v{c15}, 7, v{T+6}
        s_lshl_b32 s{sA}, s{sMH}, 12
        v_add_u32 v{self.vX0}, s{sA}, v{self.vX0}
        v_xor_b32 v{self.vX1}, 64, v{self.vX0}
        v_mul_u32_u24 v{self.vWB4}, 2560, v{g}
        v_bfe_u32 v{T+6}, v{vL}, 2, 2
        v_mul_u32_u24 v{T+6}, 320, v{T+6}
        v_add_u32 v{self.vWB4}, v{self.vWB4}, v{T+6}
        v_and_b32 v{T+6}, 3, v{vL}
        v_lshl_add_u32 v{self.vWB4}, v{T+6}, 3, v{self.vWB4}
        v_and_b32 v{T+6}, 1, v{g}
        v_lshlrev_b32 v{T+6}, 5, v{T+6}
        s_and_b32 s{sC}, s{sCB}, 1
        s_mul_i32 s{sA}, s{sNH}, 5
        s_add_u32 s{sA}, s{sA}, s{sC}
        s_lshl_b32 s{sA}, s{sA}, 5
        v_xor_b32 v{T+7}, s{sA}, v{T+6}
        v_add_u32 v{self.vWB}, v{T+7}, v{self.vWB4}
        s_add_u32 s{sA}, s{sA}, 32
        v_xor_b32 v{T+7}, s{sA}, v{T+6}
        v_add_u32 v{self.vWB1}, v{T+7}, v{self.vWB4}
        s_lshl_b32 s{sC}, s{sC}, 5
        s_add_u32 s{sC}, s{sC}, 128
        v_xor_b32 v{T+7}, s{sC}, v{T+6}
        v_add_u32 v{self.vWB4}, v{T+7}, v{self.vWB4}
        s_mov_b32 s{sK1}, {hx(f2u(-2.302208198*0.044715))}
        s_mov_b32 s{sK1+1}, {hx(f2u(-2.302208198*0.044715))}
        v_mov_b32 v{self.vK0}, {hx(f2u(-2.302208198))}
        v_mov_b32 v{self.vK0+1}, {hx(f2u(-2.302208198))}""")
        self.entry3()
        def ydma(grp):
            L = self.a.newlab("Lyd")
            e(f"s_cmp_lt_u32 s{sWAVE}, 4\ns_cbranch_scc1 {L}")
            e(grp)
            self.a.lab(L)
        n0 = 2 if XST else int(self.o.get("nst0", 0))
        if XST: self.w_voffs()
        e(f"v_mov_b32 v7, 0\nv_mov_b32 v37, 0\nv_mov_b32 v248, 0\ns_cmp_ge_u32 s{sWAVE}, 4\ns_cbranch_scc1 L_xs")
        self.x_setup()
        self.a.lab("L_xs")
        if n0 < 2: ydma("\n".join(sum([self.w_ops() for _ in range(2 - n0)], [])))
        S, Q = T+8, T+9
        e(f"""v_mov_b32 v{S}, 0
        v_mov_b32 v{Q}, 0
        s_mov_b32 s{sA}, 0x3f803f80
        s_cmp_lt_u32 s{sWAVE}, 4""")
        for j in range(10):
            if n0 < 2: e(f"s_cbranch_scc1 Lxw{j}\ns_waitcnt vmcnt({9-j+5*(2-n0)})\ns_branch Lxv{j}\nLxw{j}:\ns_waitcnt vmcnt({9-j})\nLxv{j}:")
            else: e(f"s_waitcnt vmcnt({9-j})")
            if j == 9: self.stamp_s(3)
            for i in range(4*j, 4*j+4):
                e(f"v_dot2c_f32_bf16 v{S}, s{sA}, v{XR+i}\nv_dot2c_f32_bf16 v{Q}, v{XR+i}, v{XR+i}")
        if XST and self.o.get("xearly", "1") == "1":
            e(f"s_cmp_ge_u32 s{sWAVE}, 4\ns_cbranch_scc1 L_xe")
            self.issue_w(); self.issue_w()
            self.a.lab("L_xe")
        for m in ("quad_perm:[1,0,3,2]", "quad_perm:[2,3,0,1]", "row_half_mirror"):
            e(f"v_add_f32_dpp v{S}, v{S}, v{S} {m} row_mask:0xf bank_mask:0xf\nv_add_f32_dpp v{Q}, v{Q}, v{Q} {m} row_mask:0xf bank_mask:0xf")
        self.ln_params(S, Q, 640, T+10, T+12, T+14)
        NM, RS = T+10, T+12
        e(f"""s_mov_b32 s{sA}, 0x00003f80
        s_mov_b32 s{sC}, 0x3f800000
        s_lshl_b32 s{sB}, s{sXS}, 13
        v_lshlrev_b32 v{T+7}, 2, v{T}
        ds_write_b32 v{T+7}, v{RS} offset:{RSTAB - 98304}""".replace(f"v_lshlrev_b32 v{T+7}, 2, v{T}", f"v_lshlrev_b32 v{T+7}, 2, v{T}\n        v_add_u32 v{T+7}, 98304, v{T+7}"))
        TP = 80
        for j in range(10):
            ls = []
            for k in range(4):
                r = XR + 4*j + k; a = TP + 2*k; b = a + 1
                ls.append([f"v_dot2_f32_bf16 v{a}, v{r}, s{sA}, v{NM}", f"v_dot2_f32_bf16 v{b}, v{r}, s{sC}, v{NM}",
                           f"v_cvt_pk_bf16_f32 v{r}, v{a}, v{b}"])
            self.rr(ls)
            e(f"""v_add_u32 v{T+6}, s{sB}, v{T+3}
            ds_write_b128 v{T+6}, v[{XR+4*j}:{XR+4*j+3}]
            s_add_u32 s{sB}, s{sB}, 8192
            s_cmp_ge_u32 s{sB}, 81920
            s_cselect_b32 s{sB}, 0, s{sB}""")
        self.stamp_flush()
        e(f"""s_waitcnt lgkmcnt(0)
        s_mul_i32 s{sTAG}, s{sTAG}, 0x9E3779B1
        s_add_u32 s{sTAG}, s{sTAG}, 0x7F4A7C15
        s_cmp_ge_u32 s{sWAVE}, 4
        s_cbranch_scc1 L_Y""")

    def ln_params(self, S, Q, n, NM, RS, t):
        self.e(f"""v_mul_f32 v{S}, {hx(f2u(1.0/n))}, v{S}
        v_mul_f32 v{Q}, {hx(f2u(1.0/n))}, v{Q}
        v_fma_f32 v{Q}, -v{S}, v{S}, v{Q}
        v_max_f32 v{Q}, 0, v{Q}
        v_cvt_pk_bf16_f32 v{t}, v{S}, v{Q}
        v_lshlrev_b32 v{NM}, 16, v{t}
        v_xor_b32 v{NM}, 0x80000000, v{NM}
        v_mov_b32 v{NM+1}, v{NM}
        v_and_b32 v{Q}, 0xffff0000, v{t}
        v_add_f32 v{Q}, {hx(f2u(1e-5))}, v{Q}
        v_cvt_pk_bf16_f32 v{t}, v{Q}, v{Q}
        v_lshlrev_b32 v{Q}, 16, v{t}
        v_sqrt_f32 v{Q}, v{Q}
        v_cvt_pk_bf16_f32 v{t}, v{Q}, v{Q}
        v_lshlrev_b32 v{Q}, 16, v{t}
        v_rcp_f32 v{RS}, v{Q}
        v_mov_b32 v{RS+1}, v{RS}""")


    NJ = 5
    def p1_reads(self, F):
        out = []
        for ks in range(2):
            Fk = F + 28*ks
            vx = self.vA0 if ks == 0 else self.vA1
            for a in range(2):
                out.append(f"ds_read_b128 v[{Fk+4*a}:{Fk+4*a+3}], v{vx} offset:{2048*a}")
            for j in range(self.NJ):
                base = self.vB4 if j == 4 else (self.vB0, self.vB1)[j & 1]
                off = ks*10240 + (64*(j >> 1) if j < 4 else 0)
                for h in range(2):
                    r = Fk + 8 + 4*j + 2*h
                    out.append(f"ds_read_b64_tr_b16 v[{r}:{r+1}], v{base} offset:{off + h*1280}")
        return out
    def p2_reads(self, F):
        out = []
        for ks in range(2):
            Fk = F + 28*ks
            vx = self.vA0 if ks == 0 else self.vA1
            out += [f"ds_read_b128 v[{Fk+4*a}:{Fk+4*a+3}], v{vx} offset:{2048*a}" for a in range(2)]
            for j in range(self.NJ):
                base = self.vB0 if j < 4 else self.vB4
                off = ks*9216 + (1024*j if j < 4 else 0)
                out.append(f"ds_read_b128 v[{Fk+8+4*j}:{Fk+8+4*j+3}], v{base} offset:{off}")
        return out
    def mfmas(self, F, swap, first=False):
        out = []
        for ks in range(2):
            Fk = F + 28*ks
            for j in range(self.NJ):
                for a in range(2):
                    c = self.ACC + 4*(2*j + a)
                    X = f"v[{Fk+4*a}:{Fk+4*a+3}]"; W = f"v[{Fk+8+4*j}:{Fk+8+4*j+3}]"
                    A, B = (W, X) if swap else (X, W)
                    C = "0" if (first and ks == 0) else f"v[{c}:{c+3}]"
                    out.append(f"v_mfma_f32_16x16x32_bf16 v[{c}:{c+3}], {A}, {B}, {C}")
        return out
    def interleave(self, reads, mf, per=2):
        out = []; ri = 0
        for m in mf:
            out.append(m)
            for _ in range(per):
                if ri < len(reads): out.append(reads[ri]); ri += 1
        out += reads[ri:]
        return out

    def compute_loop(self, n, swap, reads_fn, addr_fn, tagname, vmwait=False, first=None, mid=None, peel=None, top=None):
        e = self.e
        endw = f"s_waitcnt {'vmcnt(0) ' if vmwait else ''}lgkmcnt(0)"
        def stage(rd, mf, extra=(), per2=2):
            e("s_barrier")
            per = 2 if len(rd) > 16 else 1
            if self.o.get("noread"): rd = []
            if self.o.get("nomfma"): mf = []
            fill = list(rd) + addr_fn() + list(extra)
            out = []; ri = 0
            for k, m in enumerate(mf):
                out.append(m)
                for _ in range(per if ri < len(rd) else per2):
                    if ri < len(fill): out.append(fill[ri]); ri += 1
            out += fill[ri:]
            for s in out: e(s)
        F0, F1 = self.FS
        for s in addr_fn(): e(s)
        stage(reads_fn(F0), [], first[0] if first else ())
        e(endw)
        stage(reads_fn(F1), self.mfmas(F0, swap, True), [f"s_mov_b32 s{sCNT}, {(n-2)//2}"] + (first[1] if first else []), 5 if first else 2); e(endw)
        if peel: e(peel)
        L = self.a.newlab("Lc" + tagname)
        self.a.lab(L)
        if top: top()
        stage(reads_fn(F0), self.mfmas(F1, swap))
        if mid: mid()
        e(endw)
        stage(reads_fn(F1), self.mfmas(F0, swap), [f"s_sub_u32 s{sCNT}, s{sCNT}, 1", f"s_cmp_lg_u32 s{sCNT}, 0"])
        e(f"{endw}\ns_cbranch_scc1 {L}")
        return self.mfmas(F1, swap)

    def ring_addr(self, asz_total, bbase, bsz, nb):
        return [f"v_add_u32 v{self.vA0}, s{sXOFF}, v{self.vX0}", f"v_add_u32 v{self.vA1}, s{sXOFF}, v{self.vX1}",
        f"v_add_u32 v{self.vB0}, s{sROFF}, v{self.vWB}", f"v_add_u32 v{self.vB4}, s{sROFF}, v{self.vWB4}",
        f"s_add_u32 s{sXOFF}, s{sXOFF}, 8192", f"s_cmp_ge_u32 s{sXOFF}, {asz_total}", f"s_cselect_b32 s{sXOFF}, 0, s{sXOFF}",
        f"s_add_u32 s{sROFF}, s{sROFF}, {bsz}", f"s_cmp_ge_u32 s{sROFF}, {bbase + nb*bsz}", f"s_cselect_b32 s{sROFF}, {bbase}, s{sROFF}"]
    def p1_addr(self): return [f"v_add_u32 v{self.vB1}, s{sROFF}, v{self.vWB1}"] + self.ring_addr(81920, RING1, S1SZ, 4)
    def p2_addr(self): return self.ring_addr(NA*8192, BRING, BSZ, NB)

    def gelu_pair(self, r, t, dst=None, packed=None):
        d = r if dst is None else dst
        self.e(f"""v_pk_mul_f32 v[{t}:{t+1}], v[{r}:{r+1}], v[{r}:{r+1}]
        v_pk_fma_f32 v[{t}:{t+1}], v[{t}:{t+1}], s[{sK1}:{sK1+1}], v[{self.vK0}:{self.vK0+1}]
        v_pk_mul_f32 v[{t}:{t+1}], v[{t}:{t+1}], v[{r}:{r+1}]
        v_exp_f32 v{t}, v{t}
        v_exp_f32 v{t+1}, v{t+1}
        v_pk_add_f32 v[{t}:{t+1}], v[{t}:{t+1}], 1.0 op_sel_hi:[1,0]
        v_rcp_f32 v{t}, v{t}
        v_rcp_f32 v{t+1}, v{t+1}
        v_pk_mul_f32 v[{t}:{t+1}], v[{t}:{t+1}], v[{r}:{r+1}]
        v_cvt_pk_bf16_f32 v{t if packed is None else packed}, v{t}, v{t+1}""")
        if packed is None:
            self.e(f"v_lshlrev_b32 v{d}, 16, v{t}\nv_and_b32 v{d+1}, s{sB}, v{t}")

    def gelu_list(self, r, t, sc, packed=None, stats=None):
        L = [f"v_pk_mul_f32 v[{r}:{r+1}], v[{r}:{r+1}], v[{sc}:{sc+1}]",
             f"v_pk_mul_f32 v[{t}:{t+1}], v[{r}:{r+1}], v[{r}:{r+1}]",
             f"v_pk_fma_f32 v[{t}:{t+1}], v[{t}:{t+1}], s[{sK1}:{sK1+1}], v[{self.vK0}:{self.vK0+1}]",
             f"v_pk_mul_f32 v[{t}:{t+1}], v[{t}:{t+1}], v[{r}:{r+1}]",
             f"v_exp_f32 v{t}, v{t}", f"v_exp_f32 v{t+1}, v{t+1}",
             f"v_pk_add_f32 v[{t}:{t+1}], v[{t}:{t+1}], 1.0 op_sel_hi:[1,0]",
             f"v_rcp_f32 v{t}, v{t}", f"v_rcp_f32 v{t+1}, v{t+1}"]
        d = r if packed is None else packed
        L += [f"v_pk_mul_f32 v[{d}:{d+1}], v[{t}:{t+1}], v[{r}:{r+1}]"]
        if stats:
            s_, q_ = stats
            L += [f"v_pk_add_f32 v[{s_}:{s_+1}], v[{s_}:{s_+1}], v[{r}:{r+1}]",
                  f"v_pk_fma_f32 v[{q_}:{q_+1}], v[{r}:{r+1}], v[{r}:{r+1}], v[{q_}:{q_+1}]"]
        return L
    def rr(self, lists):
        n = max(len(l) for l in lists)
        for i in range(n):
            for l in lists:
                if i < len(l): self.e(l[i])

    def dump_regs(self, r0, n, slot, vt):
        self.e(f"""s_lshl_b32 s{sA}, s2, 3
        s_add_u32 s{sA}, s{sA}, s{sWAVE}
        s_mul_i32 s{sA}, s{sA}, {n*256}
        s_add_u32 s{sA}, s{sA}, {WS_DBG + 0x100000 + slot*0x600000}
        v_lshlrev_b32 v{vt}, 2, v{self.vL}""")
        for i in range(n):
            self.e(f"buffer_store_dword v{r0+i}, v{vt}, {srd(SRD_WS)}, s{sA} offen\ns_add_u32 s{sA}, s{sA}, 256")


    NWS = 21
    A3 = 224
    sBO = 44
    def wreg(self, pos, ee): return 40 + ((pos % self.NWS)*2 + ee)*4
    def wload(self, pos):
        out = []
        for ee in range(2):
            r = self.wreg(pos, ee)
            off = f"s{self.sBO + (pos >> 2)}" if pos < 24 else str(6*4096)
            out.append(f"s_add_u32 s{sT}, s{93+ee}, {off}\nbuffer_load_dwordx4 v[{r}:{r+3}], v7, {srd(SRD_WS)}, s{sT} offen offset:{(pos%4)*1024} sc1")
        return out
    def blk_offsets(self, mul):
        self.e(f"""s_mul_i32 s{self.sBO}, s{sCB}, {mul}
        s_lshr_b32 s{sT}, s2, 6
        s_sub_u32 s51, s{sCB}, s{sT}
        s_mov_b32 s50, 0""")
        for j in range(1, 6):
            if j == 3: self.e("s_sub_u32 s51, 3, s51")
            self.e(f"""s_add_u32 s{sT}, s{sT}, 1
            s_cmp_ge_u32 s{sT}, 3
            s_cselect_b32 s{sT}, 0, s{sT}
            s_add_u32 s{sT2}, s{sT}, s51
            s_mul_i32 s{self.sBO+j}, s{sT2}, {mul}
            s_lshl_b32 s{sT2}, s{sT2}, 2
            s_lshl_b32 s{sT2}, {j}, s{sT2}
            s_or_b32 s50, s50, s{sT2}""")

    def x_path(self):
        e = self.e; T = self.vT; ACC = self.ACC; vL = self.vL
        self.stamp(0)
        if self.o.get("xst", "1") == "1" and self.o.get("xearly", "1") != "1":
            self.issue_w(); self.issue_w()
        pub_rd, prd, pwork = self.xs_out
        def xnflag():
            Lf = self.a.newlab("Lfx")
            xnf = int(self.o.get('xnf', 3))
            e(f"s_cmp_lg_u32 s{sCNT}, {xnf}\ns_cbranch_scc1 {Lf}\ns_cmp_lg_u32 s{sW}, 0\ns_cbranch_scc1 {Lf}")
            self.flag_store(39, T)
            self.a.lab(Lf)
        def xnwait():
            Lf = self.a.newlab("Lfw")
            e(f"s_cmp_lg_u32 s{sCNT}, {int(self.o.get('xnf', 3))}\ns_cbranch_scc1 {Lf}\ns_waitcnt vmcnt(0)")
            self.a.lab(Lf)
        e(f"s_mov_b32 s{sROFF}, {RING1}")
        if self.o.get("xst", "1") == "1":
            e("s_waitcnt vmcnt(5)")
            prd = prd + ["s_waitcnt vmcnt(0)"]
        tail = self.compute_loop(10, False, self.p1_reads, self.p1_addr, "p1a", first=(pub_rd + prd, pwork), mid=xnflag, top=xnwait)
        e(f"""s_and_b32 s{sA}, s{sRB}, 7
        s_add_u32 s{sA}, s{sA}, 3
        s_cmp_ge_u32 s{sA}, 10
        s_cselect_b32 s{sA}, 0, s{sA}
        s_mul_i32 s{sWSOFF}, s{sA}, {64*3456}
        s_sub_u32 s{sWSL}, s{sWSL}, 1728
        s_add_u32 s{sWSOFF}, s{sWSOFF}, s{sWSL}
        s_add_u32 s{sWSLOT}, s{sW0}, {S1SZ}
        s_mov_b32 s{sB}, 0xffff0000""")
        hold = int(self.o.get("hold", 3))
        if hold < 3: e("s_barrier")
        for m in tail: e(m)
        e("s_waitcnt lgkmcnt(0)")
        self.stamp(1)
        SS = 192
        for i in range(16): e(f"v_mov_b32 v{SS+i}, 0")
        vmw = lambda n: f"s_waitcnt vmcnt({n})"
        def do_frag(j):
            self.rr([self.gelu_list(ACC + 4*(2*j + a) + 2*h, T + 2*(2*a + h), 232 + 4*a + 2*h, stats=(SS + 4*a + 2*h, SS + 8 + 4*a + 2*h))
                     for a in range(2) for h in range(2)])
        if hold < 2: e("s_barrier")
        do_frag(0); do_frag(1)
        if hold < 1: e("s_barrier")
        do_frag(2); do_frag(3)
        Ls = self.a.newlab("Lz4")
        e(f"s_cmp_eq_u32 s{sNH}, 1\ns_cbranch_scc1 {Ls}")
        do_frag(4)
        self.a.lab(Ls)
        for i in range(8):
            e(f"v_add_f32_dpp v{SS+i}, v{SS+i}, v{SS+i} row_mirror row_mask:0xf bank_mask:0x3")
        for i in range(8):
            e(f"v_add_f32_dpp v{SS+i}, v{SS+8+i}, v{SS+8+i} row_mirror row_mask:0xf bank_mask:0xc")
        for i in range(4):
            e(f"v_add_f32_dpp v{SS+i}, v{SS+i}, v{SS+i} row_half_mirror row_mask:0xf bank_mask:0x5")
        for i in range(4):
            e(f"v_add_f32_dpp v{SS+i}, v{SS+4+i}, v{SS+4+i} row_half_mirror row_mask:0xf bank_mask:0xa")
        for i in range(4):
            e(f"v_add_f32_dpp v{SS+i}, v{SS+i}, v{SS+i} quad_perm:[2,3,0,1] row_mask:0xf bank_mask:0xf")
        for i in range(4):
            e(f"v_add_f32_dpp v{SS+i}, v{SS+i}, v{SS+i} quad_perm:[1,0,3,2] row_mask:0xf bank_mask:0xf")
        e(f"""s_mov_b32 vcc_lo, 0xaaaaaaaa
        s_mov_b32 vcc_hi, 0xaaaaaaaa
        s_mov_b32 s{sE0}, 0xcccccccc
        s_mov_b32 s{sE0+1}, 0xcccccccc
        v_cndmask_b32 v{SS}, v{SS}, v{SS+1}, vcc
        v_cndmask_b32 v{SS+2}, v{SS+2}, v{SS+3}, vcc
        v_mov_b32 v{SS+1}, s{sTAG}
        v_cndmask_b32 v{SS}, v{SS}, v{SS+2}, s[{sE0}:{sE0+1}]
        v_lshlrev_b32 v{T}, 3, v{vL}
        s_lshl_b32 s{sC}, s{sRB}, 1
        s_add_u32 s{sC}, s{sC}, s{sMH}
        s_mul_i32 s{sC}, s{sC}, {12*512}
        s_add_u32 s{sC}, s{sC}, {WS_STATS}
        s_lshl_b32 s{sA}, s{sCB}, 1
        s_add_u32 s{sA}, s{sA}, s{sNH}
        s_lshl_b32 s{sA}, s{sA}, 9
        s_add_u32 s{sA}, s{sA}, s{sC}
        buffer_store_dwordx2 v[{SS}:{SS+1}], v{T}, {srd(SRD_WS)}, s{sA} offen sc1""")
        self.stamp(2)
        if hold >= 3: e("s_barrier")
        self.issue_w()
        if hold >= 2: e("s_barrier")
        self.issue_w()
        if hold >= 1: e("s_barrier")
        PR = 128
        L = self.a.newlab("Lst"); D = self.a.newlab("Lstd")
        e(f"s_mov_b32 s{sSPIN}, {SPIN_MAX}\ns_add_u32 s{sA}, s{sC}, 4096")
        def stat_loads():
            for p in range(12):
                e(f"buffer_load_dwordx2 v[{PR+2*p}:{PR+2*p+1}], v{T}, {srd(SRD_WS)}, s{sC if p < 8 else sA} offen offset:{512*(p%8)} sc1")
        CK = int(self.o.get("ck", 14))
        self.issue_w()
        if CK == 14:
            e("s_waitcnt vmcnt(10)\ns_barrier")
            stat_loads()
            self.issue_w()
            e("s_waitcnt vmcnt(22)\ns_barrier")
            self.issue_w()
        else:
            e("s_waitcnt vmcnt(10)\ns_barrier")
            self.issue_w()
            stat_loads()
            e("s_waitcnt vmcnt(22)\ns_barrier")
            self.issue_w()
            e("s_waitcnt vmcnt(22)\ns_barrier")
            self.issue_w()
        self.stamp(3)
        Lchk = self.a.newlab("Lchk")
        e(f"s_waitcnt vmcnt(10)\ns_branch {Lchk}")
        self.a.lab(L)
        stat_loads()
        e("s_waitcnt vmcnt(0)")
        self.a.lab(Lchk)
        e(f"v_xor_b32 v{T+1}, s{sTAG}, v{PR+1}")
        for p in range(1, 12):
            e(f"v_xor_b32 v{T+2}, s{sTAG}, v{PR+2*p+1}\nv_or_b32 v{T+1}, v{T+1}, v{T+2}")
        e(f"""v_cmp_ne_u32 vcc, 0, v{T+1}
        s_cbranch_vccz {D}
        s_sleep 2
        s_sub_u32 s{sSPIN}, s{sSPIN}, 1
        s_cmp_lg_u32 s{sSPIN}, 0
        s_cbranch_scc1 {L}""")
        self.a.lab(D)
        self.stamp(4)
        for p in range(1, 12):
            e(f"v_add_f32 v{PR}, v{PR}, v{PR+2*p}")
        e(f"v_mov_b32_dpp v{PR+1}, v{PR} row_ror:8 row_mask:0xf bank_mask:0xf")
        self.ln_params(PR, PR+1, 864, T+10, T+12, T+14)
        e(f"v_mul_f32 v{T+10}, v{T+10}, v{T+12}")
        for i in range(8):
            e(f"v_mov_b32_dpp v{SS+i}, v{T+10} row_newbcast:{i} row_mask:0xf bank_mask:0xf")
            e(f"v_mov_b32_dpp v{SS+8+i}, v{T+12} row_newbcast:{i} row_mask:0xf bank_mask:0xf")
        e(f"""v_lshrrev_b32 v{T}, 4, v{vL}
        v_and_b32 v{T+1}, 1, v{T}
        v_lshrrev_b32 v{T}, 1, v{T}
        v_lshl_add_u32 v{T}, v{T+1}, 1, v{T}
        v_lshlrev_b32 v{T}, 8, v{T}
        v_and_b32 v{T+1}, 15, v{vL}
        v_lshl_add_u32 v{T}, v{T+1}, 4, v{T}
        s_lshl_b32 s{sA}, s{sCB}, 5
        s_add_u32 s{sA}, s{sA}, s{sRB}
        s_mul_i32 s{sA}, s{sA}, 18432
        s_mul_i32 s{sC}, s{sMH}, 9216
        s_add_u32 s{sA}, s{sA}, s{sC}
        s_add_u32 s{sA}, s{sA}, {WS_Z2}
        s_mul_i32 s{sC}, s{sNH}, 5120
        s_add_u32 s{sC}, s{sC}, s{sA}
        s_add_u32 s{sA}, s{sA}, 4096""")
        Q4 = PR
        Ls = self.a.newlab("Lz4b")
        for j in range(5):
            if j == 4: e(f"s_cmp_eq_u32 s{sNH}, 1\ns_cbranch_scc1 {Ls}")
            q = Q4 + 4*j
            ls = []
            for a in range(2):
                for h in range(2):
                    r = ACC + 4*(2*j + a) + 2*h
                    nm, rs = SS + 4*a + 2*h, SS + 8 + 4*a + 2*h
                    d = q + 2*a + h
                    ls.append([f"v_pk_fma_f32 v[{r}:{r+1}], v[{r}:{r+1}], v[{rs}:{rs+1}], v[{nm}:{nm+1}]",
                    f"v_cvt_pk_bf16_f32 v{d}, v{r}, v{r+1}"])
            self.rr(ls)
            e(f"v_permlane16_swap_b32 v{q}, v{q+2}\nv_permlane16_swap_b32 v{q+1}, v{q+3}")
            if j < 4:
                e(f"buffer_store_dwordx4 v[{q}:{q+3}], v{T}, {srd(SRD_WS)}, s{sC} offen offset:{1024*j} sc1")
            else:
                e(f"buffer_store_dwordx4 v[{q}:{q+3}], v{T}, {srd(SRD_WS)}, s{sA} offen sc1")
        self.a.lab(Ls)
        fl = f"""s_lshl_b32 s{sD}, s{sCB}, 2
        s_add_u32 s{sD}, s{sD}, s{sW}
        s_lshl_b32 s{sD}, s{sD}, {5+FS}
        s_add_u32 s{sD}, s{sD}, {WS_FZ2}
        s_lshl_b32 s{sA}, s{sRB}, {FS}
        s_add_u32 s{sA}, s{sA}, s{sD}"""
        if CK == 14:
            e("s_barrier")
            self.issue_w()
            e("s_waitcnt vmcnt(14)\ns_barrier")
            self.issue_w()
            e(fl)
            e("s_waitcnt vmcnt(14)\ns_barrier")
            e("s_waitcnt vmcnt(10)")
        else:
            e("s_barrier")
            self.issue_w()
            e("s_waitcnt vmcnt(14)\ns_barrier")
            e(fl)
            self.x_p2_setup()
            e("s_waitcnt vmcnt(9)\ns_barrier")
            e("s_waitcnt vmcnt(0)")
        self.flag_store(sA, T+8)
        self.stamp(5)
        if self.o.get("selft", "1") == "1":
            e(f"""s_lshl_b32 s{sT}, s{sNH}, 3
            s_sub_u32 s{sT}, 39, s{sT}
            v_min_u32 v{T+4}, s{sT}, v{vL}
            v_lshlrev_b32 v{T+4}, 7, v{T+4}
            buffer_load_dword v{T+14}, v{T+4}, {srd(SRD_WS)}, s{sC} offen sc1""")
        if CK == 14:
            nx = 2 if self.o.get("selft", "1") == "1" else 1
            e(f"s_waitcnt vmcnt({5+nx})\ns_barrier")
            self.x_p2_setup()
            e(f"s_waitcnt vmcnt({nx})")
        e("s_barrier")
        for i in range(int(self.o.get("na1", 4))): self.issue_a(i)
        e("s_barrier")
        self.WPRE = 0
        self.wl_all = [s_ for pos in range(self.NWS) for s_ in self.wload(pos)]
        self.x_p2_loader()
        self.x_p3()

    def x_p2_setup(self):
        e = self.e; T = self.vT + 4; vL = self.vL
        e(f"s_lshl_b32 s{sT2}, s{sW}, 4")
        for i in range(2):
            e(f"""v_lshrrev_b32 v{T}, 3, v{vL}
            v_add_u32 v{T}, s{sT2}, v{T}
            v_add_u32 v{T}, {8*i}, v{T}
            v_bfe_u32 v{T+1}, v{T}, 1, 3
            v_and_b32 v{T+2}, 7, v{vL}
            v_xor_b32 v{T+1}, v{T+1}, v{T+2}
            v_lshlrev_b32 v{T+1}, 4, v{T+1}
            v_lshl_add_u32 v{2+i}, v{T}, 12, v{T+1}""")
        e(f"""v_subrev_u32 v3, 1024, v3
        v_and_b32 v5, 31, v{vL}
        v_lshlrev_b32 v5, {FS}, v5
        s_lshl_b32 s{sWSOFF}, s{sRB}, 18
        s_add_u32 s42, s{sWSOFF}, 4096
        s_and_b32 s{sT2}, s{sRB}, 24
        s_lshl_b32 s{sT}, s{sT2}, 7
        s_add_u32 s{sWSOFF}, s{sWSOFF}, s{sT}
        s_lshl_b32 s{sWSLOT}, s{sW}, 11
        s_mul_i32 s{sROFF}, s{sMH}, 9216
        s_mul_i32 s{sT}, s{sNH}, 5120
        s_add_u32 s{sROFF}, s{sROFF}, s{sT}
        s_mul_i32 s{sXOFF}, s{sCB}, {32*18432}
        s_add_u32 s{sXOFF}, s{sXOFF}, s{sROFF}
        s_add_u32 s{sXOFF}, s{sXOFF}, {WS_Z2}
        s_add_u32 s43, s{sXOFF}, {32*18432}
        s_mul_i32 s{sT}, s{sT2}, 18432
        s_add_u32 s{sXOFF}, s{sXOFF}, s{sT}
        s_add_u32 s95, s{sXOFF}, 4096
        s_add_u32 s{sROFF}, s{sROFF}, {BRING}""")
    def issue_a(self, i):
        self.e(f"""s_add_u32 m0, s{sWSLOT}, {ABASE + 8192*i}
        s_nop 0
        buffer_load_dwordx4 v2, {srd(SRD_WSP)}, s{sWSOFF} offen lds
        buffer_load_dwordx4 v3, {srd(SRD_WSP)}, s{sWSOFF} offen offset:1024 lds
        s_add_u32 s{sWSOFF}, s{sWSOFF}, 128""")
    def issue_b(self, slot, five):
        e = self.e
        e(f"s_add_u32 m0, s{sROFF}, {BSZ*slot}\ns_nop 0")
        for i in range(4):
            e(f"buffer_load_dwordx4 v7, {srd(SRD_WS)}, s{sXOFF} offen offset:{1024*i} sc1 lds")
        if five:
            e(f"""s_add_u32 m0, s{sROFF}, {BSZ*slot + 4096}
            s_add_u32 s{sXOFF}, s{sXOFF}, 18432
            buffer_load_dwordx4 v7, {srd(SRD_WS)}, s95 offen sc1 lds
            s_add_u32 s95, s95, 18432""")
        else:
            e(f"s_add_u32 s{sXOFF}, s{sXOFF}, 18432")
    def loop(self, n, fn, name):
        L = self.a.newlab(name)
        self.e(f"s_mov_b32 s{sCNT}, {n}")
        self.a.lab(L)
        fn()
        self.e(f"s_sub_u32 s{sCNT}, s{sCNT}, 1\ns_cmp_lg_u32 s{sCNT}, 0\ns_cbranch_scc1 {L}")

    def x_p2_loader(self):
        e = self.e; T = self.vT
        e(f"""        s_and_b32 s{sT}, s{sRB}, 24
        s_lshl_b32 exec_lo, 0xff, s{sT}
        s_mov_b32 exec_hi, 0""")
        self.poll(5, f"s{sD}", T)
        self.stamp(6)
        Lfour = self.a.newlab("Lp2four"); Ldone = self.a.newlab("Lp2done")
        e(f"""s_cmp_eq_u32 s{sNH}, 1
        s_cbranch_scc1 {Lfour}""")
        for five in (True, False):
            nb = 5 if five else 4
            self.issue_b(0, five); self.issue_b(1, five)
            e(f"s_waitcnt vmcnt({nb})\ns_barrier")
            self.issue_b(2, five); self.issue_b(3, five)
            na1 = int(self.o.get("na1", 4))
            for i in range(na1, NA): self.issue_a(i)
            e(f"s_waitcnt vmcnt({2*nb + 2*(NA-na1)})")
            def grp(withA):
                e(f"""s_cmp_ge_u32 s{sWSOFF}, s42
                s_cselect_b32 s{sT}, 4096, 0
                s_sub_u32 s{sWSOFF}, s{sWSOFF}, s{sT}
                s_cmp_ge_u32 s{sXOFF}, s43
                s_cselect_b32 s{sT}, {32*18432}, 0
                s_sub_u32 s{sXOFF}, s{sXOFF}, s{sT}
                s_sub_u32 s95, s95, s{sT}""")
                if withA:
                    Lk = self.a.newlab("Lfk")
                    e(f"""s_cmp_lg_u32 s{sCNT}, 5
                    s_cbranch_scc1 {Lk}
                    v_cmp_ne_u32 vcc, s{sTAG}, v6
                    s_cbranch_vccz {Lk}""")
                    self.poll(5, f"s{sD}", T)
                    self.a.lab(Lk)
                for i in range(4):
                    if withA and i == 1:
                        Lq = self.a.newlab("Lfq")
                        e(f"s_cmp_lg_u32 s{sCNT}, 6\ns_cbranch_scc1 {Lq}\nbuffer_load_dword v6, v5, {srd(SRD_WS)}, s{sD} offen sc1\nbuffer_load_dword v{T+15}, v37, {srd(SRD_WS)}, s91 offen sc1")
                        self.a.lab(Lq)
                    e("s_barrier")
                    if i == 0: self.stampd(12)
                    self.issue_b(i, five)
                    if withA: self.issue_a(i)
                    e(f"s_waitcnt vmcnt({2*nb + 2 if withA else 2*nb})")
                if withA: e(f"s_xor_b32 s{sWSLOT}, s{sWSLOT}, 32768")
            def grp_t():
                grp(True)
                if self.o.get("wtouch", "0") == "1":
                    Lt = self.a.newlab("Lwt")
                    e(f"s_cmp_lg_u32 s{sCNT}, 2\ns_cbranch_scc1 {Lt}\nbuffer_load_dword v6, v4, {srd(SRD_WS)}, s{sT2} offen sc1")
                    self.a.lab(Lt)
            self.loop(6, grp_t, "Lp2f")
            grp(False)
            if five:
                e(f"s_branch {Ldone}")
                self.a.lab(Lfour)
        self.a.lab(Ldone)
        wl = self.wl_all[self.WPRE:]
        Lw = self.a.newlab("Lwok")
        e(f"v_cmp_ne_u32 vcc, s{sTAG}, v{T+15}\ns_cbranch_vccz {Lw}")
        self.poll(37, "s91", T)
        self.a.lab(Lw)
        e("s_barrier")
        n1 = min(5, len(wl)); n2 = min(5, len(wl) - n1); n3 = min(8, len(wl) - n1 - n2)
        for s_ in wl[:n1]: e(s_)
        e(f"s_waitcnt vmcnt({4+n1})\ns_barrier")
        for s_ in wl[n1:n1+n2]: e(s_)
        e(f"s_waitcnt vmcnt({n1+n2})\ns_barrier")
        for s_ in wl[n1+n2:n1+n2+n3]: e(s_)
        self.wl_rest = wl[n1+n2+n3:]
        self.w_issued = self.WPRE + n1 + n2 + n3
        self.stamp(7)

    def x_p3(self):
        e = self.e; T = self.vT; vL = self.vL; A3 = self.A3
        e("s_barrier")
        Lidle = self.a.newlab("Lp3idle")
        e(f"s_cmp_eq_u32 s{sCB}, 5\ns_cbranch_scc1 {Lidle}")
        e("s_barrier")
        WTH = int(self.o.get("wthr", 5)); WN1 = int(self.o.get("wn1", 24)); WPP = int(self.o.get("wpp", 4))
        wq = list(self.wl_rest) + [s_ for p_ in range(self.NWS, 27) for s_ in self.wload(p_)]
        e(f"""v_and_b32 v2, 15, v{vL}
        v_mul_u32_u24 v2, 1280, v2
        v_lshrrev_b32 v3, 4, v{vL}
        s_mul_i32 s{sA}, s{sRB}, {64*1280}
        s_lshl_b32 s{sC}, s{sCB}, 8
        s_add_u32 s{sA}, s{sA}, s{sC}
        s_lshl_b32 s{sC}, s{sW}, 6
        s_add_u32 s{sA}, s{sA}, s{sC}
        v_and_b32 v6, 1, v3
        v_lshlrev_b32 v6, 5, v6
        v_lshrrev_b32 v3, 1, v3
        v_lshl_add_u32 v6, v3, 4, v6
        v_add_u32 v6, v6, v2
        s_mov_b32 s{sB}, 0xffff0000
        v_add_u32 v2, {HB}, v7
        v_add_u32 v3, 0x10000, v2
        v_lshlrev_b32 v4, 3, v{vL}""")
        self.stamp(8)
        def hreads(pos, F):
            out = []
            if pos < 24:
                j, p = divmod(pos, 4)
                for b in range(4):
                    mh, a = b >> 1, b & 1
                    off = j*18432 + (9*mh + 5*(p >> 1) + 2*(p & 1) + a)*1024
                    out.append(f"ds_read_b128 v[{F+4*b}:{F+4*b+3}], v{2 + (off >> 16)} offset:{off & 0xffff}")
            else:
                for hf in range(2):
                    cbp = 2*(pos - 24) + hf
                    pre = f"""s_bfe_u32 s{sT}, s50, {(4 << 16) | (4*cbp)}
                    s_mul_i32 s{sT}, s{sT}, 18432
                    s_add_u32 s{sT}, s{sT}, {HB + 4096}
                    v_add_u32 v{2+hf}, s{sT}, v4
                    """
                    for b in range(4):
                        mh, a = b >> 1, b & 1
                        out.append(pre + f"ds_read_b64 v[{F+4*b+2*hf}:{F+4*b+2*hf+1}], v{2+hf} offset:{9216*mh + a*512}")
                        pre = ""
            return out
        FB = (8, 24, 208)
        self.stamp(9)
        for s_ in hreads(0, FB[0]) + hreads(1, FB[1]): e(s_)
        issued = self.w_issued
        NL = 27 - self.NWS
        XV = self.wreg(NL, 0)
        YV = self.wreg(NL + 2, 0)
        XS = self.wreg(NL + 5, 0)
        XA = self.wreg(NL + 4, 0)
        e(f"""v_lshrrev_b32 v5, 2, v{vL}
        v_lshlrev_b32 v5, 7, v5
        v_and_b32 v{A3}, 3, v{vL}
        v_lshl_add_u32 v5, v{A3}, 3, v5
        s_lshl_b32 s{sC}, s{sW}, 12
        s_add_u32 s{sC}, s{sC}, {YAB}
        v_add_u32 v5, s{sC}, v5""")
        prev = 4
        for pos in range(27):
            if pos == NL + 6:
                e(f"""v_and_b32 v{XA+2}, 15, v{vL}
                v_lshrrev_b32 v{XA+3}, 5, v{vL}
                s_lshl_b32 s{sC}, s{sW}, 2
                v_add_u32 v{XA+3}, s{sC}, v{XA+3}
                v_xor_b32 v{XA+3}, v{XA+3}, v{XA+2}
                v_lshlrev_b32 v{XA+3}, 4, v{XA+3}
                v_lshl_add_u32 v{XA}, v{XA+2}, 8, v{XA+3}
                v_bfe_u32 v{XA+3}, v{vL}, 4, 1
                v_lshl_add_u32 v{XA}, v{XA+3}, 3, v{XA}
                v_add_u32 v{XA}, {XB}, v{XA}
                v_xor_b32 v{XA+1}, 32, v{XA}""")
            F = FB[pos % 3]
            nxt = []
            def fbar(j):
                if self.o.get("fine"): self.stamp(28 + j)
                e("s_barrier")
                if self.o.get("fine"): self.stamp(22 + j)
            if pos == 4:
                fbar(1)
                for s_ in hreads(4, FB[1]) + hreads(5, FB[2]): e(s_)
                prev = 4
            if pos < 25 and pos not in (2, 3):
                if (pos + 2) % 4 == 0 and 8 < pos + 2 < 24: fbar((pos + 2)//4)
                nxt = hreads(pos + 2, FB[(pos + 2) % 3])
            mf = []
            for b in range(4):
                for ee in range(2):
                    c = A3 + 4*(2*b + ee); w = self.wreg(pos, ee)
                    C = "0" if pos == 0 else f"v[{c}:{c+3}]"
                    mf.append(f"v_mfma_f32_16x16x32_bf16 v[{c}:{c+3}], v[{w}:{w+3}], v[{F+4*b}:{F+4*b+3}], {C}")
            e(f"s_waitcnt lgkmcnt({prev}) vmcnt({issued - 2*(pos + 1)})")
            prev = len(nxt)
            fill = list(nxt)
            if pos >= 23:
                for i in range(4*(pos-23), 4*(pos-23)+4):
                    t = XA + 4 + 2*(i & 1)
                    fill += [f"v_lshlrev_b32 v{XS+2*i}, 16, v{XV+i}\nv_and_b32 v{XS+2*i+1}, s{sB}, v{XV+i}",
                             f"v_lshlrev_b32 v{t}, 16, v{YV+i}\nv_and_b32 v{t+1}, s{sB}, v{YV+i}\nv_pk_add_f32 v[{XS+2*i}:{XS+2*i+1}], v[{XS+2*i}:{XS+2*i+1}], v[{t}:{t+1}]"]
            for s_ in self.interleave(fill, mf, 2 if len(fill) > 8 else 1): e(s_)
            nw = (WN1 + 3) // 4 if pos < 4 else WPP
            for _ in range(nw):
                if wq and (issued < 2*self.NWS or issued//2 - self.NWS <= pos):
                    e(wq.pop(0)); issued += 1
                    if pos < 4: e(f"s_waitcnt vmcnt({WTH})")
            assert issued >= min(54, 2*(pos + 2)), (pos, issued)
            if pos == 21:
                if self.o.get("spec", "0") == "1": e("s_barrier")
                for b in range(4):
                    for ee in range(2):
                        r = 2*(2*b + ee)
                        e(f"ds_read_b64_tr_b16 v[{YV+r}:{YV+r+1}], v5 offset:{ee*2048 + b*32}")
                prev += 8
            if pos == 20:
                for b in range(4):
                    for ee in range(2):
                        r = 2*(2*b + ee)
                        e(f"ds_read_b64 v[{XV+r}:{XV+r+1}], v{XA+ee} offset:{4096*b}")
                prev += 8
        self.stamp(10)
        for i in range(16):
            e(f"v_pk_add_f32 v[{A3+2*i}:{A3+2*i+1}], v[{A3+2*i}:{A3+2*i+1}], v[{XS+2*i}:{XS+2*i+1}]")
        OV = 40
        for b in range(4):
            q = OV + 4*b
            for k in range(4):
                c = A3 + 8*b + 2*k; i = 4*b + k; t = 8 + 2*k
                e(f"v_cvt_pk_bf16_f32 v{q+k}, v{c}, v{c+1}")
            e(f"""v_permlane16_swap_b32 v{q}, v{q+2}
            v_permlane16_swap_b32 v{q+1}, v{q+3}
            s_add_u32 s{sT}, s{sA}, {b*16*1280}
            buffer_store_dwordx4 v[{q}:{q+3}], v6, {srd(SRD_OUT)}, s{sT} offen {self.o.get("ost", "")}""")
        self.stamp(11)
        e(f"""s_cmp_lg_u32 s2, 0
        s_cbranch_scc1 L_end
        s_cmp_lg_u32 s{sW}, 0
        s_cbranch_scc1 L_end
        v_lshlrev_b32 v8, {FS}, v{vL}
        s_mov_b32 s{sD}, {WS_FY}
        s_mov_b32 s{sA}, {WS_EPOCH}""")
        self.poll(8, f"s{sD}", 9)
        self.flag_store(sA, 8)
        if self.o.get("dbgt"):
            e(f"""s_load_dwordx2 s[40:41], s[0:1], 104
            s_waitcnt vmcnt(0)
            s_memtime s[{sTM}:{sTM+1}]
            s_memrealtime s[98:99]
            s_waitcnt lgkmcnt(0)
            s_sub_u32 s{sTM}, s{sTM}, s{sTM0}
            s_sub_u32 s98, s98, s100
            v_mov_b32 v8, s{sTM}
            v_mov_b32 v9, s98
            v_mov_b32 v10, 0
            global_store_dwordx2 v10, v[8:9], s[40:41]""")
        self.a.lab(Lidle)
        e("s_branch L_end")

    def pub_parts(self):
        e = self.e; T = 240; vL = self.vL
        g, r, c4 = T, T+1, T+2
        XQ = 192; XAD = 208; RSV = 216
        e(f"""v_lshrrev_b32 v{g}, 4, v{vL}
        v_bfe_u32 v{r}, v{vL}, 2, 2
        v_and_b32 v{c4}, 3, v{vL}""")
        for rd in range(2):
            t, sw, ad = T+3, T+4, T+6+rd
            e(f"""v_lshl_add_u32 v{t}, v{g}, 3, v{r}
            v_add_u32 v{t}, {4*rd}, v{t}
            v_bfe_u32 v{sw}, v{t}, 1, 3
            v_lshrrev_b32 v{ad}, 1, v{c4}
            v_xor_b32 v{sw}, v{sw}, v{ad}
            v_lshlrev_b32 v{sw}, 4, v{sw}
            v_lshl_add_u32 v{ad}, v{t}, 7, v{sw}
            v_and_b32 v{sw}, 1, v{c4}
            v_lshl_add_u32 v{ad}, v{sw}, 3, v{ad}""")
        e(f"""v_and_b32 v{T+8}, 7, v{vL}
        v_lshlrev_b32 v{T+8}, 12, v{T+8}
        v_lshl_add_u32 v{T+8}, v{g}, 4, v{T+8}
        v_bfe_u32 v{T+3}, v{vL}, 3, 1
        v_lshl_add_u32 v{T+8}, v{T+3}, 6, v{T+8}
        v_lshlrev_b32 v{T+9}, 5, v{g}
        v_add_u32 v{T+9}, {RSTAB}, v{T+9}
        s_mul_i32 s{sA}, s{sCB}, 7
        s_sub_u32 s{sB}, s{sCB}, 2
        s_max_i32 s{sB}, s{sB}, 0
        s_sub_u32 s{sA}, s{sA}, s{sB}
        s_lshl_b32 s{sB}, s{sW}, 1
        s_add_u32 s{sA}, s{sA}, s{sB}""")
        for i in range(2):
            e(f"""s_add_u32 s{sB}, s{sA}, {i}
            s_and_b32 s{sC}, s{sB}, 3
            s_lshl_b32 s{sC}, s{sC}, 5
            s_lshr_b32 s{sD}, s{sB}, 2
            s_lshl_b32 s{sD}, s{sD}, 13""")
            for rd in range(2):
                e(f"v_xor_b32 v{XAD+2*i+rd}, s{sC}, v{T+6+rd}\nv_add_u32 v{XAD+2*i+rd}, s{sD}, v{XAD+2*i+rd}")
        e(f"""s_lshl_b32 s{sB}, s{sRB}, 7
        s_add_u32 s{sB}, s{sB}, {WS_XNT}
        s_lshl_b32 s{sA}, s{sA}, 16
        s_add_u32 s38, s{sA}, s{sB}
        s_lshl_b32 s{sD}, s{sCB}, 5
        s_add_u32 s{sD}, s{sD}, s{sRB}
        s_lshl_b32 s{sD}, s{sD}, 7
        s_add_u32 s39, s{sD}, {WS_FXN}
        s_mov_b32 s40, 0xffff0000""")
        rds = [f"ds_read_b128 v[{RSV+4*k}:{RSV+4*k+3}], v{T+9} offset:{128*(k>>1) + 16*(k&1)}" for k in range(4)]
        for i in range(2):
            for h in range(2):
                for rd in range(2):
                    q = XQ + 8*i + 4*h + 2*rd
                    rds.append(f"ds_read_b64_tr_b16 v[{q}:{q+1}], v{XAD+2*i+rd} offset:{4096*h}")
        work = []
        for i in range(2):
            for h in range(2):
                for k in range(4):
                    q = XQ + 8*i + 4*h + k; a = T + 2*(k & 1); rs = RSV + 8*h + 2*k
                    work += [f"v_lshlrev_b32 v{a}, 16, v{q}", f"v_and_b32 v{a+1}, s40, v{q}",
                             f"v_pk_mul_f32 v[{a}:{a+1}], v[{a}:{a+1}], v[{rs}:{rs+1}]", f"v_cvt_pk_bf16_f32 v{q}, v{a}, v{a+1}"]
            for k in range(4):
                r0 = XQ + 8*i + k; r1 = r0 + 4; t = T + 4 + (k & 1)
                work += [f"v_mov_b32 v{t}, v{r0}",
                         f"v_mov_b32_dpp v{r0}, v{r1} row_ror:8 row_mask:0xf bank_mask:0xc",
                         f"v_mov_b32_dpp v{r1}, v{t} row_ror:8 row_mask:0xf bank_mask:0x3"]
            for h in range(2):
                q = XQ + 8*i + 4*h
                work.append(f"buffer_store_dwordx4 v[{q}:{q+3}], v{T+8}, {srd(SRD_WS)}, s38 offen sc1\ns_add_u32 s38, s38, 32768")
        return rds, work

    def y_spec(self, hblk):
        e = self.e; T = self.vT; vL = self.vL
        V = 40
        L5 = self.a.newlab("Lc5")
        e(f"s_cmp_eq_u32 s{sCB}, 5\ns_cbranch_scc1 L_end")
        N1 = int(self.o.get("sn1", 2))
        for j in range(1, N1 + 1): hblk(j)
        self.stamp(6)
        e(f"v_add_u32 v{T+7}, 0x10000, v{T+10}")
        for j in range(1, 6):
            Lok = self.a.newlab("Lsv")
            if j == 3:
                e(f"buffer_load_dword v{T+6}, v6, {srd(SRD_WS)}, 0 offen sc1")
                for jj in range(N1 + 1, 6): hblk(jj)
            e(f"s_waitcnt vmcnt({4*((N1 if j < 3 else 5)-j) + (4 if j > 3 else 0)})")
            off = 18432*j
            for i in range(5):
                o = off + 1024*min(i, 4)
                if i < 4: e(f"ds_read_b128 v[{V+4*i}:{V+4*i+3}], v{(T+10, T+7)[o >> 16]} offset:{o & 0xffff}")
                else: e(f"ds_read_b128 v[{V+16}:{V+19}], v{(T+4, T+5)[off >> 16]} offset:{off & 0xffff}")
            e("s_waitcnt lgkmcnt(0)")
            e(f"v_max3_u32 v{V}, v{V}, v{V+1}, v{V+2}")
            for r in range(3, 19, 2): e(f"v_max3_u32 v{V}, v{V}, v{V+r}, v{V+r+1}")
            e(f"""v_max_u32 v{V}, v{V}, v{V+19}
            v_cmp_eq_u32 vcc, -1, v{V}
            s_cbranch_vccz {Lok}
            s_mul_hi_u32 s{sT}, s{self.sBO+j}, {(1 << 32)//18432 + 1}
            s_lshl_b32 exec_lo, 1, s{sT}
            s_mov_b32 exec_hi, 0""")
            self.poll(6, "0", T+3)
            hblk(j)
            e("s_waitcnt vmcnt(0)")
            self.a.lab(Lok)
            if j == 3:
                Ly = self.a.newlab("Lsy")
                e(f"""s_barrier
                s_waitcnt vmcnt(8)
                v_cmp_ne_u32 vcc, s{sTAG}, v{T+6}
                s_and_b32 s{sT}, vcc_lo, 0xffff0000
                s_cbranch_scc0 {Ly}
                s_mov_b32 exec_lo, 0xffff0000
                s_mov_b32 exec_hi, 0""")
                self.poll(6, "0", T+3)
                self.a.lab(Ly)
                e(f"s_add_u32 m0, s{sB}, {YAB}\ns_nop 0")
                for i in range(4):
                    e(f"buffer_load_dwordx4 v{T+8}, {srd(SRD_WS)}, s{sD} offen offset:{1024*i} sc1 lds")
            if j not in (1, 3): e("s_barrier")
        e("s_waitcnt vmcnt(0)\ns_barrier")
        self.stamp(7)
        e("s_branch L_end")

    def y_p3_setup(self):
        e = self.e; T = self.vT; vL = self.vL
        e(f"""s_lshl_b32 s{sD}, s{sRB}, 2
        s_add_u32 s{sD}, s{sD}, s{sW}
        s_lshl_b32 s{sD}, s{sD}, {3+FS}
        s_add_u32 s{sD}, s{sD}, {WS_FH}
        s_lshl_b32 s85, s{sCB}, {FS}
        s_add_u32 s85, s85, s{sD}
        v_min_u32 v6, 5, v{vL}
        v_lshlrev_b32 v6, {FS}, v6
        v_add_u32 v6, s{sD}, v6
        s_min_u32 s{sC}, s{sCB}, 4
        s_mul_i32 s{sA}, s{sC}, 51
        s_lshr_b32 s{sA}, s{sA}, 2
        v_and_b32 v{T+3}, 15, v{vL}
        v_add_u32 v{T+3}, s{sA}, v{T+3}
        v_min_u32 v{T+3}, 63, v{T+3}
        v_lshlrev_b32 v{T+3}, {FS}, v{T+3}
        v_add_u32 v{T+3}, {WS_FY}, v{T+3}
        v_cmp_lt_u32 vcc, 15, v{vL}
        v_cndmask_b32 v6, v6, v{T+3}, vcc
        s_mul_i32 s93, s{sMH}, 9216
        s_mul_i32 s{sA}, s{sNH}, 5120
        s_add_u32 s93, s93, s{sA}
        s_mul_i32 s94, s{sRB}, {6*18432}
        s_add_u32 s94, s94, s93
        s_add_u32 s94, s94, {WS_H}
        s_add_u32 s93, s93, {HB}
        s_mul_i32 s91, s{sRB}, {64*1280}
        s_lshl_b32 s{sA}, s{sC}, 8
        s_add_u32 s91, s91, s{sA}
        s_mul_i32 s{sA}, s{sW}, {16*1280}
        s_add_u32 s91, s91, s{sA}
        s_mul_i32 s{sMASK}, s{sRB}, {640*128}
        s_lshl_b32 s{sA}, s{sC}, 14
        s_add_u32 s{sMASK}, s{sMASK}, s{sA}
        s_lshl_b32 s{sA}, s{sW}, 12
        s_add_u32 s{sMASK}, s{sMASK}, s{sA}
        s_add_u32 s{sMASK}, s{sMASK}, {WS_YA}""")
        for i in range(4):
            e(f"""v_lshrrev_b32 v{T+4}, 4, v{vL}
            v_add_u32 v{T+4}, {4*i}, v{T+4}
            v_and_b32 v{T+5}, 15, v{vL}
            v_xor_b32 v{T+5}, v{T+5}, v{T+4}
            v_mul_u32_u24 v{T+4}, 1280, v{T+4}
            v_lshl_add_u32 v{T+12+i}, v{T+5}, 4, v{T+4}""")
            if i: e(f"v_subrev_u32 v{T+12+i}, {1024*i}, v{T+12+i}")

    def y_path(self):
        e = self.e; T = self.vT; ACC = self.ACC; vL = self.vL; Z1 = self.Z1
        self.a.lab("L_Y")
        if self.o.get("yprio", "1") == "1": e("s_setprio 0")
        self.stamp(0)
        vmw = lambda n: f"s_waitcnt vmcnt({n})"
        e(f"""v_and_b32 v{T}, 15, v{vL}
        v_lshlrev_b32 v{T}, 2, v{T}
        s_lshl_b32 s{sA}, s{sMH}, 7
        s_add_u32 s{sA}, s{sA}, {RSTAB}
        v_add_u32 v{T}, s{sA}, v{T}
        v_lshrrev_b32 v{T+1}, 4, v{vL}
        v_lshlrev_b32 v{T+1}, 5, v{T+1}
        s_lshl_b32 s{sA}, s{sNH}, 7
        s_add_u32 s{sA}, s{sA}, {RSTAB}
        v_add_u32 v{T+1}, s{sA}, v{T+1}""")
        if self.o.get("xst", "1") == "1":
            e(f"""s_add_u32 s{sWSLOT}, s{sWSLOT}, {2*S1SZ}
            s_add_u32 s{sWSOFF}, s{sWSOFF}, {2*64*3456}""")
        else:
            e(vmw(5))
        e("s_barrier")
        self.stamp(12)
        e(f"ds_read_b32 v{T+8}, v{T}\nds_read_b32 v{T+10}, v{T} offset:64")
        self.issue_w()
        e("s_waitcnt vmcnt(5) lgkmcnt(0)\ns_barrier")
        self.issue_w(); self.issue_w()
        e(vmw(10))
        L = self.a.newlab("Ly1")
        e(f"s_mov_b32 s{sCNT}, 2")
        self.a.lab(L)
        e("s_barrier")
        self.stampd(12)
        Lc = self.a.newlab("Lcol")
        e(f"""s_cmp_lg_u32 s{sCNT}, 7
        s_cbranch_scc1 {Lc}
        s_sub_u32 s{sWSOFF}, s{sWSOFF}, 1728
        s_sub_u32 s{sWSL}, s{sWSL}, 1728""")
        self.a.lab(Lc)
        self.issue_w()
        e(vmw(10))
        e(f"""s_add_u32 s{sCNT}, s{sCNT}, 1
        s_cmp_lt_u32 s{sCNT}, 10
        s_cbranch_scc1 {L}""")
        self.stamp(1)
        ysetup = self.capture(lambda: (self.blk_offsets(18432), self.y_p3_setup()))
        yflag = []
        if int(self.o.get("hold", 3)) >= 3:
            for l in ysetup: e(l)
            ysetup = []
        e(f"""s_mov_b32 s{sROFF}, {RING1 + 2*S1SZ}
        v_and_b32 v{T}, 15, v{vL}
        v_lshlrev_b32 v{T}, 1, v{T}
        s_lshl_b32 s{sA}, s{sRB}, 7
        s_lshl_b32 s{sB}, s{sMH}, 6
        s_add_u32 s{sA}, s{sA}, s{sB}
        buffer_load_ushort v34, v{T}, {srd(SRD_BSP)}, s{sA} offen
        buffer_load_ushort v36, v{T}, {srd(SRD_BSP)}, s{sA} offen offset:32""")
        tail = self.compute_loop(10, True, self.p1_reads, self.p1_addr, "p1b", vmwait=True, first=(ysetup, yflag))
        for m in tail: e(m)
        e("s_barrier")
        self.stamp(2)
        e(f"v_mov_b32 v{T+9}, v{T+8}\nv_mov_b32 v{T+11}, v{T+10}")
        for i in range(0, 20, 4):
            self.rr([self.gelu_list(ACC + 2*(i+k), T + 2*k, T + 8 + 2*(k >> 1), packed=Z1 + 2*(i + k)) for k in range(4)])
        e(f"""v_lshlrev_b32 v34, 16, v34
        v_lshlrev_b32 v36, 16, v36
        v_mov_b32 v35, v34
        v_mov_b32 v37, v36
        v_lshlrev_b32 v{self.vWB4}, 4, v{vL}
        s_mul_i32 s{sA}, s{sNH}, 5120
        v_add_u32 v{self.vWB}, s{sA}, v{self.vWB4}
        v_add_u32 v{self.vWB4}, 4096, v{self.vWB4}
        v_add_u32 v{self.vX0}, {ABASE}, v{self.vX0}
        v_add_u32 v{self.vX1}, {ABASE}, v{self.vX1}
        s_mov_b32 s{sROFF}, {BRING}
        s_mov_b32 s{sXOFF}, 0""")
        e("s_waitcnt vmcnt(12)")
        if self.o.get("dgem"): e(f"s_sleep {self.o['dgem']}")
        self.stamp(3)
        ZD = int(self.o.get("zd", 0))
        e(f"""v_min_u32 v4, 8, v{vL}
        v_lshlrev_b32 v4, 7, v4
        s_and_b32 s{sA}, s{sRB}, 7
        s_lshl_b32 s{sA}, s{sA}, 2
        s_add_u32 s{sA}, s{sA}, s{sW}
        s_mul_i32 s{sWSL}, s{sA}, {9*128}
        s_mul_i32 s{sC}, s{sCB}, {32*18432}
        s_add_u32 s{sWSL}, s{sWSL}, s{sC}
        s_add_u32 s{sWSL}, s{sWSL}, {WS_Z2 + ZD*18432}
        s_min_u32 s{sC}, s{sCB}, 4
        s_mul_i32 s{sC}, s{sC}, {8*27*1024}
        s_mul_i32 s{sA}, s{sA}, {54*128}
        s_add_u32 s{sW0}, s{sC}, s{sA}
        s_add_u32 s{sW0}, s{sW0}, {WS_WOT}
        v_min_u32 v7, 53, v{vL}
        v_lshlrev_b32 v7, 7, v7""")
        def ztouch():
            if ZD:
                Lz = self.a.newlab("Lzt")
                e(f"""s_cmp_le_u32 s{sCNT}, {(ZD-2)//2}
                s_cbranch_scc1 {Lz}
                buffer_load_dword v5, v4, {srd(SRD_WS)}, s{sWSL} offen sc1
                s_add_u32 s{sWSL}, s{sWSL}, {2*18432}""")
                self.a.lab(Lz)
            if self.o.get("ywt"):
                Lw = self.a.newlab("Lwt")
                e(f"s_cmp_lg_u32 s{sCNT}, 6\ns_cbranch_scc1 {Lw}\nbuffer_load_dword v5, v7, {srd(SRD_WS)}, s{sW0} offen sc1")
                self.a.lab(Lw)
        e(f"""v_lshlrev_b32 v{T+8}, 4, v{vL}
        v_lshlrev_b32 v{T+9}, 3, v{vL}
        s_mul_i32 s{sA}, s{sRB}, 6
        s_add_u32 s{sA}, s{sA}, s{sCB}
        s_mul_i32 s{sA}, s{sA}, 18432
        s_mul_i32 s{sC}, s{sMH}, 9216
        s_mul_i32 s{sD}, s{sNH}, 5120
        s_add_u32 s{sC}, s{sC}, s{sD}
        s_add_u32 s{sA}, s{sA}, s{sC}
        s_add_u32 s{sA}, s{sA}, {WS_H}
        s_add_u32 s{sC}, s{sC}, {HB}
        v_add_u32 v{T+10}, s{sC}, v{T+8}
        v_add_u32 v{T+11}, s{sC}, v{T+9}
        s_add_u32 s{sC}, s{sA}, 4096""")
        if self.o.get("nhs", "1") == "1":
            e(f"s_cmp_eq_u32 s{sNH}, 0\ns_cbranch_scc1 L_p2five")
            self.NJ = 4
            self.compute_loop(32, True, self.p2_reads, self.p2_addr, "p2", mid=ztouch, peel="s_waitcnt vmcnt(0)")
            self.NJ = 5
            e("s_branch L_p2join")
            self.a.lab("L_p2five")
        tail = self.compute_loop(32, True, self.p2_reads, self.p2_addr, "p2", mid=ztouch, peel="s_waitcnt vmcnt(0)")
        if self.o.get("nhs", "1") == "1": self.a.lab("L_p2join")
        e("s_barrier")
        tl = {}
        for k, m in enumerate(tail): tl.setdefault((k % 10) // 2, []).append(m)
        HQ = 40
        Ls = self.a.newlab("Lh4")
        tc = [0]
        def hval(j, a, h, d):
            r = ACC + 4*(2*j + a) + 2*h; z = Z1 + 4*(2*j + a) + 2*h; b = 34 + 2*a
            return [f"v_pk_add_f32 v[{r}:{r+1}], v[{r}:{r+1}], v[{b}:{b+1}]",
            f"v_pk_mul_f32 v[{r}:{r+1}], v[{r}:{r+1}], v[{z}:{z+1}]",
            f"v_cvt_pk_bf16_f32 v{d}, v{r}, v{r+1}"]
        for m in tl[0] + tl[1] + tl[2][:2]: e(m)
        rest = tl[2][2:] + tl[3] + tl[4]
        for p in range(2):
            for a in range(2):
                q = HQ + 4*(2*p + a)
                ops = []
                hv = [hval(2*p + jj, a, h, q + 2*jj + h) for jj in range(2) for h in range(2)]
                for i in range(3): ops += [l[i] for l in hv]
                if p == 0:
                    ms = rest[5*a:5*a+5]
                    for i, o in enumerate(ops):
                        if i % 2 == 0 and ms: e(ms.pop(0))
                        e(o)
                else:
                    for o in ops: e(o)
                e(f"buffer_store_dwordx4 v[{q}:{q+3}], v{T+8}, {srd(SRD_WS)}, s{sA} offen offset:{1024*(2*p+a)} sc1")
                e(f"ds_write_b128 v{T+10}, v[{q}:{q+3}] offset:{1024*(2*p+a)}")
        self.stamp(4)
        e(f"s_cmp_eq_u32 s{sNH}, 1\ns_cbranch_scc1 {Ls}")
        self.rr([hval(4, a, h, HQ + 16 + 2*a + h) for a in range(2) for h in range(2)])
        for a in range(2):
            q = HQ + 16 + 2*a
            e(f"buffer_store_dwordx2 v[{q}:{q+1}], v{T+9}, {srd(SRD_WS)}, s{sC} offen offset:{512*a} sc1")
            e(f"ds_write_b64 v{T+11}, v[{q}:{q+1}] offset:{4096 + 512*a}")
        self.a.lab(Ls)
        e("s_waitcnt lgkmcnt(0)\ns_barrier")
        e(f"s_lshl_b32 s{sB}, s{sW}, 12\ns_mov_b32 s{sD}, s{sMASK}")
        e(f"s_add_u32 m0, s{sB}, {XB}\ns_nop 0")
        for i in range(4):
            e(f"buffer_load_dwordx4 v{T+12+i}, {srd(SRD_X)}, s91 offen offset:{1024*i} lds")
        e("s_waitcnt vmcnt(4)")
        self.flag_store(85, T)
        if self.o.get("spec", "0") == "1":
            e(f"""s_lshl_b32 s{sT}, s{sNH}, 10
            s_sub_u32 s{sT}, 4096, s{sT}
            v_add_u32 v{T+4}, s{sT}, v{T+10}
            v_add_u32 v{T+5}, 0x10000, v{T+4}""")
        elif self.o.get("selft", "1") == "1":
            e(f"""s_lshl_b32 s{sT}, s{sNH}, 3
            s_sub_u32 s{sT}, 39, s{sT}
            v_min_u32 v{T+4}, s{sT}, v{vL}
            v_lshlrev_b32 v{T+4}, 7, v{T+4}
            buffer_load_dword v{T+5}, v{T+4}, {srd(SRD_WS)}, s{sA} offen sc1""")
        self.stamp(5)
        def hblk(j):
            Lk = self.a.newlab("Lhk")
            e(f"s_add_u32 m0, s93, {18432*j}\ns_add_u32 s{sT}, s94, s{self.sBO+j}")
            for i in range(4):
                e(f"buffer_load_dwordx4 v{T+8}, {srd(SRD_WS)}, s{sT} offen offset:{1024*i} sc1 lds")
            e(f"""s_cmp_eq_u32 s{sNH}, 1
            s_cbranch_scc1 {Lk}
            s_add_u32 m0, m0, 4096
            s_add_u32 s{sT}, s{sT}, 4096
            buffer_load_dwordx4 v{T+8}, {srd(SRD_WS)}, s{sT} offen sc1 lds""")
            self.a.lab(Lk)
        if self.o.get("spec", "0") == "1":
            self.y_spec(hblk); return
        L5 = self.a.newlab("Lc5"); Lall = self.a.newlab("Lhall"); Lok = self.a.newlab("Lhok"); Lj = self.a.newlab("Lhj")
        e(f"""s_waitcnt vmcnt(1)
        s_sleep {self.o.get("hdl", 1)}
        s_cmp_eq_u32 s{sCB}, 5
        s_cbranch_scc1 {L5}
        buffer_load_dword v{T+3}, v6, {srd(SRD_WS)}, 0 offen sc1
        s_and_b32 s{sT}, s2, 1
        s_mul_i32 s{sT}, s{sT}, 3
        s_lshl_b32 s{sT2}, 7, s{sT}
        s_waitcnt vmcnt(0)
        v_cmp_ne_u32 vcc, s{sTAG}, v{T+3}
        s_cbranch_vccz {Lall}
        s_and_b32 s{sT}, vcc_lo, s{sT2}
        s_cbranch_scc0 {Lj}
        s_mov_b32 exec_lo, s{sT2}
        s_mov_b32 exec_hi, 0""")
        self.poll(6, "0", T+3)
        self.a.lab(Lj)
        self.stamp(6)
        hblk(1); hblk(2)
        e(f"""buffer_load_dword v{T+3}, v6, {srd(SRD_WS)}, 0 offen sc1
        s_waitcnt vmcnt(0)
        s_barrier
        v_cmp_ne_u32 vcc, s{sTAG}, v{T+3}
        s_cbranch_vccz {Lok}""")
        self.a.lab(L5)
        self.poll(6, "0", T+3)
        self.a.lab(Lok)
        self.stamp(8)
        hblk(3)
        e(f"s_cmp_eq_u32 s{sCB}, 5\ns_cbranch_scc1 L_end")
        hblk(4); hblk(5)
        e(f"s_add_u32 m0, s{sB}, {YAB}\ns_nop 0")
        for i in range(4):
            e(f"buffer_load_dwordx4 v{T+8}, {srd(SRD_WS)}, s{sD} offen offset:{1024*i} sc1 lds")
        for n in (12, 8, 0):
            e(f"s_waitcnt vmcnt({n})\ns_barrier")
        self.stamp(7)
        e("s_branch L_end")
        self.a.lab(Lall)
        self.stamp(6)
        hblk(1); hblk(2); hblk(3)
        e("s_waitcnt vmcnt(4)\ns_barrier")
        hblk(4); hblk(5)
        e(f"s_add_u32 m0, s{sB}, {YAB}\ns_nop 0")
        for i in range(4):
            e(f"buffer_load_dwordx4 v{T+8}, {srd(SRD_WS)}, s{sD} offen offset:{1024*i} sc1 lds")
        for n in (12, 8, 0):
            e(f"s_waitcnt vmcnt({n})\ns_barrier")
        self.stamp(7)
        e("s_branch L_end")

    def build(self):
        from ssm import ssm_path
        self.entry()
        self.inpro = True
        self.gemm_prologue()
        self.inpro = False
        self.x_path()
        self.y_path()
        self.a.lab("L_ssm")
        if self.o.get("nossm"):
            self.e("s_branch L_end")
        else:
            self.inssm = True
            ssm_path(self)
            self.inssm = False
        self.a.lab("L_end")
        if self.o.get("stamps"):
            self.e(f"""s_mov_b64 exec, -1
            s_waitcnt vmcnt(0)
            s_memrealtime s[{sTM}:{sTM+1}]
            s_waitcnt lgkmcnt(0)
            v_writelane_b32 v0, s100, 62
            v_writelane_b32 v0, s{sTM}, 63
            s_lshl_b32 s{sTM}, s2, 3
            s_add_u32 s{sTM}, s{sTM}, s{sWAVE}
            s_lshl_b32 s{sTM}, s{sTM}, 8
            s_add_u32 s{sTM}, s{sTM}, {WS_DBG}
            v_lshlrev_b32 v2, 2, v1
            buffer_store_dword v0, v2, {srd(SRD_WS)}, s{sTM} offen""")
        self.e("s_endpgm")
        self.a.lab("L_exit")
        self.e("s_endpgm")
        body = self.a.finalize()
        if self.o.get("align", "1") == "1":
            from asmlib import align_pass
            body = align_pass(body, KNAME, extra="L_gtab:\nL_tabend:\n")
        hdr = open("parallel_sum__ssm_conv_s4d__mixer_gmlp__prompt.s.ref").read().split("; Override launch")[0]
        s = hdr + "; @launch grid=(256,1,1) block=(512,1,1) lds=163840\n"
        s += f'.amdgcn_target "amdgcn-amd-amdhsa--gfx950"\n.text\n.globl {KNAME}\n.p2align 8\n.type {KNAME},@function\n{KNAME}:\n'
        s += body
        from ssm import gtab
        t = gtab()
        s += ".p2align 8\n.type L_gtab,@object\nL_gtab:\n"
        for i in range(0, len(t), 16): s += ".long " + ", ".join(str(v) for v in t[i:i+16]) + "\n"
        s += "L_tabend:\n"
        s += f""".section .rodata,"a"
.p2align 6
.amdhsa_kernel {KNAME}
  .amdhsa_next_free_vgpr 256
  .amdhsa_next_free_sgpr 102
  .amdhsa_accum_offset 256
  .amdhsa_group_segment_fixed_size 0
  .amdhsa_kernarg_size 120
  .amdhsa_user_sgpr_count 2
  .amdhsa_user_sgpr_kernarg_segment_ptr 1
  .amdhsa_system_sgpr_workgroup_id_x 1
.end_amdhsa_kernel
"""
        return s

if __name__ == "__main__":
    opts = {}
    out = "parallel_sum__ssm_conv_s4d__mixer_gmlp__prompt.s"
    for a in sys.argv[1:]:
        if a.startswith("-o"): out = a[2:]
        elif "=" in a:
            k, v = a.split("="); opts[k] = v
        else: opts[a] = True
    open(out, "w").write(G(opts).build())
```

```python
import math
from gen import *

SLOT = 17600; KCP = 4576; UOFF = 9152; UCP = 4224
TB = 8*SLOT; TSZ = 1568; ZI = 768
SRD_LAR, SRD_AIM, SRD_CR, SRD_CI, SRD_LDT, SRD_DSK = 8, 12, 16, 20, 24, 32
sCH, sSLOT, sTBL, sRND, sD0 = 66, 67, 68, 69, 70
sWJ, sKS, sLN = 71, 72, 73
sNIT, sMO, sPF, sPK, sPN, sWP = 75, 76, 77, 83, 84, 85
sC2, sUF, sF1, sF2 = 91, 93, 94, 95
SRD_WO, SRD_PF, SRD_WI = 36, 52, 40
LOG2E = 1.4426950408889634

def ssm_path(g):
    e = g.e; a = g.a
    vL = 1
    T = 12; vZ = 10
    GA = 220
    e(f"""s_load_dwordx16 s[36:51], s[0:1], 0
    s_load_dwordx8 s[52:59], s[0:1], 64
    s_getpc_b64 s[62:63]
    L_pc0:
    s_sub_u32 s62, s62, L_pc0-{KNAME}
    s_subb_u32 s63, s63, 0
    v_and_b32 v{vL}, 63, v0
    s_sub_u32 s{sB}, s{sB}, 24
    s_lshl_b32 s{sB}, s{sB}, 3
    s_add_u32 s{sRB}, s{sB}, s{sA}
    s_mul_i32 s{sD0}, s{sRB}, 10
    s_add_u32 s{sCH}, s{sD0}, s{sWAVE}
    v_mov_b32 v{vZ}, 0""")
    if g.o.get("pfc", "1") == "1":
        e(f"""v_min_u32 v2, 6, v{vL}
        s_add_u32 s{sC}, s{sB}, s{sWAVE}
        s_mul_i32 s{sC}, s{sC}, 7
        v_add_u32 v2, s{sC}, v2
        v_lshlrev_b32 v2, 7, v2
        v_min_u32 v2, L_tabend-4-{KNAME}, v2
        global_load_dword v219, v2, s[62:63]""")
    e("s_waitcnt lgkmcnt(0)")
    g.mk_srd(SRD_LAR, 38, 640*128*2); g.mk_srd(SRD_AIM, 40, 640*128*2)
    g.mk_srd(SRD_CR, 42, 640*128*2); g.mk_srd(SRD_CI, 44, 640*128*2)
    g.mk_srd(SRD_LDT, 46, 640*2)
    def param_loads():
        e(f"""v_lshlrev_b32 v{T}, 2, v{vL}
        s_lshl_b32 s{sA}, s{sCH}, 8
        s_lshl_b32 s{sB}, s{sCH}, 1
        buffer_load_dword v{T+4}, v{T}, {srd(SRD_LAR)}, s{sA} offen
        buffer_load_dword v{T+5}, v{T}, {srd(SRD_AIM)}, s{sA} offen
        buffer_load_dword v{T+6}, v{T}, {srd(SRD_CR)}, s{sA} offen
        buffer_load_dword v{T+7}, v{T}, {srd(SRD_CI)}, s{sA} offen
        buffer_load_ushort v{T+8}, v{vZ}, {srd(SRD_LDT)}, s{sB} offen""")
    param_loads()
    g.mk_srd(SRD_WI, 52, 640*1728*2)
    e(f"s_load_dword s{sTAG}, s[64:65], {WS_EPOCH}")
    g.mk_srd(SRD_WS, 64, WS_SIZE)
    g.mk_srd(SRD_DSK, 48, 640*2)
    e(f"""s_mul_i32 s{sSLOT}, s{sWAVE}, {SLOT}
    s_mov_b32 s{sRND}, 0""")
    if g.o.get("kprio", "1") == "1":
        e(f"s_cmp_lt_u32 s{sWAVE}, 6\ns_cbranch_scc1 L_noprio\ns_setprio 3\nL_noprio:")
    vG, vJ = 2, 3
    vSW, vSR = 4, 5
    vT0, vT1a, vT1b, vT2 = 6, 7, 8, 9
    e(f"""v_lshrrev_b32 v{vG}, 4, v{vL}
    v_and_b32 v{vJ}, 15, v{vL}
    v_lshlrev_b32 v{vSW}, 3, v{vL}
    v_add_u32 v{vSW}, s{sSLOT}, v{vSW}
    v_mul_u32_u24 v{vSR}, 528, v{vJ}
    v_lshl_add_u32 v{vSR}, v{vG}, 4, v{vSR}
    v_add_u32 v{vSR}, s{sSLOT}, v{vSR}
    v_lshrrev_b32 v{T}, 1, v{vG}
    v_lshlrev_b32 v{T}, 7, v{T}
    v_lshl_add_u32 v{T}, v{vJ}, 3, v{T}
    v_and_b32 v{T+1}, 1, v{vG}
    v_lshl_add_u32 v{T}, v{T+1}, 2, v{T}
    v_lshlrev_b32 v{vT0}, 1, v{T}
    v_lshlrev_b32 v{T}, 6, v{vG}
    v_lshl_add_u32 v{T+1}, v{vJ}, 2, v{T}
    v_add_u32 v{T+1}, 256, v{T+1}
    v_lshl_add_u32 v{T+2}, v{vJ}, 1, v{T}
    v_add_u32 v{T+2}, 256, v{T+2}
    v_cmp_gt_u32 vcc, 2, v{vG}
    v_cndmask_b32 v{vT1a}, v{T+2}, v{T+1}, vcc
    v_mov_b32 v{T+3}, 32
    v_cndmask_b32 v{T+3}, v{T+3}, 2, vcc
    v_add_u32 v{vT1b}, v{vT1a}, v{T+3}
    v_lshlrev_b32 v{vT1a}, 1, v{vT1a}
    v_lshlrev_b32 v{vT1b}, 1, v{vT1b}
    v_add_u32 v{T}, v{T}, v{vJ}
    v_add_u32 v{T}, 512, v{T}
    v_lshlrev_b32 v{vT2}, 1, v{T}""")
    g.mk_srd(SRD_WO, 58, 864*640*2)
    g.mk_srd(SRD_PF, 54, 2048*2048*2)
    e(f"""s_mov_b32 s{sWJ}, 0
    s_cmp_ge_u32 s{sRB}, 54
    s_cbranch_scc1 L_wj_skip
    s_cmp_ge_u32 s{sWAVE}, 5
    s_cbranch_scc1 L_wj_skip
    s_mov_b32 s{sWJ}, 1
    s_lshr_b32 s{sKS}, s{sRB}, 1
    s_and_b32 s{sLN}, s{sRB}, 1
    s_mul_i32 s{sLN}, s{sLN}, 5
    s_add_u32 s{sLN}, s{sLN}, s{sWAVE}
    s_lshr_b32 s{sA}, s{sKS}, 2
    s_and_b32 s{sB}, s{sKS}, 3
    s_mul_i32 s{sA}, s{sA}, 9
    s_lshl_b32 s{sC}, s{sB}, 1
    s_add_u32 s{sA}, s{sA}, s{sC}
    s_lshr_b32 s{sC}, s{sB}, 1
    s_add_u32 s{sA}, s{sA}, s{sC}
    s_add_u32 s{sB}, s{sA}, 1
    s_sub_u32 s{sC}, s{sKS}, 24
    s_mul_i32 s{sC}, s{sC}, 18
    s_add_u32 s{sC}, s{sC}, 4
    s_add_u32 s{sD}, s{sC}, 9
    s_cmp_ge_u32 s{sKS}, 24
    s_cselect_b32 s{sA}, s{sC}, s{sA}
    s_cselect_b32 s{sB}, s{sD}, s{sB}
    s_mul_i32 s{sA}, s{sA}, {16*1280}
    s_mul_i32 s{sB}, s{sB}, {16*1280}
    s_lshl_b32 s{sC}, s{sLN}, 7
    s_add_u32 s{sA}, s{sA}, s{sC}
    s_add_u32 s{sB}, s{sB}, s{sC}
    v_lshrrev_b32 v{T}, 3, v{vL}
    v_mul_u32_u24 v{T}, 1280, v{T}
    v_and_b32 v{T+1}, 7, v{vL}
    v_lshl_add_u32 v{T}, v{T+1}, 4, v{T}
    s_add_u32 m0, s{sSLOT}, {UOFF + 128}
    s_add_u32 s{sC}, s{sA}, {8*1280}
    buffer_load_dwordx4 v{T}, {srd(SRD_WO)}, s{sA} offen lds
    s_add_u32 m0, m0, 1024
    s_add_u32 s{sD}, s{sB}, {8*1280}
    buffer_load_dwordx4 v{T}, {srd(SRD_WO)}, s{sC} offen lds
    s_add_u32 m0, m0, 1024
    s_nop 0
    buffer_load_dwordx4 v{T}, {srd(SRD_WO)}, s{sB} offen lds
    s_add_u32 m0, m0, 1024
    s_nop 0
    buffer_load_dwordx4 v{T}, {srd(SRD_WO)}, s{sD} offen lds""")
    a.lab("L_wj_skip")
    e(f"v_lshlrev_b32 v{T}, 4, v{vL}\nv_add_u32 v{T}, L_gtab-{KNAME}, v{T}")
    for i in range(9):
        if i == 4: e(f"v_add_u32 v{T}, 4096, v{T}")
        if i == 8: e(f"v_add_u32 v{T}, 4096, v{T}")
        e(f"global_load_dwordx4 v[{GA+4*i}:{GA+4*i+3}], v{T}, s[62:63] offset:{1024*(i%4)}")
    PFM = g.o.get("pfw", "1")
    npf = 0
    TLB = int(g.o.get("tlb", 0))
    if TLB:
        e(f"""s_load_dwordx2 s[60:61], s[0:1], 96
        v_lshlrev_b32 v214, {TLB}, v{vL}
        s_lshr_b32 s{sA}, s{sRB}, 3
        s_lshl_b32 s{sA}, s{sA}, {TLB + 6}
        s_waitcnt lgkmcnt(0)""")
        g.mk_srd(56, 60, 2048*640*2)
        e(f"""s_cmp_eq_u32 s{sWAVE}, 5
        s_cbranch_scc0 L_tl1
        buffer_load_dword v219, v214, {srd(SRD_WS)}, s{sA} offen offset:2048
        L_tl1:
        s_cmp_eq_u32 s{sWAVE}, 6
        s_cbranch_scc0 L_tl2
        buffer_load_dword v219, v214, {srd(SRD_PF)}, s{sA} offen
        L_tl2:
        s_cmp_eq_u32 s{sWAVE}, 7
        s_cbranch_scc0 L_tl3
        buffer_load_dword v219, v214, s[56:59], s{sA} offen
        L_tl3:""")
    if PFM == "1":
        npf = 1
        e(f"""v_min_u32 v218, 33, v{vL}
        v_lshlrev_b32 v218, 7, v218
        s_lshl_b32 s{sA}, s{sRB}, 3
        s_add_u32 s{sA}, s{sA}, s{sWAVE}
        s_mul_i32 s{sA}, s{sA}, {34*128}
        buffer_load_dword v219, v218, {srd(SRD_WI)}, s{sA} offen""")
    if PFM == "2":
        npf = 1
        e(f"""v_lshrrev_b32 v218, 3, v{vL}
        v_mul_u32_u24 v218, 3456, v218
        v_and_b32 v219, 7, v{vL}
        v_lshl_add_u32 v218, v219, 7, v218
        s_lshr_b32 s{sA}, s{sRB}, 3
        s_lshl_b32 s{sA}, s{sA}, 3
        s_add_u32 s{sA}, s{sA}, s{sWAVE}
        s_and_b32 s{sC}, s2, 1
        s_mul_i32 s{sWP}, s{sA}, {8*3456}
        s_mul_i32 s{sD}, s{sC}, 896
        s_add_u32 s{sD}, s{sD}, 1664
        s_add_u32 s{sD}, s{sD}, s{sWP}
        buffer_load_dword v219, v218, {srd(SRD_WI)}, s{sD} offen
        s_add_u32 s{sPK}, s{sD}, {64*8*3456}
        s_mul_i32 s{sC}, s{sC}, 768
        s_add_u32 s{sWP}, s{sWP}, s{sC}""")
    g.stamp(0)
    PFW = False
    e(f"""v_and_b32 v216, 3, v{vL}
    v_lshlrev_b32 v216, 7, v216
    v_bfe_u32 v217, v{vL}, 2, {3 if g.o.get("pfl2") else 2}
    v_lshl_add_u32 v216, v217, 12, v216
    s_and_b32 s{sA}, s2, {6 if g.o.get("pfl2") else 7}
    s_lshl_b32 s{sA}, s{sA}, {2 if g.o.get("pfl2") else 3}
    s_lshr_b32 s{sC}, s{sRB}, 3
    s_add_u32 s{sA}, s{sA}, s{sC}
    s_lshl_b32 s{sA}, s{sA}, 3
    s_add_u32 s{sA}, s{sA}, s{sWAVE}
    s_lshl_b32 s{sPF}, s{sA}, {15 if g.o.get("pfl2") else 14}
    s_and_b32 s{sPK}, s2, 6
    s_lshl_b32 s{sPK}, s{sPK}, 9
    s_mov_b32 s{sPN}, 8""")
    def pf_touch():
        if g.o.get("nopf"): return
        L = a.newlab("Lpf")
        e(f"""s_cmp_eq_u32 s{sPN}, 0
        s_cbranch_scc1 {L}
        s_add_u32 s{sT2}, s{sPF}, s{sPK}
        buffer_load_dword v217, v216, {srd(SRD_PF)}, s{sT2} offen
        s_add_u32 s{sPK}, s{sPK}, 512
        s_and_b32 s{sPK}, s{sPK}, 4095
        s_sub_u32 s{sPN}, s{sPN}, 1""")
        a.lab(L)
    def pfq():
        if g.o.get("pfq", "1") == "1":
            e(f"""s_cmp_lg_u32 s{sRND}, 0
            s_cbranch_scc1 L_pfq
            v_lshrrev_b32 v30, 3, v{vL}
            v_lshlrev_b32 v30, 12, v30
            v_and_b32 v31, 7, v{vL}
            v_lshl_add_u32 v30, v31, 7, v30
            s_and_b32 s{sA}, s2, 6
            s_lshl_b32 s{sA}, s{sA}, 2
            s_lshr_b32 s{sC}, s{sRB}, 3
            s_add_u32 s{sA}, s{sA}, s{sC}
            s_lshl_b32 s{sA}, s{sA}, 3
            s_add_u32 s{sA}, s{sA}, s{sWAVE}
            s_lshl_b32 s{sA}, s{sA}, 15
            s_add_u32 s{sA}, s{sA}, s{sPK}
            buffer_load_dword v217, v30, {srd(SRD_PF)}, s{sA} offen
            s_add_u32 s{sPK}, s{sPK}, 1024
            s_and_b32 s{sPK}, s{sPK}, 4095
            s_mov_b32 s{sPN}, 6""")
            a.lab("L_pfq")
        else:
            for _ in range(2): pf_touch()
    NK = int(g.o.get("pfk", 0))
    kc = [0]
    def pf_k():
        kc[0] += 1
        if PFM == "2" and kc[0] <= 3:
            L = a.newlab("Lpw")
            e(f"s_cmp_lg_u32 s{sRND}, 0\ns_cbranch_scc1 {L}")
            if kc[0] == 1: e(f"buffer_load_dword v219, v215, {srd(SRD_WI)}, s{sPK} offen")
            if kc[0] == 2: e(f"buffer_load_dword v219, v215, {srd(SRD_WI)}, s{sWP} offen\ns_add_u32 s{sWP}, s{sWP}, {64*8*3456}")
            if kc[0] == 3: e(f"buffer_load_dword v219, v215, {srd(SRD_WI)}, s{sWP} offen")
            a.lab(L)
        if kc[0] > 6 - NK: pf_touch()
    vL16 = 11; vFL = 218; vDS = 22
    def xn_addr(sch, sdst):
        e(f"s_lshr_b32 s{sA}, s{sch}, 4\ns_mov_b32 s{sdst}, {WS_FXN}")
        for th in (7, 14, 20, 26, 32):
            e(f"s_cmp_ge_u32 s{sA}, {th}\ns_cselect_b32 s{sT}, 4096, 0\ns_add_u32 s{sdst}, s{sdst}, s{sT}")
    XF = 24
    def xn_load(): e(f"buffer_load_dwordx4 v[{XF}:{XF+3}], v{vFL}, {srd(SRD_WS)}, s{sF1} offen sc1")
    def xn_check():
        e(f"""v_xor_b32 v{XF}, s{sTAG}, v{XF}
        v_xor_b32 v{XF+1}, s{sTAG}, v{XF+1}
        v_xor_b32 v{XF+2}, s{sTAG}, v{XF+2}
        v_xor_b32 v{XF+3}, s{sTAG}, v{XF+3}
        v_or3_b32 v{XF}, v{XF}, v{XF+1}, v{XF+2}
        v_or_b32 v{XF}, v{XF}, v{XF+3}
        v_cmp_ne_u32 vcc, 0, v{XF}""")
    def u_dma(sch):
        e(f"""s_lshl_b32 s{sA}, s{sch}, 12
        s_add_u32 s{sA}, s{sA}, {WS_XNT}
        s_sub_u32 s{sC}, s{sA}, 4
        s_add_u32 m0, s{sSLOT}, {UOFF + UCP + 64}
        s_lshl_b32 s{sD}, s{sch}, 1""")
        for i in range(4): e(f"buffer_load_dwordx4 v{vL16}, {srd(SRD_WS)}, s{sA} offen offset:{1024*i} sc1 lds")
        e(f"s_add_u32 m0, s{sSLOT}, {UOFF + 64}\ns_nop 0")
        for i in range(4): e(f"buffer_load_dwordx4 v{vL16}, {srd(SRD_WS)}, s{sC} offen offset:{1024*i} sc1 lds")
        e(f"buffer_load_ushort v{vDS}, v{vZ}, {srd(SRD_DSK)}, s{sD} offen")
    e(f"""v_lshlrev_b32 v{vL16}, 4, v{vL}
    s_and_b32 s{sC2}, s{sWAVE}, 1
    s_add_u32 s{sC2}, s{sC2}, s{sD0}
    s_add_u32 s{sC2}, s{sC2}, 8
    s_mov_b32 s{sUF}, 0""")
    xn_addr(sCH, sF1); xn_addr(sC2, sF2)
    AR, PH, CRp, CIp = 24, 26, 28, 30
    W = 32
    def C(i): return W + 4*i
    def re(c): return f"v[{c}:{c+1}]"
    def im(c): return f"v[{c+2}:{c+3}]"
    tp = T
    TMP = 176
    def cexp_l(c, p, k):
        lit = hx(f2u(float(p))); tp = TMP + 4*k
        return [f"v_mul_f32 v{tp}, {lit}, v{AR}", f"v_mul_f32 v{tp+1}, {lit}, v{AR+1}",
        f"v_mul_f32 v{tp+2}, {lit}, v{PH}", f"v_mul_f32 v{tp+3}, {lit}, v{PH+1}",
        f"v_exp_f32 v{tp}, v{tp}", f"v_exp_f32 v{tp+1}, v{tp+1}",
        f"v_fract_f32 v{tp+2}, v{tp+2}", f"v_fract_f32 v{tp+3}, v{tp+3}",
        f"v_cos_f32 v{c}, v{tp+2}", f"v_cos_f32 v{c+1}, v{tp+3}",
        f"v_sin_f32 v{c+2}, v{tp+2}", f"v_sin_f32 v{c+3}, v{tp+3}",
        f"v_pk_mul_f32 {re(c)}, {re(c)}, v[{tp}:{tp+1}]", f"v_pk_mul_f32 {im(c)}, {im(c)}, v[{tp}:{tp+1}]"]
    def cmul_l(z, x, y, k):
        tp = TMP + 4*k
        assert z not in (x, y)
        return [f"v_pk_mul_f32 v[{tp}:{tp+1}], {im(x)}, {im(y)}",
        f"v_pk_mul_f32 v[{tp+2}:{tp+3}], {im(x)}, {re(y)}",
        f"v_pk_fma_f32 {re(z)}, {re(x)}, {re(y)}, v[{tp}:{tp+1}] neg_lo:[0,0,1] neg_hi:[0,0,1]",
        f"v_pk_fma_f32 {im(z)}, {re(x)}, {im(y)}, v[{tp+2}:{tp+3}]"]
    def put_l(c, row, neg, k):
        d = 192 + 2*k
        n = "-" if neg else ""
        return [f"v_cvt_pk_f16_f32 v{d}, v{c}, {n}v{c+2}", f"v_cvt_pk_f16_f32 v{d+1}, v{c+1}, {n}v{c+3}",
                f"ds_write_b64 v{vSW}, v[{d}:{d+1}] offset:{528*row}"]
    def batch(jobs):
        for i in range(0, len(jobs), 4):
            g.rr([j(k) for k, j in enumerate(jobs[i:i+4])])
    def J_mul(z, x, y, row=None, neg=False):
        return lambda k: cmul_l(z, x, y, k) + (put_l(z, row, neg, k) if row is not None else [])
    def J_put(c, row, neg): return lambda k: put_l(c, row, neg, k)
    E2F = 112
    E1F = 144
    DD = 12
    vSC = 23
    e(f"s_mul_i32 s{sTBL}, s{sWAVE}, {TSZ}\ns_add_u32 s{sTBL}, s{sTBL}, {TB}")
    e(f"s_waitcnt vmcnt({9+npf}) lgkmcnt(0)")
    if PFW:
        e(f"""v_lshrrev_b32 v218, 3, v{vL}
        v_mul_u32_u24 v218, 3456, v218
        v_and_b32 v219, 7, v{vL}
        v_lshl_add_u32 v218, v219, 7, v218
        s_lshr_b32 s{sA}, s{sRB}, 3
        s_lshl_b32 s{sA}, s{sA}, 3
        s_add_u32 s{sA}, s{sA}, s{sWAVE}
        s_and_b32 s{sC}, s2, 1
        s_mul_i32 s{sC}, s{sC}, 768
        s_mul_i32 s{sWP}, s{sA}, {8*3456}
        s_add_u32 s{sWP}, s{sWP}, s{sC}""")
    a.lab("L_kgen")
    g.stamp(8)
    e(f"s_mov_b32 s{sB}, 0xffff0000")
    e(f"""s_cmp_lg_u32 s{sRND}, 0
    s_cbranch_scc1 L_r0_skip
    s_mul_i32 s{sTAG}, s{sTAG}, 0x9E3779B1
    s_add_u32 s{sTAG}, s{sTAG}, 0x7F4A7C15
    s_cmp_eq_u32 s{sWJ}, 0
    s_cbranch_scc1 L_wj2_skip
    v_lshrrev_b32 v{E1F+16}, 2, v{vL}
    v_lshlrev_b32 v{E1F+16}, 7, v{E1F+16}
    v_and_b32 v{E1F+17}, 3, v{vL}
    v_lshl_add_u32 v{E1F+16}, v{E1F+17}, 3, v{E1F+16}
    v_add_u32 v{E1F+16}, s{sSLOT}, v{E1F+16}
    v_lshlrev_b32 v{E1F+17}, 4, v{vL}""")
    for df in range(4):
        for hf in range(2):
            e(f"ds_read_b64_tr_b16 v[{E1F+4*df+2*hf}:{E1F+4*df+2*hf+1}], v{E1F+16} offset:{UOFF + 128 + hf*2048 + df*32}")
    e(f"""s_lshl_b32 s{sA}, s{sLN}, 2
    s_mul_i32 s{sA}, s{sA}, {27*1024}
    s_lshl_b32 s{sC}, s{sKS}, 10
    s_add_u32 s{sA}, s{sA}, s{sC}
    s_add_u32 s{sA}, s{sA}, {WS_WOT}
    s_waitcnt lgkmcnt(0)""")
    for df in range(4):
        e(f"buffer_store_dwordx4 v[{E1F+4*df}:{E1F+4*df+3}], v{E1F+17}, {srd(SRD_WS)}, s{sA} offen sc1\ns_add_u32 s{sA}, s{sA}, {27*1024}")
    a.lab("L_wj2_skip")
    if PFW:
        e(f"""buffer_load_dword v219, v218, {srd(SRD_WI)}, s{sWP} offen
        s_add_u32 s{sWP}, s{sWP}, {64*8*3456}
        buffer_load_dword v219, v218, {srd(SRD_WI)}, s{sWP} offen""")
    a.lab("L_r0_skip")
    e(f"""v_mov_b32 v215, v218
    s_sub_u32 s{sA}, s{sF2}, s{sF1}
    v_lshrrev_b32 v{vFL}, 5, v{vL}
    v_mul_lo_u32 v{vFL}, v{vFL}, s{sA}
    v_and_b32 v214, 31, v{vL}
    v_lshl_add_u32 v{vFL}, v214, 7, v{vFL}""")
    g.stamp(9)
    e(f"""v_lshlrev_b32 v{T+8}, 16, v{T+8}
    v_mul_f32 v{T+8}, {hx(f2u(LOG2E))}, v{T+8}
    v_exp_f32 v{T+8}, v{T+8}
    v_lshlrev_b32 v{AR}, 16, v{T+4}
    v_and_b32 v{AR+1}, s{sB}, v{T+4}
    v_cvt_pk_bf16_f32 v{T+8}, v{T+8}, v{T+8}
    v_mul_f32 v{AR}, {hx(f2u(LOG2E))}, v{AR}
    v_mul_f32 v{AR+1}, {hx(f2u(LOG2E))}, v{AR+1}
    v_lshlrev_b32 v{T+8}, 16, v{T+8}
    v_exp_f32 v{AR}, v{AR}
    v_exp_f32 v{AR+1}, v{AR+1}
    v_lshlrev_b32 v{PH}, 16, v{T+5}
    v_and_b32 v{PH+1}, s{sB}, v{T+5}
    v_cvt_pk_bf16_f32 v{T+4}, v{AR}, v{AR+1}
    v_lshlrev_b32 v{AR}, 16, v{T+4}
    v_and_b32 v{AR+1}, s{sB}, v{T+4}
    v_mul_f32 v{AR}, v{AR}, v{T+8}
    v_mul_f32 v{AR+1}, v{AR+1}, v{T+8}
    v_mul_f32 v{AR}, {hx(f2u(-LOG2E))}, v{AR}
    v_mul_f32 v{AR+1}, {hx(f2u(-LOG2E))}, v{AR+1}
    v_mul_f32 v{PH}, v{PH}, v{T+8}
    v_mul_f32 v{PH+1}, v{PH+1}, v{T+8}
    v_mul_f32 v{PH}, {hx(f2u(1/(2*math.pi)))}, v{PH}
    v_mul_f32 v{PH+1}, {hx(f2u(1/(2*math.pi)))}, v{PH+1}
    v_lshlrev_b32 v{CRp}, 16, v{T+6}
    v_and_b32 v{CRp+1}, s{sB}, v{T+6}
    v_lshlrev_b32 v{CIp}, 16, v{T+7}
    v_and_b32 v{CIp+1}, s{sB}, v{T+7}
    v_max3_f32 v{T}, abs(v{CRp}), abs(v{CRp+1}), abs(v{CIp})
    v_max_f32 v{T}, abs(v{CIp+1}), v{T}""")
    for m in ("row_ror:8", "row_ror:4", "row_ror:2", "row_ror:1"):
        e(f"v_max_f32_dpp v{T}, v{T}, v{T} {m} row_mask:0xf bank_mask:0xf")
    e(f"""v_readlane_b32 s{sA}, v{T}, 0
    v_readlane_b32 s{sC}, v{T}, 16
    v_readlane_b32 s{sD}, v{T}, 32
    v_readlane_b32 s{sT}, v{T}, 48
    s_max_u32 s{sA}, s{sA}, s{sC}
    s_max_u32 s{sD}, s{sD}, s{sT}
    s_max_u32 s{sA}, s{sA}, s{sD}
    v_frexp_exp_i32_f32 v{T}, s{sA}
    v_sub_u32 v{T+1}, 0, v{T}
    v_ldexp_f32 v{C(0)}, v{CRp}, v{T+1}
    v_ldexp_f32 v{C(0)+1}, v{CRp+1}, v{T+1}
    v_ldexp_f32 v{C(0)+2}, v{CIp}, v{T+1}
    v_ldexp_f32 v{C(0)+3}, v{CIp+1}, v{T+1}
    v_add_f32 v{vSC}, v{T+8}, v{T+8}
    v_ldexp_f32 v{vSC}, v{vSC}, v{T}""")
    e(f"""s_cmp_lg_u32 s{sRND}, 0
    s_cbranch_scc1 L_np2
    s_cmp_lt_u32 s{sWAVE}, 6
    s_cbranch_scc1 L_np2
    s_add_u32 s{sCH}, s{sCH}, 2""")
    param_loads()
    e(f"s_mov_b32 s{sB}, 0xffff0000")
    a.lab("L_np2")
    Tq = lambda q: C(q)
    P = lambda j: C(8 + j - 1)
    V = {1: C(16), 2: C(17), 4: C(18), 8: C(19)}
    SO = lambda k: E1F + 4*k
    pf_k()
    g.rr([cexp_l(P(1), 8, 0), cexp_l(V[1], 128, 1)])
    e(f"v_mov_b32 v{SO(0)}, 1.0\nv_mov_b32 v{SO(0)+1}, 1.0\nv_mov_b32 v{SO(0)+2}, 0\nv_mov_b32 v{SO(0)+3}, 0")
    batch([J_mul(P(2), P(1), P(1), 2, True), J_mul(V[2], V[1], V[1]), J_mul(Tq(1), Tq(0), V[1]), J_put(SO(0), 0, True)])
    batch([J_mul(P(4), P(2), P(2), 4, True), J_mul(P(3), P(2), P(1), 3, True), J_mul(V[4], V[2], V[2]), J_put(P(1), 1, True)])
    pf_k()
    batch([J_mul(P(8), P(4), P(4), 8, True), J_mul(P(5), P(4), P(1), 5, True), J_mul(P(6), P(4), P(2), 6, True), J_mul(P(7), P(4), P(3), 7, True)])
    batch([J_mul(SO(k % 4), P(8), P(k + 1), 9 + k, True) for k in range(7)] + [J_mul(V[8], V[4], V[4])])
    for ks in range(8):
        e(f"ds_read_b128 v[{E2F+4*ks}:{E2F+4*ks+3}], v{vSR} offset:{64*ks}")
    pf_k()
    g.stamp(10)
    R = P
    g.rr([cexp_l(R(1), 1, 0), cmul_l(Tq(2), Tq(0), V[2], 1) + cmul_l(Tq(4), Tq(0), V[4], 1) + cmul_l(Tq(5), Tq(1), V[4], 1),
          cmul_l(Tq(3), Tq(1), V[2], 2) + put_l(Tq(0), 0, False, 2) + put_l(Tq(1), 8, False, 2)])
    batch([J_mul(R(2), R(1), R(1)), J_mul(Tq(6), Tq(2), V[4]), J_mul(Tq(7), Tq(3), V[4]), J_mul(SO(0), Tq(0), R(1), 1)])
    batch([J_mul(R(4), R(2), R(2)), J_mul(R(3), R(2), R(1)), J_mul(SO(1), Tq(1), R(1), 9), J_mul(SO(2), Tq(0), R(2), 2)])
    pf_k()
    batch([J_mul(R(5), R(4), R(1)), J_mul(R(6), R(4), R(2)), J_mul(R(7), R(4), R(3)), J_mul(SO(3), Tq(1), R(2), 10)])
    batch([J_mul(SO(k % 4), Tq(k & 1), R(3 + (k >> 1)), 8*(k & 1) + 3 + (k >> 1)) for k in range(10)])
    def tile_rd():
        for ks in range(8):
            e(f"ds_read_b128 v[{E1F+4*ks}:{E1F+4*ks+3}], v{vSR} offset:{64*ks}")
    def tile_mma(nafter):
        for ks in range(8):
            e(f"s_waitcnt lgkmcnt({7-ks})")
            e(f"v_mfma_f32_16x16x32_f16 v[{DD}:{DD+3}], v[{E1F+4*ks}:{E1F+4*ks+3}], v[{E2F+4*ks}:{E2F+4*ks+3}], {'0' if ks == 0 else f'v[{DD}:{DD+3}]'}")
    def tile_fin():
        for r in range(4): e(f"v_mul_f32 v{DD+r}, v{DD+r}, v{vSC}")
        e(f"v_cvt_pk_bf16_f32 v{DD}, v{DD}, v{DD+1}\nv_cvt_pk_bf16_f32 v{DD+1}, v{DD+2}, v{DD+3}")
    def taddr(v, d): e(f"v_add_u32 v{d}, s{sTBL}, v{v}")
    SO2 = lambda k: 200 + 4*k
    tile_rd(); tile_mma(0); pf_k()
    g.stamp(11)
    jobs = []
    for q in range(2):
        jobs.append(J_put(Tq(2 + q), 4*q, False))
        for r in range(1, 4): jobs.append(J_mul(SO2(len(jobs) % 4), Tq(2 + q), R(2*r), 4*q + r))
    for q in range(4):
        jobs.append(J_put(Tq(4 + q), 8 + 2*q, False))
        jobs.append(J_mul(SO2(len(jobs) % 4), Tq(4 + q), R(4), 8 + 2*q + 1))
    batch(jobs[:4])
    tile_fin(); taddr(vT0, DD+2)
    e(f"ds_write_b64 v{DD+2}, v[{DD}:{DD+1}]")
    pf_k()
    batch(jobs[4:])
    tile_rd(); tile_mma(0)
    xn_load()
    jobs = [J_mul(R(1), Tq(0), V[8], 0)] + [J_mul(SO2(q % 4), Tq(q), V[8], q) for q in range(1, 8)]
    batch(jobs[:4])
    tile_fin(); taddr(vT1a, DD+2); taddr(vT1b, DD+3)
    e(f"ds_write_b32 v{DD+2}, v{DD}\nds_write_b32 v{DD+3}, v{DD+1}")
    batch(jobs[4:])
    batch([J_mul(SO2(0), R(1), V[8], 8)])
    tile_rd(); tile_mma(0)
    g.stamp(12)
    e(f"""s_waitcnt vmcnt(0)
    s_cmp_lg_u32 s{sUF}, 0
    s_cbranch_scc1 L_uf_skip""")
    xn_check()
    e(f"""s_cbranch_vccnz L_uf_skip
    s_mov_b32 s{sUF}, 1
    s_add_u32 s{sT2}, s{sD0}, s{sWAVE}""")
    u_dma(sT2)
    a.lab("L_uf_skip")
    e(f"""s_cmp_lg_u32 s{sRND}, 0
    s_cbranch_scc1 L_wj3_skip
    s_cmp_eq_u32 s{sWJ}, 0
    s_cbranch_scc1 L_wj3_skip
    s_lshl_b32 s{sA}, s{sLN}, 5
    s_add_u32 s{sA}, s{sA}, s{sKS}
    s_lshl_b32 s{sA}, s{sA}, {FS}
    s_add_u32 s{sA}, s{sA}, {WS_FWO}""")
    g.flag_store(sA, 28)
    a.lab("L_wj3_skip")
    if g.o.get("pfqe", "0") == "1": pfq()
    tile_fin(); taddr(vT2, DD+2)
    e(f"""ds_write_b16 v{DD+2}, v{DD}
    ds_write_b16_d16_hi v{DD+2}, v{DD} offset:32
    ds_write_b16 v{DD+2}, v{DD+1} offset:64
    ds_write_b16_d16_hi v{DD+2}, v{DD+1} offset:96
    v_mov_b32 v{DD+3}, s{sTBL}
    ds_write_b32 v{DD+3}, v{vZ} offset:{2*ZI}""")
    e(f"""s_cmp_lg_u32 s{sRND}, 0
    s_cbranch_scc1 L_kgen_done
    s_cmp_lt_u32 s{sWAVE}, 6
    s_cbranch_scc1 L_kgen_done
    s_mov_b32 s{sRND}, 1
    s_add_u32 s{sTBL}, s{sTBL}, {2*TSZ}
    s_branch L_kgen""")
    a.lab("L_kgen_done")
    g.stamp(1)
    vKA, vUB, vKW, vZW, vEU, vES, vYO = 60, 61, 62, 63, 65, 66, 67
    vKAc, vUBc = 69, 70
    vDP = 172
    e(f"s_add_u32 s{sCH}, s{sD0}, s{sWAVE}")
    e(f"""v_and_b32 v{T}, 1, v{vJ}
    v_mul_u32_u24 v{vKA}, {KCP}, v{T}
    v_lshrrev_b32 v{T+1}, 1, v{vJ}
    v_lshlrev_b32 v{T+1}, 6, v{T+1}
    v_lshl_add_u32 v{T+1}, v{vG}, 4, v{T+1}
    v_sub_u32 v{vKA}, v{vKA}, v{T+1}
    v_add_u32 v{vKA}, {4528 - 3584}, v{vKA}
    v_add_u32 v{vKA}, s{sSLOT}, v{vKA}
    v_mul_u32_u24 v{vUB}, {UCP}, v{T}
    v_or_b32 v{T+1}, 1, v{vJ}
    v_lshl_add_u32 v{vUB}, v{T+1}, 2, v{vUB}
    v_lshlrev_b32 v{T+1}, 4, v{vG}
    v_sub_u32 v{vUB}, v{vUB}, v{T+1}
    v_add_u32 v{vUB}, {UOFF + 52 + 448}, v{vUB}
    v_add_u32 v{vUB}, s{sSLOT}, v{vUB}
    v_add_u32 v{vKW}, s{sSLOT}, v{vL16}
    v_and_b32 v{T}, 31, v{vL}
    v_min_u32 v{T}, 29, v{T}
    v_lshlrev_b32 v{T}, 4, v{T}
    v_lshrrev_b32 v{T+1}, 5, v{vL}
    v_mul_u32_u24 v{T+1}, {KCP}, v{T+1}
    v_add3_u32 v{vZW}, v{T}, v{T+1}, s{sSLOT}
    v_lshlrev_b32 v{vES}, 7, v{vG}
    v_lshl_add_u32 v{vES}, v{vJ}, 2, v{vES}
    v_add_u32 v{vES}, s{sSLOT}, v{vES}
    v_add_u32 v{vEU}, {UOFF + UCP + 64}, v{vES}
    v_lshrrev_b32 v{T}, 3, v{vL}
    s_mov_b32 s{sA}, {640*128}
    v_mul_lo_u32 v{vYO}, v{T}, s{sA}
    v_and_b32 v{T}, 7, v{vL}
    v_lshl_add_u32 v{vYO}, v{T}, 4, v{vYO}""")
    ZQ = 72
    for i in range(4): e(f"v_mov_b32 v{ZQ+i}, 0")
    e(f"""v_and_b32 v{T}, 3, v{vL}
    v_lshlrev_b32 v{T}, 4, v{T}
    v_bfe_u32 v{T+1}, v{vL}, 2, 1
    v_mul_u32_u24 v{T+1}, {UCP}, v{T+1}
    v_add3_u32 v{T}, v{T}, v{T+1}, s{sSLOT}
    ds_write_b128 v{T}, v[{ZQ}:{ZQ+3}] offset:{UOFF}
    s_mov_b32 s{sRND}, 0
    s_mov_b32 s{sNIT}, 8
    s_mov_b32 s{sMO}, 0
    s_add_u32 s{sCH}, s{sD0}, s{sWAVE}
    s_mul_i32 s{sTBL}, s{sWAVE}, {TSZ}
    s_add_u32 s{sTBL}, s{sTBL}, {TB}""")
    for i in range(36): e(f"v_add_u32 v{GA+i}, s{sTBL}, v{GA+i}")
    e("s_setprio 0")
    g.stamp(2)
    if g.o.get("pfqe", "0") == "2": pfq()
    AF = 76
    BF = 108
    AC = 140
    GV = 76
    OQ = 112
    a.lab("L_conv")
    for m in range(4):
        for ee in range(9):
            e(f"ds_read_u16 v{GV+9*m+ee}, v{GA+9*m+ee}")
        if m % 2 == 1 or True:
            e("s_waitcnt lgkmcnt(0)")
            q = OQ + 8*(m & 1)
            b = GV + 9*m
            for i in range(4):
                e(f"v_lshl_or_b32 v{q+i}, v{b+2*i+2}, 16, v{b+2*i+1}")
                e(f"v_lshl_or_b32 v{q+4+i}, v{b+2*i+1}, 16, v{b+2*i}")
            e(f"ds_write_b128 v{vKW}, v[{q}:{q+3}] offset:{1024*m}\nds_write_b128 v{vKW}, v[{q+4}:{q+7}] offset:{KCP + 1024*m}")
    e(f"ds_write_b128 v{vZW}, v[{ZQ}:{ZQ+3}] offset:4096")
    e(f"""v_mov_b32 v{vKAc}, v{vKA}
    v_mov_b32 v{vUBc}, v{vUB}
    v_mov_b32 v{T}, s{sSLOT}""")
    g.stamp(13)
    e(f"s_cmp_lg_u32 s{sUF}, 0\ns_cbranch_scc1 L_nofetch")
    e(f"s_mov_b32 s{sSPIN}, {SPIN_MAX}")
    a.lab("L_xpoll")
    xn_load()
    e("s_waitcnt vmcnt(0)")
    xn_check()
    e(f"""s_cbranch_vccz L_xpolld
    s_mov_b64 exec, vcc
    s_sleep {g.o.get("xslp", 12)}
    s_sub_u32 s{sSPIN}, s{sSPIN}, 1
    s_cmp_lg_u32 s{sSPIN}, 0
    s_cbranch_scc1 L_xpoll""")
    a.lab("L_xpolld")
    e("s_mov_b64 exec, -1")
    g.stamp(3)
    u_dma(sCH)
    e(f"s_mov_b32 s{sUF}, 1")
    a.lab("L_nofetch")
    for i in range(32): e(f"v_mov_b32 v{AC+i}, 0")
    e(f"""s_mov_b32 s{sCNT}, s{sNIT}
    v_subrev_u32 v{vKAc}, s{sMO}, v{vKAc}
    v_subrev_u32 v{vUBc}, s{sMO}, v{vUBc}
    s_waitcnt vmcnt(0)
    ds_write_b32 v{T}, v{vZ} offset:{UOFF + 64}
    v_lshlrev_b32 v{vDP}, 16, v{vDS}
    v_mov_b32 v{vDP+1}, v{vDP}""")
    if g.o.get("pfqe", "0") == "0": pfq()
    for _ in range(int(g.o.get("pfx", 0))): pf_touch()
    if g.o.get("swt", "0") == "1":
        e(f"""s_cmp_lg_u32 s{sRND}, 0
        s_cbranch_scc1 L_swt
        s_lshr_b32 s{sA}, s{sRB}, 3
        s_lshl_b32 s{sA}, s{sA}, 3
        s_add_u32 s{sA}, s{sA}, s{sWAVE}
        s_and_b32 s{sC}, s2, 1
        s_mul_i32 s{sD}, s{sC}, {24*27*1024}
        s_mul_i32 s{sC}, s{sC}, 27
        s_sub_u32 s{sC}, 81, s{sC}
        s_mul_i32 s{sA}, s{sA}, s{sC}
        s_lshl_b32 s{sA}, s{sA}, 7
        s_add_u32 s{sA}, s{sA}, s{sD}
        s_add_u32 s{sA}, s{sA}, {WS_WOT}
        v_min_u32 v30, 53, v{vL}
        v_lshlrev_b32 v30, 7, v30
        buffer_load_dword v217, v30, {srd(SRD_WS)}, s{sA} offen sc1
        v_min_u32 v31, 26, v{vL}
        v_lshlrev_b32 v31, 7, v31
        s_add_u32 s{sA}, s{sA}, {54*128}
        buffer_load_dword v217, v31, {srd(SRD_WS)}, s{sA} offen sc1""")
        a.lab("L_swt")
    NZ = int(g.o.get("nz", 0))
    if NZ:
        e(f"""s_lshr_b32 s{sA}, s{sRB}, 3
        s_lshl_b32 s{sA}, s{sA}, 3
        s_add_u32 s{sA}, s{sA}, s{sWAVE}
        s_mul_i32 s{sA}, s{sA}, 27
        v_min_u32 v28, 26, v{vL}
        v_add_u32 v28, s{sA}, v28
        v_mul_u32_u24 v29, 1821, v28
        v_lshrrev_b32 v29, 20, v29
        v_mul_u32_u24 v27, 576, v29
        v_sub_u32 v28, v28, v27
        s_mov_b32 s{sA}, {32*18432}
        v_mul_lo_u32 v29, v29, s{sA}
        v_lshl_add_u32 v28, v28, 7, v29
        s_and_b32 s{sC}, s2, 1
        s_mul_i32 s{sC}, s{sC}, {3*32*18432}
        s_and_b32 s{sD}, s2, 6
        s_lshl_b32 s{sD}, s{sD}, 2
        s_add_u32 s{sD}, s{sD}, 8
        s_and_b32 s{sD}, s{sD}, 31
        s_mul_i32 s{sD}, s{sD}, 18432
        s_add_u32 s{sWP}, s{sC}, s{sD}
        s_add_u32 s{sWP}, s{sWP}, {WS_Z2}""")
    g.stamp(4)
    a.lab("L_mu0")
    def rd(m):
        return [f"ds_read_b128 v[{AF+4*m}:{AF+4*m+3}], v{vKAc} offset:{512*(7-m)}",
                f"ds_read_b64 v[{BF+4*m}:{BF+4*m+1}], v{vUBc} offset:{512*m}",
                f"ds_read_b64 v[{BF+4*m+2}:{BF+4*m+3}], v{vUBc} offset:{512*m+8}"]
    for m in range(5):
        for s in rd(m): e(s)
    issued = 5
    for m in range(8):
        e(f"s_waitcnt lgkmcnt({3*(issued-1-m)})")
        pairs = [(m, b) for b in range(m+1) if m + b <= 7] + [(u, m) for u in range(m) if u + m <= 7]
        for k, (u, b) in enumerate(pairs):
            c = AC + 4*(u + b)
            e(f"v_mfma_f32_16x16x32_bf16 v[{c}:{c+3}], v[{AF+4*u}:{AF+4*u+3}], v[{BF+4*b}:{BF+4*b+3}], v[{c}:{c+3}]")
        if issued < 8:
            for s in rd(issued): e(s)
            issued += 1
    pf_touch()
    if NZ:
        e(f"""s_cmp_gt_u32 s{sCNT}, {NZ}
        s_cbranch_scc1 L_nz
        s_cmp_lg_u32 s{sRND}, 0
        s_cbranch_scc1 L_nz
        buffer_load_dword v217, v28, {srd(SRD_WS)}, s{sWP} offen sc1
        s_add_u32 s{sWP}, s{sWP}, {4*18432}""")
        a.lab("L_nz")
    e(f"""v_subrev_u32 v{vKAc}, 64, v{vKAc}
    v_subrev_u32 v{vUBc}, 64, v{vUBc}
    s_sub_u32 s{sCNT}, s{sCNT}, 1
    s_cmp_lg_u32 s{sCNT}, 0
    s_cbranch_scc1 L_mu0""")
    g.stamp(5)
    e(f"""s_cmp_eq_u32 s{sRND}, 0
    s_cbranch_scc1 L_epi
    s_cmp_lt_u32 s{sWAVE}, 2
    s_cbranch_scc1 L_red_rd""")
    for c in range(8): e(f"ds_write_b128 v{vKW}, v[{AC+4*c}:{AC+4*c+3}] offset:{1024*c}")
    e("s_waitcnt lgkmcnt(0)\ns_barrier\ns_branch L_conv_done")
    a.lab("L_red_rd")
    e("s_barrier")
    for c in range(8): e(f"ds_read_b128 v[{BF+4*c}:{BF+4*c+3}], v{vKW} offset:{2*SLOT + 1024*c}")
    for c in range(8):
        e(f"s_waitcnt lgkmcnt({7-c})")
        e(f"v_pk_add_f32 v[{AC+4*c}:{AC+4*c+1}], v[{AC+4*c}:{AC+4*c+1}], v[{BF+4*c}:{BF+4*c+1}]\nv_pk_add_f32 v[{AC+4*c+2}:{AC+4*c+3}], v[{AC+4*c+2}:{AC+4*c+3}], v[{BF+4*c+2}:{BF+4*c+3}]")
    a.lab("L_epi")
    UV = AF
    for c in range(8):
        e(f"ds_read2_b32 v[{UV+2*c}:{UV+2*c+1}], v{vEU} offset0:{128*c % 256} offset1:{(128*c + 16) % 256}" if c < 2 else "")
    for c in range(2, 8):
        e(f"ds_read_b32 v{UV+2*c}, v{vEU} offset:{512*c}\nds_read_b32 v{UV+2*c+1}, v{vEU} offset:{512*c+64}")
    e(f"""s_mov_b32 s{sB}, 0xffff0000
    s_waitcnt lgkmcnt(0)
    s_cmp_lg_u32 s{sRND}, 0
    s_cbranch_scc1 L_nou2
    s_cmp_ge_u32 s{sWAVE}, 4
    s_cbranch_scc1 L_nou2""")
    u_dma(sC2)
    a.lab("L_nou2")
    for c in range(8):
        for h in range(2):
            y = AC + 4*c + 2*h; u = UV + 2*c + h
            p0, p1 = T, T+2
            p0 = T + 2*h
            e(f"""v_lshlrev_b32 v{p0}, 16, v{u}
            v_and_b32 v{p0+1}, s{sB}, v{u}
            v_pk_fma_f32 v[{y}:{y+1}], v[{p0}:{p0+1}], v[{vDP}:{vDP+1}], v[{y}:{y+1}]
            v_cvt_pk_bf16_f32 v{y}, v{y}, v{y+1}
            ds_write_b32 v{vES}, v{y} offset:{512*c + 64*h}""")
    for i in range(4):
        e(f"ds_read_b128 v[{BF+4*i}:{BF+4*i+3}], v{vKW} offset:{1024*i}")
    e(f"""s_lshl_b32 s{sA}, s{sCH}, 7
    s_add_u32 s{sA}, s{sA}, {WS_YA}""")
    for i in range(4):
        e(f"""s_waitcnt lgkmcnt({3-i})
        buffer_store_dwordx4 v[{BF+4*i}:{BF+4*i+3}], v{vYO}, {srd(SRD_WS)}, s{sA} offen sc1
        s_add_u32 s{sA}, s{sA}, {8*640*128}""")
    pf_touch(); pf_touch()
    g.stamp(6)
    e(f"""s_cmp_lg_u32 s{sRND}, 0
    s_cbranch_scc1 L_conv_done
    s_cmp_ge_u32 s{sWAVE}, 4
    s_cbranch_scc1 L_conv_idle
    s_barrier
    s_mov_b32 s{sRND}, 1
    s_mov_b32 s{sNIT}, 4
    s_lshr_b32 s{sMO}, s{sWAVE}, 1
    s_lshl_b32 s{sMO}, s{sMO}, 8
    s_and_b32 s{sA}, s{sWAVE}, 1
    s_add_u32 s{sCH}, s{sD0}, 8
    s_add_u32 s{sCH}, s{sCH}, s{sA}
    s_add_u32 s{sA}, s{sA}, 8
    s_sub_u32 s{sA}, s{sA}, s{sWAVE}
    s_mul_i32 s{sA}, s{sA}, {TSZ}""")
    for i in range(36): e(f"v_add_u32 v{GA+i}, s{sA}, v{GA+i}")
    e("s_branch L_conv")
    a.lab("L_conv_idle")
    if g.o.get("zpf", "1") == "1":
        e(f"""s_lshr_b32 s{sA}, s{sRB}, 3
        s_lshl_b32 s{sA}, s{sA}, 2
        s_add_u32 s{sA}, s{sA}, s{sWAVE}
        s_sub_u32 s{sA}, s{sA}, 4
        s_mul_i32 s{sA}, s{sA}, 54
        v_min_u32 v30, 53, v{vL}
        v_add_u32 v30, s{sA}, v30
        v_mul_u32_u24 v31, 1821, v30
        v_lshrrev_b32 v31, 20, v31
        v_mul_u32_u24 v29, 576, v31
        v_sub_u32 v30, v30, v29
        s_mov_b32 s{sA}, {32*18432}
        v_mul_lo_u32 v31, v31, s{sA}
        v_lshl_add_u32 v30, v30, 7, v31
        s_and_b32 s{sC}, s2, 1
        s_mul_i32 s{sC}, s{sC}, {3*32*18432}
        s_add_u32 s{sC}, s{sC}, {WS_Z2}
        s_and_b32 s{sD}, s2, 6
        s_lshl_b32 s{sD}, s{sD}, 2
        s_add_u32 s{sD}, s{sD}, {int(g.o.get("zp0", 8 + 4*int(g.o.get("nz", 0))))}""")
        for i in range((32 - int(g.o.get("zp0", 8 + 4*int(g.o.get("nz", 0))))) // 4):
            e(f"""s_and_b32 s{sD}, s{sD}, 31
            s_mul_i32 s{sA}, s{sD}, 18432
            s_add_u32 s{sA}, s{sA}, s{sC}
            buffer_load_dword v217, v30, {srd(SRD_WS)}, s{sA} offen sc1
            s_add_u32 s{sD}, s{sD}, 4""")
    if g.o.get("hwarm"):
        e(f"""s_lshl_b32 s{sA}, s{sRB}, 2
        s_add_u32 s{sA}, s{sA}, s{sWAVE}
        s_sub_u32 s{sA}, s{sA}, 4
        s_mul_i32 s{sA}, s{sA}, {108*128}
        s_add_u32 s{sA}, s{sA}, {WS_H}
        v_min_u32 v216, 53, v{vL}
        v_lshlrev_b32 v216, 7, v216
        buffer_load_dword v217, v216, {srd(SRD_WS)}, s{sA} offen sc1
        s_add_u32 s{sA}, s{sA}, {54*128}
        buffer_load_dword v217, v216, {srd(SRD_WS)}, s{sA} offen sc1""")
    e("s_barrier\ns_barrier")
    a.lab("L_conv_done")
    if g.o.get("dssm"): e(f"s_sleep {g.o['dssm']}")
    e(f"""s_waitcnt vmcnt(0)
    s_barrier
    s_cmp_lg_u32 s{sWAVE}, 0
    s_cbranch_scc1 L_end
    s_lshl_b32 s{sA}, s{sRB}, {FS}
    s_add_u32 s{sA}, s{sA}, {WS_FY}""")
    g.flag_store(sA, T)
    g.stamp(7)
    e("s_branch L_end")


def gtab():
    import numpy as np
    def bf16r(l):
        u = int(np.float32(l).view(np.uint32))
        u = (u + 0x7FFF + ((u >> 16) & 1)) >> 16
        return u
    out = []
    for q in range(9):
        for lane in range(64):
            for k in range(4):
                m, ee = divmod(4*q + k, 9)
                l = 2047 - 8*(lane + 64*m) - ee
                idx = ZI if l < 0 else (l if l < 128 else bf16r(l) - 0x4300 + 128)
                out.append(2*idx)
    return out
```

```python
import sys, math, struct
from asmlib import Asm

KNAME = "parallel_sum__ssm_conv_s4d__mixer_gmlp__prompt_kernel"
def f2u(x): return struct.unpack("<I", struct.pack("<f", x))[0]
def hx(x): return f"0x{x:08x}"

WS_EPOCH = 0
WS_FXN   = 0xE0000
WS_FZ2   = 0x20000
WS_FH    = 0x40000
WS_FY    = 0x60000
WS_FWO   = 0x70000
WS_WOT   = 0xF00000 - 0x20000
WS_STATS = 0x80000
WS_XNT   = 0x100000
WS_Z2    = 0x400000
WS_H     = 0x800000
WS_YA    = 0xC00000
WS_DBG   = 0x1000000
WS_SIZE  = 0x2000000

FS = 7
XT = 0; RING1 = 81920; S1SZ = 20480; RSTAB = RING1 + 3*S1SZ
NA = 8; BRING = 0; ABASE = 81920; NB = 4; BSZ = 18432
HB = 49152; YAB = 16384; XB = 32768

sWAVE, sRB, sCB, sTAG, sT = 3, 4, 5, 6, 7
SRD_X, SRD_WIN, SRD_WSP, SRD_WOUT, SRD_OUT, SRD_WS, SRD_BSP = 8, 12, 16, 20, 24, 28, 32
def srd(n): return f"s[{n}:{n+3}]"
sW, sMH, sNH = 66, 67, 68
sWSLOT, sWSOFF, sWSL = 69, 70, 71
sXOFF, sROFF, sCNT = 72, 73, 74
sK1 = 76
sA, sB, sC, sD = 78, 79, 80, 81
sSPIN = 82
sMASK = 84
sE0 = 86
sTM = 88
sTM0 = 90
sT2 = 92
sW0 = 83
SPIN_MAX = 200000

class G:
    def __init__(self, opts):
        self.a = Asm(); self.o = opts; self.nstamp = 0
    def e(self, s):
        if self.o.get("nodma"):
            s = "\n".join(l for l in s.split("\n") if not l.strip().endswith(" lds"))
        if self.o.get("ntx"):
            s = s.replace(f"{srd(SRD_X)}, s{sC} offen", f"{srd(SRD_X)}, s{sC} offen nt")
        if self.o.get("novalu") and getattr(self, "inpro", False):
            s = "\n".join(l for l in s.split("\n") if not (l.strip().startswith("v_dot2") or l.strip().startswith("v_cvt_pk_bf16_f32 v4") or l.strip().startswith("v_cvt_pk_bf16_f32 v5") or l.strip().startswith("v_cvt_pk_bf16_f32 v6") or l.strip().startswith("v_cvt_pk_bf16_f32 v7")))
        if getattr(self, "inssm", False):
            if self.o.get("s_nomfma"): s = "\n".join(l for l in s.split("\n") if "v_mfma_f32_16x16x32_bf16" not in l)
            if self.o.get("s_nopk"): s = "\n".join(l for l in s.split("\n") if not l.strip().startswith("v_pk_") and "cvt_pk_f16" not in l)
            if self.o.get("s_nolds"): s = "\n".join(l for l in s.split("\n") if not (l.strip().startswith("ds_read_b128 v[") and "v69" in l) and not (l.strip().startswith("ds_read_b64 v[") and "v70" in l))
        if self.o.get("nosc1"):
            s = s.replace(" sc1 lds", " lds")
        self.a.e(s)

    def capture(self, fn):
        old = self.a; self.a = Asm(); self.a.uid = old.uid + 1000
        fn()
        out = [i.text for i in self.a.L]
        self.a = old
        return out
    def mk_srd(self, d, p, nbytes):
        self.e(f"""s_mov_b32 s{d}, s{p}
        s_mov_b32 s{d+1}, s{p+1}
        s_mov_b32 s{d+2}, {nbytes}
        s_mov_b32 s{d+3}, 0x20000""")

    def stamp(self, idx, vt=None):
        if not self.o.get("stamps"): return
        self.e(f"""s_memtime s[{sTM}:{sTM+1}]
        s_waitcnt lgkmcnt(0)
        s_sub_u32 s{sTM}, s{sTM}, s{sTM0}
        v_writelane_b32 v0, s{sTM}, {idx}""")
        if self.o.get("rts") and idx < 12:
            self.e(f"""s_memrealtime s[{sTM}:{sTM+1}]
            s_waitcnt lgkmcnt(0)
            s_sub_u32 s{sTM}, s{sTM}, s100
            v_writelane_b32 v0, s{sTM}, {48+idx}""")

    def stamp_s(self, k):
        if not self.o.get("stamps"): return
        self.e(f"""s_memtime s[{sTM}:{sTM+1}]
        s_waitcnt lgkmcnt(0)
        s_sub_u32 s{96+k}, s{sTM}, s{sTM0}""")
    def stamp_flush(self):
        if not self.o.get("stamps"): return
        for k in range(4): self.e(f"v_writelane_b32 v0, s{96+k}, {40+k}")

    def stampd(self, base):
        if not self.o.get("fine"): return
        self.e(f"""s_memtime s[{sTM}:{sTM+1}]
        s_waitcnt lgkmcnt(0)
        s_sub_u32 s{sTM}, s{sTM}, s{sTM0}
        s_add_u32 m0, s{sCNT}, {base}
        s_nop 1
        v_writelane_b32 v0, s{sTM}, m0""")

    def poll(self, voff, soff, vtmp, sleep=None):
        L = self.a.newlab("Lpoll"); D = self.a.newlab("Lpolld")
        sl = sleep if sleep is not None else int(self.o.get("slp", 8))
        self.e(f"s_mov_b32 s{sSPIN}, {SPIN_MAX}")
        self.a.lab(L)
        self.e(f"""buffer_load_dword v{vtmp}, v{voff}, {srd(SRD_WS)}, {soff} offen sc1
        s_waitcnt vmcnt(0)
        v_cmp_ne_u32 vcc, s{sTAG}, v{vtmp}
        s_cbranch_vccz {D}
        s_mov_b64 exec, vcc
        s_sleep {sl}
        s_sub_u32 s{sSPIN}, s{sSPIN}, 1
        s_cmp_lg_u32 s{sSPIN}, 0
        s_cbranch_scc1 {L}""")
        self.a.lab(D)
        self.e("s_mov_b64 exec, -1")

    def flag_store(self, soff_sreg, vt):
        self.e(f"""v_mov_b32 v{vt}, s{sTAG}
        v_lshlrev_b32 v{vt+1}, 2, v1
        s_mov_b32 exec_hi, 0
        buffer_store_dword v{vt}, v{vt+1}, {srd(SRD_WS)}, s{soff_sreg} offen sc1
        s_mov_b64 exec, -1""")

    def entry(self):
        e = self.e
        e(f"""s_cmp_ge_u32 s2, 256
        s_cbranch_scc1 L_exit
        s_load_dwordx2 s[36:37], s[0:1], 0
        s_load_dwordx2 s[52:53], s[0:1], 64
        s_load_dwordx2 s[64:65], s[0:1], 112
        v_lshrrev_b32 v1, 6, v0
        s_and_b32 s{sA}, s2, 7
        s_lshr_b32 s{sB}, s2, 3""")
        if self.o.get("stamps") or self.o.get("dbgt"):
            e(f"s_memtime s[{sTM0}:{sTM0+1}]\ns_memrealtime s[100:101]")
        e(f"""v_readfirstlane_b32 s{sWAVE}, v1
        s_cmp_ge_u32 s{sB}, 24
        s_cbranch_scc1 L_ssm
        s_lshr_b32 s{sRB}, s{sA}, 1
        s_lshl_b32 s{sRB}, s{sRB}, 3
        s_and_b32 s{sC}, s{sB}, 7
        s_add_u32 s{sRB}, s{sRB}, s{sC}""")

    def entry2(self):
        e = self.e
        e(f"""s_load_dwordx4 s[56:59], s[0:1], 72
        s_load_dwordx2 s[60:61], s[0:1], 96
        s_load_dword s{sTAG}, s[64:65], {WS_EPOCH}
        s_lshr_b32 s{sMH}, s{sW}, 1
        s_and_b32 s{sNH}, s{sW}, 1""")
        self.mk_srd(SRD_WS, 64, WS_SIZE)
    def entry3(self):
        self.e("s_waitcnt lgkmcnt(0)")
        self.mk_srd(SRD_WSP, 56, 2048*2048*2)
        self.mk_srd(SRD_BSP, 58, 2048*2)
        self.mk_srd(SRD_OUT, 60, 2048*640*2)

    vL = 1
    vWOFF = 2
    vX0, vX1 = 8, 9
    vWB, vWB4 = 10, 11
    vA0, vA1, vB0, vB4 = 12, 13, 14, 15
    vWB1, vB1 = 38, 39
    vT = 16
    vK0 = 32
    FS = (40, 96)
    ACC = 152
    Z1 = 192
    XR = 40

    def w_ops(self):
        g = [f"""s_mov_b32 m0, s{sWSLOT}
        s_add_u32 s{sWSLOT}, s{sWSLOT}, {S1SZ}
        buffer_load_dwordx4 v{self.vWOFF}, {srd(SRD_WIN)}, s{sWSOFF} offen lds"""]
        for i in range(1, 4):
            g.append(f"buffer_load_dwordx4 v{self.vWOFF+i}, {srd(SRD_WIN)}, s{sWSOFF} offen offset:{1024*i} lds")
        g.append(f"""s_add_u32 m0, m0, 4096
        s_cmp_ge_u32 s{sWSLOT}, {RING1 + 4*S1SZ}
        buffer_load_dwordx4 v{self.vWOFF+4}, {srd(SRD_WIN)}, s{sWSOFF} offen lds
        s_cselect_b32 s{sWSLOT}, s{sW0}, s{sWSLOT}
        s_add_u32 s{sWSOFF}, s{sWSOFF}, {64*3456}
        s_cmp_ge_u32 s{sWSOFF}, {640*3456}
        s_cselect_b32 s{sWSOFF}, s{sWSL}, s{sWSOFF}""")
        return g
    def issue_w(self):
        for g in self.w_ops(): self.e(g)

    def w_voffs(self):
        e = self.e; T = self.vT; vL = self.vL
        e(f"s_mul_i32 s{sA}, s{sW}, 320")
        for i in range(5):
            p, k, c, d = T+4, T+5, T+6, self.vWOFF + i
            e(f"""v_add_u32 v{p}, s{sA}, v{vL}
            s_add_u32 s{sA}, s{sA}, 64
            v_mul_u32_u24 v{k}, 3277, v{p}
            v_lshrrev_b32 v{k}, 16, v{k}
            v_mul_u32_u24 v{c}, 20, v{k}
            v_sub_u32 v{c}, v{p}, v{c}
            v_bfe_u32 v{p}, v{k}, 3, 1
            v_lshlrev_b32 v{p}, 1, v{p}
            v_xor_b32 v{c}, v{c}, v{p}
            v_mul_u32_u24 v{d}, 3456, v{k}
            v_lshl_add_u32 v{d}, v{c}, 4, v{d}""")
            if 1 <= i <= 3: e(f"v_subrev_u32 v{d}, {1024*i}, v{d}")

    def x_setup(self):
        e = self.e; T = self.vT; vL = self.vL
        pub_rd = []
        sv = "\n".join(self.capture(self.w_voffs)).replace(f"s{sA},", f"s{sC},").replace(f"s{sA}\n", f"s{sC}\n").replace(f"v{T+4}", f"v{T+11}").replace(f"v{T+5}", f"v{T+12}").replace(f"v{T+6}", f"v{T+13}")
        if self.o.get("xst", "1") != "1": e(sv)
        e(f"""v_lshlrev_b32 v7, 4, v{vL}
        v_and_b32 v37, 31, v{vL}
        v_min_u32 v37, 26, v37
        v_lshlrev_b32 v37, {FS}, v37
        s_min_u32 s{sA}, s{sCB}, 4
        s_lshl_b32 s91, s{sA}, 1
        s_add_u32 s91, s91, s{sMH}
        s_lshl_b32 s91, s91, {5+FS}
        s_add_u32 s91, s91, {WS_FWO}
        s_lshl_b32 s{sA}, s{sA}, 2
        s_add_u32 s{sA}, s{sA}, s{sW}
        s_mul_i32 s93, s{sA}, {2*27*1024}
        s_add_u32 s93, s93, {WS_WOT}
        s_add_u32 s94, s93, {27*1024}""")
        self.blk_offsets(4096)
        SPEC = self.o.get("spec", "0") == "1"
        if SPEC:
            Lp = self.a.newlab("Lpf5")
            e(f"""s_mul_i32 s{sA}, s{sRB}, 6
            s_add_u32 s{sA}, s{sA}, s{sCB}
            s_mul_i32 s{sA}, s{sA}, 18432
            s_mul_i32 s{sC}, s{sMH}, 9216
            s_mul_i32 s{sD}, s{sNH}, 5120
            s_add_u32 s{sC}, s{sC}, s{sD}
            s_add_u32 s{sA}, s{sA}, s{sC}
            s_add_u32 s{sA}, s{sA}, {WS_H}
            v_mov_b32 v244, -1
            v_mov_b32 v245, -1
            v_mov_b32 v246, -1
            v_mov_b32 v247, -1""")
            for i in range(4):
                e(f"buffer_store_dwordx4 v[244:247], v7, {srd(SRD_WS)}, s{sA} offen offset:{1024*i} sc1")
            e(f"""s_cmp_eq_u32 s{sNH}, 1
            s_cbranch_scc1 {Lp}
            s_add_u32 s{sA}, s{sA}, 4096
            buffer_store_dwordx4 v[244:247], v7, {srd(SRD_WS)}, s{sA} offen sc1""")
            self.a.lab(Lp)
            e("s_nop 1")
        prd, pwork = self.pub_parts()
        self.xs_out = (pub_rd, prd, pwork)

    def gemm_prologue(self):
        e = self.e; T = self.vT; XR = self.XR; vL = self.vL
        sXS = sROFF
        e(f"""v_and_b32 v{vL}, 63, v0
        s_and_b32 s{sCB}, s2, 1
        s_mul_i32 s{sCB}, s{sCB}, 3
        s_lshr_b32 s{sC}, s2, 6
        s_add_u32 s{sCB}, s{sCB}, s{sC}
        s_and_b32 s{sW}, s{sWAVE}, 3""")
        e(f"""s_and_b32 s{sA}, s{sRB}, 7
        s_mul_i32 s{sWSOFF}, s{sA}, {64*3456}
        s_lshl_b32 s{sXOFF}, s{sA}, 13
        s_mul_i32 s{sWSL}, s{sCB}, 288
        s_and_b32 s{sWSL}, s{sWSL}, 0xffffffc0
        s_add_u32 s{sWSL}, s{sWSL}, 1728
        s_add_u32 s{sWSOFF}, s{sWSOFF}, s{sWSL}
        s_mul_i32 s{sW0}, s{sW}, 5120
        s_add_u32 s{sW0}, s{sW0}, {RING1}
        s_mov_b32 s{sWSLOT}, s{sW0}""")
        for i in range(5): e(f"v_mov_b32 v{self.vWOFF+i}, 0")
        e(f"s_waitcnt lgkmcnt(0)")
        self.mk_srd(SRD_WIN, 52, 640*1728*2)
        XST = self.o.get("xst", "1") == "1"
        if not XST:
            e(f"s_cmp_lt_u32 s{sWAVE}, 4\ns_cbranch_scc1 L_xfirst")
            self.w_voffs()
            for _ in range(int(self.o.get("nst0", 0))): self.issue_w()
            self.a.lab("L_xfirst")
        e(f"""
        s_lshr_b32 s{sA}, s2, 6
        s_mul_i32 s{sA}, s{sA}, 3
        s_add_u32 s{sA}, s{sA}, s{sWAVE}
        s_and_b32 s{sA}, s{sA}, 7
        s_lshl_b32 s{sA}, s{sA}, 3
        v_lshrrev_b32 v{T}, 3, v{vL}
        v_add_u32 v{T}, s{sA}, v{T}
        v_and_b32 v{T+1}, 7, v0
        v_mul_u32_u24 v{T+2}, 1280, v{T}
        v_lshl_add_u32 v{T+2}, v{T+1}, 4, v{T+2}
        s_mul_i32 s{sA}, s{sRB}, {64*1280}
        s_and_b32 s{sXS}, s{sRB}, 7
        s_lshl_b32 s{sB}, s{sXS}, 7
        s_waitcnt lgkmcnt(0)""")
        self.mk_srd(SRD_X, 36, 2048*640*2)
        self.stamp_s(0)
        for j in range(10):
            e(f"""s_add_u32 s{sC}, s{sA}, s{sB}
            buffer_load_dwordx4 v[{XR+4*j}:{XR+4*j+3}], v{T+2}, {srd(SRD_X)}, s{sC} offen
            s_add_u32 s{sB}, s{sB}, 128
            s_cmp_ge_u32 s{sB}, 1280
            s_cselect_b32 s{sB}, 0, s{sB}""")
        if self.o.get("yprio", "1") == "1":
            e(f"s_cmp_lt_u32 s{sWAVE}, 4\ns_cbranch_scc1 Lnyp\ns_setprio 2\nLnyp:")
        self.entry2()
        g, c15 = T+4, T+5
        e(f"""v_bfe_u32 v{T+3}, v{T}, 1, 3
        v_xor_b32 v{T+3}, v{T+3}, v{T+1}
        v_lshlrev_b32 v{T+3}, 4, v{T+3}
        v_lshl_add_u32 v{T+3}, v{T}, 7, v{T+3}
        v_lshrrev_b32 v{g}, 4, v{vL}
        v_and_b32 v{c15}, 15, v{vL}
        v_lshrrev_b32 v{T+6}, 1, v{c15}
        v_xor_b32 v{T+6}, v{T+6}, v{g}
        v_lshlrev_b32 v{T+6}, 4, v{T+6}
        v_lshl_add_u32 v{self.vX0}, v{c15}, 7, v{T+6}
        s_lshl_b32 s{sA}, s{sMH}, 12
        v_add_u32 v{self.vX0}, s{sA}, v{self.vX0}
        v_xor_b32 v{self.vX1}, 64, v{self.vX0}
        v_mul_u32_u24 v{self.vWB4}, 2560, v{g}
        v_bfe_u32 v{T+6}, v{vL}, 2, 2
        v_mul_u32_u24 v{T+6}, 320, v{T+6}
        v_add_u32 v{self.vWB4}, v{self.vWB4}, v{T+6}
        v_and_b32 v{T+6}, 3, v{vL}
        v_lshl_add_u32 v{self.vWB4}, v{T+6}, 3, v{self.vWB4}
        v_and_b32 v{T+6}, 1, v{g}
        v_lshlrev_b32 v{T+6}, 5, v{T+6}
        s_and_b32 s{sC}, s{sCB}, 1
        s_mul_i32 s{sA}, s{sNH}, 5
        s_add_u32 s{sA}, s{sA}, s{sC}
        s_lshl_b32 s{sA}, s{sA}, 5
        v_xor_b32 v{T+7}, s{sA}, v{T+6}
        v_add_u32 v{self.vWB}, v{T+7}, v{self.vWB4}
        s_add_u32 s{sA}, s{sA}, 32
        v_xor_b32 v{T+7}, s{sA}, v{T+6}
        v_add_u32 v{self.vWB1}, v{T+7}, v{self.vWB4}
        s_lshl_b32 s{sC}, s{sC}, 5
        s_add_u32 s{sC}, s{sC}, 128
        v_xor_b32 v{T+7}, s{sC}, v{T+6}
        v_add_u32 v{self.vWB4}, v{T+7}, v{self.vWB4}
        s_mov_b32 s{sK1}, {hx(f2u(-2.302208198*0.044715))}
        s_mov_b32 s{sK1+1}, {hx(f2u(-2.302208198*0.044715))}
        v_mov_b32 v{self.vK0}, {hx(f2u(-2.302208198))}
        v_mov_b32 v{self.vK0+1}, {hx(f2u(-2.302208198))}""")
        self.entry3()
        def ydma(grp):
            L = self.a.newlab("Lyd")
            e(f"s_cmp_lt_u32 s{sWAVE}, 4\ns_cbranch_scc1 {L}")
            e(grp)
            self.a.lab(L)
        n0 = 2 if XST else int(self.o.get("nst0", 0))
        if XST: self.w_voffs()
        e(f"v_mov_b32 v7, 0\nv_mov_b32 v37, 0\nv_mov_b32 v248, 0\ns_cmp_ge_u32 s{sWAVE}, 4\ns_cbranch_scc1 L_xs")
        self.x_setup()
        self.a.lab("L_xs")
        if n0 < 2: ydma("\n".join(sum([self.w_ops() for _ in range(2 - n0)], [])))
        S, Q = T+8, T+9
        e(f"""v_mov_b32 v{S}, 0
        v_mov_b32 v{Q}, 0
        s_mov_b32 s{sA}, 0x3f803f80
        s_cmp_lt_u32 s{sWAVE}, 4""")
        for j in range(10):
            if n0 < 2: e(f"s_cbranch_scc1 Lxw{j}\ns_waitcnt vmcnt({9-j+5*(2-n0)})\ns_branch Lxv{j}\nLxw{j}:\ns_waitcnt vmcnt({9-j})\nLxv{j}:")
            else: e(f"s_waitcnt vmcnt({9-j})")
            if j == 9: self.stamp_s(3)
            for i in range(4*j, 4*j+4):
                e(f"v_dot2c_f32_bf16 v{S}, s{sA}, v{XR+i}\nv_dot2c_f32_bf16 v{Q}, v{XR+i}, v{XR+i}")
        if XST and self.o.get("xearly", "1") == "1":
            e(f"s_cmp_ge_u32 s{sWAVE}, 4\ns_cbranch_scc1 L_xe")
            self.issue_w(); self.issue_w()
            self.a.lab("L_xe")
        for m in ("quad_perm:[1,0,3,2]", "quad_perm:[2,3,0,1]", "row_half_mirror"):
            e(f"v_add_f32_dpp v{S}, v{S}, v{S} {m} row_mask:0xf bank_mask:0xf\nv_add_f32_dpp v{Q}, v{Q}, v{Q} {m} row_mask:0xf bank_mask:0xf")
        self.ln_params(S, Q, 640, T+10, T+12, T+14)
        NM, RS = T+10, T+12
        e(f"""v_cvt_pk_bf16_f32 v{RS}, v{RS}, v{RS}
        s_lshl_b32 s{sB}, s{sXS}, 13
        v_and_b32 v{RS+1}, 0xffff0000, v{RS}
        v_and_b32 v{RS}, 0xffff, v{RS}
        v_mul_f32 v{NM}, v{NM}, v{RS+1}""")
        TP = 80
        for j in range(10):
            ls = []
            for k in range(4):
                r = XR + 4*j + k; a = TP + 2*k; b = a + 1
                ls.append([f"v_dot2_f32_bf16 v{a}, v{r}, v{RS}, v{NM}", f"v_dot2_f32_bf16 v{b}, v{r}, v{RS+1}, v{NM}",
                           f"v_cvt_pk_bf16_f32 v{r}, v{a}, v{b}"])
            self.rr(ls)
            e(f"""v_add_u32 v{T+6}, s{sB}, v{T+3}
            ds_write_b128 v{T+6}, v[{XR+4*j}:{XR+4*j+3}]
            s_add_u32 s{sB}, s{sB}, 8192
            s_cmp_ge_u32 s{sB}, 81920
            s_cselect_b32 s{sB}, 0, s{sB}""")
        self.stamp_flush()
        e(f"""s_waitcnt lgkmcnt(0)
        s_mul_i32 s{sTAG}, s{sTAG}, 0x9E3779B1
        s_add_u32 s{sTAG}, s{sTAG}, 0x7F4A7C15
        s_cmp_ge_u32 s{sWAVE}, 4
        s_cbranch_scc1 L_Y""")

    def ln_params(self, S, Q, n, NM, RS, t):
        self.e(f"""v_mul_f32 v{S}, {hx(f2u(1.0/n))}, v{S}
        v_mul_f32 v{Q}, {hx(f2u(1.0/n))}, v{Q}
        v_fma_f32 v{Q}, -v{S}, v{S}, v{Q}
        v_max_f32 v{Q}, 0, v{Q}
        v_cvt_pk_bf16_f32 v{t}, v{S}, v{Q}
        v_lshlrev_b32 v{NM}, 16, v{t}
        v_xor_b32 v{NM}, 0x80000000, v{NM}
        v_mov_b32 v{NM+1}, v{NM}
        v_and_b32 v{Q}, 0xffff0000, v{t}
        v_add_f32 v{Q}, {hx(f2u(1e-5))}, v{Q}
        v_cvt_pk_bf16_f32 v{t}, v{Q}, v{Q}
        v_lshlrev_b32 v{Q}, 16, v{t}
        v_sqrt_f32 v{Q}, v{Q}
        v_cvt_pk_bf16_f32 v{t}, v{Q}, v{Q}
        v_lshlrev_b32 v{Q}, 16, v{t}
        v_rcp_f32 v{RS}, v{Q}
        v_mov_b32 v{RS+1}, v{RS}""")


    NJ = 5
    def p1_reads(self, F):
        out = []
        for ks in range(2):
            Fk = F + 28*ks
            vx = self.vA0 if ks == 0 else self.vA1
            for a in range(2):
                out.append(f"ds_read_b128 v[{Fk+4*a}:{Fk+4*a+3}], v{vx} offset:{2048*a}")
            for j in range(self.NJ):
                base = self.vB4 if j == 4 else (self.vB0, self.vB1)[j & 1]
                off = ks*10240 + (64*(j >> 1) if j < 4 else 0)
                for h in range(2):
                    r = Fk + 8 + 4*j + 2*h
                    out.append(f"ds_read_b64_tr_b16 v[{r}:{r+1}], v{base} offset:{off + h*1280}")
        return out
    def p2_reads(self, F):
        out = []
        for ks in range(2):
            Fk = F + 28*ks
            vx = self.vA0 if ks == 0 else self.vA1
            out += [f"ds_read_b128 v[{Fk+4*a}:{Fk+4*a+3}], v{vx} offset:{2048*a}" for a in range(2)]
            for j in range(self.NJ):
                base = self.vB0 if j < 4 else self.vB4
                off = ks*9216 + (1024*j if j < 4 else 0)
                out.append(f"ds_read_b128 v[{Fk+8+4*j}:{Fk+8+4*j+3}], v{base} offset:{off}")
        return out
    def mfmas(self, F, swap, first=False):
        out = []
        for ks in range(2):
            Fk = F + 28*ks
            for j in range(self.NJ):
                for a in range(2):
                    c = self.ACC + 4*(2*j + a)
                    X = f"v[{Fk+4*a}:{Fk+4*a+3}]"; W = f"v[{Fk+8+4*j}:{Fk+8+4*j+3}]"
                    A, B = (W, X) if swap else (X, W)
                    C = "0" if (first and ks == 0) else f"v[{c}:{c+3}]"
                    out.append(f"v_mfma_f32_16x16x32_bf16 v[{c}:{c+3}], {A}, {B}, {C}")
        return out
    def interleave(self, reads, mf, per=2):
        out = []; ri = 0
        for m in mf:
            out.append(m)
            for _ in range(per):
                if ri < len(reads): out.append(reads[ri]); ri += 1
        out += reads[ri:]
        return out

    def compute_loop(self, n, swap, reads_fn, addr_fn, tagname, vmwait=False, first=None, mid=None, peel=None, top=None):
        e = self.e
        endw = f"s_waitcnt {'vmcnt(0) ' if vmwait else ''}lgkmcnt(0)"
        def stage(rd, mf, extra=(), per2=2):
            e("s_barrier")
            per = 2 if len(rd) > 16 else 1
            if self.o.get("noread"): rd = []
            if self.o.get("nomfma"): mf = []
            fill = list(rd) + addr_fn() + list(extra)
            out = []; ri = 0
            for k, m in enumerate(mf):
                out.append(m)
                for _ in range(per if ri < len(rd) else per2):
                    if ri < len(fill): out.append(fill[ri]); ri += 1
            out += fill[ri:]
            for s in out: e(s)
        F0, F1 = self.FS
        for s in addr_fn(): e(s)
        stage(reads_fn(F0), [], first[0] if first else ())
        e(endw)
        stage(reads_fn(F1), self.mfmas(F0, swap, True), [f"s_mov_b32 s{sCNT}, {(n-2)//2}"] + (first[1] if first else []), 3 if first else 2); e(endw)
        if peel: e(peel)
        L = self.a.newlab("Lc" + tagname)
        self.a.lab(L)
        if top: top()
        stage(reads_fn(F0), self.mfmas(F1, swap))
        if mid: mid()
        e(endw)
        stage(reads_fn(F1), self.mfmas(F0, swap), [f"s_sub_u32 s{sCNT}, s{sCNT}, 1", f"s_cmp_lg_u32 s{sCNT}, 0"])
        e(f"{endw}\ns_cbranch_scc1 {L}")
        return self.mfmas(F1, swap)

    def compute2(self, *a, **k):
        if self.o.get("nhs1", "1") != "1": return self.compute_loop(*a, **k)
        L5 = self.a.newlab("Lnh5"); LJ = self.a.newlab("Lnhj")
        self.e(f"s_cmp_eq_u32 s{sNH}, 0\ns_cbranch_scc1 {L5}")
        self.NJ = 4
        self.compute_loop(*a, **k)
        self.NJ = 5
        self.e(f"s_branch {LJ}")
        self.a.lab(L5)
        t = self.compute_loop(*a, **k)
        self.a.lab(LJ)
        return t

    def ring_addr(self, asz_total, bbase, bsz, nb):
        return [f"v_add_u32 v{self.vA0}, s{sXOFF}, v{self.vX0}", f"v_add_u32 v{self.vA1}, s{sXOFF}, v{self.vX1}",
        f"v_add_u32 v{self.vB0}, s{sROFF}, v{self.vWB}", f"v_add_u32 v{self.vB4}, s{sROFF}, v{self.vWB4}",
        f"s_add_u32 s{sXOFF}, s{sXOFF}, 8192", f"s_cmp_ge_u32 s{sXOFF}, {asz_total}", f"s_cselect_b32 s{sXOFF}, 0, s{sXOFF}",
        f"s_add_u32 s{sROFF}, s{sROFF}, {bsz}", f"s_cmp_ge_u32 s{sROFF}, {bbase + nb*bsz}", f"s_cselect_b32 s{sROFF}, {bbase}, s{sROFF}"]
    def p1_addr(self): return [f"v_add_u32 v{self.vB1}, s{sROFF}, v{self.vWB1}"] + self.ring_addr(81920, RING1, S1SZ, 4)
    def p2_addr(self): return self.ring_addr(NA*8192, BRING, BSZ, NB)

    def gelu_pair(self, r, t, dst=None, packed=None):
        d = r if dst is None else dst
        self.e(f"""v_pk_mul_f32 v[{t}:{t+1}], v[{r}:{r+1}], v[{r}:{r+1}]
        v_pk_fma_f32 v[{t}:{t+1}], v[{t}:{t+1}], s[{sK1}:{sK1+1}], v[{self.vK0}:{self.vK0+1}]
        v_pk_mul_f32 v[{t}:{t+1}], v[{t}:{t+1}], v[{r}:{r+1}]
        v_exp_f32 v{t}, v{t}
        v_exp_f32 v{t+1}, v{t+1}
        v_pk_add_f32 v[{t}:{t+1}], v[{t}:{t+1}], 1.0 op_sel_hi:[1,0]
        v_rcp_f32 v{t}, v{t}
        v_rcp_f32 v{t+1}, v{t+1}
        v_pk_mul_f32 v[{t}:{t+1}], v[{t}:{t+1}], v[{r}:{r+1}]
        v_cvt_pk_bf16_f32 v{t if packed is None else packed}, v{t}, v{t+1}""")
        if packed is None:
            self.e(f"v_lshlrev_b32 v{d}, 16, v{t}\nv_and_b32 v{d+1}, s{sB}, v{t}")

    def gelu_list(self, r, t, sc, packed=None, stats=None):
        L = [f"v_pk_mul_f32 v[{t}:{t+1}], v[{r}:{r+1}], v[{r}:{r+1}]",
             f"v_pk_fma_f32 v[{t}:{t+1}], v[{t}:{t+1}], s[{sK1}:{sK1+1}], v[{self.vK0}:{self.vK0+1}]",
             f"v_pk_mul_f32 v[{t}:{t+1}], v[{t}:{t+1}], v[{r}:{r+1}]",
             f"v_exp_f32 v{t}, v{t}", f"v_exp_f32 v{t+1}, v{t+1}",
             f"v_pk_add_f32 v[{t}:{t+1}], v[{t}:{t+1}], 1.0 op_sel_hi:[1,0]",
             f"v_rcp_f32 v{t}, v{t}", f"v_rcp_f32 v{t+1}, v{t+1}"]
        d = r if packed is None else packed
        L += [f"v_pk_mul_f32 v[{d}:{d+1}], v[{t}:{t+1}], v[{r}:{r+1}]"]
        if stats:
            s_, q_ = stats
            L += [f"v_pk_add_f32 v[{s_}:{s_+1}], v[{s_}:{s_+1}], v[{r}:{r+1}]",
                  f"v_pk_fma_f32 v[{q_}:{q_+1}], v[{r}:{r+1}], v[{r}:{r+1}], v[{q_}:{q_+1}]"]
        return L
    def rr(self, lists):
        n = max(len(l) for l in lists)
        for i in range(n):
            for l in lists:
                if i < len(l): self.e(l[i])

    def dump_regs(self, r0, n, slot, vt):
        self.e(f"""s_lshl_b32 s{sA}, s2, 3
        s_add_u32 s{sA}, s{sA}, s{sWAVE}
        s_mul_i32 s{sA}, s{sA}, {n*256}
        s_add_u32 s{sA}, s{sA}, {WS_DBG + 0x100000 + slot*0x600000}
        v_lshlrev_b32 v{vt}, 2, v{self.vL}""")
        for i in range(n):
            self.e(f"buffer_store_dword v{r0+i}, v{vt}, {srd(SRD_WS)}, s{sA} offen\ns_add_u32 s{sA}, s{sA}, 256")


    NWS = 21
    A3 = 224
    sBO = 44
    def wreg(self, pos, ee): return 40 + ((pos % self.NWS)*2 + ee)*4
    def wload(self, pos):
        out = []
        for ee in range(2):
            r = self.wreg(pos, ee)
            off = f"s{self.sBO + (pos >> 2)}" if pos < 24 else str(6*4096)
            out.append(f"s_add_u32 s{sT}, s{93+ee}, {off}\nbuffer_load_dwordx4 v[{r}:{r+3}], v7, {srd(SRD_WS)}, s{sT} offen offset:{(pos%4)*1024} sc1")
        return out
    def blk_offsets(self, mul):
        self.e(f"""s_mul_i32 s{self.sBO}, s{sCB}, {mul}
        s_lshr_b32 s{sT}, s2, 6
        s_sub_u32 s51, s{sCB}, s{sT}
        s_mov_b32 s50, 0""")
        for j in range(1, 6):
            if j == 3: self.e("s_sub_u32 s51, 3, s51")
            self.e(f"""s_add_u32 s{sT}, s{sT}, 1
            s_cmp_ge_u32 s{sT}, 3
            s_cselect_b32 s{sT}, 0, s{sT}
            s_add_u32 s{sT2}, s{sT}, s51
            s_mul_i32 s{self.sBO+j}, s{sT2}, {mul}
            s_lshl_b32 s{sT2}, s{sT2}, 2
            s_lshl_b32 s{sT2}, {j}, s{sT2}
            s_or_b32 s50, s50, s{sT2}""")

    def x_path(self):
        e = self.e; T = self.vT; ACC = self.ACC; vL = self.vL
        self.stamp(0)
        if self.o.get("xst", "1") == "1" and self.o.get("xearly", "1") != "1":
            self.issue_w(); self.issue_w()
        pub_rd, prd, pwork = self.xs_out
        def xnflag():
            Lf = self.a.newlab("Lfx")
            xnf = int(self.o.get('xnf', 3))
            e(f"s_cmp_lg_u32 s{sCNT}, {xnf}\ns_cbranch_scc1 {Lf}\ns_cmp_lg_u32 s{sW}, 0\ns_cbranch_scc1 {Lf}")
            self.flag_store(39, T)
            self.a.lab(Lf)
        def xnwait():
            Lf = self.a.newlab("Lfw")
            e(f"s_cmp_lg_u32 s{sCNT}, {int(self.o.get('xnf', 3))}\ns_cbranch_scc1 {Lf}\ns_waitcnt vmcnt(0)")
            self.a.lab(Lf)
        e(f"s_mov_b32 s{sROFF}, {RING1}")
        if self.o.get("xst", "1") == "1":
            e("s_waitcnt vmcnt(5)")
            prd = prd + ["s_waitcnt vmcnt(0)"]
        tail = self.compute2(10, False, self.p1_reads, self.p1_addr, "p1a", first=(pub_rd + prd, pwork), mid=xnflag, top=xnwait)
        e(f"""s_and_b32 s{sA}, s{sRB}, 7
        s_add_u32 s{sA}, s{sA}, 3
        s_cmp_ge_u32 s{sA}, 10
        s_cselect_b32 s{sA}, 0, s{sA}
        s_mul_i32 s{sWSOFF}, s{sA}, {64*3456}
        s_sub_u32 s{sWSL}, s{sWSL}, 1728
        s_add_u32 s{sWSOFF}, s{sWSOFF}, s{sWSL}
        s_add_u32 s{sWSLOT}, s{sW0}, {S1SZ}
        s_mov_b32 s{sB}, 0xffff0000""")
        hold = int(self.o.get("hold", 3))
        if hold < 3: e("s_barrier")
        for m in tail: e(m)
        e("s_waitcnt lgkmcnt(0)")
        self.stamp(1)
        SS = 192
        for i in range(16): e(f"v_mov_b32 v{SS+i}, 0")
        vmw = lambda n: f"s_waitcnt vmcnt({n})"
        def do_frag(j):
            self.rr([self.gelu_list(ACC + 4*(2*j + a) + 2*h, T + 2*(2*a + h), 232 + 4*a + 2*h, stats=(SS + 4*a + 2*h, SS + 8 + 4*a + 2*h))
                     for a in range(2) for h in range(2)])
        if hold < 2: e("s_barrier")
        do_frag(0); do_frag(1)
        if hold < 1: e("s_barrier")
        do_frag(2); do_frag(3)
        Ls = self.a.newlab("Lz4")
        e(f"s_cmp_eq_u32 s{sNH}, 1\ns_cbranch_scc1 {Ls}")
        do_frag(4)
        self.a.lab(Ls)
        for i in range(8):
            e(f"v_add_f32_dpp v{SS+i}, v{SS+i}, v{SS+i} row_mirror row_mask:0xf bank_mask:0x3")
        for i in range(8):
            e(f"v_add_f32_dpp v{SS+i}, v{SS+8+i}, v{SS+8+i} row_mirror row_mask:0xf bank_mask:0xc")
        for i in range(4):
            e(f"v_add_f32_dpp v{SS+i}, v{SS+i}, v{SS+i} row_half_mirror row_mask:0xf bank_mask:0x5")
        for i in range(4):
            e(f"v_add_f32_dpp v{SS+i}, v{SS+4+i}, v{SS+4+i} row_half_mirror row_mask:0xf bank_mask:0xa")
        for i in range(4):
            e(f"v_add_f32_dpp v{SS+i}, v{SS+i}, v{SS+i} quad_perm:[2,3,0,1] row_mask:0xf bank_mask:0xf")
        for i in range(4):
            e(f"v_add_f32_dpp v{SS+i}, v{SS+i}, v{SS+i} quad_perm:[1,0,3,2] row_mask:0xf bank_mask:0xf")
        e(f"""s_mov_b32 vcc_lo, 0xaaaaaaaa
        s_mov_b32 vcc_hi, 0xaaaaaaaa
        s_mov_b32 s{sE0}, 0xcccccccc
        s_mov_b32 s{sE0+1}, 0xcccccccc
        v_cndmask_b32 v{SS}, v{SS}, v{SS+1}, vcc
        v_cndmask_b32 v{SS+2}, v{SS+2}, v{SS+3}, vcc
        v_mov_b32 v{SS+1}, s{sTAG}
        v_cndmask_b32 v{SS}, v{SS}, v{SS+2}, s[{sE0}:{sE0+1}]
        v_lshlrev_b32 v{T}, 3, v{vL}
        s_lshl_b32 s{sC}, s{sRB}, 1
        s_add_u32 s{sC}, s{sC}, s{sMH}
        s_mul_i32 s{sC}, s{sC}, {12*512}
        s_add_u32 s{sC}, s{sC}, {WS_STATS}
        s_lshl_b32 s{sA}, s{sCB}, 1
        s_add_u32 s{sA}, s{sA}, s{sNH}
        s_lshl_b32 s{sA}, s{sA}, 9
        s_add_u32 s{sA}, s{sA}, s{sC}
        buffer_store_dwordx2 v[{SS}:{SS+1}], v{T}, {srd(SRD_WS)}, s{sA} offen sc1""")
        self.stamp(2)
        if hold >= 3: e("s_barrier")
        self.issue_w()
        if hold >= 2: e("s_barrier")
        self.issue_w()
        if hold >= 1: e("s_barrier")
        PR = 128
        L = self.a.newlab("Lst"); D = self.a.newlab("Lstd")
        e(f"s_mov_b32 s{sSPIN}, {SPIN_MAX}\ns_add_u32 s{sA}, s{sC}, 4096")
        def stat_loads():
            for p in range(12):
                e(f"buffer_load_dwordx2 v[{PR+2*p}:{PR+2*p+1}], v{T}, {srd(SRD_WS)}, s{sC if p < 8 else sA} offen offset:{512*(p%8)} sc1")
        CK = int(self.o.get("ck", 14))
        self.issue_w()
        if CK == 14:
            e("s_waitcnt vmcnt(10)\ns_barrier")
            stat_loads()
            self.issue_w()
            e("s_waitcnt vmcnt(22)\ns_barrier")
            self.issue_w()
        else:
            e("s_waitcnt vmcnt(10)\ns_barrier")
            self.issue_w()
            stat_loads()
            e("s_waitcnt vmcnt(22)\ns_barrier")
            self.issue_w()
            e("s_waitcnt vmcnt(22)\ns_barrier")
            self.issue_w()
        self.stamp(3)
        Lchk = self.a.newlab("Lchk")
        e(f"s_waitcnt vmcnt(10)\ns_branch {Lchk}")
        self.a.lab(L)
        stat_loads()
        e("s_waitcnt vmcnt(0)")
        self.a.lab(Lchk)
        e(f"v_xor_b32 v{T+1}, s{sTAG}, v{PR+1}")
        for p in range(1, 12):
            e(f"v_xor_b32 v{T+2}, s{sTAG}, v{PR+2*p+1}\nv_or_b32 v{T+1}, v{T+1}, v{T+2}")
        e(f"""v_cmp_ne_u32 vcc, 0, v{T+1}
        s_cbranch_vccz {D}
        s_sleep 2
        s_sub_u32 s{sSPIN}, s{sSPIN}, 1
        s_cmp_lg_u32 s{sSPIN}, 0
        s_cbranch_scc1 {L}""")
        self.a.lab(D)
        self.stamp(4)
        for p in range(1, 12):
            e(f"v_add_f32 v{PR}, v{PR}, v{PR+2*p}")
        e(f"v_mov_b32_dpp v{PR+1}, v{PR} row_ror:8 row_mask:0xf bank_mask:0xf")
        self.ln_params(PR, PR+1, 864, T+10, T+12, T+14)
        e(f"v_mul_f32 v{T+10}, v{T+10}, v{T+12}")
        for i in range(8):
            e(f"v_mov_b32_dpp v{SS+i}, v{T+10} row_newbcast:{i} row_mask:0xf bank_mask:0xf")
            e(f"v_mov_b32_dpp v{SS+8+i}, v{T+12} row_newbcast:{i} row_mask:0xf bank_mask:0xf")
        e(f"""v_lshrrev_b32 v{T}, 4, v{vL}
        v_and_b32 v{T+1}, 1, v{T}
        v_lshrrev_b32 v{T}, 1, v{T}
        v_lshl_add_u32 v{T}, v{T+1}, 1, v{T}
        v_lshlrev_b32 v{T}, 8, v{T}
        v_and_b32 v{T+1}, 15, v{vL}
        v_lshl_add_u32 v{T}, v{T+1}, 4, v{T}
        s_lshl_b32 s{sA}, s{sCB}, 5
        s_add_u32 s{sA}, s{sA}, s{sRB}
        s_mul_i32 s{sA}, s{sA}, 18432
        s_mul_i32 s{sC}, s{sMH}, 9216
        s_add_u32 s{sA}, s{sA}, s{sC}
        s_add_u32 s{sA}, s{sA}, {WS_Z2}
        s_mul_i32 s{sC}, s{sNH}, 5120
        s_add_u32 s{sC}, s{sC}, s{sA}
        s_add_u32 s{sA}, s{sA}, 4096""")
        Q4 = PR
        Ls = self.a.newlab("Lz4b")
        for j in range(5):
            if j == 4: e(f"s_cmp_eq_u32 s{sNH}, 1\ns_cbranch_scc1 {Ls}")
            q = Q4 + 4*j
            ls = []
            for a in range(2):
                for h in range(2):
                    r = ACC + 4*(2*j + a) + 2*h
                    nm, rs = SS + 4*a + 2*h, SS + 8 + 4*a + 2*h
                    d = q + 2*a + h
                    ls.append([f"v_pk_fma_f32 v[{r}:{r+1}], v[{r}:{r+1}], v[{rs}:{rs+1}], v[{nm}:{nm+1}]",
                    f"v_cvt_pk_bf16_f32 v{d}, v{r}, v{r+1}"])
            self.rr(ls)
            e(f"v_permlane16_swap_b32 v{q}, v{q+2}\nv_permlane16_swap_b32 v{q+1}, v{q+3}")
            if j < 4:
                e(f"buffer_store_dwordx4 v[{q}:{q+3}], v{T}, {srd(SRD_WS)}, s{sC} offen offset:{1024*j} sc1")
            else:
                e(f"buffer_store_dwordx4 v[{q}:{q+3}], v{T}, {srd(SRD_WS)}, s{sA} offen sc1")
        self.a.lab(Ls)
        fl = f"""s_lshl_b32 s{sD}, s{sCB}, 2
        s_add_u32 s{sD}, s{sD}, s{sW}
        s_lshl_b32 s{sD}, s{sD}, {5+FS}
        s_add_u32 s{sD}, s{sD}, {WS_FZ2}
        s_lshl_b32 s{sA}, s{sRB}, {FS}
        s_add_u32 s{sA}, s{sA}, s{sD}"""
        if CK == 14:
            e("s_barrier")
            self.issue_w()
            e("s_waitcnt vmcnt(14)\ns_barrier")
            self.issue_w()
            e(fl)
            e("s_waitcnt vmcnt(14)\ns_barrier")
            e("s_waitcnt vmcnt(10)")
        else:
            e("s_barrier")
            self.issue_w()
            e("s_waitcnt vmcnt(14)\ns_barrier")
            e(fl)
            self.x_p2_setup()
            e("s_waitcnt vmcnt(9)\ns_barrier")
            e("s_waitcnt vmcnt(0)")
        self.flag_store(sA, T+8)
        self.stamp(5)
        if self.o.get("selft", "1") == "1":
            e(f"""s_lshl_b32 s{sT}, s{sNH}, 3
            s_sub_u32 s{sT}, 39, s{sT}
            v_min_u32 v{T+4}, s{sT}, v{vL}
            v_lshlrev_b32 v{T+4}, 7, v{T+4}
            buffer_load_dword v{T+14}, v{T+4}, {srd(SRD_WS)}, s{sC} offen sc1""")
        if CK == 14:
            nx = 2 if self.o.get("selft", "1") == "1" else 1
            e(f"s_waitcnt vmcnt({5+nx})\ns_barrier")
            self.x_p2_setup()
            e(f"s_waitcnt vmcnt({nx})")
        e("s_barrier")
        for i in range(int(self.o.get("na1", 4))): self.issue_a(i)
        e("s_barrier")
        self.WPRE = 0
        self.wl_all = [s_ for pos in range(self.NWS) for s_ in self.wload(pos)]
        self.x_p2_loader()
        self.x_p3()

    def x_p2_setup(self):
        e = self.e; T = self.vT + 4; vL = self.vL
        e(f"s_lshl_b32 s{sT2}, s{sW}, 4")
        for i in range(2):
            e(f"""v_lshrrev_b32 v{T}, 3, v{vL}
            v_add_u32 v{T}, s{sT2}, v{T}
            v_add_u32 v{T}, {8*i}, v{T}
            v_bfe_u32 v{T+1}, v{T}, 1, 3
            v_and_b32 v{T+2}, 7, v{vL}
            v_xor_b32 v{T+1}, v{T+1}, v{T+2}
            v_lshlrev_b32 v{T+1}, 4, v{T+1}
            v_lshl_add_u32 v{2+i}, v{T}, 12, v{T+1}""")
        e(f"""v_subrev_u32 v3, 1024, v3
        v_and_b32 v5, 31, v{vL}
        v_lshlrev_b32 v5, {FS}, v5
        s_lshl_b32 s{sWSOFF}, s{sRB}, 18
        s_add_u32 s42, s{sWSOFF}, 4096
        s_and_b32 s{sT2}, s{sRB}, 24
        s_lshl_b32 s{sT}, s{sT2}, 7
        s_add_u32 s{sWSOFF}, s{sWSOFF}, s{sT}
        s_lshl_b32 s{sWSLOT}, s{sW}, 11
        s_mul_i32 s{sROFF}, s{sMH}, 9216
        s_mul_i32 s{sT}, s{sNH}, 5120
        s_add_u32 s{sROFF}, s{sROFF}, s{sT}
        s_mul_i32 s{sXOFF}, s{sCB}, {32*18432}
        s_add_u32 s{sXOFF}, s{sXOFF}, s{sROFF}
        s_add_u32 s{sXOFF}, s{sXOFF}, {WS_Z2}
        s_add_u32 s43, s{sXOFF}, {32*18432}
        s_mul_i32 s{sT}, s{sT2}, 18432
        s_add_u32 s{sXOFF}, s{sXOFF}, s{sT}
        s_add_u32 s95, s{sXOFF}, 4096
        s_add_u32 s{sROFF}, s{sROFF}, {BRING}""")
    def issue_a(self, i):
        self.e(f"""s_add_u32 m0, s{sWSLOT}, {ABASE + 8192*i}
        s_nop 0
        buffer_load_dwordx4 v2, {srd(SRD_WSP)}, s{sWSOFF} offen lds
        buffer_load_dwordx4 v3, {srd(SRD_WSP)}, s{sWSOFF} offen offset:1024 lds
        s_add_u32 s{sWSOFF}, s{sWSOFF}, 128""")
    def issue_b(self, slot, five):
        e = self.e
        e(f"s_add_u32 m0, s{sROFF}, {BSZ*slot}\ns_nop 0")
        for i in range(4):
            e(f"buffer_load_dwordx4 v7, {srd(SRD_WS)}, s{sXOFF} offen offset:{1024*i} sc1 lds")
        if five:
            e(f"""s_add_u32 m0, s{sROFF}, {BSZ*slot + 4096}
            s_add_u32 s{sXOFF}, s{sXOFF}, 18432
            buffer_load_dwordx4 v7, {srd(SRD_WS)}, s95 offen sc1 lds
            s_add_u32 s95, s95, 18432""")
        else:
            e(f"s_add_u32 s{sXOFF}, s{sXOFF}, 18432")
    def loop(self, n, fn, name):
        L = self.a.newlab(name)
        self.e(f"s_mov_b32 s{sCNT}, {n}")
        self.a.lab(L)
        fn()
        self.e(f"s_sub_u32 s{sCNT}, s{sCNT}, 1\ns_cmp_lg_u32 s{sCNT}, 0\ns_cbranch_scc1 {L}")

    def x_p2_loader(self):
        e = self.e; T = self.vT
        e(f"""s_and_b32 s{sT}, s{sRB}, 24
        s_lshl_b32 exec_lo, 0xff, s{sT}
        s_mov_b32 exec_hi, 0
        s_add_u32 s{sT}, s{sT}, 8
        s_and_b32 s{sT}, s{sT}, 31
        s_lshl_b32 s41, 0xff, s{sT}""")
        self.poll(5, f"s{sD}", T)
        self.stamp(6)
        Lfour = self.a.newlab("Lp2four"); Ldone = self.a.newlab("Lp2done")
        e(f"""s_cmp_eq_u32 s{sNH}, 1
        s_cbranch_scc1 {Lfour}""")
        for five in (True, False):
            nb = 5 if five else 4
            self.issue_b(0, five); self.issue_b(1, five)
            e(f"s_waitcnt vmcnt({nb})\ns_barrier")
            self.issue_b(2, five); self.issue_b(3, five)
            na1 = int(self.o.get("na1", 4))
            for i in range(na1, NA): self.issue_a(i)
            e(f"s_waitcnt vmcnt({2*nb + 2*(NA-na1)})")
            def grp(withA):
                e(f"""s_cmp_ge_u32 s{sWSOFF}, s42
                s_cselect_b32 s{sT}, 4096, 0
                s_sub_u32 s{sWSOFF}, s{sWSOFF}, s{sT}
                s_cmp_ge_u32 s{sXOFF}, s43
                s_cselect_b32 s{sT}, {32*18432}, 0
                s_sub_u32 s{sXOFF}, s{sXOFF}, s{sT}
                s_sub_u32 s95, s95, s{sT}""")
                if withA:
                    Lk = self.a.newlab("Lfk"); Lr = self.a.newlab("Lfr")
                    e(f"""s_bitcmp0_b32 s{sCNT}, 0
                    s_cbranch_scc1 {Lk}
                    v_cmp_ne_u32 vcc, s{sTAG}, v6
                    s_nop 0
                    s_and_b32 s{sT}, vcc_lo, s41
                    s_cbranch_scc0 {Lr}
                    s_mov_b32 exec_lo, s{sT}
                    s_mov_b32 exec_hi, 0""")
                    self.poll(5, f"s{sD}", T)
                    self.a.lab(Lr)
                    e(f"s_lshr_b32 s{sT}, s41, 24\ns_lshl_b32 s41, s41, 8\ns_or_b32 s41, s41, s{sT}")
                    self.a.lab(Lk)
                for i in range(4):
                    if withA and i == 1:
                        Lq = self.a.newlab("Lfq"); Lq2 = self.a.newlab("Lfq2")
                        e(f"""s_bitcmp1_b32 s{sCNT}, 0
                        s_cbranch_scc1 {Lq}
                        s_mov_b32 exec_lo, s41
                        s_mov_b32 exec_hi, 0
                        buffer_load_dword v6, v5, {srd(SRD_WS)}, s{sD} offen sc1
                        s_mov_b64 exec, -1
                        s_cmp_lg_u32 s{sCNT}, 6
                        s_cbranch_scc1 {Lq}
                        buffer_load_dword v{T+15}, v37, {srd(SRD_WS)}, s91 offen sc1""")
                        self.a.lab(Lq)
                    e("s_barrier")
                    if i == 0: self.stampd(12)
                    self.issue_b(i, five)
                    if withA: self.issue_a(i)
                    e(f"s_waitcnt vmcnt({2*nb + 2 if withA else 2*nb})")
                if withA: e(f"s_xor_b32 s{sWSLOT}, s{sWSLOT}, 32768")
            def grp_t():
                grp(True)
                if self.o.get("wtouch", "0") == "1":
                    Lt = self.a.newlab("Lwt")
                    e(f"s_cmp_lg_u32 s{sCNT}, 2\ns_cbranch_scc1 {Lt}\nbuffer_load_dword v6, v4, {srd(SRD_WS)}, s{sT2} offen sc1")
                    self.a.lab(Lt)
            self.loop(6, grp_t, "Lp2f")
            grp(False)
            if five:
                e(f"s_branch {Ldone}")
                self.a.lab(Lfour)
        self.a.lab(Ldone)
        wl = self.wl_all[self.WPRE:]
        Lw = self.a.newlab("Lwok")
        e(f"v_cmp_ne_u32 vcc, s{sTAG}, v{T+15}\ns_cbranch_vccz {Lw}")
        self.poll(37, "s91", T)
        self.a.lab(Lw)
        e("s_barrier")
        n1 = min(5, len(wl)); n2 = min(5, len(wl) - n1); n3 = min(8, len(wl) - n1 - n2)
        for s_ in wl[:n1]: e(s_)
        e(f"s_waitcnt vmcnt({4+n1})\ns_barrier")
        for s_ in wl[n1:n1+n2]: e(s_)
        e(f"s_waitcnt vmcnt({n1+n2})\ns_barrier")
        for s_ in wl[n1+n2:n1+n2+n3]: e(s_)
        self.wl_rest = wl[n1+n2+n3:]
        self.w_issued = self.WPRE + n1 + n2 + n3
        self.stamp(7)

    def x_p3(self):
        e = self.e; T = self.vT; vL = self.vL; A3 = self.A3
        e("s_barrier")
        Lidle = self.a.newlab("Lp3idle")
        e(f"s_cmp_eq_u32 s{sCB}, 5\ns_cbranch_scc1 {Lidle}")
        e("s_barrier")
        WTH = int(self.o.get("wthr", 5)); WN1 = int(self.o.get("wn1", 24)); WPP = int(self.o.get("wpp", 4))
        wq = list(self.wl_rest) + [s_ for p_ in range(self.NWS, 27) for s_ in self.wload(p_)]
        e(f"""v_and_b32 v2, 15, v{vL}
        v_mul_u32_u24 v2, 1280, v2
        v_lshrrev_b32 v3, 4, v{vL}
        s_mul_i32 s{sA}, s{sRB}, {64*1280}
        s_lshl_b32 s{sC}, s{sCB}, 8
        s_add_u32 s{sA}, s{sA}, s{sC}
        s_lshl_b32 s{sC}, s{sW}, 6
        s_add_u32 s{sA}, s{sA}, s{sC}
        v_and_b32 v6, 1, v3
        v_lshlrev_b32 v6, 5, v6
        v_lshrrev_b32 v3, 1, v3
        v_lshl_add_u32 v6, v3, 4, v6
        v_add_u32 v6, v6, v2
        s_mov_b32 s{sB}, 0xffff0000
        v_add_u32 v2, {HB}, v7
        v_add_u32 v3, 0x10000, v2
        v_lshlrev_b32 v4, 3, v{vL}""")
        self.stamp(8)
        def hreads(pos, F):
            out = []
            if pos < 24:
                j, p = divmod(pos, 4)
                for b in range(4):
                    mh, a = b >> 1, b & 1
                    off = j*18432 + (9*mh + 5*(p >> 1) + 2*(p & 1) + a)*1024
                    out.append(f"ds_read_b128 v[{F+4*b}:{F+4*b+3}], v{2 + (off >> 16)} offset:{off & 0xffff}")
            else:
                for hf in range(2):
                    cbp = 2*(pos - 24) + hf
                    pre = f"""s_bfe_u32 s{sT}, s50, {(4 << 16) | (4*cbp)}
                    s_mul_i32 s{sT}, s{sT}, 18432
                    s_add_u32 s{sT}, s{sT}, {HB + 4096}
                    v_add_u32 v{2+hf}, s{sT}, v4
                    """
                    for b in range(4):
                        mh, a = b >> 1, b & 1
                        out.append(pre + f"ds_read_b64 v[{F+4*b+2*hf}:{F+4*b+2*hf+1}], v{2+hf} offset:{9216*mh + a*512}")
                        pre = ""
            return out
        FB = (8, 24, 208)
        self.stamp(9)
        for s_ in hreads(0, FB[0]) + hreads(1, FB[1]): e(s_)
        issued = self.w_issued
        NL = 27 - self.NWS
        XV = self.wreg(NL, 0)
        YV = self.wreg(NL + 2, 0)
        XS = self.wreg(NL + 5, 0)
        XA = self.wreg(NL + 4, 0)
        e(f"""v_lshrrev_b32 v5, 2, v{vL}
        v_lshlrev_b32 v5, 7, v5
        v_and_b32 v{A3}, 3, v{vL}
        v_lshl_add_u32 v5, v{A3}, 3, v5
        s_lshl_b32 s{sC}, s{sW}, 12
        s_add_u32 s{sC}, s{sC}, {YAB}
        v_add_u32 v5, s{sC}, v5""")
        prev = 4
        for pos in range(27):
            if pos == NL + 6:
                e(f"""v_and_b32 v{XA+2}, 15, v{vL}
                v_lshrrev_b32 v{XA+3}, 5, v{vL}
                s_lshl_b32 s{sC}, s{sW}, 2
                v_add_u32 v{XA+3}, s{sC}, v{XA+3}
                v_xor_b32 v{XA+3}, v{XA+3}, v{XA+2}
                v_lshlrev_b32 v{XA+3}, 4, v{XA+3}
                v_lshl_add_u32 v{XA}, v{XA+2}, 8, v{XA+3}
                v_bfe_u32 v{XA+3}, v{vL}, 4, 1
                v_lshl_add_u32 v{XA}, v{XA+3}, 3, v{XA}
                v_add_u32 v{XA}, {XB}, v{XA}
                v_xor_b32 v{XA+1}, 32, v{XA}""")
            F = FB[pos % 3]
            nxt = []
            def fbar(j):
                if self.o.get("fine"): self.stamp(28 + j)
                e("s_barrier")
                if self.o.get("fine"): self.stamp(22 + j)
            if pos == 4:
                fbar(1)
                for s_ in hreads(4, FB[1]) + hreads(5, FB[2]): e(s_)
                prev = 4
            if pos < 25 and pos not in (2, 3):
                if (pos + 2) % 4 == 0 and 8 < pos + 2 < 24: fbar((pos + 2)//4)
                nxt = hreads(pos + 2, FB[(pos + 2) % 3])
            mf = []
            for b in range(4):
                for ee in range(2):
                    c = A3 + 4*(2*b + ee); w = self.wreg(pos, ee)
                    C = "0" if pos == 0 else f"v[{c}:{c+3}]"
                    mf.append(f"v_mfma_f32_16x16x32_bf16 v[{c}:{c+3}], v[{w}:{w+3}], v[{F+4*b}:{F+4*b+3}], {C}")
            e(f"s_waitcnt lgkmcnt({prev}) vmcnt({issued - 2*(pos + 1)})")
            prev = len(nxt)
            fill = list(nxt)
            if pos >= 23:
                for i in range(4*(pos-23), 4*(pos-23)+4):
                    t = XA + 4 + 2*(i & 1)
                    fill += [f"v_lshlrev_b32 v{XS+2*i}, 16, v{XV+i}\nv_and_b32 v{XS+2*i+1}, s{sB}, v{XV+i}",
                             f"v_lshlrev_b32 v{t}, 16, v{YV+i}\nv_and_b32 v{t+1}, s{sB}, v{YV+i}\nv_pk_add_f32 v[{XS+2*i}:{XS+2*i+1}], v[{XS+2*i}:{XS+2*i+1}], v[{t}:{t+1}]"]
            for s_ in self.interleave(fill, mf, 2 if len(fill) > 8 else 1): e(s_)
            nw = (WN1 + 3) // 4 if pos < 4 else WPP
            for _ in range(nw):
                if wq and (issued < 2*self.NWS or issued//2 - self.NWS <= pos):
                    e(wq.pop(0)); issued += 1
                    if pos < 4: e(f"s_waitcnt vmcnt({WTH})")
            assert issued >= min(54, 2*(pos + 2)), (pos, issued)
            if pos == 21:
                if self.o.get("spec", "0") == "1": e("s_barrier")
                for b in range(4):
                    for ee in range(2):
                        r = 2*(2*b + ee)
                        e(f"ds_read_b64_tr_b16 v[{YV+r}:{YV+r+1}], v5 offset:{ee*2048 + b*32}")
                prev += 8
            if pos == 20:
                for b in range(4):
                    for ee in range(2):
                        r = 2*(2*b + ee)
                        e(f"ds_read_b64 v[{XV+r}:{XV+r+1}], v{XA+ee} offset:{4096*b}")
                prev += 8
        self.stamp(10)
        for i in range(16):
            e(f"v_pk_add_f32 v[{A3+2*i}:{A3+2*i+1}], v[{A3+2*i}:{A3+2*i+1}], v[{XS+2*i}:{XS+2*i+1}]")
        OV = 40
        for b in range(4):
            q = OV + 4*b
            for k in range(4):
                c = A3 + 8*b + 2*k; i = 4*b + k; t = 8 + 2*k
                e(f"v_cvt_pk_bf16_f32 v{q+k}, v{c}, v{c+1}")
            e(f"""v_permlane16_swap_b32 v{q}, v{q+2}
            v_permlane16_swap_b32 v{q+1}, v{q+3}
            s_add_u32 s{sT}, s{sA}, {b*16*1280}
            buffer_store_dwordx4 v[{q}:{q+3}], v6, {srd(SRD_OUT)}, s{sT} offen {self.o.get("ost", "")}""")
        self.stamp(11)
        e(f"""s_cmp_lg_u32 s2, 0
        s_cbranch_scc1 L_end
        s_cmp_lg_u32 s{sW}, 0
        s_cbranch_scc1 L_end
        v_lshlrev_b32 v8, {FS}, v{vL}
        s_mov_b32 s{sD}, {WS_FY}
        s_mov_b32 s{sA}, {WS_EPOCH}""")
        self.poll(8, f"s{sD}", 9)
        self.flag_store(sA, 8)
        if self.o.get("dbgt"):
            e(f"""s_load_dwordx2 s[40:41], s[0:1], 104
            s_waitcnt vmcnt(0)
            s_memtime s[{sTM}:{sTM+1}]
            s_memrealtime s[98:99]
            s_waitcnt lgkmcnt(0)
            s_sub_u32 s{sTM}, s{sTM}, s{sTM0}
            s_sub_u32 s98, s98, s100
            v_mov_b32 v8, s{sTM}
            v_mov_b32 v9, s98
            v_mov_b32 v10, 0
            global_store_dwordx2 v10, v[8:9], s[40:41]""")
        self.a.lab(Lidle)
        e("s_branch L_end")

    def pub_parts(self):
        e = self.e; T = 240; vL = self.vL
        g, r, c4 = T, T+1, T+2
        XQ = 192; XAD = 208; RSV = 216
        e(f"""v_lshrrev_b32 v{g}, 4, v{vL}
        v_bfe_u32 v{r}, v{vL}, 2, 2
        v_and_b32 v{c4}, 3, v{vL}""")
        for rd in range(2):
            t, sw, ad = T+3, T+4, T+6+rd
            e(f"""v_lshl_add_u32 v{t}, v{g}, 3, v{r}
            v_add_u32 v{t}, {4*rd}, v{t}
            v_bfe_u32 v{sw}, v{t}, 1, 3
            v_lshrrev_b32 v{ad}, 1, v{c4}
            v_xor_b32 v{sw}, v{sw}, v{ad}
            v_lshlrev_b32 v{sw}, 4, v{sw}
            v_lshl_add_u32 v{ad}, v{t}, 7, v{sw}
            v_and_b32 v{sw}, 1, v{c4}
            v_lshl_add_u32 v{ad}, v{sw}, 3, v{ad}""")
        e(f"""v_and_b32 v{T+8}, 7, v{vL}
        v_lshlrev_b32 v{T+8}, 12, v{T+8}
        v_lshl_add_u32 v{T+8}, v{g}, 4, v{T+8}
        v_bfe_u32 v{T+3}, v{vL}, 3, 1
        v_lshl_add_u32 v{T+8}, v{T+3}, 6, v{T+8}
        s_mul_i32 s{sA}, s{sCB}, 7
        s_sub_u32 s{sB}, s{sCB}, 2
        s_max_i32 s{sB}, s{sB}, 0
        s_sub_u32 s{sA}, s{sA}, s{sB}
        s_lshl_b32 s{sB}, s{sW}, 1
        s_add_u32 s{sA}, s{sA}, s{sB}""")
        for i in range(2):
            e(f"""s_add_u32 s{sB}, s{sA}, {i}
            s_and_b32 s{sC}, s{sB}, 3
            s_lshl_b32 s{sC}, s{sC}, 5
            s_lshr_b32 s{sD}, s{sB}, 2
            s_lshl_b32 s{sD}, s{sD}, 13""")
            for rd in range(2):
                e(f"v_xor_b32 v{XAD+2*i+rd}, s{sC}, v{T+6+rd}\nv_add_u32 v{XAD+2*i+rd}, s{sD}, v{XAD+2*i+rd}")
        e(f"""s_lshl_b32 s{sB}, s{sRB}, 7
        s_add_u32 s{sB}, s{sB}, {WS_XNT}
        s_lshl_b32 s{sA}, s{sA}, 16
        s_add_u32 s38, s{sA}, s{sB}
        s_lshl_b32 s{sD}, s{sCB}, 5
        s_add_u32 s{sD}, s{sD}, s{sRB}
        s_lshl_b32 s{sD}, s{sD}, 7
        s_add_u32 s39, s{sD}, {WS_FXN}
        s_mov_b32 s40, 0xffff0000""")
        rds = []
        for i in range(2):
            for h in range(2):
                for rd in range(2):
                    q = XQ + 8*i + 4*h + 2*rd
                    rds.append(f"ds_read_b64_tr_b16 v[{q}:{q+1}], v{XAD+2*i+rd} offset:{4096*h}")
        work = []
        for i in range(2):
            for k in range(4):
                r0 = XQ + 8*i + k; r1 = r0 + 4; t = T + 4 + (k & 1)
                work += [f"v_mov_b32 v{t}, v{r0}",
                         f"v_mov_b32_dpp v{r0}, v{r1} row_ror:8 row_mask:0xf bank_mask:0xc",
                         f"v_mov_b32_dpp v{r1}, v{t} row_ror:8 row_mask:0xf bank_mask:0x3"]
            for h in range(2):
                q = XQ + 8*i + 4*h
                work.append(f"buffer_store_dwordx4 v[{q}:{q+3}], v{T+8}, {srd(SRD_WS)}, s38 offen sc1\ns_add_u32 s38, s38, 32768")
        return rds, work

    def y_spec(self, hblk):
        e = self.e; T = self.vT; vL = self.vL
        V = 40
        L5 = self.a.newlab("Lc5")
        e(f"s_cmp_eq_u32 s{sCB}, 5\ns_cbranch_scc1 L_end")
        N1 = int(self.o.get("sn1", 2))
        for j in range(1, N1 + 1): hblk(j)
        self.stamp(6)
        e(f"v_add_u32 v{T+7}, 0x10000, v{T+10}")
        for j in range(1, 6):
            Lok = self.a.newlab("Lsv")
            if j == 3:
                e(f"buffer_load_dword v{T+6}, v6, {srd(SRD_WS)}, 0 offen sc1")
                for jj in range(N1 + 1, 6): hblk(jj)
            e(f"s_waitcnt vmcnt({4*((N1 if j < 3 else 5)-j) + (4 if j > 3 else 0)})")
            off = 18432*j
            for i in range(5):
                o = off + 1024*min(i, 4)
                if i < 4: e(f"ds_read_b128 v[{V+4*i}:{V+4*i+3}], v{(T+10, T+7)[o >> 16]} offset:{o & 0xffff}")
                else: e(f"ds_read_b128 v[{V+16}:{V+19}], v{(T+4, T+5)[off >> 16]} offset:{off & 0xffff}")
            e("s_waitcnt lgkmcnt(0)")
            e(f"v_max3_u32 v{V}, v{V}, v{V+1}, v{V+2}")
            for r in range(3, 19, 2): e(f"v_max3_u32 v{V}, v{V}, v{V+r}, v{V+r+1}")
            e(f"""v_max_u32 v{V}, v{V}, v{V+19}
            v_cmp_eq_u32 vcc, -1, v{V}
            s_cbranch_vccz {Lok}
            s_mul_hi_u32 s{sT}, s{self.sBO+j}, {(1 << 32)//18432 + 1}
            s_lshl_b32 exec_lo, 1, s{sT}
            s_mov_b32 exec_hi, 0""")
            self.poll(6, "0", T+3)
            hblk(j)
            e("s_waitcnt vmcnt(0)")
            self.a.lab(Lok)
            if j == 3:
                Ly = self.a.newlab("Lsy")
                e(f"""s_barrier
                s_waitcnt vmcnt(8)
                v_cmp_ne_u32 vcc, s{sTAG}, v{T+6}
                s_and_b32 s{sT}, vcc_lo, 0xffff0000
                s_cbranch_scc0 {Ly}
                s_mov_b32 exec_lo, 0xffff0000
                s_mov_b32 exec_hi, 0""")
                self.poll(6, "0", T+3)
                self.a.lab(Ly)
                e(f"s_add_u32 m0, s{sB}, {YAB}\ns_nop 0")
                for i in range(4):
                    e(f"buffer_load_dwordx4 v{T+8}, {srd(SRD_WS)}, s{sD} offen offset:{1024*i} sc1 lds")
            if j not in (1, 3): e("s_barrier")
        e("s_waitcnt vmcnt(0)\ns_barrier")
        self.stamp(7)
        e("s_branch L_end")

    def y_p3_setup(self):
        e = self.e; T = self.vT; vL = self.vL
        e(f"""s_lshl_b32 s{sD}, s{sRB}, 2
        s_add_u32 s{sD}, s{sD}, s{sW}
        s_lshl_b32 s{sD}, s{sD}, {3+FS}
        s_add_u32 s{sD}, s{sD}, {WS_FH}
        s_lshl_b32 s85, s{sCB}, {FS}
        s_add_u32 s85, s85, s{sD}
        v_min_u32 v6, 5, v{vL}
        v_lshlrev_b32 v6, {FS}, v6
        v_add_u32 v6, s{sD}, v6
        s_min_u32 s{sC}, s{sCB}, 4
        s_mul_i32 s{sA}, s{sC}, 51
        s_lshr_b32 s{sA}, s{sA}, 2
        v_and_b32 v{T+3}, 15, v{vL}
        v_add_u32 v{T+3}, s{sA}, v{T+3}
        v_min_u32 v{T+3}, 63, v{T+3}
        v_lshlrev_b32 v{T+3}, {FS}, v{T+3}
        v_add_u32 v{T+3}, {WS_FY}, v{T+3}
        v_cmp_lt_u32 vcc, 15, v{vL}
        v_cndmask_b32 v6, v6, v{T+3}, vcc
        s_mul_i32 s93, s{sMH}, 9216
        s_mul_i32 s{sA}, s{sNH}, 5120
        s_add_u32 s93, s93, s{sA}
        s_mul_i32 s94, s{sRB}, {6*18432}
        s_add_u32 s94, s94, s93
        s_add_u32 s94, s94, {WS_H}
        s_add_u32 s93, s93, {HB}
        s_mul_i32 s91, s{sRB}, {64*1280}
        s_lshl_b32 s{sA}, s{sC}, 8
        s_add_u32 s91, s91, s{sA}
        s_mul_i32 s{sA}, s{sW}, {16*1280}
        s_add_u32 s91, s91, s{sA}
        s_mul_i32 s{sMASK}, s{sRB}, {640*128}
        s_lshl_b32 s{sA}, s{sC}, 14
        s_add_u32 s{sMASK}, s{sMASK}, s{sA}
        s_lshl_b32 s{sA}, s{sW}, 12
        s_add_u32 s{sMASK}, s{sMASK}, s{sA}
        s_add_u32 s{sMASK}, s{sMASK}, {WS_YA}""")
        for i in range(4):
            e(f"""v_lshrrev_b32 v{T+4}, 4, v{vL}
            v_add_u32 v{T+4}, {4*i}, v{T+4}
            v_and_b32 v{T+5}, 15, v{vL}
            v_xor_b32 v{T+5}, v{T+5}, v{T+4}
            v_mul_u32_u24 v{T+4}, 1280, v{T+4}
            v_lshl_add_u32 v{T+12+i}, v{T+5}, 4, v{T+4}""")
            if i: e(f"v_subrev_u32 v{T+12+i}, {1024*i}, v{T+12+i}")

    def y_path(self):
        e = self.e; T = self.vT; ACC = self.ACC; vL = self.vL; Z1 = self.Z1
        self.a.lab("L_Y")
        if self.o.get("yprio", "1") == "1": e("s_setprio 0")
        self.stamp(0)
        vmw = lambda n: f"s_waitcnt vmcnt({n})"
        e(f"""s_add_u32 s{sWSLOT}, s{sWSLOT}, {2*S1SZ}
        s_add_u32 s{sWSOFF}, s{sWSOFF}, {2*64*3456}""")
        if self.o.get("y23", "0") == "1": self.issue_w()
        e("s_barrier")
        self.stamp(12)
        if self.o.get("y23", "0") != "1": self.issue_w()
        self.issue_w()
        e("s_barrier")
        self.issue_w()
        e(vmw(10))
        L = self.a.newlab("Ly1")
        e(f"s_mov_b32 s{sCNT}, 2")
        self.a.lab(L)
        e("s_barrier")
        self.stampd(12)
        Lc = self.a.newlab("Lcol")
        e(f"""s_cmp_lg_u32 s{sCNT}, 7
        s_cbranch_scc1 {Lc}
        s_sub_u32 s{sWSOFF}, s{sWSOFF}, 1728
        s_sub_u32 s{sWSL}, s{sWSL}, 1728""")
        self.a.lab(Lc)
        self.issue_w()
        e(vmw(10))
        e(f"""s_add_u32 s{sCNT}, s{sCNT}, 1
        s_cmp_lt_u32 s{sCNT}, 10
        s_cbranch_scc1 {L}""")
        self.stamp(1)
        ysetup = self.capture(lambda: (self.blk_offsets(18432), self.y_p3_setup()))
        yflag = []
        if int(self.o.get("hold", 3)) >= 3:
            for l in ysetup: e(l)
            ysetup = []
        e(f"""s_mov_b32 s{sROFF}, {RING1 + 2*S1SZ}
        v_and_b32 v{T}, 15, v{vL}
        v_lshlrev_b32 v{T}, 1, v{T}
        s_lshl_b32 s{sA}, s{sRB}, 7
        s_lshl_b32 s{sB}, s{sMH}, 6
        s_add_u32 s{sA}, s{sA}, s{sB}
        buffer_load_ushort v34, v{T}, {srd(SRD_BSP)}, s{sA} offen
        buffer_load_ushort v36, v{T}, {srd(SRD_BSP)}, s{sA} offen offset:32""")
        tail = self.compute2(10, True, self.p1_reads, self.p1_addr, "p1b", vmwait=True, first=(ysetup, yflag))
        for m in tail: e(m)
        e("s_barrier")
        self.stamp(2)
        for i in range(0, 20, 4):
            if i == 16: e(f"s_cmp_eq_u32 s{sNH}, 1\ns_cbranch_scc1 L_g4")
            self.rr([self.gelu_list(ACC + 2*(i+k), T + 2*k, T + 8 + 2*(k >> 1), packed=Z1 + 2*(i + k)) for k in range(4)])
        self.a.lab("L_g4")
        e(f"""v_lshlrev_b32 v34, 16, v34
        v_lshlrev_b32 v36, 16, v36
        v_mov_b32 v35, v34
        v_mov_b32 v37, v36
        v_lshlrev_b32 v{self.vWB4}, 4, v{vL}
        s_mul_i32 s{sA}, s{sNH}, 5120
        v_add_u32 v{self.vWB}, s{sA}, v{self.vWB4}
        v_add_u32 v{self.vWB4}, 4096, v{self.vWB4}
        v_add_u32 v{self.vX0}, {ABASE}, v{self.vX0}
        v_add_u32 v{self.vX1}, {ABASE}, v{self.vX1}
        s_mov_b32 s{sROFF}, {BRING}
        s_mov_b32 s{sXOFF}, 0""")
        e("s_waitcnt vmcnt(12)")
        if self.o.get("dgem"): e(f"s_sleep {self.o['dgem']}")
        self.stamp(3)
        ZD = int(self.o.get("zd", 0))
        e(f"""v_min_u32 v4, 8, v{vL}
        v_lshlrev_b32 v4, 7, v4
        s_and_b32 s{sA}, s{sRB}, 7
        s_lshl_b32 s{sA}, s{sA}, 2
        s_add_u32 s{sA}, s{sA}, s{sW}
        s_mul_i32 s{sWSL}, s{sA}, {9*128}
        s_mul_i32 s{sC}, s{sCB}, {32*18432}
        s_add_u32 s{sWSL}, s{sWSL}, s{sC}
        s_add_u32 s{sWSL}, s{sWSL}, {WS_Z2 + ZD*18432}
        s_min_u32 s{sC}, s{sCB}, 4
        s_mul_i32 s{sC}, s{sC}, {8*27*1024}
        s_mul_i32 s{sA}, s{sA}, {54*128}
        s_add_u32 s{sW0}, s{sC}, s{sA}
        s_add_u32 s{sW0}, s{sW0}, {WS_WOT}
        v_min_u32 v7, 53, v{vL}
        v_lshlrev_b32 v7, 7, v7""")
        def ztouch():
            if ZD:
                Lz = self.a.newlab("Lzt")
                e(f"""s_cmp_le_u32 s{sCNT}, {(ZD-2)//2}
                s_cbranch_scc1 {Lz}
                buffer_load_dword v5, v4, {srd(SRD_WS)}, s{sWSL} offen sc1
                s_add_u32 s{sWSL}, s{sWSL}, {2*18432}""")
                self.a.lab(Lz)
            if self.o.get("ywt"):
                Lw = self.a.newlab("Lwt")
                e(f"s_cmp_lg_u32 s{sCNT}, 6\ns_cbranch_scc1 {Lw}\nbuffer_load_dword v5, v7, {srd(SRD_WS)}, s{sW0} offen sc1")
                self.a.lab(Lw)
        e(f"""v_lshlrev_b32 v{T+8}, 4, v{vL}
        v_lshlrev_b32 v{T+9}, 3, v{vL}
        s_mul_i32 s{sA}, s{sRB}, 6
        s_add_u32 s{sA}, s{sA}, s{sCB}
        s_mul_i32 s{sA}, s{sA}, 18432
        s_mul_i32 s{sC}, s{sMH}, 9216
        s_mul_i32 s{sD}, s{sNH}, 5120
        s_add_u32 s{sC}, s{sC}, s{sD}
        s_add_u32 s{sA}, s{sA}, s{sC}
        s_add_u32 s{sA}, s{sA}, {WS_H}
        s_add_u32 s{sC}, s{sC}, {HB}
        v_add_u32 v{T+10}, s{sC}, v{T+8}
        v_add_u32 v{T+11}, s{sC}, v{T+9}
        s_add_u32 s{sC}, s{sA}, 4096""")
        if self.o.get("nhs", "1") == "1":
            e(f"s_cmp_eq_u32 s{sNH}, 0\ns_cbranch_scc1 L_p2five")
            self.NJ = 4
            self.compute_loop(32, True, self.p2_reads, self.p2_addr, "p2", mid=ztouch, peel="s_waitcnt vmcnt(0)")
            self.NJ = 5
            e("s_branch L_p2join")
            self.a.lab("L_p2five")
        tail = self.compute_loop(32, True, self.p2_reads, self.p2_addr, "p2", mid=ztouch, peel="s_waitcnt vmcnt(0)")
        if self.o.get("nhs", "1") == "1": self.a.lab("L_p2join")
        e("s_barrier")
        tl = {}
        for k, m in enumerate(tail): tl.setdefault((k % 10) // 2, []).append(m)
        HQ = 40
        Ls = self.a.newlab("Lh4")
        tc = [0]
        def hval(j, a, h, d):
            r = ACC + 4*(2*j + a) + 2*h; z = Z1 + 4*(2*j + a) + 2*h; b = 34 + 2*a
            return [f"v_pk_add_f32 v[{r}:{r+1}], v[{r}:{r+1}], v[{b}:{b+1}]",
            f"v_pk_mul_f32 v[{r}:{r+1}], v[{r}:{r+1}], v[{z}:{z+1}]",
            f"v_cvt_pk_bf16_f32 v{d}, v{r}, v{r+1}"]
        for m in tl[0] + tl[1] + tl[2][:2]: e(m)
        rest = tl[2][2:] + tl[3] + tl[4]
        for p in range(2):
            for a in range(2):
                q = HQ + 4*(2*p + a)
                ops = []
                hv = [hval(2*p + jj, a, h, q + 2*jj + h) for jj in range(2) for h in range(2)]
                for i in range(3): ops += [l[i] for l in hv]
                if p == 0:
                    ms = rest[5*a:5*a+5]
                    for i, o in enumerate(ops):
                        if i % 2 == 0 and ms: e(ms.pop(0))
                        e(o)
                else:
                    for o in ops: e(o)
                e(f"buffer_store_dwordx4 v[{q}:{q+3}], v{T+8}, {srd(SRD_WS)}, s{sA} offen offset:{1024*(2*p+a)} sc1")
                e(f"ds_write_b128 v{T+10}, v[{q}:{q+3}] offset:{1024*(2*p+a)}")
        self.stamp(4)
        e(f"s_cmp_eq_u32 s{sNH}, 1\ns_cbranch_scc1 {Ls}")
        self.rr([hval(4, a, h, HQ + 16 + 2*a + h) for a in range(2) for h in range(2)])
        for a in range(2):
            q = HQ + 16 + 2*a
            e(f"buffer_store_dwordx2 v[{q}:{q+1}], v{T+9}, {srd(SRD_WS)}, s{sC} offen offset:{512*a} sc1")
            e(f"ds_write_b64 v{T+11}, v[{q}:{q+1}] offset:{4096 + 512*a}")
        self.a.lab(Ls)
        e("s_waitcnt lgkmcnt(0)\ns_barrier")
        e(f"s_lshl_b32 s{sB}, s{sW}, 12\ns_mov_b32 s{sD}, s{sMASK}")
        e(f"s_add_u32 m0, s{sB}, {XB}\ns_nop 0")
        for i in range(4):
            e(f"buffer_load_dwordx4 v{T+12+i}, {srd(SRD_X)}, s91 offen offset:{1024*i} lds")
        e("s_waitcnt vmcnt(4)")
        self.flag_store(85, T)
        if self.o.get("spec", "0") == "1":
            e(f"""s_lshl_b32 s{sT}, s{sNH}, 10
            s_sub_u32 s{sT}, 4096, s{sT}
            v_add_u32 v{T+4}, s{sT}, v{T+10}
            v_add_u32 v{T+5}, 0x10000, v{T+4}""")
        elif self.o.get("selft", "1") == "1":
            e(f"""s_lshl_b32 s{sT}, s{sNH}, 3
            s_sub_u32 s{sT}, 39, s{sT}
            v_min_u32 v{T+4}, s{sT}, v{vL}
            v_lshlrev_b32 v{T+4}, 7, v{T+4}
            buffer_load_dword v{T+5}, v{T+4}, {srd(SRD_WS)}, s{sA} offen sc1""")
        self.stamp(5)
        def hblk(j):
            Lk = self.a.newlab("Lhk")
            e(f"s_add_u32 m0, s93, {18432*j}\ns_add_u32 s{sT}, s94, s{self.sBO+j}")
            for i in range(4):
                e(f"buffer_load_dwordx4 v{T+8}, {srd(SRD_WS)}, s{sT} offen offset:{1024*i} sc1 lds")
            e(f"""s_cmp_eq_u32 s{sNH}, 1
            s_cbranch_scc1 {Lk}
            s_add_u32 m0, m0, 4096
            s_add_u32 s{sT}, s{sT}, 4096
            buffer_load_dwordx4 v{T+8}, {srd(SRD_WS)}, s{sT} offen sc1 lds""")
            self.a.lab(Lk)
        if self.o.get("spec", "0") == "1":
            self.y_spec(hblk); return
        L5 = self.a.newlab("Lc5"); Lall = self.a.newlab("Lhall"); Lok = self.a.newlab("Lhok"); Lj = self.a.newlab("Lhj")
        e(f"""s_waitcnt vmcnt(1)
        s_cmp_eq_u32 s{sCB}, 5
        s_cbranch_scc1 {L5}
        buffer_load_dword v{T+3}, v6, {srd(SRD_WS)}, 0 offen sc1
        s_and_b32 s{sT}, s2, 1
        s_mul_i32 s{sT}, s{sT}, 3
        s_lshl_b32 s{sT2}, 7, s{sT}
        s_waitcnt vmcnt(0)
        v_cmp_ne_u32 vcc, s{sTAG}, v{T+3}
        s_cbranch_vccz {Lall}
        s_and_b32 s{sT}, vcc_lo, s{sT2}
        s_cbranch_scc0 {Lj}
        s_mov_b32 exec_lo, s{sT2}
        s_mov_b32 exec_hi, 0""")
        self.poll(6, "0", T+3)
        self.a.lab(Lj)
        self.stamp(6)
        hblk(1); hblk(2)
        e(f"""buffer_load_dword v{T+3}, v6, {srd(SRD_WS)}, 0 offen sc1
        s_waitcnt vmcnt(0)
        s_barrier
        v_cmp_ne_u32 vcc, s{sTAG}, v{T+3}
        s_cbranch_vccz {Lok}""")
        self.a.lab(L5)
        self.poll(6, "0", T+3)
        self.a.lab(Lok)
        self.stamp(8)
        hblk(3)
        e(f"s_cmp_eq_u32 s{sCB}, 5\ns_cbranch_scc1 L_end")
        hblk(4); hblk(5)
        e(f"s_add_u32 m0, s{sB}, {YAB}\ns_nop 0")
        for i in range(4):
            e(f"buffer_load_dwordx4 v{T+8}, {srd(SRD_WS)}, s{sD} offen offset:{1024*i} sc1 lds")
        for n in (12, 8, 0):
            e(f"s_waitcnt vmcnt({n})\ns_barrier")
        self.stamp(7)
        e("s_branch L_end")
        self.a.lab(Lall)
        self.stamp(6)
        hblk(1); hblk(2); hblk(3)
        e("s_waitcnt vmcnt(4)\ns_barrier")
        hblk(4); hblk(5)
        e(f"s_add_u32 m0, s{sB}, {YAB}\ns_nop 0")
        for i in range(4):
            e(f"buffer_load_dwordx4 v{T+8}, {srd(SRD_WS)}, s{sD} offen offset:{1024*i} sc1 lds")
        for n in (12, 8, 0):
            e(f"s_waitcnt vmcnt({n})\ns_barrier")
        self.stamp(7)
        e("s_branch L_end")

    def build(self):
        from ssm import ssm_path
        self.entry()
        self.inpro = True
        self.gemm_prologue()
        self.inpro = False
        self.x_path()
        self.y_path()
        self.a.lab("L_ssm")
        if self.o.get("nossm"):
            self.e("s_branch L_end")
        else:
            self.inssm = True
            ssm_path(self)
            self.inssm = False
        self.a.lab("L_end")
        if self.o.get("stamps"):
            self.e(f"""s_mov_b64 exec, -1
            s_waitcnt vmcnt(0)
            s_memrealtime s[{sTM}:{sTM+1}]
            s_waitcnt lgkmcnt(0)
            v_writelane_b32 v0, s100, 62
            v_writelane_b32 v0, s{sTM}, 63
            s_lshl_b32 s{sTM}, s2, 3
            s_add_u32 s{sTM}, s{sTM}, s{sWAVE}
            s_lshl_b32 s{sTM}, s{sTM}, 8
            s_add_u32 s{sTM}, s{sTM}, {WS_DBG}
            v_lshlrev_b32 v2, 2, v1
            buffer_store_dword v0, v2, {srd(SRD_WS)}, s{sTM} offen""")
        self.e("s_endpgm")
        self.a.lab("L_exit")
        self.e("s_endpgm")
        body = self.a.finalize()
        if self.o.get("align", "1") == "1":
            from asmlib import align_pass
            body = align_pass(body, KNAME, extra="L_gtab:\nL_tabend:\n")
        hdr = open("parallel_sum__ssm_conv_s4d__mixer_gmlp__prompt.s.ref").read().split("; Override launch")[0]
        s = hdr + "; @launch grid=(256,1,1) block=(512,1,1) lds=163840\n"
        s += f'.amdgcn_target "amdgcn-amd-amdhsa--gfx950"\n.text\n.globl {KNAME}\n.p2align 8\n.type {KNAME},@function\n{KNAME}:\n'
        s += body
        from ssm import gtab
        t = gtab()
        s += ".p2align 8\n.type L_gtab,@object\nL_gtab:\n"
        for i in range(0, len(t), 16): s += ".long " + ", ".join(str(v) for v in t[i:i+16]) + "\n"
        s += "L_tabend:\n"
        s += f""".section .rodata,"a"
.p2align 6
.amdhsa_kernel {KNAME}
  .amdhsa_next_free_vgpr 256
  .amdhsa_next_free_sgpr 102
  .amdhsa_accum_offset 256
  .amdhsa_group_segment_fixed_size 0
  .amdhsa_kernarg_size 120
  .amdhsa_user_sgpr_count 2
  .amdhsa_user_sgpr_kernarg_segment_ptr 1
  .amdhsa_system_sgpr_workgroup_id_x 1
.end_amdhsa_kernel
"""
        return s

if __name__ == "__main__":
    opts = {}
    out = "parallel_sum__ssm_conv_s4d__mixer_gmlp__prompt.s"
    for a in sys.argv[1:]:
        if a.startswith("-o"): out = a[2:]
        elif "=" in a:
            k, v = a.split("="); opts[k] = v
        else: opts[a] = True
    open(out, "w").write(G(opts).build())
```

```python
import sys, math, struct
from asmlib import Asm

KNAME = "parallel_sum__ssm_conv_s4d__mixer_gmlp__prompt_kernel"
def f2u(x): return struct.unpack("<I", struct.pack("<f", x))[0]
def hx(x): return f"0x{x:08x}"

WS_EPOCH = 0
WS_FXN   = 0xE0000
WS_FZ2   = 0x20000
WS_FH    = 0x40000
WS_FY    = 0x60000
WS_FWO   = 0x70000
WS_WOT   = 0xF00000 - 0x20000
WS_STATS = 0x80000
WS_XNT   = 0x100000
WS_Z2    = 0x400000
WS_H     = 0x800000
WS_YA    = 0xC00000
WS_DBG   = 0x1000000
WS_SIZE  = 0x2000000

FS = 7
XT = 0; RING1 = 81920; S1SZ = 20480; RSTAB = RING1 + 3*S1SZ
NA = 8; BRING = 0; ABASE = 81920; NB = 4; BSZ = 18432
HB = 49152; YAB = 16384; XB = 32768

sWAVE, sRB, sCB, sTAG, sT = 3, 4, 5, 6, 7
SRD_X, SRD_WIN, SRD_WSP, SRD_WOUT, SRD_OUT, SRD_WS, SRD_BSP = 8, 12, 16, 20, 24, 28, 32
def srd(n): return f"s[{n}:{n+3}]"
sW, sMH, sNH = 66, 67, 68
sWSLOT, sWSOFF, sWSL = 69, 70, 71
sXOFF, sROFF, sCNT = 72, 73, 74
sK1 = 76
sA, sB, sC, sD = 78, 79, 80, 81
sSPIN = 82
sMASK = 84
sE0 = 86
sTM = 88
sTM0 = 90
sT2 = 92
sW0 = 83
SPIN_MAX = 200000

class G:
    def __init__(self, opts):
        self.a = Asm(); self.o = opts; self.nstamp = 0
    def e(self, s):
        if self.o.get("nodma"):
            s = "\n".join(l for l in s.split("\n") if not l.strip().endswith(" lds"))
        if self.o.get("ntx"):
            s = s.replace(f"{srd(SRD_X)}, s{sC} offen", f"{srd(SRD_X)}, s{sC} offen nt")
        if self.o.get("novalu") and getattr(self, "inpro", False):
            s = "\n".join(l for l in s.split("\n") if not (l.strip().startswith("v_dot2") or l.strip().startswith("v_cvt_pk_bf16_f32 v4") or l.strip().startswith("v_cvt_pk_bf16_f32 v5") or l.strip().startswith("v_cvt_pk_bf16_f32 v6") or l.strip().startswith("v_cvt_pk_bf16_f32 v7")))
        if getattr(self, "inssm", False):
            if self.o.get("s_nomfma"): s = "\n".join(l for l in s.split("\n") if "v_mfma_f32_16x16x32_bf16" not in l)
            if self.o.get("s_nopk"): s = "\n".join(l for l in s.split("\n") if not l.strip().startswith("v_pk_") and "cvt_pk_f16" not in l)
            if self.o.get("s_nolds"): s = "\n".join(l for l in s.split("\n") if not (l.strip().startswith("ds_read_b128 v[") and "v69" in l) and not (l.strip().startswith("ds_read_b64 v[") and "v70" in l))
        if self.o.get("nosc1"):
            s = s.replace(" sc1 lds", " lds")
        self.a.e(s)

    def capture(self, fn):
        old = self.a; self.a = Asm(); self.a.uid = old.uid + 1000
        fn()
        out = [i.text for i in self.a.L]
        self.a = old
        return out
    def mk_srd(self, d, p, nbytes):
        self.e(f"""s_mov_b32 s{d}, s{p}
        s_mov_b32 s{d+1}, s{p+1}
        s_mov_b32 s{d+2}, {nbytes}
        s_mov_b32 s{d+3}, 0x20000""")

    def stamp(self, idx, vt=None):
        if not self.o.get("stamps"): return
        self.e(f"""s_memtime s[{sTM}:{sTM+1}]
        s_waitcnt lgkmcnt(0)
        s_sub_u32 s{sTM}, s{sTM}, s{sTM0}
        v_writelane_b32 v0, s{sTM}, {idx}""")
        if self.o.get("rts") and idx < 12:
            self.e(f"""s_memrealtime s[{sTM}:{sTM+1}]
            s_waitcnt lgkmcnt(0)
            s_sub_u32 s{sTM}, s{sTM}, s100
            v_writelane_b32 v0, s{sTM}, {48+idx}""")

    def stamp_s(self, k):
        if not self.o.get("stamps"): return
        self.e(f"""s_memtime s[{sTM}:{sTM+1}]
        s_waitcnt lgkmcnt(0)
        s_sub_u32 s{96+k}, s{sTM}, s{sTM0}""")
    def stamp_flush(self):
        if not self.o.get("stamps"): return
        for k in range(4): self.e(f"v_writelane_b32 v0, s{96+k}, {40+k}")

    def stampd(self, base):
        if not self.o.get("fine"): return
        self.e(f"""s_memtime s[{sTM}:{sTM+1}]
        s_waitcnt lgkmcnt(0)
        s_sub_u32 s{sTM}, s{sTM}, s{sTM0}
        s_add_u32 m0, s{sCNT}, {base}
        s_nop 1
        v_writelane_b32 v0, s{sTM}, m0""")

    def poll(self, voff, soff, vtmp, sleep=None):
        L = self.a.newlab("Lpoll"); D = self.a.newlab("Lpolld")
        sl = sleep if sleep is not None else int(self.o.get("slp", 8))
        self.e(f"s_mov_b32 s{sSPIN}, {SPIN_MAX}")
        self.a.lab(L)
        self.e(f"""buffer_load_dword v{vtmp}, v{voff}, {srd(SRD_WS)}, {soff} offen sc1
        s_waitcnt vmcnt(0)
        v_cmp_ne_u32 vcc, s{sTAG}, v{vtmp}
        s_cbranch_vccz {D}
        s_mov_b64 exec, vcc
        s_sleep {sl}
        s_sub_u32 s{sSPIN}, s{sSPIN}, 1
        s_cmp_lg_u32 s{sSPIN}, 0
        s_cbranch_scc1 {L}""")
        self.a.lab(D)
        self.e("s_mov_b64 exec, -1")

    def flag_store(self, soff_sreg, vt):
        self.e(f"""v_mov_b32 v{vt}, s{sTAG}
        v_lshlrev_b32 v{vt+1}, 2, v1
        s_mov_b32 exec_hi, 0
        buffer_store_dword v{vt}, v{vt+1}, {srd(SRD_WS)}, s{soff_sreg} offen sc1
        s_mov_b64 exec, -1""")

    def entry(self):
        e = self.e
        e(f"""s_cmp_ge_u32 s2, 256
        s_cbranch_scc1 L_exit
        s_load_dwordx2 s[36:37], s[0:1], 0
        s_load_dwordx2 s[52:53], s[0:1], 64
        s_load_dwordx2 s[64:65], s[0:1], 112
        v_lshrrev_b32 v1, 6, v0
        s_and_b32 s{sA}, s2, 7
        s_lshr_b32 s{sB}, s2, 3""")
        if self.o.get("stamps") or self.o.get("dbgt"):
            e(f"s_memtime s[{sTM0}:{sTM0+1}]\ns_memrealtime s[100:101]")
        e(f"""v_readfirstlane_b32 s{sWAVE}, v1
        s_cmp_ge_u32 s{sB}, 24
        s_cbranch_scc1 L_ssm
        s_lshr_b32 s{sRB}, s{sA}, 1
        s_lshl_b32 s{sRB}, s{sRB}, 3
        s_and_b32 s{sC}, s{sB}, 7
        s_add_u32 s{sRB}, s{sRB}, s{sC}""")

    def entry2(self):
        e = self.e
        e(f"""s_load_dwordx4 s[56:59], s[0:1], 72
        s_load_dwordx2 s[60:61], s[0:1], 96
        s_load_dword s{sTAG}, s[64:65], {WS_EPOCH}
        s_lshr_b32 s{sMH}, s{sW}, 1
        s_and_b32 s{sNH}, s{sW}, 1""")
        self.mk_srd(SRD_WS, 64, WS_SIZE)
    def entry3(self):
        self.e("s_waitcnt lgkmcnt(0)")
        self.mk_srd(SRD_WSP, 56, 2048*2048*2)
        self.mk_srd(SRD_BSP, 58, 2048*2)
        self.mk_srd(SRD_OUT, 60, 2048*640*2)

    vL = 1
    vWOFF = 2
    vX0, vX1 = 8, 9
    vWB, vWB4 = 10, 11
    vA0, vA1, vB0, vB4 = 12, 13, 14, 15
    vWB1, vB1 = 38, 39
    vT = 16
    vK0 = 32
    FS = (40, 96)
    ACC = 152
    Z1 = 192
    XR = 40

    def w_ops(self):
        g = [f"""s_mov_b32 m0, s{sWSLOT}
        s_add_u32 s{sWSLOT}, s{sWSLOT}, {S1SZ}
        buffer_load_dwordx4 v{self.vWOFF}, {srd(SRD_WIN)}, s{sWSOFF} offen lds"""]
        for i in range(1, 4):
            g.append(f"buffer_load_dwordx4 v{self.vWOFF+i}, {srd(SRD_WIN)}, s{sWSOFF} offen offset:{1024*i} lds")
        g.append(f"""s_add_u32 m0, m0, 4096
        s_cmp_ge_u32 s{sWSLOT}, {RING1 + 4*S1SZ}
        buffer_load_dwordx4 v{self.vWOFF+4}, {srd(SRD_WIN)}, s{sWSOFF} offen lds
        s_cselect_b32 s{sWSLOT}, s{sW0}, s{sWSLOT}
        s_add_u32 s{sWSOFF}, s{sWSOFF}, {64*3456}
        s_cmp_ge_u32 s{sWSOFF}, {640*3456}
        s_cselect_b32 s{sWSOFF}, s{sWSL}, s{sWSOFF}""")
        return g
    def issue_w(self):
        for g in self.w_ops(): self.e(g)

    def w_voffs(self):
        e = self.e; T = self.vT; vL = self.vL
        e(f"s_mul_i32 s{sA}, s{sW}, 320")
        for i in range(5):
            p, k, c, d = T+4, T+5, T+6, self.vWOFF + i
            e(f"""v_add_u32 v{p}, s{sA}, v{vL}
            s_add_u32 s{sA}, s{sA}, 64
            v_mul_u32_u24 v{k}, 3277, v{p}
            v_lshrrev_b32 v{k}, 16, v{k}
            v_mul_u32_u24 v{c}, 20, v{k}
            v_sub_u32 v{c}, v{p}, v{c}
            v_bfe_u32 v{p}, v{k}, 3, 1
            v_lshlrev_b32 v{p}, 1, v{p}
            v_xor_b32 v{c}, v{c}, v{p}
            v_mul_u32_u24 v{d}, 3456, v{k}
            v_lshl_add_u32 v{d}, v{c}, 4, v{d}""")
            if 1 <= i <= 3: e(f"v_subrev_u32 v{d}, {1024*i}, v{d}")

    def x_setup(self):
        e = self.e; T = self.vT; vL = self.vL
        pub_rd = []
        sv = "\n".join(self.capture(self.w_voffs)).replace(f"s{sA},", f"s{sC},").replace(f"s{sA}\n", f"s{sC}\n").replace(f"v{T+4}", f"v{T+11}").replace(f"v{T+5}", f"v{T+12}").replace(f"v{T+6}", f"v{T+13}")
        if self.o.get("xst", "1") != "1": e(sv)
        e(f"""v_lshlrev_b32 v7, 4, v{vL}
        v_and_b32 v37, 31, v{vL}
        v_min_u32 v37, 26, v37
        v_lshlrev_b32 v37, {FS}, v37
        s_min_u32 s{sA}, s{sCB}, 4
        s_lshl_b32 s91, s{sA}, 1
        s_add_u32 s91, s91, s{sMH}
        s_lshl_b32 s91, s91, {5+FS}
        s_add_u32 s91, s91, {WS_FWO}
        s_lshl_b32 s{sA}, s{sA}, 2
        s_add_u32 s{sA}, s{sA}, s{sW}
        s_mul_i32 s93, s{sA}, {2*27*1024}
        s_add_u32 s93, s93, {WS_WOT}
        s_add_u32 s94, s93, {27*1024}""")
        self.blk_offsets(4096)
        SPEC = self.o.get("spec", "0") == "1"
        if SPEC:
            Lp = self.a.newlab("Lpf5")
            e(f"""s_mul_i32 s{sA}, s{sRB}, 6
            s_add_u32 s{sA}, s{sA}, s{sCB}
            s_mul_i32 s{sA}, s{sA}, 18432
            s_mul_i32 s{sC}, s{sMH}, 9216
            s_mul_i32 s{sD}, s{sNH}, 5120
            s_add_u32 s{sC}, s{sC}, s{sD}
            s_add_u32 s{sA}, s{sA}, s{sC}
            s_add_u32 s{sA}, s{sA}, {WS_H}
            v_mov_b32 v244, -1
            v_mov_b32 v245, -1
            v_mov_b32 v246, -1
            v_mov_b32 v247, -1""")
            for i in range(4):
                e(f"buffer_store_dwordx4 v[244:247], v7, {srd(SRD_WS)}, s{sA} offen offset:{1024*i} sc1")
            e(f"""s_cmp_eq_u32 s{sNH}, 1
            s_cbranch_scc1 {Lp}
            s_add_u32 s{sA}, s{sA}, 4096
            buffer_store_dwordx4 v[244:247], v7, {srd(SRD_WS)}, s{sA} offen sc1""")
            self.a.lab(Lp)
            e("s_nop 1")
        prd, pwork = self.pub_parts()
        self.xs_out = (pub_rd, prd, pwork)

    def gemm_prologue(self):
        e = self.e; T = self.vT; XR = self.XR; vL = self.vL
        sXS = sROFF
        e(f"""v_and_b32 v{vL}, 63, v0
        s_and_b32 s{sCB}, s2, 1
        s_mul_i32 s{sCB}, s{sCB}, 3
        s_lshr_b32 s{sC}, s2, 6
        s_add_u32 s{sCB}, s{sCB}, s{sC}
        s_and_b32 s{sW}, s{sWAVE}, 3""")
        e(f"""s_and_b32 s{sA}, s{sRB}, 7
        s_mul_i32 s{sWSOFF}, s{sA}, {64*3456}
        s_lshl_b32 s{sXOFF}, s{sA}, 13
        s_mul_i32 s{sWSL}, s{sCB}, 288
        s_and_b32 s{sWSL}, s{sWSL}, 0xffffffc0
        s_add_u32 s{sWSL}, s{sWSL}, 1728
        s_add_u32 s{sWSOFF}, s{sWSOFF}, s{sWSL}
        s_mul_i32 s{sW0}, s{sW}, 5120
        s_add_u32 s{sW0}, s{sW0}, {RING1}
        s_mov_b32 s{sWSLOT}, s{sW0}""")
        for i in range(5): e(f"v_mov_b32 v{self.vWOFF+i}, 0")
        e(f"s_waitcnt lgkmcnt(0)")
        self.mk_srd(SRD_WIN, 52, 640*1728*2)
        XST = self.o.get("xst", "1") == "1"
        if not XST:
            e(f"s_cmp_lt_u32 s{sWAVE}, 4\ns_cbranch_scc1 L_xfirst")
            self.w_voffs()
            for _ in range(int(self.o.get("nst0", 0))): self.issue_w()
            self.a.lab("L_xfirst")
        e(f"""
        s_lshr_b32 s{sA}, s2, 6
        s_mul_i32 s{sA}, s{sA}, 3
        s_add_u32 s{sA}, s{sA}, s{sWAVE}
        s_and_b32 s{sA}, s{sA}, 7
        s_lshl_b32 s{sA}, s{sA}, 3
        v_lshrrev_b32 v{T}, 3, v{vL}
        v_add_u32 v{T}, s{sA}, v{T}
        v_and_b32 v{T+1}, 7, v0
        v_mul_u32_u24 v{T+2}, 1280, v{T}
        v_lshl_add_u32 v{T+2}, v{T+1}, 4, v{T+2}
        s_mul_i32 s{sA}, s{sRB}, {64*1280}
        s_and_b32 s{sXS}, s{sRB}, 7
        s_lshl_b32 s{sB}, s{sXS}, 7
        s_waitcnt lgkmcnt(0)""")
        self.mk_srd(SRD_X, 36, 2048*640*2)
        self.stamp_s(0)
        for j in range(10):
            e(f"""s_add_u32 s{sC}, s{sA}, s{sB}
            buffer_load_dwordx4 v[{XR+4*j}:{XR+4*j+3}], v{T+2}, {srd(SRD_X)}, s{sC} offen
            s_add_u32 s{sB}, s{sB}, 128
            s_cmp_ge_u32 s{sB}, 1280
            s_cselect_b32 s{sB}, 0, s{sB}""")
        if self.o.get("yprio", "1") == "1":
            e(f"s_cmp_lt_u32 s{sWAVE}, 4\ns_cbranch_scc1 Lnyp\ns_setprio 2\nLnyp:")
        self.entry2()
        g, c15 = T+4, T+5
        e(f"""v_bfe_u32 v{T+3}, v{T}, 1, 3
        v_xor_b32 v{T+3}, v{T+3}, v{T+1}
        v_lshlrev_b32 v{T+3}, 4, v{T+3}
        v_lshl_add_u32 v{T+3}, v{T}, 7, v{T+3}
        v_lshrrev_b32 v{g}, 4, v{vL}
        v_and_b32 v{c15}, 15, v{vL}
        v_lshrrev_b32 v{T+6}, 1, v{c15}
        v_xor_b32 v{T+6}, v{T+6}, v{g}
        v_lshlrev_b32 v{T+6}, 4, v{T+6}
        v_lshl_add_u32 v{self.vX0}, v{c15}, 7, v{T+6}
        s_lshl_b32 s{sA}, s{sMH}, 12
        v_add_u32 v{self.vX0}, s{sA}, v{self.vX0}
        v_xor_b32 v{self.vX1}, 64, v{self.vX0}
        v_mul_u32_u24 v{self.vWB4}, 2560, v{g}
        v_bfe_u32 v{T+6}, v{vL}, 2, 2
        v_mul_u32_u24 v{T+6}, 320, v{T+6}
        v_add_u32 v{self.vWB4}, v{self.vWB4}, v{T+6}
        v_and_b32 v{T+6}, 3, v{vL}
        v_lshl_add_u32 v{self.vWB4}, v{T+6}, 3, v{self.vWB4}
        v_and_b32 v{T+6}, 1, v{g}
        v_lshlrev_b32 v{T+6}, 5, v{T+6}
        s_and_b32 s{sC}, s{sCB}, 1
        s_mul_i32 s{sA}, s{sNH}, 5
        s_add_u32 s{sA}, s{sA}, s{sC}
        s_lshl_b32 s{sA}, s{sA}, 5
        v_xor_b32 v{T+7}, s{sA}, v{T+6}
        v_add_u32 v{self.vWB}, v{T+7}, v{self.vWB4}
        s_add_u32 s{sA}, s{sA}, 32
        v_xor_b32 v{T+7}, s{sA}, v{T+6}
        v_add_u32 v{self.vWB1}, v{T+7}, v{self.vWB4}
        s_lshl_b32 s{sC}, s{sC}, 5
        s_add_u32 s{sC}, s{sC}, 128
        v_xor_b32 v{T+7}, s{sC}, v{T+6}
        v_add_u32 v{self.vWB4}, v{T+7}, v{self.vWB4}
        s_mov_b32 s{sK1}, {hx(f2u(-2.302208198*0.044715))}
        s_mov_b32 s{sK1+1}, {hx(f2u(-2.302208198*0.044715))}
        v_mov_b32 v{self.vK0}, {hx(f2u(-2.302208198))}
        v_mov_b32 v{self.vK0+1}, {hx(f2u(-2.302208198))}""")
        self.entry3()
        def ydma(grp):
            L = self.a.newlab("Lyd")
            e(f"s_cmp_lt_u32 s{sWAVE}, 4\ns_cbranch_scc1 {L}")
            e(grp)
            self.a.lab(L)
        n0 = 2 if XST else int(self.o.get("nst0", 0))
        if XST: self.w_voffs()
        e(f"v_mov_b32 v7, 0\nv_mov_b32 v37, 0\nv_mov_b32 v248, 0\ns_cmp_ge_u32 s{sWAVE}, 4\ns_cbranch_scc1 L_xs")
        self.x_setup()
        self.a.lab("L_xs")
        if n0 < 2: ydma("\n".join(sum([self.w_ops() for _ in range(2 - n0)], [])))
        S, Q = T+8, T+9
        e(f"""v_mov_b32 v{S}, 0
        v_mov_b32 v{Q}, 0
        s_mov_b32 s{sA}, 0x3f803f80
        s_cmp_lt_u32 s{sWAVE}, 4""")
        for j in range(10):
            if n0 < 2: e(f"s_cbranch_scc1 Lxw{j}\ns_waitcnt vmcnt({9-j+5*(2-n0)})\ns_branch Lxv{j}\nLxw{j}:\ns_waitcnt vmcnt({9-j})\nLxv{j}:")
            else: e(f"s_waitcnt vmcnt({9-j})")
            if j == 9: self.stamp_s(3)
            for i in range(4*j, 4*j+4):
                e(f"v_dot2c_f32_bf16 v{S}, s{sA}, v{XR+i}\nv_dot2c_f32_bf16 v{Q}, v{XR+i}, v{XR+i}")
        if XST and self.o.get("xearly", "1") == "1":
            e(f"s_cmp_ge_u32 s{sWAVE}, 4\ns_cbranch_scc1 L_xe")
            self.issue_w(); self.issue_w()
            self.a.lab("L_xe")
        for m in ("quad_perm:[1,0,3,2]", "quad_perm:[2,3,0,1]", "row_half_mirror"):
            e(f"v_add_f32_dpp v{S}, v{S}, v{S} {m} row_mask:0xf bank_mask:0xf\nv_add_f32_dpp v{Q}, v{Q}, v{Q} {m} row_mask:0xf bank_mask:0xf")
        self.ln_params(S, Q, 640, T+10, T+12, T+14)
        NM, RS = T+10, T+12
        e(f"""v_cvt_pk_bf16_f32 v{RS}, v{RS}, v{RS}
        s_lshl_b32 s{sB}, s{sXS}, 13
        v_and_b32 v{RS+1}, 0xffff0000, v{RS}
        v_and_b32 v{RS}, 0xffff, v{RS}
        v_mul_f32 v{NM}, v{NM}, v{RS+1}""")
        TP = 80
        for j in range(10):
            ls = []
            for k in range(4):
                r = XR + 4*j + k; a = TP + 2*k; b = a + 1
                ls.append([f"v_dot2_f32_bf16 v{a}, v{r}, v{RS}, v{NM}", f"v_dot2_f32_bf16 v{b}, v{r}, v{RS+1}, v{NM}",
                           f"v_cvt_pk_bf16_f32 v{r}, v{a}, v{b}"])
            self.rr(ls)
            e(f"""v_add_u32 v{T+6}, s{sB}, v{T+3}
            ds_write_b128 v{T+6}, v[{XR+4*j}:{XR+4*j+3}]
            s_add_u32 s{sB}, s{sB}, 8192
            s_cmp_ge_u32 s{sB}, 81920
            s_cselect_b32 s{sB}, 0, s{sB}""")
        self.stamp_flush()
        e(f"""s_waitcnt lgkmcnt(0)
        s_mul_i32 s{sTAG}, s{sTAG}, 0x9E3779B1
        s_add_u32 s{sTAG}, s{sTAG}, 0x7F4A7C15
        s_cmp_ge_u32 s{sWAVE}, 4
        s_cbranch_scc1 L_Y""")

    def ln_params(self, S, Q, n, NM, RS, t):
        self.e(f"""v_mul_f32 v{S}, {hx(f2u(1.0/n))}, v{S}
        v_mul_f32 v{Q}, {hx(f2u(1.0/n))}, v{Q}
        v_fma_f32 v{Q}, -v{S}, v{S}, v{Q}
        v_max_f32 v{Q}, 0, v{Q}
        v_cvt_pk_bf16_f32 v{t}, v{S}, v{Q}
        v_lshlrev_b32 v{NM}, 16, v{t}
        v_xor_b32 v{NM}, 0x80000000, v{NM}
        v_mov_b32 v{NM+1}, v{NM}
        v_and_b32 v{Q}, 0xffff0000, v{t}
        v_add_f32 v{Q}, {hx(f2u(1e-5))}, v{Q}
        v_cvt_pk_bf16_f32 v{t}, v{Q}, v{Q}
        v_lshlrev_b32 v{Q}, 16, v{t}
        v_sqrt_f32 v{Q}, v{Q}
        v_cvt_pk_bf16_f32 v{t}, v{Q}, v{Q}
        v_lshlrev_b32 v{Q}, 16, v{t}
        v_rcp_f32 v{RS}, v{Q}
        v_mov_b32 v{RS+1}, v{RS}""")


    NJ = 5
    def p1_reads(self, F):
        out = []
        for ks in range(2):
            Fk = F + 28*ks
            vx = self.vA0 if ks == 0 else self.vA1
            for a in range(2):
                out.append(f"ds_read_b128 v[{Fk+4*a}:{Fk+4*a+3}], v{vx} offset:{2048*a}")
            for j in range(self.NJ):
                base = self.vB4 if j == 4 else (self.vB0, self.vB1)[j & 1]
                off = ks*10240 + (64*(j >> 1) if j < 4 else 0)
                for h in range(2):
                    r = Fk + 8 + 4*j + 2*h
                    out.append(f"ds_read_b64_tr_b16 v[{r}:{r+1}], v{base} offset:{off + h*1280}")
        return out
    def p2_reads(self, F):
        out = []
        for ks in range(2):
            Fk = F + 28*ks
            vx = self.vA0 if ks == 0 else self.vA1
            out += [f"ds_read_b128 v[{Fk+4*a}:{Fk+4*a+3}], v{vx} offset:{2048*a}" for a in range(2)]
            for j in range(self.NJ):
                base = self.vB0 if j < 4 else self.vB4
                off = ks*9216 + (1024*j if j < 4 else 0)
                out.append(f"ds_read_b128 v[{Fk+8+4*j}:{Fk+8+4*j+3}], v{base} offset:{off}")
        return out
    def mfmas(self, F, swap, first=False):
        out = []
        for ks in range(2):
            Fk = F + 28*ks
            for j in range(self.NJ):
                for a in range(2):
                    c = self.ACC + 4*(2*j + a)
                    X = f"v[{Fk+4*a}:{Fk+4*a+3}]"; W = f"v[{Fk+8+4*j}:{Fk+8+4*j+3}]"
                    A, B = (W, X) if swap else (X, W)
                    C = "0" if (first and ks == 0) else f"v[{c}:{c+3}]"
                    out.append(f"v_mfma_f32_16x16x32_bf16 v[{c}:{c+3}], {A}, {B}, {C}")
        return out
    def interleave(self, reads, mf, per=2):
        out = []; ri = 0
        for m in mf:
            out.append(m)
            for _ in range(per):
                if ri < len(reads): out.append(reads[ri]); ri += 1
        out += reads[ri:]
        return out

    def compute_loop(self, n, swap, reads_fn, addr_fn, tagname, vmwait=False, first=None, mid=None, peel=None, top=None):
        e = self.e
        endw = f"s_waitcnt {'vmcnt(0) ' if vmwait else ''}lgkmcnt(0)"
        def stage(rd, mf, extra=(), per2=2):
            e("s_barrier")
            per = 2 if len(rd) > 16 else 1
            if self.o.get("noread"): rd = []
            if self.o.get("nomfma"): mf = []
            fill = list(rd) + addr_fn() + list(extra)
            out = []; ri = 0
            for k, m in enumerate(mf):
                out.append(m)
                for _ in range(per if ri < len(rd) else per2):
                    if ri < len(fill): out.append(fill[ri]); ri += 1
            out += fill[ri:]
            for s in out: e(s)
        F0, F1 = self.FS
        for s in addr_fn(): e(s)
        stage(reads_fn(F0), [], first[0] if first else ())
        e(endw)
        stage(reads_fn(F1), self.mfmas(F0, swap, True), [f"s_mov_b32 s{sCNT}, {(n-2)//2}"] + (first[1] if first else []), 3 if first else 2); e(endw)
        if peel: e(peel)
        L = self.a.newlab("Lc" + tagname)
        self.a.lab(L)
        if top: top()
        stage(reads_fn(F0), self.mfmas(F1, swap))
        if mid: mid()
        e(endw)
        stage(reads_fn(F1), self.mfmas(F0, swap), [f"s_sub_u32 s{sCNT}, s{sCNT}, 1", f"s_cmp_lg_u32 s{sCNT}, 0"])
        e(f"{endw}\ns_cbranch_scc1 {L}")
        return self.mfmas(F1, swap)

    def compute2(self, *a, **k):
        if self.o.get("nhs1", "1") != "1": return self.compute_loop(*a, **k)
        L5 = self.a.newlab("Lnh5"); LJ = self.a.newlab("Lnhj")
        self.e(f"s_cmp_eq_u32 s{sNH}, 0\ns_cbranch_scc1 {L5}")
        self.NJ = 4
        self.compute_loop(*a, **k)
        self.NJ = 5
        self.e(f"s_branch {LJ}")
        self.a.lab(L5)
        t = self.compute_loop(*a, **k)
        self.a.lab(LJ)
        return t

    def ring_addr(self, asz_total, bbase, bsz, nb):
        return [f"v_add_u32 v{self.vA0}, s{sXOFF}, v{self.vX0}", f"v_add_u32 v{self.vA1}, s{sXOFF}, v{self.vX1}",
        f"v_add_u32 v{self.vB0}, s{sROFF}, v{self.vWB}", f"v_add_u32 v{self.vB4}, s{sROFF}, v{self.vWB4}",
        f"s_add_u32 s{sXOFF}, s{sXOFF}, 8192", f"s_cmp_ge_u32 s{sXOFF}, {asz_total}", f"s_cselect_b32 s{sXOFF}, 0, s{sXOFF}",
        f"s_add_u32 s{sROFF}, s{sROFF}, {bsz}", f"s_cmp_ge_u32 s{sROFF}, {bbase + nb*bsz}", f"s_cselect_b32 s{sROFF}, {bbase}, s{sROFF}"]
    def p1_addr(self): return [f"v_add_u32 v{self.vB1}, s{sROFF}, v{self.vWB1}"] + self.ring_addr(81920, RING1, S1SZ, 4)
    def p2_addr(self): return self.ring_addr(NA*8192, BRING, BSZ, NB)

    def gelu_pair(self, r, t, dst=None, packed=None):
        d = r if dst is None else dst
        self.e(f"""v_pk_mul_f32 v[{t}:{t+1}], v[{r}:{r+1}], v[{r}:{r+1}]
        v_pk_fma_f32 v[{t}:{t+1}], v[{t}:{t+1}], s[{sK1}:{sK1+1}], v[{self.vK0}:{self.vK0+1}]
        v_pk_mul_f32 v[{t}:{t+1}], v[{t}:{t+1}], v[{r}:{r+1}]
        v_exp_f32 v{t}, v{t}
        v_exp_f32 v{t+1}, v{t+1}
        v_pk_add_f32 v[{t}:{t+1}], v[{t}:{t+1}], 1.0 op_sel_hi:[1,0]
        v_rcp_f32 v{t}, v{t}
        v_rcp_f32 v{t+1}, v{t+1}
        v_pk_mul_f32 v[{t}:{t+1}], v[{t}:{t+1}], v[{r}:{r+1}]
        v_cvt_pk_bf16_f32 v{t if packed is None else packed}, v{t}, v{t+1}""")
        if packed is None:
            self.e(f"v_lshlrev_b32 v{d}, 16, v{t}\nv_and_b32 v{d+1}, s{sB}, v{t}")

    def gelu_list(self, r, t, sc, packed=None, stats=None):
        L = [f"v_pk_mul_f32 v[{t}:{t+1}], v[{r}:{r+1}], v[{r}:{r+1}]",
             f"v_pk_fma_f32 v[{t}:{t+1}], v[{t}:{t+1}], s[{sK1}:{sK1+1}], v[{self.vK0}:{self.vK0+1}]",
             f"v_pk_mul_f32 v[{t}:{t+1}], v[{t}:{t+1}], v[{r}:{r+1}]",
             f"v_exp_f32 v{t}, v{t}", f"v_exp_f32 v{t+1}, v{t+1}",
             f"v_pk_add_f32 v[{t}:{t+1}], v[{t}:{t+1}], 1.0 op_sel_hi:[1,0]",
             f"v_rcp_f32 v{t}, v{t}", f"v_rcp_f32 v{t+1}, v{t+1}"]
        d = r if packed is None else packed
        L += [f"v_pk_mul_f32 v[{d}:{d+1}], v[{t}:{t+1}], v[{r}:{r+1}]"]
        if stats:
            s_, q_ = stats
            L += [f"v_pk_add_f32 v[{s_}:{s_+1}], v[{s_}:{s_+1}], v[{r}:{r+1}]",
                  f"v_pk_fma_f32 v[{q_}:{q_+1}], v[{r}:{r+1}], v[{r}:{r+1}], v[{q_}:{q_+1}]"]
        return L
    def rr(self, lists):
        n = max(len(l) for l in lists)
        for i in range(n):
            for l in lists:
                if i < len(l): self.e(l[i])

    def dump_regs(self, r0, n, slot, vt):
        self.e(f"""s_lshl_b32 s{sA}, s2, 3
        s_add_u32 s{sA}, s{sA}, s{sWAVE}
        s_mul_i32 s{sA}, s{sA}, {n*256}
        s_add_u32 s{sA}, s{sA}, {WS_DBG + 0x100000 + slot*0x600000}
        v_lshlrev_b32 v{vt}, 2, v{self.vL}""")
        for i in range(n):
            self.e(f"buffer_store_dword v{r0+i}, v{vt}, {srd(SRD_WS)}, s{sA} offen\ns_add_u32 s{sA}, s{sA}, 256")


    NWS = 21
    A3 = 224
    sBO = 44
    def wreg(self, pos, ee): return 40 + ((pos % self.NWS)*2 + ee)*4
    def wload(self, pos):
        out = []
        for ee in range(2):
            r = self.wreg(pos, ee)
            off = f"s{self.sBO + (pos >> 2)}" if pos < 24 else str(6*4096)
            out.append(f"s_add_u32 s{sT}, s{93+ee}, {off}\nbuffer_load_dwordx4 v[{r}:{r+3}], v7, {srd(SRD_WS)}, s{sT} offen offset:{(pos%4)*1024} sc1")
        return out
    def blk_offsets(self, mul):
        self.e(f"""s_mul_i32 s{self.sBO}, s{sCB}, {mul}
        s_lshr_b32 s{sT}, s2, 6
        s_sub_u32 s51, s{sCB}, s{sT}
        s_mov_b32 s50, 0""")
        for j in range(1, 6):
            if j == 3: self.e("s_sub_u32 s51, 3, s51")
            self.e(f"""s_add_u32 s{sT}, s{sT}, 1
            s_cmp_ge_u32 s{sT}, 3
            s_cselect_b32 s{sT}, 0, s{sT}
            s_add_u32 s{sT2}, s{sT}, s51
            s_mul_i32 s{self.sBO+j}, s{sT2}, {mul}
            s_lshl_b32 s{sT2}, s{sT2}, 2
            s_lshl_b32 s{sT2}, {j}, s{sT2}
            s_or_b32 s50, s50, s{sT2}""")

    def x_path(self):
        e = self.e; T = self.vT; ACC = self.ACC; vL = self.vL
        self.stamp(0)
        if self.o.get("xst", "1") == "1" and self.o.get("xearly", "1") != "1":
            self.issue_w(); self.issue_w()
        pub_rd, prd, pwork = self.xs_out
        def xnflag():
            Lf = self.a.newlab("Lfx")
            xnf = int(self.o.get('xnf', 3))
            e(f"s_cmp_lg_u32 s{sCNT}, {xnf}\ns_cbranch_scc1 {Lf}\ns_cmp_lg_u32 s{sW}, 0\ns_cbranch_scc1 {Lf}")
            self.flag_store(39, T)
            self.a.lab(Lf)
        def xnwait():
            Lf = self.a.newlab("Lfw")
            e(f"s_cmp_lg_u32 s{sCNT}, {int(self.o.get('xnf', 3))}\ns_cbranch_scc1 {Lf}\ns_waitcnt vmcnt(0)")
            self.a.lab(Lf)
        e(f"s_mov_b32 s{sROFF}, {RING1}")
        if self.o.get("xst", "1") == "1":
            e("s_waitcnt vmcnt(5)")
            prd = prd + ["s_waitcnt vmcnt(0)"]
        tail = self.compute2(10, False, self.p1_reads, self.p1_addr, "p1a", first=(pub_rd + prd, pwork), mid=xnflag, top=xnwait)
        e(f"""s_and_b32 s{sA}, s{sRB}, 7
        s_add_u32 s{sA}, s{sA}, 3
        s_cmp_ge_u32 s{sA}, 10
        s_cselect_b32 s{sA}, 0, s{sA}
        s_mul_i32 s{sWSOFF}, s{sA}, {64*3456}
        s_sub_u32 s{sWSL}, s{sWSL}, 1728
        s_add_u32 s{sWSOFF}, s{sWSOFF}, s{sWSL}
        s_add_u32 s{sWSLOT}, s{sW0}, {S1SZ}
        s_mov_b32 s{sB}, 0xffff0000""")
        hold = int(self.o.get("hold", 3))
        if hold < 3: e("s_barrier")
        for m in tail: e(m)
        e("s_waitcnt lgkmcnt(0)")
        self.stamp(1)
        SS = 192
        for i in range(16): e(f"v_mov_b32 v{SS+i}, 0")
        vmw = lambda n: f"s_waitcnt vmcnt({n})"
        def do_frag(j):
            self.rr([self.gelu_list(ACC + 4*(2*j + a) + 2*h, T + 2*(2*a + h), 232 + 4*a + 2*h, stats=(SS + 4*a + 2*h, SS + 8 + 4*a + 2*h))
                     for a in range(2) for h in range(2)])
        if hold < 2: e("s_barrier")
        do_frag(0); do_frag(1)
        if hold < 1: e("s_barrier")
        do_frag(2); do_frag(3)
        Ls = self.a.newlab("Lz4")
        e(f"s_cmp_eq_u32 s{sNH}, 1\ns_cbranch_scc1 {Ls}")
        do_frag(4)
        self.a.lab(Ls)
        for i in range(8):
            e(f"v_add_f32_dpp v{SS+i}, v{SS+i}, v{SS+i} row_mirror row_mask:0xf bank_mask:0x3")
        for i in range(8):
            e(f"v_add_f32_dpp v{SS+i}, v{SS+8+i}, v{SS+8+i} row_mirror row_mask:0xf bank_mask:0xc")
        for i in range(4):
            e(f"v_add_f32_dpp v{SS+i}, v{SS+i}, v{SS+i} row_half_mirror row_mask:0xf bank_mask:0x5")
        for i in range(4):
            e(f"v_add_f32_dpp v{SS+i}, v{SS+4+i}, v{SS+4+i} row_half_mirror row_mask:0xf bank_mask:0xa")
        for i in range(4):
            e(f"v_add_f32_dpp v{SS+i}, v{SS+i}, v{SS+i} quad_perm:[2,3,0,1] row_mask:0xf bank_mask:0xf")
        for i in range(4):
            e(f"v_add_f32_dpp v{SS+i}, v{SS+i}, v{SS+i} quad_perm:[1,0,3,2] row_mask:0xf bank_mask:0xf")
        e(f"""s_mov_b32 vcc_lo, 0xaaaaaaaa
        s_mov_b32 vcc_hi, 0xaaaaaaaa
        s_mov_b32 s{sE0}, 0xcccccccc
        s_mov_b32 s{sE0+1}, 0xcccccccc
        v_cndmask_b32 v{SS}, v{SS}, v{SS+1}, vcc
        v_cndmask_b32 v{SS+2}, v{SS+2}, v{SS+3}, vcc
        v_mov_b32 v{SS+1}, s{sTAG}
        v_cndmask_b32 v{SS}, v{SS}, v{SS+2}, s[{sE0}:{sE0+1}]
        v_lshlrev_b32 v{T}, 3, v{vL}
        s_lshl_b32 s{sC}, s{sRB}, 1
        s_add_u32 s{sC}, s{sC}, s{sMH}
        s_mul_i32 s{sC}, s{sC}, {12*512}
        s_add_u32 s{sC}, s{sC}, {WS_STATS}
        s_lshl_b32 s{sA}, s{sCB}, 1
        s_add_u32 s{sA}, s{sA}, s{sNH}
        s_lshl_b32 s{sA}, s{sA}, 9
        s_add_u32 s{sA}, s{sA}, s{sC}
        buffer_store_dwordx2 v[{SS}:{SS+1}], v{T}, {srd(SRD_WS)}, s{sA} offen sc1""")
        self.stamp(2)
        if hold >= 3: e("s_barrier")
        self.issue_w()
        if hold >= 2: e("s_barrier")
        self.issue_w()
        if hold >= 1: e("s_barrier")
        PR = 128
        L = self.a.newlab("Lst"); D = self.a.newlab("Lstd")
        e(f"s_mov_b32 s{sSPIN}, {SPIN_MAX}\ns_add_u32 s{sA}, s{sC}, 4096")
        def stat_loads():
            for p in range(12):
                e(f"buffer_load_dwordx2 v[{PR+2*p}:{PR+2*p+1}], v{T}, {srd(SRD_WS)}, s{sC if p < 8 else sA} offen offset:{512*(p%8)} sc1")
        CK = int(self.o.get("ck", 14))
        self.issue_w()
        if CK == 14:
            e("s_waitcnt vmcnt(10)\ns_barrier")
            stat_loads()
            self.issue_w()
            e("s_waitcnt vmcnt(22)\ns_barrier")
            self.issue_w()
        else:
            e("s_waitcnt vmcnt(10)\ns_barrier")
            self.issue_w()
            stat_loads()
            e("s_waitcnt vmcnt(22)\ns_barrier")
            self.issue_w()
            e("s_waitcnt vmcnt(22)\ns_barrier")
            self.issue_w()
        self.stamp(3)
        Lchk = self.a.newlab("Lchk")
        e(f"s_waitcnt vmcnt(10)\ns_branch {Lchk}")
        self.a.lab(L)
        stat_loads()
        e("s_waitcnt vmcnt(0)")
        self.a.lab(Lchk)
        e(f"v_xor_b32 v{T+1}, s{sTAG}, v{PR+1}")
        for p in range(1, 12):
            e(f"v_xor_b32 v{T+2}, s{sTAG}, v{PR+2*p+1}\nv_or_b32 v{T+1}, v{T+1}, v{T+2}")
        e(f"""v_cmp_ne_u32 vcc, 0, v{T+1}
        s_cbranch_vccz {D}
        s_sleep 2
        s_sub_u32 s{sSPIN}, s{sSPIN}, 1
        s_cmp_lg_u32 s{sSPIN}, 0
        s_cbranch_scc1 {L}""")
        self.a.lab(D)
        self.stamp(4)
        for p in range(1, 12):
            e(f"v_add_f32 v{PR}, v{PR}, v{PR+2*p}")
        e(f"v_mov_b32_dpp v{PR+1}, v{PR} row_ror:8 row_mask:0xf bank_mask:0xf")
        self.ln_params(PR, PR+1, 864, T+10, T+12, T+14)
        e(f"v_mul_f32 v{T+10}, v{T+10}, v{T+12}")
        for i in range(8):
            e(f"v_mov_b32_dpp v{SS+i}, v{T+10} row_newbcast:{i} row_mask:0xf bank_mask:0xf")
            e(f"v_mov_b32_dpp v{SS+8+i}, v{T+12} row_newbcast:{i} row_mask:0xf bank_mask:0xf")
        e(f"""v_lshrrev_b32 v{T}, 4, v{vL}
        v_and_b32 v{T+1}, 1, v{T}
        v_lshrrev_b32 v{T}, 1, v{T}
        v_lshl_add_u32 v{T}, v{T+1}, 1, v{T}
        v_lshlrev_b32 v{T}, 8, v{T}
        v_and_b32 v{T+1}, 15, v{vL}
        v_lshl_add_u32 v{T}, v{T+1}, 4, v{T}
        s_lshl_b32 s{sA}, s{sCB}, 5
        s_add_u32 s{sA}, s{sA}, s{sRB}
        s_mul_i32 s{sA}, s{sA}, 18432
        s_mul_i32 s{sC}, s{sMH}, 9216
        s_add_u32 s{sA}, s{sA}, s{sC}
        s_add_u32 s{sA}, s{sA}, {WS_Z2}
        s_mul_i32 s{sC}, s{sNH}, 5120
        s_add_u32 s{sC}, s{sC}, s{sA}
        s_add_u32 s{sA}, s{sA}, 4096""")
        Q4 = PR
        Ls = self.a.newlab("Lz4b")
        for j in range(5):
            if j == 4: e(f"s_cmp_eq_u32 s{sNH}, 1\ns_cbranch_scc1 {Ls}")
            q = Q4 + 4*j
            ls = []
            for a in range(2):
                for h in range(2):
                    r = ACC + 4*(2*j + a) + 2*h
                    nm, rs = SS + 4*a + 2*h, SS + 8 + 4*a + 2*h
                    d = q + 2*a + h
                    ls.append([f"v_pk_fma_f32 v[{r}:{r+1}], v[{r}:{r+1}], v[{rs}:{rs+1}], v[{nm}:{nm+1}]",
                    f"v_cvt_pk_bf16_f32 v{d}, v{r}, v{r+1}"])
            self.rr(ls)
            e(f"v_permlane16_swap_b32 v{q}, v{q+2}\nv_permlane16_swap_b32 v{q+1}, v{q+3}")
            if j < 4:
                e(f"buffer_store_dwordx4 v[{q}:{q+3}], v{T}, {srd(SRD_WS)}, s{sC} offen offset:{1024*j} sc1")
            else:
                e(f"buffer_store_dwordx4 v[{q}:{q+3}], v{T}, {srd(SRD_WS)}, s{sA} offen sc1")
        self.a.lab(Ls)
        fl = f"""s_lshl_b32 s{sD}, s{sCB}, 2
        s_add_u32 s{sD}, s{sD}, s{sW}
        s_lshl_b32 s{sD}, s{sD}, {5+FS}
        s_add_u32 s{sD}, s{sD}, {WS_FZ2}
        s_lshl_b32 s{sA}, s{sRB}, {FS}
        s_add_u32 s{sA}, s{sA}, s{sD}"""
        if CK == 14:
            e("s_barrier")
            self.issue_w()
            e("s_waitcnt vmcnt(14)\ns_barrier")
            self.issue_w()
            e(fl)
            e("s_waitcnt vmcnt(14)\ns_barrier")
            e("s_waitcnt vmcnt(10)")
        else:
            e("s_barrier")
            self.issue_w()
            e("s_waitcnt vmcnt(14)\ns_barrier")
            e(fl)
            self.x_p2_setup()
            e("s_waitcnt vmcnt(9)\ns_barrier")
            e("s_waitcnt vmcnt(0)")
        self.flag_store(sA, T+8)
        self.stamp(5)
        if self.o.get("selft", "1") == "1":
            e(f"""s_lshl_b32 s{sT}, s{sNH}, 3
            s_sub_u32 s{sT}, 39, s{sT}
            v_min_u32 v{T+4}, s{sT}, v{vL}
            v_lshlrev_b32 v{T+4}, 7, v{T+4}
            buffer_load_dword v{T+14}, v{T+4}, {srd(SRD_WS)}, s{sC} offen sc1""")
        if CK == 14:
            nx = 2 if self.o.get("selft", "1") == "1" else 1
            e(f"s_waitcnt vmcnt({5+nx})\ns_barrier")
            self.x_p2_setup()
            e(f"s_waitcnt vmcnt({nx})")
        e("s_barrier")
        for i in range(int(self.o.get("na1", 6))): self.issue_a(i)
        e("s_barrier")
        self.WPRE = 0
        self.wl_all = [s_ for pos in range(self.NWS) for s_ in self.wload(pos)]
        self.x_p2_loader()
        self.x_p3()

    def x_p2_setup(self):
        e = self.e; T = self.vT + 4; vL = self.vL
        e(f"s_lshl_b32 s{sT2}, s{sW}, 4")
        for i in range(2):
            e(f"""v_lshrrev_b32 v{T}, 3, v{vL}
            v_add_u32 v{T}, s{sT2}, v{T}
            v_add_u32 v{T}, {8*i}, v{T}
            v_bfe_u32 v{T+1}, v{T}, 1, 3
            v_and_b32 v{T+2}, 7, v{vL}
            v_xor_b32 v{T+1}, v{T+1}, v{T+2}
            v_lshlrev_b32 v{T+1}, 4, v{T+1}
            v_lshl_add_u32 v{2+i}, v{T}, 12, v{T+1}""")
        e(f"""v_subrev_u32 v3, 1024, v3
        v_and_b32 v5, 31, v{vL}
        v_lshlrev_b32 v5, {FS}, v5
        s_lshl_b32 s{sWSOFF}, s{sRB}, 18
        s_add_u32 s42, s{sWSOFF}, 4096
        s_and_b32 s{sT2}, s{sRB}, 24
        s_lshl_b32 s{sT}, s{sT2}, 7
        s_add_u32 s{sWSOFF}, s{sWSOFF}, s{sT}
        s_lshl_b32 s{sWSLOT}, s{sW}, 11
        s_mul_i32 s{sROFF}, s{sMH}, 9216
        s_mul_i32 s{sT}, s{sNH}, 5120
        s_add_u32 s{sROFF}, s{sROFF}, s{sT}
        s_mul_i32 s{sXOFF}, s{sCB}, {32*18432}
        s_add_u32 s{sXOFF}, s{sXOFF}, s{sROFF}
        s_add_u32 s{sXOFF}, s{sXOFF}, {WS_Z2}
        s_add_u32 s43, s{sXOFF}, {32*18432}
        s_mul_i32 s{sT}, s{sT2}, 18432
        s_add_u32 s{sXOFF}, s{sXOFF}, s{sT}
        s_add_u32 s95, s{sXOFF}, 4096
        s_add_u32 s{sROFF}, s{sROFF}, {BRING}""")
    def issue_a(self, i):
        self.e(f"""s_add_u32 m0, s{sWSLOT}, {ABASE + 8192*i}
        s_nop 0
        buffer_load_dwordx4 v2, {srd(SRD_WSP)}, s{sWSOFF} offen lds
        buffer_load_dwordx4 v3, {srd(SRD_WSP)}, s{sWSOFF} offen offset:1024 lds
        s_add_u32 s{sWSOFF}, s{sWSOFF}, 128""")
    def issue_b(self, slot, five):
        e = self.e
        e(f"s_add_u32 m0, s{sROFF}, {BSZ*slot}\ns_nop 0")
        for i in range(4):
            e(f"buffer_load_dwordx4 v7, {srd(SRD_WS)}, s{sXOFF} offen offset:{1024*i} sc1 lds")
        if five:
            e(f"""s_add_u32 m0, s{sROFF}, {BSZ*slot + 4096}
            s_add_u32 s{sXOFF}, s{sXOFF}, 18432
            buffer_load_dwordx4 v7, {srd(SRD_WS)}, s95 offen sc1 lds
            s_add_u32 s95, s95, 18432""")
        else:
            e(f"s_add_u32 s{sXOFF}, s{sXOFF}, 18432")
    def loop(self, n, fn, name):
        L = self.a.newlab(name)
        self.e(f"s_mov_b32 s{sCNT}, {n}")
        self.a.lab(L)
        fn()
        self.e(f"s_sub_u32 s{sCNT}, s{sCNT}, 1\ns_cmp_lg_u32 s{sCNT}, 0\ns_cbranch_scc1 {L}")

    def x_p2_loader(self):
        e = self.e; T = self.vT
        e(f"""s_and_b32 s{sT}, s{sRB}, 24
        s_lshl_b32 exec_lo, 0xff, s{sT}
        s_mov_b32 exec_hi, 0
        s_add_u32 s{sT}, s{sT}, 8
        s_and_b32 s{sT}, s{sT}, 31
        s_lshl_b32 s41, 0xff, s{sT}""")
        self.poll(5, f"s{sD}", T)
        self.stamp(6)
        Lfour = self.a.newlab("Lp2four"); Ldone = self.a.newlab("Lp2done")
        e(f"""s_cmp_eq_u32 s{sNH}, 1
        s_cbranch_scc1 {Lfour}""")
        for five in (True, False):
            nb = 5 if five else 4
            self.issue_b(0, five); self.issue_b(1, five)
            e(f"s_waitcnt vmcnt({nb})\ns_barrier")
            self.issue_b(2, five); self.issue_b(3, five)
            na1 = int(self.o.get("na1", 6))
            for i in range(na1, NA): self.issue_a(i)
            e(f"s_waitcnt vmcnt({2*nb + 2*(NA-na1)})")
            def grp(withA):
                e(f"""s_cmp_ge_u32 s{sWSOFF}, s42
                s_cselect_b32 s{sT}, 4096, 0
                s_sub_u32 s{sWSOFF}, s{sWSOFF}, s{sT}
                s_cmp_ge_u32 s{sXOFF}, s43
                s_cselect_b32 s{sT}, {32*18432}, 0
                s_sub_u32 s{sXOFF}, s{sXOFF}, s{sT}
                s_sub_u32 s95, s95, s{sT}""")
                if withA:
                    Lk = self.a.newlab("Lfk"); Lr = self.a.newlab("Lfr")
                    e(f"""s_bitcmp0_b32 s{sCNT}, 0
                    s_cbranch_scc1 {Lk}
                    v_cmp_ne_u32 vcc, s{sTAG}, v6
                    s_nop 0
                    s_and_b32 s{sT}, vcc_lo, s41
                    s_cbranch_scc0 {Lr}
                    s_mov_b32 exec_lo, s{sT}
                    s_mov_b32 exec_hi, 0""")
                    self.poll(5, f"s{sD}", T)
                    self.a.lab(Lr)
                    e(f"s_lshr_b32 s{sT}, s41, 24\ns_lshl_b32 s41, s41, 8\ns_or_b32 s41, s41, s{sT}")
                    self.a.lab(Lk)
                for i in range(4):
                    if withA and i == 1:
                        Lq = self.a.newlab("Lfq"); Lq2 = self.a.newlab("Lfq2")
                        e(f"""s_bitcmp1_b32 s{sCNT}, 0
                        s_cbranch_scc1 {Lq}
                        s_mov_b32 exec_lo, s41
                        s_mov_b32 exec_hi, 0
                        buffer_load_dword v6, v5, {srd(SRD_WS)}, s{sD} offen sc1
                        s_mov_b64 exec, -1
                        s_cmp_lg_u32 s{sCNT}, 6
                        s_cbranch_scc1 {Lq}
                        buffer_load_dword v{T+15}, v37, {srd(SRD_WS)}, s91 offen sc1""")
                        self.a.lab(Lq)
                    e("s_barrier")
                    if i == 0: self.stampd(12)
                    self.issue_b(i, five)
                    if withA: self.issue_a(i)
                    e(f"s_waitcnt vmcnt({2*nb + 2 if withA else 2*nb})")
                if withA: e(f"s_xor_b32 s{sWSLOT}, s{sWSLOT}, 32768")
            def grp_t():
                grp(True)
                if self.o.get("wtouch", "0") == "1":
                    Lt = self.a.newlab("Lwt")
                    e(f"s_cmp_lg_u32 s{sCNT}, 2\ns_cbranch_scc1 {Lt}\nbuffer_load_dword v6, v4, {srd(SRD_WS)}, s{sT2} offen sc1")
                    self.a.lab(Lt)
            self.loop(6, grp_t, "Lp2f")
            grp(False)
            if five:
                e(f"s_branch {Ldone}")
                self.a.lab(Lfour)
        self.a.lab(Ldone)
        wl = self.wl_all[self.WPRE:]
        Lw = self.a.newlab("Lwok")
        e(f"v_cmp_ne_u32 vcc, s{sTAG}, v{T+15}\ns_cbranch_vccz {Lw}")
        self.poll(37, "s91", T)
        self.a.lab(Lw)
        e("s_barrier")
        n1 = min(5, len(wl)); n2 = min(5, len(wl) - n1); n3 = min(8, len(wl) - n1 - n2)
        for s_ in wl[:n1]: e(s_)
        e(f"s_waitcnt vmcnt({4+n1})\ns_barrier")
        for s_ in wl[n1:n1+n2]: e(s_)
        e(f"s_waitcnt vmcnt({n1+n2})\ns_barrier")
        for s_ in wl[n1+n2:n1+n2+n3]: e(s_)
        self.wl_rest = wl[n1+n2+n3:]
        self.w_issued = self.WPRE + n1 + n2 + n3
        self.stamp(7)

    def x_p3(self):
        e = self.e; T = self.vT; vL = self.vL; A3 = self.A3
        e("s_barrier")
        Lidle = self.a.newlab("Lp3idle")
        e(f"s_cmp_eq_u32 s{sCB}, 5\ns_cbranch_scc1 {Lidle}")
        e("s_barrier")
        WTH = int(self.o.get("wthr", 5)); WN1 = int(self.o.get("wn1", 24)); WPP = int(self.o.get("wpp", 4))
        wq = list(self.wl_rest) + [s_ for p_ in range(self.NWS, 27) for s_ in self.wload(p_)]
        e(f"""v_and_b32 v2, 15, v{vL}
        v_mul_u32_u24 v2, 1280, v2
        v_lshrrev_b32 v3, 4, v{vL}
        s_mul_i32 s{sA}, s{sRB}, {64*1280}
        s_lshl_b32 s{sC}, s{sCB}, 8
        s_add_u32 s{sA}, s{sA}, s{sC}
        s_lshl_b32 s{sC}, s{sW}, 6
        s_add_u32 s{sA}, s{sA}, s{sC}
        v_and_b32 v6, 1, v3
        v_lshlrev_b32 v6, 5, v6
        v_lshrrev_b32 v3, 1, v3
        v_lshl_add_u32 v6, v3, 4, v6
        v_add_u32 v6, v6, v2
        s_mov_b32 s{sB}, 0xffff0000
        v_add_u32 v2, {HB}, v7
        v_add_u32 v3, 0x10000, v2
        v_lshlrev_b32 v4, 3, v{vL}""")
        self.stamp(8)
        def hreads(pos, F):
            out = []
            if pos < 24:
                j, p = divmod(pos, 4)
                for b in range(4):
                    mh, a = b >> 1, b & 1
                    off = j*18432 + (9*mh + 5*(p >> 1) + 2*(p & 1) + a)*1024
                    out.append(f"ds_read_b128 v[{F+4*b}:{F+4*b+3}], v{2 + (off >> 16)} offset:{off & 0xffff}")
            else:
                for hf in range(2):
                    cbp = 2*(pos - 24) + hf
                    pre = f"""s_bfe_u32 s{sT}, s50, {(4 << 16) | (4*cbp)}
                    s_mul_i32 s{sT}, s{sT}, 18432
                    s_add_u32 s{sT}, s{sT}, {HB + 4096}
                    v_add_u32 v{2+hf}, s{sT}, v4
                    """
                    for b in range(4):
                        mh, a = b >> 1, b & 1
                        out.append(pre + f"ds_read_b64 v[{F+4*b+2*hf}:{F+4*b+2*hf+1}], v{2+hf} offset:{9216*mh + a*512}")
                        pre = ""
            return out
        FB = (8, 24, 208)
        self.stamp(9)
        for s_ in hreads(0, FB[0]) + hreads(1, FB[1]): e(s_)
        issued = self.w_issued
        NL = 27 - self.NWS
        XV = self.wreg(NL, 0)
        YV = self.wreg(NL + 2, 0)
        XS = self.wreg(NL + 5, 0)
        XA = self.wreg(NL + 4, 0)
        e(f"""v_lshrrev_b32 v5, 2, v{vL}
        v_lshlrev_b32 v5, 7, v5
        v_and_b32 v{A3}, 3, v{vL}
        v_lshl_add_u32 v5, v{A3}, 3, v5
        s_lshl_b32 s{sC}, s{sW}, 12
        s_add_u32 s{sC}, s{sC}, {YAB}
        v_add_u32 v5, s{sC}, v5""")
        prev = 4
        for pos in range(27):
            if pos == NL + 6:
                e(f"""v_and_b32 v{XA+2}, 15, v{vL}
                v_lshrrev_b32 v{XA+3}, 5, v{vL}
                s_lshl_b32 s{sC}, s{sW}, 2
                v_add_u32 v{XA+3}, s{sC}, v{XA+3}
                v_xor_b32 v{XA+3}, v{XA+3}, v{XA+2}
                v_lshlrev_b32 v{XA+3}, 4, v{XA+3}
                v_lshl_add_u32 v{XA}, v{XA+2}, 8, v{XA+3}
                v_bfe_u32 v{XA+3}, v{vL}, 4, 1
                v_lshl_add_u32 v{XA}, v{XA+3}, 3, v{XA}
                v_add_u32 v{XA}, {XB}, v{XA}
                v_xor_b32 v{XA+1}, 32, v{XA}""")
            F = FB[pos % 3]
            nxt = []
            def fbar(j):
                if self.o.get("fine"): self.stamp(28 + j)
                e("s_barrier")
                if self.o.get("fine"): self.stamp(22 + j)
            if pos == 4:
                fbar(1)
                for s_ in hreads(4, FB[1]) + hreads(5, FB[2]): e(s_)
                prev = 4
            if pos < 25 and pos not in (2, 3):
                if (pos + 2) % 4 == 0 and 8 < pos + 2 < 24: fbar((pos + 2)//4)
                nxt = hreads(pos + 2, FB[(pos + 2) % 3])
            mf = []
            for b in range(4):
                for ee in range(2):
                    c = A3 + 4*(2*b + ee); w = self.wreg(pos, ee)
                    C = "0" if pos == 0 else f"v[{c}:{c+3}]"
                    mf.append(f"v_mfma_f32_16x16x32_bf16 v[{c}:{c+3}], v[{w}:{w+3}], v[{F+4*b}:{F+4*b+3}], {C}")
            e(f"s_waitcnt lgkmcnt({prev}) vmcnt({issued - 2*(pos + 1)})")
            prev = len(nxt)
            fill = list(nxt)
            if pos >= 23:
                for i in range(4*(pos-23), 4*(pos-23)+4):
                    t = XA + 4 + 2*(i & 1)
                    fill += [f"v_lshlrev_b32 v{XS+2*i}, 16, v{XV+i}\nv_and_b32 v{XS+2*i+1}, s{sB}, v{XV+i}",
                             f"v_lshlrev_b32 v{t}, 16, v{YV+i}\nv_and_b32 v{t+1}, s{sB}, v{YV+i}\nv_pk_add_f32 v[{XS+2*i}:{XS+2*i+1}], v[{XS+2*i}:{XS+2*i+1}], v[{t}:{t+1}]"]
            for s_ in self.interleave(fill, mf, 2 if len(fill) > 8 else 1): e(s_)
            nw = (WN1 + 3) // 4 if pos < 4 else WPP
            for _ in range(nw):
                if wq and (issued < 2*self.NWS or issued//2 - self.NWS <= pos):
                    e(wq.pop(0)); issued += 1
                    if pos < 4: e(f"s_waitcnt vmcnt({WTH})")
            assert issued >= min(54, 2*(pos + 2)), (pos, issued)
            if pos == 21:
                if self.o.get("spec", "0") == "1": e("s_barrier")
                for b in range(4):
                    for ee in range(2):
                        r = 2*(2*b + ee)
                        e(f"ds_read_b64_tr_b16 v[{YV+r}:{YV+r+1}], v5 offset:{ee*2048 + b*32}")
                prev += 8
            if pos == 20:
                for b in range(4):
                    for ee in range(2):
                        r = 2*(2*b + ee)
                        e(f"ds_read_b64 v[{XV+r}:{XV+r+1}], v{XA+ee} offset:{4096*b}")
                prev += 8
        self.stamp(10)
        for i in range(16):
            e(f"v_pk_add_f32 v[{A3+2*i}:{A3+2*i+1}], v[{A3+2*i}:{A3+2*i+1}], v[{XS+2*i}:{XS+2*i+1}]")
        OV = 40
        for b in range(4):
            q = OV + 4*b
            for k in range(4):
                c = A3 + 8*b + 2*k; i = 4*b + k; t = 8 + 2*k
                e(f"v_cvt_pk_bf16_f32 v{q+k}, v{c}, v{c+1}")
            e(f"""v_permlane16_swap_b32 v{q}, v{q+2}
            v_permlane16_swap_b32 v{q+1}, v{q+3}
            s_add_u32 s{sT}, s{sA}, {b*16*1280}
            buffer_store_dwordx4 v[{q}:{q+3}], v6, {srd(SRD_OUT)}, s{sT} offen {self.o.get("ost", "")}""")
        self.stamp(11)
        e(f"""s_cmp_lg_u32 s2, 0
        s_cbranch_scc1 L_end
        s_cmp_lg_u32 s{sW}, 0
        s_cbranch_scc1 L_end
        v_lshlrev_b32 v8, {FS}, v{vL}
        s_mov_b32 s{sD}, {WS_FY}
        s_mov_b32 s{sA}, {WS_EPOCH}""")
        self.poll(8, f"s{sD}", 9)
        self.flag_store(sA, 8)
        if self.o.get("dbgt"):
            e(f"""s_load_dwordx2 s[40:41], s[0:1], 104
            s_waitcnt vmcnt(0)
            s_memtime s[{sTM}:{sTM+1}]
            s_memrealtime s[98:99]
            s_waitcnt lgkmcnt(0)
            s_sub_u32 s{sTM}, s{sTM}, s{sTM0}
            s_sub_u32 s98, s98, s100
            v_mov_b32 v8, s{sTM}
            v_mov_b32 v9, s98
            v_mov_b32 v10, 0
            global_store_dwordx2 v10, v[8:9], s[40:41]""")
        self.a.lab(Lidle)
        e("s_branch L_end")

    def pub_parts(self):
        e = self.e; T = 240; vL = self.vL
        g, r, c4 = T, T+1, T+2
        XQ = 192; XAD = 208; RSV = 216
        e(f"""v_lshrrev_b32 v{g}, 4, v{vL}
        v_bfe_u32 v{r}, v{vL}, 2, 2
        v_and_b32 v{c4}, 3, v{vL}""")
        for rd in range(2):
            t, sw, ad = T+3, T+4, T+6+rd
            e(f"""v_lshl_add_u32 v{t}, v{g}, 3, v{r}
            v_add_u32 v{t}, {4*rd}, v{t}
            v_bfe_u32 v{sw}, v{t}, 1, 3
            v_lshrrev_b32 v{ad}, 1, v{c4}
            v_xor_b32 v{sw}, v{sw}, v{ad}
            v_lshlrev_b32 v{sw}, 4, v{sw}
            v_lshl_add_u32 v{ad}, v{t}, 7, v{sw}
            v_and_b32 v{sw}, 1, v{c4}
            v_lshl_add_u32 v{ad}, v{sw}, 3, v{ad}""")
        e(f"""v_and_b32 v{T+8}, 7, v{vL}
        v_lshlrev_b32 v{T+8}, 12, v{T+8}
        v_lshl_add_u32 v{T+8}, v{g}, 4, v{T+8}
        v_bfe_u32 v{T+3}, v{vL}, 3, 1
        v_lshl_add_u32 v{T+8}, v{T+3}, 6, v{T+8}
        s_mul_i32 s{sA}, s{sCB}, 7
        s_sub_u32 s{sB}, s{sCB}, 2
        s_max_i32 s{sB}, s{sB}, 0
        s_sub_u32 s{sA}, s{sA}, s{sB}
        s_lshl_b32 s{sB}, s{sW}, 1
        s_add_u32 s{sA}, s{sA}, s{sB}""")
        for i in range(2):
            e(f"""s_add_u32 s{sB}, s{sA}, {i}
            s_and_b32 s{sC}, s{sB}, 3
            s_lshl_b32 s{sC}, s{sC}, 5
            s_lshr_b32 s{sD}, s{sB}, 2
            s_lshl_b32 s{sD}, s{sD}, 13""")
            for rd in range(2):
                e(f"v_xor_b32 v{XAD+2*i+rd}, s{sC}, v{T+6+rd}\nv_add_u32 v{XAD+2*i+rd}, s{sD}, v{XAD+2*i+rd}")
        e(f"""s_lshl_b32 s{sB}, s{sRB}, 7
        s_add_u32 s{sB}, s{sB}, {WS_XNT}
        s_lshl_b32 s{sA}, s{sA}, 16
        s_add_u32 s38, s{sA}, s{sB}
        s_lshl_b32 s{sD}, s{sCB}, 5
        s_add_u32 s{sD}, s{sD}, s{sRB}
        s_lshl_b32 s{sD}, s{sD}, 7
        s_add_u32 s39, s{sD}, {WS_FXN}
        s_mov_b32 s40, 0xffff0000""")
        rds = []
        for i in range(2):
            for h in range(2):
                for rd in range(2):
                    q = XQ + 8*i + 4*h + 2*rd
                    rds.append(f"ds_read_b64_tr_b16 v[{q}:{q+1}], v{XAD+2*i+rd} offset:{4096*h}")
        work = []
        for i in range(2):
            for k in range(4):
                r0 = XQ + 8*i + k; r1 = r0 + 4; t = T + 4 + (k & 1)
                work += [f"v_mov_b32 v{t}, v{r0}",
                         f"v_mov_b32_dpp v{r0}, v{r1} row_ror:8 row_mask:0xf bank_mask:0xc",
                         f"v_mov_b32_dpp v{r1}, v{t} row_ror:8 row_mask:0xf bank_mask:0x3"]
            for h in range(2):
                q = XQ + 8*i + 4*h
                work.append(f"buffer_store_dwordx4 v[{q}:{q+3}], v{T+8}, {srd(SRD_WS)}, s38 offen sc1\ns_add_u32 s38, s38, 32768")
        return rds, work

    def y_spec(self, hblk):
        e = self.e; T = self.vT; vL = self.vL
        V = 40
        L5 = self.a.newlab("Lc5")
        e(f"s_cmp_eq_u32 s{sCB}, 5\ns_cbranch_scc1 L_end")
        N1 = int(self.o.get("sn1", 2))
        for j in range(1, N1 + 1): hblk(j)
        self.stamp(6)
        e(f"v_add_u32 v{T+7}, 0x10000, v{T+10}")
        for j in range(1, 6):
            Lok = self.a.newlab("Lsv")
            if j == 3:
                e(f"buffer_load_dword v{T+6}, v6, {srd(SRD_WS)}, 0 offen sc1")
                for jj in range(N1 + 1, 6): hblk(jj)
            e(f"s_waitcnt vmcnt({4*((N1 if j < 3 else 5)-j) + (4 if j > 3 else 0)})")
            off = 18432*j
            for i in range(5):
                o = off + 1024*min(i, 4)
                if i < 4: e(f"ds_read_b128 v[{V+4*i}:{V+4*i+3}], v{(T+10, T+7)[o >> 16]} offset:{o & 0xffff}")
                else: e(f"ds_read_b128 v[{V+16}:{V+19}], v{(T+4, T+5)[off >> 16]} offset:{off & 0xffff}")
            e("s_waitcnt lgkmcnt(0)")
            e(f"v_max3_u32 v{V}, v{V}, v{V+1}, v{V+2}")
            for r in range(3, 19, 2): e(f"v_max3_u32 v{V}, v{V}, v{V+r}, v{V+r+1}")
            e(f"""v_max_u32 v{V}, v{V}, v{V+19}
            v_cmp_eq_u32 vcc, -1, v{V}
            s_cbranch_vccz {Lok}
            s_mul_hi_u32 s{sT}, s{self.sBO+j}, {(1 << 32)//18432 + 1}
            s_lshl_b32 exec_lo, 1, s{sT}
            s_mov_b32 exec_hi, 0""")
            self.poll(6, "0", T+3)
            hblk(j)
            e("s_waitcnt vmcnt(0)")
            self.a.lab(Lok)
            if j == 3:
                Ly = self.a.newlab("Lsy")
                e(f"""s_barrier
                s_waitcnt vmcnt(8)
                v_cmp_ne_u32 vcc, s{sTAG}, v{T+6}
                s_and_b32 s{sT}, vcc_lo, 0xffff0000
                s_cbranch_scc0 {Ly}
                s_mov_b32 exec_lo, 0xffff0000
                s_mov_b32 exec_hi, 0""")
                self.poll(6, "0", T+3)
                self.a.lab(Ly)
                e(f"s_add_u32 m0, s{sB}, {YAB}\ns_nop 0")
                for i in range(4):
                    e(f"buffer_load_dwordx4 v{T+8}, {srd(SRD_WS)}, s{sD} offen offset:{1024*i} sc1 lds")
            if j not in (1, 3): e("s_barrier")
        e("s_waitcnt vmcnt(0)\ns_barrier")
        self.stamp(7)
        e("s_branch L_end")

    def y_p3_setup(self):
        e = self.e; T = self.vT; vL = self.vL
        e(f"""s_lshl_b32 s{sD}, s{sRB}, 2
        s_add_u32 s{sD}, s{sD}, s{sW}
        s_lshl_b32 s{sD}, s{sD}, {3+FS}
        s_add_u32 s{sD}, s{sD}, {WS_FH}
        s_lshl_b32 s85, s{sCB}, {FS}
        s_add_u32 s85, s85, s{sD}
        v_min_u32 v6, 5, v{vL}
        v_lshlrev_b32 v6, {FS}, v6
        v_add_u32 v6, s{sD}, v6
        s_min_u32 s{sC}, s{sCB}, 4
        s_mul_i32 s{sA}, s{sC}, 51
        s_lshr_b32 s{sA}, s{sA}, 2
        v_and_b32 v{T+3}, 15, v{vL}
        v_add_u32 v{T+3}, s{sA}, v{T+3}
        v_min_u32 v{T+3}, 63, v{T+3}
        v_lshlrev_b32 v{T+3}, {FS}, v{T+3}
        v_add_u32 v{T+3}, {WS_FY}, v{T+3}
        v_cmp_lt_u32 vcc, 15, v{vL}
        v_cndmask_b32 v6, v6, v{T+3}, vcc
        s_mul_i32 s93, s{sMH}, 9216
        s_mul_i32 s{sA}, s{sNH}, 5120
        s_add_u32 s93, s93, s{sA}
        s_mul_i32 s94, s{sRB}, {6*18432}
        s_add_u32 s94, s94, s93
        s_add_u32 s94, s94, {WS_H}
        s_add_u32 s93, s93, {HB}
        s_mul_i32 s91, s{sRB}, {64*1280}
        s_lshl_b32 s{sA}, s{sC}, 8
        s_add_u32 s91, s91, s{sA}
        s_mul_i32 s{sA}, s{sW}, {16*1280}
        s_add_u32 s91, s91, s{sA}
        s_mul_i32 s{sMASK}, s{sRB}, {640*128}
        s_lshl_b32 s{sA}, s{sC}, 14
        s_add_u32 s{sMASK}, s{sMASK}, s{sA}
        s_lshl_b32 s{sA}, s{sW}, 12
        s_add_u32 s{sMASK}, s{sMASK}, s{sA}
        s_add_u32 s{sMASK}, s{sMASK}, {WS_YA}""")
        for i in range(4):
            e(f"""v_lshrrev_b32 v{T+4}, 4, v{vL}
            v_add_u32 v{T+4}, {4*i}, v{T+4}
            v_and_b32 v{T+5}, 15, v{vL}
            v_xor_b32 v{T+5}, v{T+5}, v{T+4}
            v_mul_u32_u24 v{T+4}, 1280, v{T+4}
            v_lshl_add_u32 v{T+12+i}, v{T+5}, 4, v{T+4}""")
            if i: e(f"v_subrev_u32 v{T+12+i}, {1024*i}, v{T+12+i}")

    def y_path(self):
        e = self.e; T = self.vT; ACC = self.ACC; vL = self.vL; Z1 = self.Z1
        self.a.lab("L_Y")
        if self.o.get("yprio", "1") == "1": e("s_setprio 0")
        self.stamp(0)
        vmw = lambda n: f"s_waitcnt vmcnt({n})"
        e(f"""s_add_u32 s{sWSLOT}, s{sWSLOT}, {2*S1SZ}
        s_add_u32 s{sWSOFF}, s{sWSOFF}, {2*64*3456}""")
        if self.o.get("y23", "1") == "1": self.issue_w()
        e("s_barrier")
        self.stamp(12)
        if self.o.get("y23", "1") != "1": self.issue_w()
        self.issue_w()
        e("s_barrier")
        self.issue_w()
        e(vmw(10))
        L = self.a.newlab("Ly1")
        e(f"s_mov_b32 s{sCNT}, 2")
        self.a.lab(L)
        e("s_barrier")
        self.stampd(12)
        Lc = self.a.newlab("Lcol")
        e(f"""s_cmp_lg_u32 s{sCNT}, 7
        s_cbranch_scc1 {Lc}
        s_sub_u32 s{sWSOFF}, s{sWSOFF}, 1728
        s_sub_u32 s{sWSL}, s{sWSL}, 1728""")
        self.a.lab(Lc)
        self.issue_w()
        e(vmw(10))
        e(f"""s_add_u32 s{sCNT}, s{sCNT}, 1
        s_cmp_lt_u32 s{sCNT}, 10
        s_cbranch_scc1 {L}""")
        self.stamp(1)
        ysetup = self.capture(lambda: (self.blk_offsets(18432), self.y_p3_setup()))
        yflag = []
        if int(self.o.get("hold", 3)) >= 3:
            for l in ysetup: e(l)
            ysetup = []
        e(f"""s_mov_b32 s{sROFF}, {RING1 + 2*S1SZ}
        v_and_b32 v{T}, 15, v{vL}
        v_lshlrev_b32 v{T}, 1, v{T}
        s_lshl_b32 s{sA}, s{sRB}, 7
        s_lshl_b32 s{sB}, s{sMH}, 6
        s_add_u32 s{sA}, s{sA}, s{sB}
        buffer_load_ushort v34, v{T}, {srd(SRD_BSP)}, s{sA} offen
        buffer_load_ushort v36, v{T}, {srd(SRD_BSP)}, s{sA} offen offset:32""")
        tail = self.compute2(10, True, self.p1_reads, self.p1_addr, "p1b", vmwait=True, first=(ysetup, yflag))
        for m in tail: e(m)
        e("s_barrier")
        self.stamp(2)
        for i in range(0, 20, 4):
            if i == 16: e(f"s_cmp_eq_u32 s{sNH}, 1\ns_cbranch_scc1 L_g4")
            self.rr([self.gelu_list(ACC + 2*(i+k), T + 2*k, T + 8 + 2*(k >> 1), packed=Z1 + 2*(i + k)) for k in range(4)])
        self.a.lab("L_g4")
        e(f"""v_lshlrev_b32 v34, 16, v34
        v_lshlrev_b32 v36, 16, v36
        v_mov_b32 v35, v34
        v_mov_b32 v37, v36
        v_lshlrev_b32 v{self.vWB4}, 4, v{vL}
        s_mul_i32 s{sA}, s{sNH}, 5120
        v_add_u32 v{self.vWB}, s{sA}, v{self.vWB4}
        v_add_u32 v{self.vWB4}, 4096, v{self.vWB4}
        v_add_u32 v{self.vX0}, {ABASE}, v{self.vX0}
        v_add_u32 v{self.vX1}, {ABASE}, v{self.vX1}
        s_mov_b32 s{sROFF}, {BRING}
        s_mov_b32 s{sXOFF}, 0""")
        e("s_waitcnt vmcnt(12)")
        if self.o.get("dgem"): e(f"s_sleep {self.o['dgem']}")
        self.stamp(3)
        ZD = int(self.o.get("zd", 0))
        e(f"""v_min_u32 v4, 8, v{vL}
        v_lshlrev_b32 v4, 7, v4
        s_and_b32 s{sA}, s{sRB}, 7
        s_lshl_b32 s{sA}, s{sA}, 2
        s_add_u32 s{sA}, s{sA}, s{sW}
        s_mul_i32 s{sWSL}, s{sA}, {9*128}
        s_mul_i32 s{sC}, s{sCB}, {32*18432}
        s_add_u32 s{sWSL}, s{sWSL}, s{sC}
        s_add_u32 s{sWSL}, s{sWSL}, {WS_Z2 + ZD*18432}
        s_min_u32 s{sC}, s{sCB}, 4
        s_mul_i32 s{sC}, s{sC}, {8*27*1024}
        s_mul_i32 s{sA}, s{sA}, {54*128}
        s_add_u32 s{sW0}, s{sC}, s{sA}
        s_add_u32 s{sW0}, s{sW0}, {WS_WOT}
        v_min_u32 v7, 53, v{vL}
        v_lshlrev_b32 v7, 7, v7""")
        def ztouch():
            if ZD:
                Lz = self.a.newlab("Lzt")
                e(f"""s_cmp_le_u32 s{sCNT}, {(ZD-2)//2}
                s_cbranch_scc1 {Lz}
                buffer_load_dword v5, v4, {srd(SRD_WS)}, s{sWSL} offen sc1
                s_add_u32 s{sWSL}, s{sWSL}, {2*18432}""")
                self.a.lab(Lz)
            if self.o.get("ywt"):
                Lw = self.a.newlab("Lwt")
                e(f"s_cmp_lg_u32 s{sCNT}, 6\ns_cbranch_scc1 {Lw}\nbuffer_load_dword v5, v7, {srd(SRD_WS)}, s{sW0} offen sc1")
                self.a.lab(Lw)
        e(f"""v_lshlrev_b32 v{T+8}, 4, v{vL}
        v_lshlrev_b32 v{T+9}, 3, v{vL}
        s_mul_i32 s{sA}, s{sRB}, 6
        s_add_u32 s{sA}, s{sA}, s{sCB}
        s_mul_i32 s{sA}, s{sA}, 18432
        s_mul_i32 s{sC}, s{sMH}, 9216
        s_mul_i32 s{sD}, s{sNH}, 5120
        s_add_u32 s{sC}, s{sC}, s{sD}
        s_add_u32 s{sA}, s{sA}, s{sC}
        s_add_u32 s{sA}, s{sA}, {WS_H}
        s_add_u32 s{sC}, s{sC}, {HB}
        v_add_u32 v{T+10}, s{sC}, v{T+8}
        v_add_u32 v{T+11}, s{sC}, v{T+9}
        s_add_u32 s{sC}, s{sA}, 4096""")
        if self.o.get("nhs", "1") == "1":
            e(f"s_cmp_eq_u32 s{sNH}, 0\ns_cbranch_scc1 L_p2five")
            self.NJ = 4
            self.compute_loop(32, True, self.p2_reads, self.p2_addr, "p2", mid=ztouch, peel="s_waitcnt vmcnt(0)")
            self.NJ = 5
            e("s_branch L_p2join")
            self.a.lab("L_p2five")
        tail = self.compute_loop(32, True, self.p2_reads, self.p2_addr, "p2", mid=ztouch, peel="s_waitcnt vmcnt(0)")
        if self.o.get("nhs", "1") == "1": self.a.lab("L_p2join")
        e("s_barrier")
        tl = {}
        for k, m in enumerate(tail): tl.setdefault((k % 10) // 2, []).append(m)
        HQ = 40
        Ls = self.a.newlab("Lh4")
        tc = [0]
        def hval(j, a, h, d):
            r = ACC + 4*(2*j + a) + 2*h; z = Z1 + 4*(2*j + a) + 2*h; b = 34 + 2*a
            return [f"v_pk_add_f32 v[{r}:{r+1}], v[{r}:{r+1}], v[{b}:{b+1}]",
            f"v_pk_mul_f32 v[{r}:{r+1}], v[{r}:{r+1}], v[{z}:{z+1}]",
            f"v_cvt_pk_bf16_f32 v{d}, v{r}, v{r+1}"]
        for m in tl[0] + tl[1] + tl[2][:2]: e(m)
        rest = tl[2][2:] + tl[3] + tl[4]
        for p in range(2):
            for a in range(2):
                q = HQ + 4*(2*p + a)
                ops = []
                hv = [hval(2*p + jj, a, h, q + 2*jj + h) for jj in range(2) for h in range(2)]
                for i in range(3): ops += [l[i] for l in hv]
                if p == 0:
                    ms = rest[5*a:5*a+5]
                    for i, o in enumerate(ops):
                        if i % 2 == 0 and ms: e(ms.pop(0))
                        e(o)
                else:
                    for o in ops: e(o)
                e(f"buffer_store_dwordx4 v[{q}:{q+3}], v{T+8}, {srd(SRD_WS)}, s{sA} offen offset:{1024*(2*p+a)} sc1")
                e(f"ds_write_b128 v{T+10}, v[{q}:{q+3}] offset:{1024*(2*p+a)}")
        self.stamp(4)
        e(f"s_cmp_eq_u32 s{sNH}, 1\ns_cbranch_scc1 {Ls}")
        self.rr([hval(4, a, h, HQ + 16 + 2*a + h) for a in range(2) for h in range(2)])
        for a in range(2):
            q = HQ + 16 + 2*a
            e(f"buffer_store_dwordx2 v[{q}:{q+1}], v{T+9}, {srd(SRD_WS)}, s{sC} offen offset:{512*a} sc1")
            e(f"ds_write_b64 v{T+11}, v[{q}:{q+1}] offset:{4096 + 512*a}")
        self.a.lab(Ls)
        e("s_waitcnt lgkmcnt(0)\ns_barrier")
        e(f"s_lshl_b32 s{sB}, s{sW}, 12\ns_mov_b32 s{sD}, s{sMASK}")
        e(f"s_add_u32 m0, s{sB}, {XB}\ns_nop 0")
        for i in range(4):
            e(f"buffer_load_dwordx4 v{T+12+i}, {srd(SRD_X)}, s91 offen offset:{1024*i} lds")
        e("s_waitcnt vmcnt(4)")
        self.flag_store(85, T)
        if self.o.get("spec", "0") == "1":
            e(f"""s_lshl_b32 s{sT}, s{sNH}, 10
            s_sub_u32 s{sT}, 4096, s{sT}
            v_add_u32 v{T+4}, s{sT}, v{T+10}
            v_add_u32 v{T+5}, 0x10000, v{T+4}""")
        elif self.o.get("selft", "1") == "1":
            e(f"""s_lshl_b32 s{sT}, s{sNH}, 3
            s_sub_u32 s{sT}, 39, s{sT}
            v_min_u32 v{T+4}, s{sT}, v{vL}
            v_lshlrev_b32 v{T+4}, 7, v{T+4}
            buffer_load_dword v{T+5}, v{T+4}, {srd(SRD_WS)}, s{sA} offen sc1""")
        self.stamp(5)
        def hblk(j):
            Lk = self.a.newlab("Lhk")
            e(f"s_add_u32 m0, s93, {18432*j}\ns_add_u32 s{sT}, s94, s{self.sBO+j}")
            for i in range(4):
                e(f"buffer_load_dwordx4 v{T+8}, {srd(SRD_WS)}, s{sT} offen offset:{1024*i} sc1 lds")
            e(f"""s_cmp_eq_u32 s{sNH}, 1
            s_cbranch_scc1 {Lk}
            s_add_u32 m0, m0, 4096
            s_add_u32 s{sT}, s{sT}, 4096
            buffer_load_dwordx4 v{T+8}, {srd(SRD_WS)}, s{sT} offen sc1 lds""")
            self.a.lab(Lk)
        if self.o.get("spec", "0") == "1":
            self.y_spec(hblk); return
        L5 = self.a.newlab("Lc5"); Lall = self.a.newlab("Lhall"); Lok = self.a.newlab("Lhok"); Lj = self.a.newlab("Lhj")
        e(f"""s_waitcnt vmcnt(1)
        s_cmp_eq_u32 s{sCB}, 5
        s_cbranch_scc1 {L5}
        buffer_load_dword v{T+3}, v6, {srd(SRD_WS)}, 0 offen sc1
        s_and_b32 s{sT}, s2, 1
        s_mul_i32 s{sT}, s{sT}, 3
        s_lshl_b32 s{sT2}, 7, s{sT}
        s_waitcnt vmcnt(0)
        v_cmp_ne_u32 vcc, s{sTAG}, v{T+3}
        s_cbranch_vccz {Lall}
        s_and_b32 s{sT}, vcc_lo, s{sT2}
        s_cbranch_scc0 {Lj}
        s_mov_b32 exec_lo, s{sT2}
        s_mov_b32 exec_hi, 0""")
        self.poll(6, "0", T+3)
        self.a.lab(Lj)
        self.stamp(6)
        hblk(1); hblk(2)
        e(f"""buffer_load_dword v{T+3}, v6, {srd(SRD_WS)}, 0 offen sc1
        s_waitcnt vmcnt(0)
        s_barrier
        v_cmp_ne_u32 vcc, s{sTAG}, v{T+3}
        s_cbranch_vccz {Lok}""")
        self.a.lab(L5)
        self.poll(6, "0", T+3)
        self.a.lab(Lok)
        self.stamp(8)
        hblk(3)
        e(f"s_cmp_eq_u32 s{sCB}, 5\ns_cbranch_scc1 L_end")
        hblk(4); hblk(5)
        e(f"s_add_u32 m0, s{sB}, {YAB}\ns_nop 0")
        for i in range(4):
            e(f"buffer_load_dwordx4 v{T+8}, {srd(SRD_WS)}, s{sD} offen offset:{1024*i} sc1 lds")
        for n in (12, 8, 0):
            e(f"s_waitcnt vmcnt({n})\ns_barrier")
        self.stamp(7)
        e("s_branch L_end")
        self.a.lab(Lall)
        self.stamp(6)
        hblk(1); hblk(2); hblk(3)
        e("s_waitcnt vmcnt(4)\ns_barrier")
        hblk(4); hblk(5)
        e(f"s_add_u32 m0, s{sB}, {YAB}\ns_nop 0")
        for i in range(4):
            e(f"buffer_load_dwordx4 v{T+8}, {srd(SRD_WS)}, s{sD} offen offset:{1024*i} sc1 lds")
        for n in (12, 8, 0):
            e(f"s_waitcnt vmcnt({n})\ns_barrier")
        self.stamp(7)
        e("s_branch L_end")

    def build(self):
        from ssm import ssm_path
        self.entry()
        self.inpro = True
        self.gemm_prologue()
        self.inpro = False
        self.x_path()
        self.y_path()
        self.a.lab("L_ssm")
        if self.o.get("nossm"):
            self.e("s_branch L_end")
        else:
            self.inssm = True
            ssm_path(self)
            self.inssm = False
        self.a.lab("L_end")
        if self.o.get("stamps"):
            self.e(f"""s_mov_b64 exec, -1
            s_waitcnt vmcnt(0)
            s_memrealtime s[{sTM}:{sTM+1}]
            s_waitcnt lgkmcnt(0)
            v_writelane_b32 v0, s100, 62
            v_writelane_b32 v0, s{sTM}, 63
            s_lshl_b32 s{sTM}, s2, 3
            s_add_u32 s{sTM}, s{sTM}, s{sWAVE}
            s_lshl_b32 s{sTM}, s{sTM}, 8
            s_add_u32 s{sTM}, s{sTM}, {WS_DBG}
            v_lshlrev_b32 v2, 2, v1
            buffer_store_dword v0, v2, {srd(SRD_WS)}, s{sTM} offen""")
        self.e("s_endpgm")
        self.a.lab("L_exit")
        self.e("s_endpgm")
        body = self.a.finalize()
        if self.o.get("align", "1") == "1":
            from asmlib import align_pass
            body = align_pass(body, KNAME, extra="L_gtab:\nL_tabend:\n")
        hdr = open("parallel_sum__ssm_conv_s4d__mixer_gmlp__prompt.s.ref").read().split("; Override launch")[0]
        s = hdr + "; @launch grid=(256,1,1) block=(512,1,1) lds=163840\n"
        s += f'.amdgcn_target "amdgcn-amd-amdhsa--gfx950"\n.text\n.globl {KNAME}\n.p2align 8\n.type {KNAME},@function\n{KNAME}:\n'
        s += body
        from ssm import gtab
        t = gtab()
        s += ".p2align 8\n.type L_gtab,@object\nL_gtab:\n"
        for i in range(0, len(t), 16): s += ".long " + ", ".join(str(v) for v in t[i:i+16]) + "\n"
        s += "L_tabend:\n"
        s += f""".section .rodata,"a"
.p2align 6
.amdhsa_kernel {KNAME}
  .amdhsa_next_free_vgpr 256
  .amdhsa_next_free_sgpr 102
  .amdhsa_accum_offset 256
  .amdhsa_group_segment_fixed_size 0
  .amdhsa_kernarg_size 120
  .amdhsa_user_sgpr_count 2
  .amdhsa_user_sgpr_kernarg_segment_ptr 1
  .amdhsa_system_sgpr_workgroup_id_x 1
.end_amdhsa_kernel
"""
        return s

if __name__ == "__main__":
    opts = {}
    out = "parallel_sum__ssm_conv_s4d__mixer_gmlp__prompt.s"
    for a in sys.argv[1:]:
        if a.startswith("-o"): out = a[2:]
        elif "=" in a:
            k, v = a.split("="); opts[k] = v
        else: opts[a] = True
    open(out, "w").write(G(opts).build())
```
